```python
import torch

def _softmax(x, axis=-1):
    return torch.softmax(x, dim=axis)
def _gelu(x):
    return torch.nn.functional.gelu(x, approximate="tanh")
def _silu(x):
    return torch.nn.functional.silu(x)
def _sigmoid(x):
    return torch.sigmoid(x)
def _layernorm(x, axis=-1, eps=1e-5):
    m = x.mean(dim=axis, keepdim=True)
    v = x.var(dim=axis, keepdim=True, unbiased=False)
    return (x - m) / torch.sqrt(v + eps)
def _scatter_add(tgt, idx, src, axis=0):
    return tgt.clone().index_add_(axis, idx, src)
def _segment_sum(src, seg, n):
    out = torch.zeros((n,) + src.shape[1:], dtype=src.dtype)
    return out.index_add_(0, seg, src)
def _pad(x, pw):
    flat = tuple(v for pair in reversed(pw) for v in pair)
    return torch.nn.functional.pad(x, flat)

kernel_name = 'gated_mix__ssm_conv_h3__compressed_kv_cla__prompt'

def setup_inputs():

    _w = (lambda a: (lambda t: t.to(torch.bfloat16) if t.is_floating_point() else t)(torch.as_tensor(a)))
    def _A_setup():
        B, S, D = 1, 2048, 1024
        ks = 4
        return {
            "q": _w((lambda *s: torch.randn(*s, dtype=torch.bfloat16) * 0.05)(B, S, D)),
            "k": _w((lambda *s: torch.randn(*s, dtype=torch.bfloat16) * 0.4)(B, S, D)),
            "v": _w((lambda *s: torch.randn(*s, dtype=torch.bfloat16) * 0.4)(B, S, D)),
            "shift_k": _w((lambda *s: torch.randn(*s, dtype=torch.bfloat16) * 0.4)(D, ks) * 0.5),
            "ssm_k": _w((lambda *s: torch.randn(*s, dtype=torch.bfloat16) * 0.8)(D, S) * (1.0 / S ** 0.5)),
            "ssm_D": _w((lambda *s: torch.randn(*s, dtype=torch.bfloat16) * 0.4)(D)),
        }
    _A_in = _A_setup()

    def _B_setup():
        B, H, Sq, Sk, D, M = 1, 32, 2048, 2048, 128, 1024
        Dc = 4 * D
        return {
            "x": _w((lambda *s: torch.randn(*s, dtype=torch.bfloat16) * 0.05)(B, Sq, M)),
            "c_kv": _w((lambda *s: torch.randn(*s, dtype=torch.bfloat16) * 0.4)(B, Sk, Dc)),
            "w_q": _w((lambda *s: torch.randn(*s, dtype=torch.bfloat16) * 6.4)(M, H, D) * (M ** -0.5)),
            "w_uk": _w((lambda *s: torch.randn(*s, dtype=torch.bfloat16) * 6.4)(Dc, H, D) * (Dc ** -0.5)),
            "w_uv": _w((lambda *s: torch.randn(*s, dtype=torch.bfloat16) * 0.4)(Dc, H, D) * (Dc ** -0.5)),
            "w_o": _w((lambda *s: torch.randn(*s, dtype=torch.bfloat16) * 0.4)(H, D, M) * ((H * D) ** -0.5)),
        }
    _B_in = _B_setup()

    return {
        "A_q": _A_in["q"],
        "A_k": _A_in["k"],
        "A_v": _A_in["v"],
        "A_shift_k": _A_in["shift_k"],
        "A_ssm_k": _A_in["ssm_k"],
        "A_ssm_D": _A_in["ssm_D"],
        "B_x": _B_in["x"],
        "B_c_kv": _B_in["c_kv"],
        "B_w_q": _B_in["w_q"],
        "B_w_uk": _B_in["w_uk"],
        "B_w_uv": _B_in["w_uv"],
        "B_w_o": _B_in["w_o"],
        "gate_w": _w((lambda *s: torch.randn(*s, dtype=torch.bfloat16) * 0.05)(1024) * 16.0),
    }

def reference(A_q, A_k, A_v, A_shift_k, A_ssm_k, A_ssm_D, B_x, B_c_kv, B_w_q, B_w_uk, B_w_uv, B_w_o, gate_w):
    def _A_ref(q, k, v, shift_k, ssm_k, ssm_D):
        B, S, D = q.shape
        ks = shift_k.shape[-1]
        k_pad = _pad(k, ((0, 0), (ks - 1, 0), (0, 0)))
        k_shift = torch.zeros_like(k)
        for t in range(ks):
            k_shift = k_shift + k_pad[:, t:t + S, :] * shift_k[:, ks - 1 - t][None, None, :]
        kv = k_shift * v
        L = 2 * S
        kv_pad = _pad(kv, ((0, 0), (0, S), (0, 0)))
        kf_pad = _pad(ssm_k, ((0, 0), (0, S)))
        kv_f = (lambda x, axes=(-2,-1): torch.fft.rfft2(x.float(), dim=axes))(kv_pad[:, None, :, :], axes=(1, 2))
        kf_f = (lambda x, axes=(-2,-1): torch.fft.rfft2(x.float(), dim=axes))(kf_pad[:, None, :], axes=(1, 2))
        kf_f = (lambda x, *d: x.permute(*d))(kf_f, 1, 2, 0)
        y_f = kv_f * kf_f[None, :, :, :]
        y = (lambda x, s, axes=(-2,-1): torch.fft.irfft2(x, s=s, dim=axes).to(torch.bfloat16))(y_f, (1, L), axes=(1, 2))[:, 0, :S, :]
        y = y + kv * ssm_D[None, None, :]
        return q * y

    def _B_ref(x, c_kv, w_q, w_uk, w_uv, w_o):
        B, Sq, M = x.shape[0], x.shape[1], x.shape[2]
        Sk = c_kv.shape[1]
        H, D = w_q.shape[1], w_q.shape[2]
        q = torch.einsum("bqm,mhd->bhqd", x, w_q)
        k = torch.einsum("bkc,chd->bhkd", c_kv, w_uk)
        v = torch.einsum("bkc,chd->bhkd", c_kv, w_uv)
        scores = torch.einsum("bhqd,bhkd->bhqk", q, k) * (D ** -0.5)
        off = Sk - Sq
        qi = torch.arange(Sq)[:, None]
        kj = torch.arange(Sk)[None, :]
        cmask = kj <= (qi + off)
        scores = torch.where(cmask[None, None], scores, -1e9)
        p = _softmax(scores, axis=-1)
        ctx = torch.einsum("bhqk,bhkd->bhqd", p, v)
        return torch.einsum("bhqd,hdm->bqm", ctx, w_o)

    x = A_q
    g = _sigmoid((x * gate_w).sum(-1, keepdims=True))
    a = _A_ref(x, A_k, A_v, A_shift_k, A_ssm_k, A_ssm_D)
    b = _B_ref(x, B_c_kv, B_w_q, B_w_uk, B_w_uv, B_w_o)
    return g * a + (1 - g) * b
```

```python
import re

REG_RE = re.compile(r"^(-|abs\()?([vas])(?:\[(\d+):(\d+)\]|(\d+))\)?$")


def parse_reg(tok):
    tok = tok.strip()
    if tok in ("vcc", "exec", "m0", "scc"):
        return [tok]
    if tok in ("vcc_lo", "vcc_hi"):
        return ["vcc"]
    if tok in ("exec_lo", "exec_hi"):
        return ["exec"]
    m = REG_RE.match(tok)
    if not m:
        return []
    k = m.group(2)
    if m.group(3) is not None:
        return [f"{k}{i}" for i in range(int(m.group(3)), int(m.group(4)) + 1)]
    return [f"{k}{m.group(5)}"]


TRANS = ("v_exp_f32", "v_log_f32", "v_rcp_f32", "v_rsq_f32", "v_sqrt_f32", "v_sin_f32", "v_cos_f32")


class I:
    def __init__(self, text, tag=None):
        self.text = text.strip()
        self.tag = tag
        self.pre_lgkm = None
        self.pre_vm = None
        self.pre_nop = 0
        t = self.text.split(";")[0].strip()
        self.is_label = t.endswith(":")
        self.is_dir = t.startswith(".") or t == ""
        self.op = ""
        self.reads, self.writes = [], []
        self.kind = "none"
        if self.is_label or self.is_dir:
            return
        parts = t.split(None, 1)
        self.op = op = parts[0]
        rest = parts[1] if len(parts) > 1 else ""
        ops = [x.strip() for x in rest.split(",")] if rest else []
        mods = []
        if ops:
            last = ops[-1].split()
            ops[-1] = last[0]
            mods = last[1:]
        self.ops, self.mods = ops, mods
        R = lambda i: parse_reg(ops[i]) if i < len(ops) else []
        allr = lambda a: [r for i in range(a, len(ops)) for r in R(i)]
        if op.startswith("v_mfma"):
            self.kind = "mfma"
            self.writes = R(0)
            self.srcA, self.srcB, self.srcC = R(1), R(2), R(3)
            self.reads = self.srcA + self.srcB + self.srcC
            self.passes = 8 if "32x32" in op else 4
        elif op.startswith("ds_read"):
            self.kind = "dsr"
            self.writes = R(0)
            self.reads = R(1)
        elif op.startswith("ds_write"):
            self.kind = "dsw"
            self.reads = allr(0)
        elif op.startswith("ds_bpermute") or op.startswith("ds_swizzle"):
            self.kind = "dsr"
            self.writes = R(0)
            self.reads = allr(1)
        elif op.startswith("buffer_load") or op.startswith("global_load"):
            if "lds" in mods:
                self.kind = "dma"
                self.reads = allr(0) + ["m0"]
            else:
                self.kind = "vld"
                self.writes = R(0)
                self.reads = allr(1)
        elif op.startswith("buffer_store") or op.startswith("global_store"):
            self.kind = "vst"
            self.reads = allr(0)
            self.wide = op.endswith("x4") or op.endswith("x3")
            self.data = R(0) if op.startswith("buffer") else R(1)
        elif op.startswith("buffer_atomic") or op.startswith("global_atomic"):
            self.kind = "vst"
            self.reads = allr(0)
            self.wide = False
            self.data = []
            if "sc0" in mods:
                self.kind = "vld"
                self.writes = R(0)
        elif op.startswith("buffer_wbl2") or op.startswith("buffer_inv"):
            self.kind = "vst"
            self.wide = False
            self.data = []
        elif op.startswith("v_"):
            self.kind = "valu"
            self.writes = R(0)
            self.reads = allr(1)
            if op.startswith("v_cmp"):
                pass
            elif op.startswith("v_fmac") or op.startswith("v_dot2c") or op.startswith("v_writelane"):
                self.reads += R(0)
            elif op.startswith("v_permlane") and "swap" in op:
                self.reads = R(0) + R(1)
                self.writes = R(0) + R(1)
            elif op.startswith("v_cndmask") and len(ops) == 3:
                self.reads += ["vcc"]
            elif op.startswith("v_add_co") or op.startswith("v_addc_co") or op.startswith("v_sub_co"):
                self.writes = R(0) + R(1)
                self.reads = allr(2)
            if any(m.startswith("row_") or m.startswith("quad_perm") or m.startswith("wave_") for m in mods):
                self.dpp = True
                self.reads += R(0)
            self.trans = op.replace("_e32", "").replace("_e64", "") in TRANS
        elif op == "s_waitcnt":
            self.kind = "wait"
        elif op == "s_nop":
            self.kind = "nop"
            self.n = int(ops[0], 0) + 1
        elif op.startswith("s_load") or op.startswith("s_mem"):
            self.kind = "smem"
            self.writes = R(0)
            self.reads = allr(1)
        elif op.startswith("s_cmp") or op.startswith("s_bitcmp"):
            self.kind = "salu"
            self.reads = allr(0)
        elif op.startswith("s_cbranch") or op in ("s_branch", "s_barrier", "s_endpgm", "s_setprio", "s_sleep",
                                                   "s_setpc_b64"):
            self.kind = "ctl"
            if "vcc" in op:
                self.reads = ["vcc"]
        elif op.startswith("s_"):
            self.kind = "salu"
            self.writes = R(0)
            self.reads = allr(1)
        else:
            raise ValueError("unknown op " + text)

    def emit(self):
        out = []
        w = []
        if self.pre_vm is not None:
            w.append(f"vmcnt({self.pre_vm})")
        if self.pre_lgkm is not None:
            w.append(f"lgkmcnt({self.pre_lgkm})")
        if w:
            out.append("s_waitcnt " + " ".join(w))
        n = self.pre_nop
        while n > 0:
            k = min(n, 16)
            out.append(f"s_nop {k-1}")
            n -= k
        out.append(self.text if (self.is_label or self.is_dir) else "  " + self.text)
        return out


class Seg(list):
    def __call__(self, text, tag=None):
        for line in text.split("\n"):
            line = line.strip()
            if line:
                self.append(I(line, tag))
        return self

    def add(self, items):
        for x in items:
            if isinstance(x, str):
                self(x)
            else:
                self.append(x)
        return self


def mk(items):
    s = Seg()
    s.add(items)
    return list(s)


def interleave(mf, gaps, head=()):
    s = Seg()
    s.add(head)
    for m, g in zip(mf, gaps):
        s.add([m])
        s.add(g)
    return s


def spread(gaps, items, lo, hi):
    n = len(items)
    if n == 0:
        return
    span = hi - lo
    for k, it in enumerate(items):
        g = lo + (k * span) // n
        if isinstance(it, (list, tuple)):
            gaps[g].extend(it)
        else:
            gaps[g].append(it)


WAIT_RE = re.compile(r"(vmcnt|lgkmcnt)\((\d+)\)")


def _walk_waits(trace, fix):
    lg, vm = [], []
    changes = 0
    for ins in trace:
        if ins.is_label or ins.is_dir:
            continue
        if ins.pre_lgkm is not None:
            lg = lg[len(lg) - ins.pre_lgkm:] if ins.pre_lgkm < len(lg) else lg
            if ins.pre_lgkm == 0:
                lg = []
        if ins.pre_vm is not None:
            vm = vm[len(vm) - ins.pre_vm:] if ins.pre_vm < len(vm) else vm
            if ins.pre_vm == 0:
                vm = []
        if ins.kind == "wait":
            for c, n in WAIT_RE.findall(ins.text):
                n = int(n)
                if c == "lgkmcnt":
                    lg = lg[len(lg) - n:] if 0 < n < len(lg) else ([] if n == 0 else lg)
                else:
                    vm = vm[len(vm) - n:] if 0 < n < len(vm) else ([] if n == 0 else vm)
            continue
        touched = set(ins.reads) | set(ins.writes)
        for name, q in (("lg", lg), ("vm", vm)):
            last = -1
            for k, e in enumerate(q):
                if e & touched:
                    if (name == "lg" and ins.kind == "dsr" or name == "vm" and ins.kind == "vld") and \
                            not (e & set(ins.reads)):
                        continue
                    last = k
            if last >= 0:
                n = len(q) - 1 - last
                changes += 1
                if not fix:
                    raise RuntimeError(f"missing wait before {ins.text}")
                if name == "lg":
                    n = min(n, 15)
                    ins.pre_lgkm = n if ins.pre_lgkm is None else min(ins.pre_lgkm, n)
                    lg = lg[len(lg) - n:] if n else []
                else:
                    n = min(n, 63)
                    ins.pre_vm = n if ins.pre_vm is None else min(ins.pre_vm, n)
                    vm = vm[len(vm) - n:] if n else []
        if ins.kind == "dsr":
            lg.append(set(ins.writes))
        elif ins.kind == "dsw":
            lg.append(set())
        elif ins.kind == "smem":
            lg.append(set(ins.writes))
            lg.append(set(ins.writes))
        elif ins.kind == "vld":
            vm.append(set(ins.writes))
        elif ins.kind in ("dma", "vst"):
            vm.append(set())
    return changes


def _need(prod, cons):
    need = 0
    pw, cr, cw = set(prod.writes), set(cons.reads), set(cons.writes)
    if prod.kind == "valu":
        vw = {r for r in pw if r[0] in "va" and r != "vcc"}
        sw = pw - vw
        if cons.kind == "mfma" and vw & cr:
            need = max(need, 2)
        if cons.kind == "valu":
            if getattr(prod, "trans", False) and not getattr(cons, "trans", False) and vw & cr:
                need = max(need, 1)
            if (cons.op.startswith("v_readfirstlane") or cons.op.startswith("v_readlane")) and vw & cr:
                need = max(need, 1)
            if cons.op.startswith("v_permlane") and vw & cr:
                need = max(need, 2)
            if getattr(cons, "dpp", False) and vw & cr:
                need = max(need, 2)
            if sw & cr:
                need = max(need, 2)
                if cons.op.startswith("v_readlane") or cons.op.startswith("v_writelane"):
                    need = max(need, 4)
        if cons.kind in ("vld", "vst", "dma") and sw & cr:
            need = max(need, 5)
        if cons.kind in ("salu",) and sw & cr:
            need = max(need, 1)
    elif prod.kind == "mfma":
        p8 = prod.passes == 8
        if cons.kind == "mfma":
            if pw & (set(cons.srcA) | set(cons.srcB)):
                need = max(need, 12 if p8 else 8)
            if pw & set(cons.srcC):
                if not (prod.writes == cons.srcC and prod.passes == cons.passes):
                    need = max(need, 10 if p8 else 6)
            elif pw & cw:
                need = max(need, 10 if p8 else 6)
        elif cons.kind in ("valu", "vld", "vst", "dma", "dsr", "dsw"):
            if pw & (cr | cw):
                need = max(need, 12 if p8 else 8)
            if cons.kind == "valu" and set(prod.srcC) & cw:
                need = max(need, 7 if p8 else 3)
    elif prod.kind == "salu":
        if "m0" in pw and cons.kind == "dma":
            need = max(need, 1)
    elif prod.kind == "vst":
        if getattr(prod, "wide", False) and cons.kind in ("valu", "mfma", "dsr", "vld") and set(prod.data) & cw:
            need = max(need, 2)
    return need


def _walk_hazards(trace, fix, log):
    hist = []
    pos = 0
    changes = 0
    for ins in trace:
        if ins.is_label or ins.is_dir:
            continue
        extra = ins.pre_nop + (1 if (ins.pre_lgkm is not None or ins.pre_vm is not None) else 0)
        p = pos + extra
        short = 0
        for prod, ppos in hist[-24:]:
            n = _need(prod, ins)
            if n and p - ppos < n:
                short = max(short, n - (p - ppos))
                if log is not None:
                    log.append(f"pad {n-(p-ppos)} : {prod.text}  ->  {ins.text}")
        if short:
            changes += 1
            if not fix:
                raise RuntimeError("hazard before " + ins.text)
            ins.pre_nop += short
            p += short
        pos = p + (ins.n if ins.kind == "nop" else 1)
        hist.append((ins, pos))
    return changes


def resolve(traces, verbose=True):
    flat = [[i for seg in t for i in seg] for t in traces]
    for _ in range(20):
        if sum(_walk_waits(t, True) for t in flat) == 0:
            break
    log = []
    for _ in range(20):
        if sum(_walk_hazards(t, True, log) for t in flat) == 0:
            break
    for t in flat:
        _walk_waits(t, False)
        _walk_hazards(t, False, None)
    if verbose and log:
        seen = []
        for l in log:
            if l not in seen:
                seen.append(l)
        for l in seen[:40]:
            print(";   " + l)


def text_of(segs):
    out = []
    for s in segs:
        for i in s:
            out += i.emit()
    return "\n".join(out) + "\n"
```

```python
from asmlib import *

KA_Q, KA_K, KA_V, KA_SHIFT, KA_SSMK, KA_SSMD, KA_BX, KA_C, KA_WQ, KA_WUK, KA_WUV, KA_WO, KA_GW, KA_OUT, KA_DBG, KA_WS = \
    [8 * i for i in range(16)]

MB = 1 << 20
WS_KF = 0
WS_VF = 16 * MB
WS_CTX = 32 * MB
WS_UR = 48 * MB
WS_Y4 = 52 * MB
WS_G = 56 * MB
WS_FLAG = 57 * MB

SCALE_K = 0x3e0293ee
import struct, math
assert struct.unpack("<I", struct.pack("<f", math.log2(math.e) / math.sqrt(128.0)))[0] == SCALE_K


def vr(b, n=1):
    return f"v{b}" if n == 1 else f"v[{b}:{b+n-1}]"


def ar(b, n=1):
    return f"a{b}" if n == 1 else f"a[{b}:{b+n-1}]"


def sr(b, n=1):
    return f"s{b}" if n == 1 else f"s[{b}:{b+n-1}]"


def srd(S, d, ptr, nbytes, off=None):
    if off is None:
        S(f"s_mov_b32 s{d}, s{ptr}\ns_mov_b32 s{d+1}, s{ptr+1}")
    else:
        S(f"s_add_u32 s{d}, s{ptr}, {off}\ns_addc_u32 s{d+1}, s{ptr+1}, 0")
    S(f"s_mov_b32 s{d+2}, {nbytes}\ns_mov_b32 s{d+3}, 0x20000")


def mfma16(d, a, b, c=None):
    return f"v_mfma_f32_16x16x32_bf16 {d}, {a}, {b}, {d if c is None else c}"


def mfma32(d, a, b, c=None):
    return f"v_mfma_f32_32x32x16_bf16 {d}, {a}, {b}, {d if c is None else c}"


def kernel_header(name):
    return f".globl {name}\n.p2align 8\n.type {name},@function\n{name}:"


def kernel_desc(name, vgpr=512, accum=256, sgpr=102):
    return (f'.section .rodata,"a"\n.p2align 6\n.amdhsa_kernel {name}\n'
            f"  .amdhsa_next_free_vgpr {vgpr}\n  .amdhsa_next_free_sgpr {sgpr}\n  .amdhsa_accum_offset {accum}\n"
            "  .amdhsa_group_segment_fixed_size 0\n  .amdhsa_kernarg_size 128\n  .amdhsa_user_sgpr_count 2\n"
            "  .amdhsa_user_sgpr_kernarg_segment_ptr 1\n  .amdhsa_system_sgpr_workgroup_id_x 1\n"
            "  .amdhsa_float_denorm_mode_32 3\n"
            ".end_amdhsa_kernel\n.text\n")


import os
DIAG = bool(os.environ.get("DIAG"))
WS_DIAG = 64 * MB


class Stamps:
    def __init__(self, base, tmp, region):
        self.base, self.tmp, self.region, self.n = base, tmp, region, 0

    def __call__(self, S):
        if not DIAG:
            return
        t = self.tmp
        S(f"s_memtime s[{t}:{t+1}]\ns_memrealtime s[{t+2}:{t+3}]\ns_waitcnt lgkmcnt(0)")
        S(f"s_mov_b32 s{self.base+2*self.n}, s{t}\ns_mov_b32 s{self.base+2*self.n+1}, s{t+2}")
        self.n += 1

    def dump(self, S, wsptr, wave_sgpr):
        if not DIAG:
            return
        t = self.tmp
        S("s_waitcnt vmcnt(0)")
        self(S)
        srd(S, t, wsptr, MB, off=WS_DIAG + self.region * MB)
        S(f"s_lshl_b32 s{wsptr}, s2, 2\ns_add_u32 s{wsptr}, s{wsptr}, s{wave_sgpr}\ns_lshl_b32 s{wsptr}, s{wsptr}, 7")
        S("v_mov_b32 v2, 0")
        for k in range(2 * self.n):
            S(f"v_mov_b32 v3, s{self.base+k}")
            S(f"buffer_store_dword v3, v2, s[{t}:{t+3}], s{wsptr} offen offset:{4*k}")
            S("s_nop 1")


EXP = set(os.environ.get("EXP", "").split(","))


def exp_filter(segs):
    if not (EXP - {""}):
        return
    for s in segs:
        keep = []
        for i in s:
            if "nodma" in EXP and i.kind == "dma":
                continue
            if "nobar" in EXP and i.op == "s_barrier":
                continue
            if "novm" in EXP and i.kind == "wait" and "vmcnt" in i.text:
                i = I(re.sub(r"vmcnt\(\d+\)", "vmcnt(63)", i.text))
            if "nods" in EXP and i.kind == "dsr":
                continue
            if "noexp" in EXP and i.op.startswith("v_exp"):
                continue
            if "nomax" in EXP and i.op.startswith("v_max3"):
                continue
            if "noadd" in EXP and i.op == "v_add_f32":
                continue
            keep.append(i)
        s[:] = keep
```

```python
from common import *

S_W = 3

class P0:
    def __init__(self, vb, sb, ptr):
        self.V_KO, self.V_UO, self.V_SO, self.V_XO, self.V_GWO = vb, vb + 1, vb + 2, vb + 3, vb + 4
        self.V_K = vb + 6
        self.V_V = vb + 28
        self.V_SH = vb + 44
        self.V_GX = vb + 52
        self.V_GW = vb + 68
        self.V_KF = vb + 52
        self.V_WF = vb + 74
        self.V_A = vb + 84
        self.V_P = vb + 100
        self.V_T = vb + 108
        self.nv = 112
        self.SRD_K, self.SRD_V, self.SRD_SH, self.SRD_X, self.SRD_GW, self.SRD_U, self.SRD_G = \
            [sb + 4 * i for i in range(7)]
        self.S_T = sb + 28
        self.ptr = ptr

    def loads_ptrs(self, S):
        p = self.ptr
        S(f"s_load_dwordx8 {sr(p,8)}, s[0:1], {KA_Q}")
        S(f"s_load_dwordx2 {sr(p+8,2)}, s[0:1], {KA_GW}")
        S(f"s_load_dwordx2 {sr(p+10,2)}, s[0:1], {KA_WS}")

    def setup(self, S, l):
        p, t, T = self.ptr, self.S_T, self.V_T
        srd(S, self.SRD_X, p, 4 * MB)
        srd(S, self.SRD_K, p + 2, 4 * MB)
        srd(S, self.SRD_V, p + 4, 4 * MB)
        srd(S, self.SRD_SH, p + 6, 8192)
        srd(S, self.SRD_GW, p + 8, 2048)
        srd(S, self.SRD_U, p + 10, 4 * MB, off=WS_UR)
        srd(S, self.SRD_G, p + 10, 8192, off=WS_G)
        S(f"s_and_b32 s{t}, s2, 15")
        S(f"s_lshl_b32 s{t}, s{t}, 2")
        S(f"s_add_u32 s{t}, s{t}, s{S_W}")
        S(f"s_lshr_b32 s{t+1}, s2, 4")
        S(f"v_and_b32 v{T}, 3, v{l}")
        S(f"v_lshrrev_b32 v{T+1}, 2, v{l}")
        S(f"s_lshl_b32 s{t+2}, s{t}, 2")
        S(f"v_add_u32 v{T}, s{t+2}, v{T}")
        S(f"s_lshl_b32 s{t+2}, s{t+1}, 4")
        S(f"v_add_u32 v{T+1}, s{t+2}, v{T+1}")
        S(f"v_lshlrev_b32 v{T+2}, 14, v{T+1}")
        S(f"v_lshl_add_u32 v{T+2}, v{T}, 3, v{T+2}")
        S(f"v_add_u32 v{self.V_KO}, {-3*2048}, v{T+2}")
        S(f"v_lshlrev_b32 v{self.V_SO}, 5, v{T}")
        S(f"v_lshlrev_b32 v{T+2}, 4, v{T+1}")
        S(f"v_sub_u32 v{T+2}, 4080, v{T+2}")
        S(f"v_lshl_add_u32 v{self.V_UO}, v{T}, 14, v{T+2}")
        S(f"v_and_b32 v{T}, 31, v{l}")
        S(f"v_lshlrev_b32 v{self.V_GWO}, 4, v{T}")
        S(f"s_lshl_b32 s{t+2}, s2, 2")
        S(f"s_add_u32 s{t+2}, s{t+2}, s{S_W}")
        S(f"s_lshl_b32 s{t+2}, s{t+2}, 1")
        S(f"v_lshrrev_b32 v{T+1}, 5, v{l}")
        S(f"v_add_u32 v{T+1}, s{t+2}, v{T+1}")
        S(f"v_lshl_add_u32 v{self.V_XO}, v{T+1}, 11, v{self.V_GWO}")
        S(f"v_lshlrev_b32 v{T+1}, 2, v{T+1}")
        S(f"v_cmp_eq_u32 vcc, 0, v{T}")
        S(f"v_mov_b32 v{T+2}, 0x40000000")
        S(f"v_cndmask_b32 v{self.V_GWO+1}, v{T+2}, v{T+1}, vcc")

    def loads(self):
        out = []
        T = self.V_T
        for i in range(4):
            out.append(f"buffer_load_dwordx4 {vr(self.V_GX+4*i,4)}, v{self.V_XO}, {sr(self.SRD_X,4)}, 0 offen offset:{512*i}")
            out.append(f"buffer_load_dwordx4 {vr(self.V_GW+4*i,4)}, v{self.V_GWO}, {sr(self.SRD_GW,4)}, 0 offen offset:{512*i}")
        for i in range(2):
            out.append(f"buffer_load_dwordx4 {vr(self.V_SH+4*i,4)}, v{self.V_SO}, {sr(self.SRD_SH,4)}, 0 offen offset:{16*i}")
        for i in range(11):
            tmp = T + (i & 3)
            g = [f"v_add_u32 v{tmp}, {2048*i}, v{self.V_KO}",
                 f"buffer_load_dwordx2 {vr(self.V_K+2*i,2)}, v{tmp}, {sr(self.SRD_K,4)}, 0 offen"]
            if i >= 3:
                g.append(f"buffer_load_dwordx2 {vr(self.V_V+2*(i-3),2)}, v{tmp}, {sr(self.SRD_V,4)}, 0 offen")
            out.append(g)
        return out

    def compute(self, flavor="sc1"):
        out = []
        T = self.V_T
        a = T
        out.append(f"v_mov_b32 v{a}, 0")
        out.append(f"v_mov_b32 v{a+1}, 0")
        for i in range(16):
            out.append(f"v_dot2_f32_bf16 v{a + (i & 1)}, v{self.V_GX+i}, v{self.V_GW+i}, v{a + (i & 1)}")
        out.append("s_nop 2")
        out.append(f"v_add_f32 v{a}, v{a}, v{a+1}")
        for r in (8, 4, 2, 1):
            out.append("s_nop 1")
            out.append(f"v_add_f32_dpp v{a}, v{a}, v{a} row_ror:{r} row_mask:0xf bank_mask:0xf")
        out.append(f"v_mov_b32 v{a+1}, v{a}")
        out.append("s_nop 1")
        out.append(f"v_permlane16_swap_b32 v{a}, v{a+1}")
        out.append(f"v_add_f32 v{a}, v{a}, v{a+1}")
        out.append(f"v_mul_f32 v{a}, 0xbfb8aa3b, v{a}")
        out.append(f"v_exp_f32 v{a}, v{a}")
        out.append("s_nop 0")
        out.append(f"v_add_f32 v{a}, 1.0, v{a}")
        out.append(f"v_rcp_f32 v{a}, v{a}")
        out.append("s_nop 0")
        out.append(f"buffer_store_dword v{a}, v{self.V_GWO+1}, {sr(self.SRD_G,4)}, 0 offen {flavor}")
        for cp in range(2):
            for c in range(2):
                sh = self.V_SH + 4 * cp + 2 * c
                w = self.V_WF + 4 * c
                out += [f"v_lshlrev_b32 v{w}, 16, v{sh}", f"v_and_b32 v{w+1}, 0xffff0000, v{sh}",
                        f"v_lshlrev_b32 v{w+2}, 16, v{sh+1}", f"v_and_b32 v{w+3}, 0xffff0000, v{sh+1}"]
            for i in range(11):
                k = self.V_K + 2 * i + cp
                out += [f"v_lshlrev_b32 v{self.V_KF+2*i}, 16, v{k}", f"v_and_b32 v{self.V_KF+2*i+1}, 0xffff0000, v{k}"]
            for rho in range(8):
                v = self.V_V + 2 * rho + cp
                out += [f"v_lshlrev_b32 v{T+2}, 16, v{v}", f"v_and_b32 v{T+3}, 0xffff0000, v{v}"]
                for j in range(4):
                    for c in range(2):
                        A = self.V_A + 8 * c + rho
                        kf = self.V_KF + 2 * (rho + 3 - j) + c
                        w = self.V_WF + 4 * c + j
                        out.append(f"v_mul_f32 v{A}, v{kf}, v{w}" if j == 0 else f"v_fmac_f32 v{A}, v{kf}, v{w}")
                for c in range(2):
                    A = self.V_A + 8 * c + rho
                    out.append(f"v_mul_f32 v{A}, v{A}, v{T+2+c}")
            for c in range(2):
                P = self.V_P + 4 * c
                A = self.V_A + 8 * c
                for e in range(4):
                    out.append(f"v_cvt_pk_bf16_f32 v{P+e}, v{A+7-2*e}, v{A+6-2*e}")
                out.append([f"s_mov_b32 s{self.S_T}, {4096*(2*cp + c)}",
                            f"buffer_store_dwordx4 {vr(P,4)}, v{self.V_UO}, {sr(self.SRD_U,4)}, s{self.S_T} offen {flavor}"])
        return out


def standalone_p0(name):
    H = Seg()
    H(kernel_header(name))
    H(f"s_cmp_ge_u32 s2, 256\ns_cbranch_scc1 L_{name}_end")
    p = P0(4, 8, 48)
    p.loads_ptrs(H)
    H("v_lshrrev_b32 v2, 6, v0\nv_and_b32 v1, 63, v0")
    H(f"v_readfirstlane_b32 s{S_W}, v2")
    H("s_waitcnt lgkmcnt(0)")
    p.setup(H, 1)
    for g in p.loads() + p.compute():
        H.add(g if isinstance(g, list) else [g])
    H(f"L_{name}_end:\ns_endpgm")
    resolve([[H]])
    return text_of([H]) + kernel_desc(name, vgpr=128, accum=128), 0


SRD_H, SRD_UR, SRD_YO, SRD_D = 8, 12, 16, 20
S_T4 = 24
S_LB = 30
V_L = 1
V_HO = 2
V_AA, V_BA = 4, 5
V_HW = 6
V_YW, V_YR, V_YS = 7, 8, 9
V_D = 10
V_T4 = 12
V_H = 20
V_O = 44
V_ACC4 = 56
V_FR = 88
V_DA = 216
WAVE_LDS = 21248
H_STRIDE = 4160
U_OFF = 4 * H_STRIDE
Y_LDS = 4 * WAVE_LDS
LDS4 = Y_LDS + 128 * 136


def p4_ptrs(S):
    S(f"s_load_dwordx4 s[32:35], s[0:1], {KA_SSMK}")
    S(f"s_load_dwordx2 s[40:41], s[0:1], {KA_WS}")


def p4_setup(S):
    T, t, l = V_T4, S_T4, V_L
    S(f"s_lshl_b32 s{t}, s2, 2")
    S(f"s_add_u32 s{t}, s{t}, s{S_W}")
    S(f"s_lshl_b32 s{t+1}, s{t}, 12")
    srd(S, SRD_H, 32, 4096, off=f"s{t+1}")
    S(f"s_add_u32 s{t+1}, s{t+1}, {WS_UR}")
    srd(S, SRD_UR, 40, 4096, off=f"s{t+1}")
    S(f"s_lshl_b32 s{t+1}, s2, 14")
    S(f"s_add_u32 s{t+1}, s{t+1}, {WS_Y4}")
    srd(S, SRD_YO, 40, 16384, off=f"s{t+1}")
    srd(S, SRD_D, 34, 2048)
    S(f"s_lshl_b32 s{t+2}, s{t}, 1")
    S(f"s_mul_i32 s{S_LB}, s{S_W}, {WAVE_LDS}")
    S(f"v_lshlrev_b32 v{V_HO}, 4, v{l}")
    S(f"v_add_u32 v{V_HO+1}, -8, v{V_HO}")
    S(f"v_mov_b32 v{T}, 0")
    S(f"buffer_load_ushort v{V_D}, v{T}, {sr(SRD_D,4)}, s{t+2} offen")
    S(f"v_and_b32 v{T}, 15, v{l}")
    S(f"v_lshrrev_b32 v{T+1}, 4, v{l}")
    S(f"v_add_u32 v{T+2}, 13, v{T}")
    S(f"v_and_b32 v{T+3}, 3, v{T+2}")
    S(f"v_lshrrev_b32 v{T+2}, 2, v{T+2}")
    S(f"v_cmp_eq_u32 vcc, 0, v{T+3}")
    S(f"v_mul_u32_u24 v{T+3}, {H_STRIDE}, v{T+3}")
    S(f"v_cndmask_b32 v{T+3}, v{T+3}, 8, vcc")
    S(f"v_lshl_add_u32 v{T+3}, v{T+2}, 3, v{T+3}")
    S(f"v_lshl_add_u32 v{T+3}, v{T+1}, 4, v{T+3}")
    S(f"v_add_u32 v{V_AA}, s{S_LB}, v{T+3}")
    S(f"v_lshlrev_b32 v{T+2}, 5, v{T}")
    S(f"v_lshlrev_b32 v{T+3}, 4, v{T+1}")
    S(f"v_sub_u32 v{T+3}, v{T+3}, v{T+2}")
    S(f"s_add_u32 s{t+3}, s{S_LB}, {U_OFF + 480}")
    S(f"v_add_u32 v{V_BA}, s{t+3}, v{T+3}")
    S(f"v_add_u32 v{V_HW}, s{S_LB}, v{V_HO}")
    S(f"v_mul_u32_u24 v{T+2}, 136, v{T}")
    S(f"v_lshl_add_u32 v{T+2}, v{T+1}, 5, v{T+2}")
    S(f"s_lshl_b32 s{t+3}, s{S_W}, 1")
    S(f"s_add_u32 s{t+3}, s{t+3}, {Y_LDS}")
    S(f"v_add_u32 v{V_YW}, s{t+3}, v{T+2}")
    S(f"v_lshrrev_b32 v{T+2}, 3, v{l}")
    S(f"v_mul_u32_u24 v{T+2}, 136, v{T+2}")
    S(f"v_and_b32 v{T+3}, 7, v{l}")
    S(f"v_lshl_add_u32 v{T+2}, v{T+3}, 4, v{T+2}")
    S(f"s_mul_i32 s{t+3}, s{S_W}, {4*1088}")
    S(f"s_add_u32 s{t+3}, s{t+3}, {Y_LDS}")
    S(f"v_add_u32 v{V_YR}, s{t+3}, v{T+2}")
    S(f"s_lshl_b32 s{t+3}, s{S_W}, 12")
    S(f"v_add_u32 v{V_YS}, s{t+3}, v{V_HO}")
    S(f"v_lshl_add_u32 v{T+2}, v{T+1}, 3, v{T}")
    S(f"v_sub_u32 v{V_D+1}, 15, v{T+2}")


def p4_loads(S):
    S(f"s_add_u32 m0, s{S_LB}, {U_OFF}")
    for i in range(4):
        S(f"buffer_load_dwordx4 v{V_HO}, {sr(SRD_UR,4)}, 0 offen offset:{1024*i} lds")
    for i in range(4):
        if i == 0:
            S(f"buffer_load_dwordx2 {vr(V_H,2)}, v{V_HO+1}, {sr(SRD_H,4)}, 0 offen")
        else:
            S(f"buffer_load_dwordx2 {vr(V_H+6*i,2)}, v{V_HO}, {sr(SRD_H,4)}, 0 offen offset:{1024*i - 8}")
        S(f"buffer_load_dwordx4 {vr(V_H+6*i+2,4)}, v{V_HO}, {sr(SRD_H,4)}, 0 offen offset:{1024*i}")


def p4_prep(S):
    T, l = V_T4, V_L
    Z = T + 4
    for k in range(4):
        S(f"v_mov_b32 v{Z+k}, 0")
    S(f"v_and_b32 v{T}, 3, v{l}")
    S(f"v_mul_u32_u24 v{T}, {H_STRIDE}, v{T}")
    S(f"v_lshrrev_b32 v{T+1}, 2, v{l}")
    S(f"v_min_u32 v{T+1}, 3, v{T+1}")
    S(f"v_lshl_add_u32 v{T}, v{T+1}, 4, v{T}")
    S(f"v_add_u32 v{T}, s{S_LB}, v{T}")
    S(f"ds_write_b128 v{T}, {vr(Z,4)}")
    S(f"v_and_b32 v{T+1}, 31, v{l}")
    S(f"v_lshlrev_b32 v{T+1}, 4, v{T+1}")
    S(f"v_add_u32 v{T+1}, s{S_LB}, v{T+1}")
    S(f"ds_write_b128 v{T+1}, {vr(Z,4)} offset:{U_OFF + 4096}")
    for i in range(4):
        D = V_H + 6 * i
        O = V_O + 6 * (i & 1)
        for k in range(5):
            S(f"v_alignbit_b32 v{O+k}, v{D+k+1}, v{D+k}, 16")
        off = 48 + 1024 * i
        S(f"ds_write_b128 v{V_HW}, {vr(D+2,4)} offset:{off + 16}")
        S(f"ds_write_b128 v{V_HW}, {vr(O,4)} offset:{off + H_STRIDE}")
        for c, R in ((2, D + 1), (3, O + 1)):
            for k in range(4):
                S(f"v_mov_b32 v{T+k}, v{R+k}")
            S(f"ds_write_b128 v{V_HW}, {vr(T,4)} offset:{off + c*H_STRIDE}")
    S(f"v_lshlrev_b32 v{T}, 16, v{V_D}")
    for i in range(4):
        S(f"v_cmp_eq_u32 vcc, {2*i}, v{V_D+1}")
        S(f"v_cndmask_b32 v{V_DA+i}, 0, v{V_D}, vcc")
        S(f"v_cmp_eq_u32 vcc, {2*i+1}, v{V_D+1}")
        S(f"v_cndmask_b32 v{V_DA+i}, v{V_DA+i}, v{T}, vcc")
    S("s_waitcnt vmcnt(0) lgkmcnt(0)")


def afr(rho, q):
    return V_FR + (rho & 1) * 64 + q * 4


def bfr(rho, p):
    return V_FR + (rho & 1) * 64 + 32 + p * 4


def p4_reads(rho):
    out = []
    for k in range(8):
        out.append(f"ds_read_b128 {vr(bfr(rho, k),4)}, v{V_BA} offset:{512*(7-k) + 64*rho}")
        for a in range(2):
            out.append(f"ds_read_b64 {vr(afr(rho, k) + 2*a, 2)}, v{V_AA} offset:{64*(8*k + rho) + 8*a}")
    return out


def p4_main(S):
    S.add(p4_reads(0))
    for rho in range(8):
        mf = []
        for q in range(8):
            for p in range(8 - q):
                d = vr(V_ACC4 + 4 * (p + q), 4)
                mf.append(mfma16(d, vr(afr(rho, q), 4), vr(bfr(rho, p), 4), "0" if (rho == 0 and q == 0) else None))
            if rho == 0 and q == 0:
                for p in range(8):
                    mf.append(mfma16(vr(V_ACC4 + 4 * p, 4), vr(V_DA, 4), vr(bfr(0, p), 4)))
        g = [[] for _ in mf]
        if rho < 7:
            spread(g, p4_reads(rho + 1), 0, 30)
        S.add(interleave(mf, g))


def p4_out(S, flavor="sc1"):
    T = V_T4
    for tt in range(8):
        a = V_ACC4 + 4 * tt
        r = T + 2 * (tt & 1)
        S(f"v_cvt_pk_bf16_f32 v{r}, v{a}, v{a+1}")
        S(f"v_cvt_pk_bf16_f32 v{r+1}, v{a+2}, v{a+3}")
        for k in range(2):
            S(f"ds_write_b16 v{V_YW}, v{r+k} offset:{2176*tt + 16*k}")
            S(f"ds_write_b16_d16_hi v{V_YW}, v{r+k} offset:{2176*tt + 16*k + 8}")
    S("s_waitcnt lgkmcnt(0)\ns_barrier")
    for i in range(4):
        for a in range(2):
            S(f"ds_read_b64 {vr(V_FR + 4*i + 2*a, 2)}, v{V_YR} offset:{1088*i + 8*a}")
    for i in range(4):
        S(f"buffer_store_dwordx4 {vr(V_FR + 4*i, 4)}, v{V_YS}, {sr(SRD_YO,4)}, 0 offen offset:{1024*i} {flavor}")


def standalone_p4(name):
    H = Seg()
    H(kernel_header(name))
    H(f"s_cmp_ge_u32 s2, 256\ns_cbranch_scc1 L_{name}_end")
    st = Stamps(44, 4, 2)
    st(H)
    p4_ptrs(H)
    H(f"v_lshrrev_b32 v2, 6, v0\nv_and_b32 v{V_L}, 63, v0")
    H(f"v_readfirstlane_b32 s{S_W}, v2")
    H("s_waitcnt lgkmcnt(0)")
    p4_setup(H)
    p4_loads(H)
    p4_prep(H)
    st(H)
    p4_main(H)
    st(H)
    p4_out(H)
    st.dump(H, 40, S_W)
    H(f"L_{name}_end:\ns_endpgm")
    resolve([[H]])
    return text_of([H]) + kernel_desc(name), LDS4
```

```python
from common import *

S_W = 3
SRD_C = 8
SRD_W = 12
SRD_O = 16
S_COFF = 20
S_WOFF = 21
S_MC = 22
S_MW = 23
S_OOFF = 24
S_T = 25
S_TYPE = 30
S_SCALE = 31

V_CD = 2
V_WD = 10
V_CA = 18
V_WA = 20
V_ST = 28
V_T = 29
V_CF = 36
V_WF = 100
V_EP = 132

LDS_C = 0
LDS_W = 65536


def acc(ct, rt):
    return (ct * 8 + rt) * 4


def setup(S):
    S(f"s_load_dwordx2 s[32:33], s[0:1], {KA_C}")
    S(f"s_load_dwordx4 s[36:39], s[0:1], {KA_WUK}")
    S(f"s_load_dwordx2 s[40:41], s[0:1], {KA_WS}")
    S(f"v_lshrrev_b32 v{V_T}, 6, v0")
    S(f"v_and_b32 v1, 63, v0")
    S(f"v_readfirstlane_b32 s{S_W}, v{V_T}")
    t = S_T
    S(f"s_and_b32 s{t}, s2, 7")
    S(f"s_lshr_b32 s{t+1}, s2, 3")
    S(f"s_and_b32 s{t+2}, s{t+1}, 7")
    S(f"s_lshr_b32 s{t+1}, s{t+1}, 3")
    S(f"s_lshr_b32 s{S_TYPE}, s{t+1}, 1")
    S(f"s_and_b32 s{t+1}, s{t+1}, 1")
    S(f"s_lshl_b32 s{t}, s{t}, 1")
    S(f"s_add_u32 s{t}, s{t}, s{t+1}")
    S(f"s_lshl_b32 s{S_COFF}, s{t+2}, 18")
    S(f"s_lshl_b32 s{t+3}, s{S_W}, 16")
    S(f"s_add_u32 s{S_COFF}, s{S_COFF}, s{t+3}")
    S(f"s_lshl_b32 s{S_WOFF}, s{S_W}, 17")
    S(f"s_lshl_b32 s{t+3}, s{t}, 9")
    S(f"s_add_u32 s{S_WOFF}, s{S_WOFF}, s{t+3}")
    S(f"s_lshl_b32 s{S_MC}, s{S_W}, 13")
    S(f"s_add_u32 s{S_MW}, s{S_MC}, {LDS_W}")
    S(f"s_lshl_b32 s{t}, s{t}, 1")
    S(f"s_lshr_b32 s{t+3}, s{S_W}, 1")
    S(f"s_add_u32 s{t}, s{t}, s{t+3}")
    S(f"s_lshl_b32 s{S_OOFF}, s{t}, 19")
    S(f"s_lshl_b32 s{t+2}, s{t+2}, 16")
    S(f"s_add_u32 s{S_OOFF}, s{S_OOFF}, s{t+2}")
    S(f"s_and_b32 s{t+3}, s{S_W}, 1")
    S(f"s_lshl_b32 s{t+3}, s{t+3}, 15")
    S(f"s_add_u32 s{S_OOFF}, s{S_OOFF}, s{t+3}")
    S(f"s_mov_b32 s{S_SCALE}, {SCALE_K:#x}")
    T = V_T
    S(f"v_lshrrev_b32 v{T}, 3, v1")
    S(f"v_lshlrev_b32 v{T}, 10, v{T}")
    S(f"v_lshrrev_b32 v{T+1}, 4, v1")
    S(f"v_and_b32 v{T+2}, 7, v1")
    S(f"v_xor_b32 v{T+2}, v{T+2}, v{T+1}")
    S(f"v_lshl_add_u32 v{T}, v{T+2}, 4, v{T}")
    S(f"v_xor_b32 v{T+3}, 64, v{T}")
    for i in range(8):
        S(f"v_add_u32 v{V_CD+i}, {8192*i - 1024*(i&3)}, v{T + (3 if i & 1 else 0)}")
    S(f"v_lshrrev_b32 v{T}, 5, v1")
    S(f"v_and_b32 v{T+2}, 31, v1")
    S(f"v_lshlrev_b32 v{T+3}, 1, v{T}")
    S(f"v_xor_b32 v{T+2}, v{T+2}, v{T+3}")
    S(f"v_lshlrev_b32 v{T}, 13, v{T}")
    for i in range(8):
        x = (2 * (i & 1) + 4 * ((i >> 2) & 1)) << 1
        S(f"v_xor_b32 v{T+3}, {x}, v{T+2}")
        S(f"v_lshl_add_u32 v{T+3}, v{T+3}, 4, v{T}")
        S(f"v_add_u32 v{V_WD+i}, {16384*i - 1024*(i&3)}, v{T+3}")
    S(f"v_and_b32 v{T}, 15, v1")
    S(f"v_lshrrev_b32 v{T+2}, 1, v{T}")
    S(f"v_xor_b32 v{T+2}, v{T+2}, v{T+1}")
    S(f"v_lshlrev_b32 v{T+2}, 4, v{T+2}")
    S(f"v_lshl_add_u32 v{T+2}, v{T}, 7, v{T+2}")
    S(f"s_and_b32 s{t+3}, s{S_W}, 1")
    S(f"s_lshl_b32 s{t+3}, s{t+3}, 14")
    S(f"v_add_u32 v{V_CA}, s{t+3}, v{T+2}")
    S(f"v_xor_b32 v{V_CA+1}, 64, v{V_CA}")
    S(f"v_bfe_u32 v{T}, v1, 2, 2")
    S(f"v_and_b32 v{T+2}, 1, v{T+1}")
    S(f"v_lshl_or_b32 v{T+2}, v{T+2}, 2, v{T}")
    S(f"v_lshl_add_u32 v{T}, v{T+1}, 3, v{T}")
    S(f"v_lshlrev_b32 v{T}, 9, v{T}")
    S(f"v_and_b32 v{T+3}, 3, v1")
    S(f"v_lshl_add_u32 v{T}, v{T+3}, 3, v{T}")
    S(f"s_lshr_b32 s{t+3}, s{S_W}, 1")
    S(f"s_lshl_b32 s{t+3}, s{t+3}, 8")
    S(f"s_add_u32 s{t+3}, s{t+3}, {LDS_W}")
    S(f"v_add_u32 v{T}, s{t+3}, v{T}")
    for ct in range(8):
        S(f"v_xor_b32 v{T+3}, {ct}, v{T+2}")
        S(f"v_lshl_add_u32 v{V_WA+ct}, v{T+3}, 5, v{T}")
    S("s_waitcnt lgkmcnt(0)")
    srd(S, SRD_C, 32, 2048 * 512 * 2)
    S(f"s_cmp_eq_u32 s{S_TYPE}, 0")
    S(f"s_cselect_b32 s{SRD_W}, s36, s38")
    S(f"s_cselect_b32 s{SRD_W+1}, s37, s39")
    S(f"s_mov_b32 s{SRD_W+2}, {512*4096*2}\ns_mov_b32 s{SRD_W+3}, 0x20000")
    S(f"s_lshl_b32 s{t}, s{S_TYPE}, 24")
    srd(S, SRD_O, 40, 16 * MB, off=f"s{t}")


def dma(slot):
    out = []
    for half in range(2):
        g = [f"s_add_u32 m0, s{S_MC}, {slot*32768 + half*4096}"]
        for i in range(4 * half, 4 * half + 4):
            g.append(f"buffer_load_dwordx4 v{V_CD+i}, {sr(SRD_C,4)}, s{S_COFF} offen offset:{1024*(i&3)} lds")
            out.append(g)
            g = []
        g = [f"s_add_u32 m0, s{S_MW}, {slot*32768 + half*4096}"]
        for i in range(4 * half, 4 * half + 4):
            g.append(f"buffer_load_dwordx4 v{V_WD+i}, {sr(SRD_W,4)}, s{S_WOFF} offen offset:{1024*(i&3)} lds")
            out.append(g)
            g = []
    out[-1] = out[-1] + [f"s_add_u32 s{S_COFF}, s{S_COFF}, 128", f"s_add_u32 s{S_WOFF}, s{S_WOFF}, {64*8192}"]
    return out


def rd_c(slot, kk, rt):
    return f"ds_read_b128 {vr(V_CF + kk*32 + rt*4, 4)}, v{V_CA+kk} offset:{slot*32768 + rt*2048}"


def rd_w(slot, kk, ct):
    return [f"ds_read_b64_tr_b16 {vr(V_WF + ct*4 + 2*a, 2)}, v{V_WA+ct} offset:{slot*32768 + (32*kk + 4*a)*512}"
            for a in range(2)]


def kstep(typ, n, kk, fill=None):
    slot = n & 1
    mf = []
    for ct in range(8):
        for rt in range(8):
            w, c, d = vr(V_WF + ct * 4, 4), vr(V_CF + kk * 32 + rt * 4, 4), ar(acc(ct, rt), 4)
            cin = "0" if (n == 0 and kk == 0) else None
            mf.append(mfma16(d, w, c, cin) if typ == "K" else mfma16(d, c, w, cin))
    gaps = [[] for _ in mf]
    last = (n == 7 and kk == 1)
    if not last:
        nslot, nkk = (slot, 1) if kk == 0 else (slot ^ 1, 0)
        first_gap = 0
        if kk == 1:
            gaps[9].append("s_waitcnt vmcnt(0) lgkmcnt(0)")
            gaps[9].append("s_barrier")
            first_gap = 10
            if n + 2 <= 7:
                spread(gaps, dma(slot), 11, 60)
        for ct in range(8):
            g0 = max(8 * ct + 7, first_gap + 2 * ct)
            r = rd_w(nslot, nkk, ct)
            gaps[g0].append(r[0])
            if g0 + 1 < 64:
                gaps[g0 + 1].append(r[1])
            else:
                gaps[g0].append(r[1])
        spread(gaps, [rd_c(nslot, nkk, rt) for rt in range(8)], first_gap + 2, 50)
    if fill:
        fill(gaps)
    head = [] if (n == 0 and kk == 0) else ["s_waitcnt lgkmcnt(2)"]
    return interleave(mf, gaps, head)


def prologue(S):
    for g in dma(0) + dma(1):
        S.add(g)
    S("s_waitcnt vmcnt(16)\ns_barrier")
    for rt in range(8):
        S(rd_c(0, 0, rt))
    for ct in range(8):
        S.add(rd_w(0, 0, ct))


def epilogue_items(typ, flavor="sc1"):
    items = []
    k = 0
    if typ == "K":
        pairs = [((2 * p, rt), (2 * p + 1, rt)) for rt in range(8) for p in range(4)]
    else:
        pairs = [((ct, 2 * q), (ct, 2 * q + 1)) for q in range(4) for ct in range(8)]
    for (x, y) in pairs:
        T = V_EP + (k & 1) * 12
        k += 1
        src = [acc(*x) + r for r in range(4)] + [acc(*y) + r for r in range(4)]
        for j in range(8):
            items.append(f"v_accvgpr_read_b32 v{T+4+j}, a{src[j]}")
        if typ == "K":
            for j in range(8):
                items.append(f"v_mul_f32 v{T+4+j}, s{S_SCALE}, v{T+4+j}")
        for u in range(4):
            items.append(f"v_cvt_pk_bf16_f32 v{T+u}, v{T+4+2*u}, v{T+5+2*u}")
        if typ == "K":
            p, rt = x[0] >> 1, x[1]
            so = (rt >> 1) * 8192 + (p >> 1) * 4096
            imm = (rt & 1) * 128 + (p & 1) * 2048
        else:
            ct, q = x[0], x[1] >> 1
            so = q * 8192
            imm = (ct >> 1) * 1024 + (ct & 1) * 256
        items.append([f"s_add_u32 s{S_T}, s{S_OOFF}, {so}",
                      f"buffer_store_dwordx4 {vr(T,4)}, v{V_ST}, {sr(SRD_O,4)}, s{S_T} offen offset:{imm} {flavor}"])
    return items


def store_addr(S, typ):
    T = V_T
    if typ == "K":
        S(f"v_bfe_u32 v{T}, v1, 4, 1")
        S(f"v_lshlrev_b32 v{T}, 10, v{T}")
        S(f"v_bfe_u32 v{T+1}, v1, 3, 1")
        S(f"v_lshl_add_u32 v{T}, v{T+1}, 8, v{T}")
        S(f"v_and_b32 v{T+1}, 7, v1")
        S(f"v_lshl_add_u32 v{T}, v{T+1}, 4, v{T}")
        S(f"v_lshrrev_b32 v{T+1}, 5, v1")
        S(f"v_lshl_add_u32 v{V_ST}, v{T+1}, 9, v{T}")
    else:
        S(f"v_lshrrev_b32 v{T}, 5, v1")
        S(f"v_lshlrev_b32 v{T}, 12, v{T}")
        S(f"v_and_b32 v{T+1}, 15, v1")
        S(f"v_lshl_add_u32 v{T}, v{T+1}, 4, v{T}")
        S(f"v_bfe_u32 v{T+1}, v1, 4, 1")
        S(f"v_lshl_add_u32 v{V_ST}, v{T+1}, 9, v{T}")


def standalone(name):
    segs, traces = [], []
    H = Seg()
    H(kernel_header(name))
    H(f"s_cmp_ge_u32 s2, 256\ns_cbranch_scc1 L_{name}_end")
    st = Stamps(44, 4, 0)
    st(H)
    setup(H)
    prologue(H)
    st(H)
    H(f"s_cmp_eq_u32 s{S_TYPE}, 0\ns_cbranch_scc0 L_{name}_V")
    segs.append(H)
    for typ in "KV":
        B = Seg()
        if typ == "V":
            B(f"L_{name}_V:")
        store_addr(B, typ)
        for n in range(8):
            for kk in range(2):
                B.add(kstep(typ, n, kk))
        st.n = 2
        st(B)
        for it in epilogue_items(typ):
            B.add(it if isinstance(it, list) else [it])
        st(B)
        st.dump(B, 40, S_W)
        B("s_endpgm")
        segs.append(B)
        traces.append([H, B])
    E = Seg()
    E(f"L_{name}_end:\ns_endpgm")
    segs.append(E)
    exp_filter(segs)
    resolve(traces)
    return text_of(segs) + kernel_desc(name), 131072
```

```python
from common import *

S_W = 3
SRD_X = 44
SRD_WQ = 48
SRD_K = 52
SRD_V = 56
SRD_CTX = 60
S_XL, S_XS, S_WQO = 64, 65, 66
S_MX, S_MWQ = 67, 68
S_HEAD, S_I = 69, 70
S_KVO = 71
S_MK, S_MV = 72, 73
S_CNT = 74
S_N1 = 75
S_ND, S_NT = 76, 77
S_RESC = 78
S_THR = 79
S_TMP = 80
S_MSK = 84
S_CL, S_CS = 100, 101

V_L = 1
V_LS = [2, 4]
V_MX = [6, 7]
V_F = [8, 9]
V_KA, V_VA, V_DO = 10, 11, 12
V_Q4, V_NINF, V_CST = 13, 14, 15
V_Q = 16
V_S = 80
V_NM = 208
V_T = 240
V_WF = 16
V_XF = 48
V_XD, V_WD, V_WA, V_XA = 208, 212, 216, 224
A_O = 0
A_K = 128
A_V = 192

LDS_X = 49152
THR = 0x41000000


def qreg(qt, t):
    return V_Q + 32 * qt + 4 * t


def sreg(par, kvh, qt):
    return V_S + 64 * par + 32 * kvh + 16 * qt


def oreg(qt, dt):
    return A_O + 64 * qt + 16 * dt


def acc2(ct, rt):
    return V_S + (ct * 4 + rt) * 4


def setup(S):
    S(f"s_load_dwordx2 s[32:33], s[0:1], {KA_Q}")
    S(f"s_load_dwordx2 s[34:35], s[0:1], {KA_WQ}")
    S(f"s_load_dwordx2 s[40:41], s[0:1], {KA_WS}")
    T = V_T
    t = S_TMP
    S(f"v_lshrrev_b32 v{T}, 6, v0")
    S(f"v_and_b32 v{V_L}, 63, v0")
    S(f"v_readfirstlane_b32 s{S_W}, v{T}")
    S(f"s_and_b32 s{t}, s2, 7")
    S(f"s_lshr_b32 s{t+1}, s2, 3")
    S(f"s_and_b32 s{S_HEAD}, s{t+1}, 3")
    S(f"s_lshl_b32 s{t}, s{t}, 2")
    S(f"s_add_u32 s{S_HEAD}, s{S_HEAD}, s{t}")
    S(f"s_lshr_b32 s{S_I}, s{t+1}, 2")
    S(f"s_lshl_b32 s{t}, s{S_W}, 16")
    S(f"s_lshl_b32 s{S_XS}, s{S_I}, 18")
    S(f"s_sub_u32 s{S_XL}, {15 << 18}, s{S_XS}")
    S(f"s_add_u32 s{S_XS}, s{S_XS}, s{t}")
    S(f"s_add_u32 s{S_XL}, s{S_XL}, s{t}")
    S(f"s_lshl_b32 s{t+1}, s{S_HEAD}, 12")
    S(f"s_lshl_b32 s{S_CL}, s{S_XL}, 2")
    S(f"s_add_u32 s{S_CL}, s{S_CL}, s{t+1}")
    S(f"s_lshl_b32 s{S_CS}, s{S_XS}, 2")
    S(f"s_add_u32 s{S_CS}, s{S_CS}, s{t+1}")
    S(f"s_lshl_b32 s{S_WQO}, s{S_W}, 17")
    S(f"s_lshl_b32 s{t+1}, s{S_HEAD}, 8")
    S(f"s_add_u32 s{S_WQO}, s{S_WQO}, s{t+1}")
    S(f"s_mul_i32 s{S_MX}, s{S_W}, 24576")
    S(f"s_add_u32 s{S_MX}, s{S_MX}, {LDS_X}")
    S(f"s_lshl_b32 s{S_MWQ}, s{S_W}, 12")
    S(f"s_lshl_b32 s{S_ND}, s{S_I}, 1")
    S(f"s_sub_u32 s{S_NT}, 32, s{S_ND}")
    S(f"s_add_u32 s{S_ND}, s{S_ND}, 2")
    S(f"s_mov_b32 s{S_THR}, {THR:#x}")
    S(f"s_mov_b32 s{S_RESC}, 0")
    l = V_L
    S(f"v_lshrrev_b32 v{T}, 3, v{l}")
    S(f"v_lshlrev_b32 v{T}, 11, v{T}")
    S(f"v_lshrrev_b32 v{T+1}, 4, v{l}")
    S(f"v_and_b32 v{T+2}, 7, v{l}")
    S(f"v_xor_b32 v{T+2}, v{T+2}, v{T+1}")
    S(f"v_lshl_add_u32 v{T}, v{T+2}, 4, v{T}")
    S(f"v_xor_b32 v{T+3}, 64, v{T}")
    for i in range(4):
        S(f"v_add_u32 v{V_XD+i}, {16384*i - 1024*i}, v{T + (3 if i & 1 else 0)}")
    S(f"v_and_b32 v{T+2}, 15, v{l}")
    S(f"v_lshlrev_b32 v{T+3}, 1, v{T+1}")
    S(f"v_xor_b32 v{T+2}, v{T+2}, v{T+3}")
    S(f"v_lshlrev_b32 v{T}, 13, v{T+1}")
    for i in range(4):
        S(f"v_xor_b32 v{T+3}, {(i >> 1) << 3}, v{T+2}")
        S(f"v_lshl_add_u32 v{T+3}, v{T+3}, 4, v{T}")
        S(f"v_add_u32 v{V_WD+i}, {32768*i - 1024*i}, v{T+3}")
    S(f"v_and_b32 v{T}, 15, v{l}")
    S(f"v_lshrrev_b32 v{T+2}, 1, v{T}")
    S(f"v_xor_b32 v{T+2}, v{T+2}, v{T+1}")
    S(f"v_lshlrev_b32 v{T+2}, 4, v{T+2}")
    S(f"v_lshl_add_u32 v{T+2}, v{T}, 7, v{T+2}")
    S(f"v_add_u32 v{V_XA}, s{S_MX}, v{T+2}")
    S(f"v_xor_b32 v{V_XA+1}, 64, v{V_XA}")
    S(f"v_bfe_u32 v{T}, v{l}, 2, 2")
    S(f"v_and_b32 v{T+2}, 1, v{T+1}")
    S(f"v_lshl_or_b32 v{T+2}, v{T+2}, 2, v{T}")
    S(f"v_lshl_add_u32 v{T}, v{T+1}, 3, v{T}")
    S(f"v_lshlrev_b32 v{T}, 8, v{T}")
    S(f"v_and_b32 v{T+3}, 3, v{l}")
    S(f"v_lshl_add_u32 v{T}, v{T+3}, 3, v{T}")
    for ct in range(8):
        S(f"v_xor_b32 v{T+3}, {ct}, v{T+2}")
        S(f"v_lshl_add_u32 v{V_WA+ct}, v{T+3}, 5, v{T}")
    S(f"v_lshlrev_b32 v{T}, 4, v{l}")
    S(f"s_lshl_b32 s{t}, s{S_W}, 12")
    S(f"v_add_u32 v{V_DO}, s{t}, v{T}")
    S(f"v_add_u32 v{V_KA}, 0x8000, v{T}")
    S(f"v_add_u32 v{V_VA}, 0x10000, v{T}")
    S(f"s_add_u32 s{S_MK}, s{t}, 0x8000")
    S(f"s_add_u32 s{S_MV}, s{t}, 0x10000")
    S(f"v_and_b32 v{T}, 31, v{l}")
    S(f"v_lshrrev_b32 v{T+2}, 5, v{l}")
    S(f"v_lshlrev_b32 v{T+3}, 2, v{T+2}")
    S(f"v_sub_u32 v{V_Q4}, v{T}, v{T+3}")
    S(f"v_mov_b32 v{V_NINF}, 0xff800000")
    S(f"v_and_b32 v{T}, 15, v{l}")
    S(f"v_lshl_add_u32 v{T}, v{T+2}, 4, v{T}")
    S(f"v_lshlrev_b32 v{T}, 4, v{T}")
    S(f"v_bfe_u32 v{T+3}, v{l}, 4, 1")
    S(f"v_lshl_add_u32 v{V_CST}, v{T+3}, 17, v{T}")
    S("s_waitcnt lgkmcnt(0)")
    srd(S, SRD_X, 32, 2048 * 1024 * 2)
    srd(S, SRD_WQ, 34, 1024 * 4096 * 2)
    srd(S, SRD_CTX, 40, 16 * MB, off=WS_CTX)
    S(f"s_lshl_b32 s{t}, s{S_HEAD}, 19")
    S(f"s_add_u32 s{SRD_K}, s40, s{t}\ns_addc_u32 s{SRD_K+1}, s41, 0")
    S(f"s_lshl_b32 s{SRD_K+2}, s{S_NT}, 14\ns_mov_b32 s{SRD_K+3}, 0x20000")
    S(f"s_add_u32 s{t}, s{t}, {WS_VF - 16384}")
    S(f"s_add_u32 s{SRD_V}, s40, s{t}\ns_addc_u32 s{SRD_V+1}, s41, 0")
    S(f"s_add_u32 s{SRD_V+2}, s{SRD_K+2}, 16384\ns_mov_b32 s{SRD_V+3}, 0x20000")


def dma2(slot):
    out = []
    for half, so in ((0, S_XL), (1, S_XS)):
        g = [f"s_add_u32 m0, s{S_MX}, {slot*8192 + half*4096}"]
        for i in range(4):
            g.append(f"buffer_load_dwordx4 v{V_XD+i}, {sr(SRD_X,4)}, s{so} offen offset:{1024*i} lds")
            out.append(g)
            g = []
    g = [f"s_add_u32 m0, s{S_MWQ}, {slot*16384}"]
    for i in range(4):
        g.append(f"buffer_load_dwordx4 v{V_WD+i}, {sr(SRD_WQ,4)}, s{S_WQO} offen offset:{1024*i} lds")
        out.append(g)
        g = []
    out[-1] = out[-1] + [f"s_add_u32 s{S_XL}, s{S_XL}, 128", f"s_add_u32 s{S_XS}, s{S_XS}, 128",
                         f"s_add_u32 s{S_WQO}, s{S_WQO}, {64*8192}"]
    return out


def kv_dma(which, tile, slot):
    base = slot * 16384 + (0x10000 if which == "V" else 0)
    so = (tile + (1 if which == "V" else 0)) * 16384
    srd_ = SRD_K if which == "K" else SRD_V
    out = [[f"s_add_u32 m0, s{S_MWQ}, {base}", f"s_mov_b32 s{S_TMP}, {so}",
            f"buffer_load_dwordx4 v{V_DO}, {sr(srd_,4)}, s{S_TMP} offen lds"]]
    for i in range(1, 4):
        out.append([f"buffer_load_dwordx4 v{V_DO}, {sr(srd_,4)}, s{S_TMP} offen offset:{1024*i} lds"])
    return out


def rd_x(slot, kk, rt):
    return f"ds_read_b128 {vr(V_XF + kk*16 + rt*4, 4)}, v{V_XA+kk} offset:{slot*8192 + rt*2048}"


def rd_wq(slot, kk, ct):
    return [f"ds_read_b64_tr_b16 {vr(V_WF + ct*4 + 2*a, 2)}, v{V_WA+ct} offset:{slot*16384 + (32*kk + 4*a)*256}"
            for a in range(2)]


def kstep2(n, kk, fill=None):
    slot = n % 3
    mf = []
    for ct in range(8):
        for rt in range(4):
            d = vr(acc2(ct, rt), 4)
            mf.append(mfma16(d, vr(V_WF + ct * 4, 4), vr(V_XF + kk * 16 + rt * 4, 4),
                             "0" if (n == 0 and kk == 0) else None))
    gaps = [[] for _ in mf]
    last = (n == 15 and kk == 1)
    if not last:
        nslot, nkk = (slot, 1) if kk == 0 else ((n + 1) % 3, 0)
        fg = 0
        if kk == 1:
            vm = 12 if n <= 13 else 4
            gaps[7].append(f"s_waitcnt vmcnt({vm}) lgkmcnt(0)")
            gaps[7].append("s_barrier")
            fg = 8
            if n + 3 <= 15:
                spread(gaps, dma2(slot), 9, 31)
            elif n == 13:
                spread(gaps, kv_dma("K", 0, 1), 9, 31)
            elif n == 14:
                spread(gaps, kv_dma("K", 1, 2) + kv_dma("V", 0, 1), 9, 31)
        for ct in range(8):
            g0 = min(31, max(4 * ct + 3, fg + 2 * ct))
            r = rd_wq(nslot, nkk, ct)
            gaps[g0].append(r[0])
            gaps[min(31, g0 + 1)].append(r[1])
        spread(gaps, [rd_x(nslot, nkk, rt) for rt in range(4)], fg + 1, 24)
    if fill:
        fill(gaps)
    head = [] if (n == 0 and kk == 0) else ["s_waitcnt lgkmcnt(4)"]
    return interleave(mf, gaps, head)


def p2_prologue(S):
    for g in dma2(0) + dma2(1) + dma2(2):
        S.add(g)
    S("s_waitcnt vmcnt(24)\ns_barrier")
    for rt in range(4):
        S(rd_x(0, 0, rt))
    for ct in range(8):
        S.add(rd_wq(0, 0, ct))


def p2_body(S):
    zero = [f"v_accvgpr_write_b32 a{A_O+i}, 0" for i in range(128)]
    for n in range(16):
        for kk in range(2):
            fill = None
            k = 2 * n + kk
            if 2 <= k < 18:
                z = zero[(k - 2) * 8:(k - 1) * 8]
                fill = lambda gaps, z=z: spread(gaps, z, 2, 30)
            S.add(kstep2(n, kk, fill))


def rd_k(f, imm):
    return f"ds_read_b128 {ar(A_K + 4*f, 4)}, v{V_KA} offset:{imm + 1024*f}"


def rd_v(f, imm):
    return f"ds_read_b128 {ar(A_V + 4*f, 4)}, v{V_VA} offset:{imm + 1024*f}"


def qk_mfmas(par, qts, czero=False):
    mf = []
    for kvh in range(2):
        for t in range(8):
            for qt in qts:
                d = vr(sreg(par, kvh, qt), 16)
                c = None if t else ("0" if czero else vr(V_NM + 16 * qt, 16))
                mf.append(mfma32(d, ar(A_K + 4 * (8 * kvh + t), 4), vr(qreg(qt, t), 4), c))
    return mf


def pv_mfmas(par, qts):
    mf = []
    for t in range(4):
        for dt in range(4):
            for qt in qts:
                mf.append(mfma32(ar(oreg(qt, dt), 16), ar(A_V + 4 * (4 * t + dt), 4),
                                 vr(sreg(par, t >> 1, qt) + 8 * (t & 1), 4)))
    return mf


def exp_stream(par, pairs):
    out = []
    prev = None

    def fin(p):
        kvh, qt, u = p
        b = sreg(par, kvh, qt)
        r = b + 2 * u
        return [f"v_add_f32 v{V_LS[qt]}, v{V_LS[qt]}, v{r}",
                f"v_add_f32 v{V_LS[qt]+1}, v{V_LS[qt]+1}, v{r+1}",
                f"v_cvt_pk_bf16_f32 v{b + 8*(u >> 2) + (u & 3)}, v{r}, v{r+1}"]
    for p in pairs:
        kvh, qt, u = p
        r = sreg(par, kvh, qt) + 2 * u
        f = fin(prev) if prev else []
        out.append(f"v_exp_f32 v{r}, v{r}")
        out += f[:1]
        out.append(f"v_exp_f32 v{r+1}, v{r+1}")
        out += f[1:]
        prev = p
    if prev:
        out += fin(prev)
    return out


def all_pairs(qts):
    return [(kvh, qt, u) for kvh in range(2) for qt in qts for u in range(8)]


NA = {2: 12, 1: 6}


def max_stream(par, qts):
    chains = []
    for qt in qts:
        regs = [sreg(par, kvh, qt) + r for kvh in range(2) for r in range(16)]
        m = V_MX[qt]
        c = [f"v_max3_f32 v{m}, v{regs[0]}, v{regs[1]}, v{regs[2]}"]
        k = 3
        while k + 1 < 32:
            c.append(f"v_max3_f32 v{m}, v{m}, v{regs[k]}, v{regs[k+1]}")
            k += 2
        c.append(f"v_max_f32 v{m}, v{m}, v{regs[31]}")
        chains.append(c)
    out = []
    for x in zip(*chains):
        out += list(x)
    return out


def mask_code(S, par, qt, dpos_sgpr):
    T = V_T
    t = S_TMP + 1
    S(f"s_lshl_b32 s{t}, s{dpos_sgpr}, 1")
    S(f"s_sub_u32 s{t}, s{S_W}, s{t}")
    S(f"s_lshl_b32 s{t}, s{t}, 5")
    S(f"v_add_u32 v{T}, s{t}, v{V_Q4}")
    S(f"v_add_u32 v{T+1}, -32, v{T}")
    for kvh in range(2):
        for half in range(2):
            for k in range(8):
                r = 8 * half + k
                c = 16 * ((r >> 2) & 1) + 8 * (r >> 3) + (r & 3)
                S(f"v_cmp_gt_i32_e64 {sr(S_MSK + 2*k, 2)}, {c}, v{T+kvh}")
            for k in range(8):
                r = sreg(par, kvh, qt) + 8 * half + k
                S(f"v_cndmask_b32_e64 v{r}, v{r}, v{V_NINF}, {sr(S_MSK + 2*k, 2)}")


def rowmax_code(S, qt, clamp):
    T = V_T
    S(f"v_mov_b32 v{T}, v{V_MX[qt]}\nv_mov_b32 v{T+1}, v{V_MX[qt]}")
    S(f"v_permlane32_swap_b32 v{T}, v{T+1}")
    S(f"v_max_f32 v{T+2}, v{T}, v{T+1}")
    if clamp:
        S(f"v_max_f32 v{T+2}, 0, v{T+2}")


def rare_code(S, par, qts):
    T = V_T
    for qt in qts:
        rowmax_code(S, qt, True)
        S(f"v_exp_f32 v{V_F[qt]}, -v{T+2}")
        for r in range(16):
            S(f"v_sub_f32 v{V_NM+16*qt+r}, v{V_NM+16*qt+r}, v{T+2}")
        S(f"v_mul_f32 v{V_LS[qt]}, v{V_LS[qt]}, v{V_F[qt]}")
        S(f"v_mul_f32 v{V_LS[qt]+1}, v{V_LS[qt]+1}, v{V_F[qt]}")
        for kvh in range(2):
            for r in range(16):
                x = sreg(par, kvh, qt) + r
                S(f"v_sub_f32 v{x}, v{x}, v{T+2}")
    S(f"s_mov_b32 s{S_RESC}, 1")


def resc_code(S, qts):
    T = V_T
    S("s_nop 15")
    for qt in qts:
        for b in range(0, 64, 8):
            for k in range(8):
                S(f"v_accvgpr_read_b32 v{T+k}, a{A_O+64*qt+b+k}")
            for k in range(8):
                S(f"v_mul_f32 v{T+k}, v{T+k}, v{V_F[qt]}")
            for k in range(8):
                S(f"v_accvgpr_write_b32 a{A_O+64*qt+b+k}, v{T+k}")
    S(f"s_mov_b32 s{S_RESC}, 0\ns_nop 1")


class Body:
    def __init__(self, nm, par, qk, pv):
        self.nm, self.par = nm, par
        a, b = par, par ^ 1
        restA = all_pairs(pv)[NA[len(pv)]:]
        valu1 = exp_stream(a, restA)
        vimm = 16384 if par == 0 else 0
        vrd = [rd_v(f, vimm) for f in range(16)]
        s1 = Seg()
        head = [f"v_xor_b32 v{V_VA}, 0x8000, v{V_VA}"] if par == 1 else []
        if qk:
            mf = qk_mfmas(b, qk)
            n1 = len(mf)
            g = [[] for _ in mf]
            spread(g, vrd, 0, (n1 * 3) // 4)
            spread(g, valu1, 0, n1)
            s1 = interleave(mf, g, head + ["s_waitcnt lgkmcnt(0)"])
        else:
            s1.add(head)
            s1.add(vrd)
            s1.add(valu1)
        mf = pv_mfmas(a, pv)
        n2 = len(mf)
        g = [[] for _ in mf]
        h2 = []
        self.mask = self.rare = None
        cut_mask = cut_rare = None
        if qk:
            h2 = ["s_waitcnt vmcnt(16) lgkmcnt(0)", "s_barrier"]
            kimm = 16384 if par == 0 else 0
            dk = [[f"s_add_u32 m0, s{S_MK}, {0 if par == 0 else 16384}"]]
            if par == 1:
                g[0] += [f"v_xor_b32 v{V_KA}, 0x8000, v{V_KA}", f"s_xor_b32 s{S_MV}, s{S_MV}, 0x8000"]
            for i in range(4):
                dk.append([f"buffer_load_dwordx4 v{V_DO}, {sr(SRD_K,4)}, s{S_KVO} offen offset:{1024*i} lds"])
            dk.append([f"s_add_u32 m0, s{S_MV}, {16384 if par == 0 else 0}"])
            for i in range(4):
                dk.append([f"buffer_load_dwordx4 v{V_DO}, {sr(SRD_V,4)}, s{S_KVO} offen offset:{1024*i} lds"])
            dk.append([f"s_add_u32 s{S_KVO}, s{S_KVO}, 16384"] +
                      ([f"s_xor_b32 s{S_MK}, s{S_MK}, 0x8000"] if par == 1 else []))
            mq = qk[-1]
            md = S_ND if len(qk) == 2 else S_NT
            g[0] += [f"s_sub_u32 s{S_TMP}, s{S_N1}, s{md}", f"s_add_u32 s{S_TMP}, s{S_TMP}, 2"]
            cm = 1 if n2 == 32 else 1
            g[cm] += [f"s_cmp_lt_u32 s{S_TMP}, 2", f"s_cbranch_scc1 L_{nm}_mask", "@mask"]
            mx = max_stream(b, qk)
            nmx = 6 if len(qk) == 2 else 3
            if n2 == 32 and len(qk) == 1:
                nmx = 4
            spread(g, mx, cm + 1, cm + 1 + nmx)
            cg = cm + 1 + nmx
            if len(qk) == 2:
                g[cg - 1] += [f"v_max_f32 v{V_T}, v{V_MX[0]}, v{V_MX[1]}", f"v_cmp_lt_f32 vcc, s{S_THR}, v{V_T}"]
            else:
                g[cg - 1] += [f"v_cmp_lt_f32 vcc, s{S_THR}, v{V_MX[0]}"]
            g[cg] += [f"s_cbranch_vccnz L_{nm}_rare", "@rare", f"s_add_u32 s{S_N1}, s{S_N1}, 1"]
            valu2 = exp_stream(b, all_pairs(qk)[:NA[len(qk)]])
            spread(g, [rd_k(f, kimm) for f in range(16)], 1, n2 - 2)
            spread(g, dk, cg, n2)
            spread(g, valu2, cg + 1 if n2 == 32 else cg, n2)
            M = Seg()
            M(f"L_{nm}_mask:\ns_nop 7")
            mask_code(M, b, mq, S_TMP)
            M(f"s_branch L_{nm}_mask_ret")
            self.mask = M
            R = Seg()
            R(f"L_{nm}_rare:")
            rare_code(R, b, qk)
            R(f"s_branch L_{nm}_rare_ret")
            self.rare = R
        else:
            h2 = ["s_waitcnt lgkmcnt(0)"]
        segs = [s1, Seg()]
        segs[-1].add(h2)
        for m, gg in zip(mf, g):
            segs[-1].add([m])
            for x in gg:
                if x == "@mask" or x == "@rare":
                    segs.append(Seg())
                    segs[-1](f"L_{nm}_{x[1:]}_ret:")
                else:
                    segs[-1].add([x])
        self.resc = None
        if qk:
            segs[-1](f"s_cmp_lg_u32 s{S_RESC}, 0\ns_cbranch_scc1 L_{nm}_resc")
            segs.append(Seg())
            segs[-1](f"L_{nm}_resc_ret:")
            Z = Seg()
            Z(f"L_{nm}_resc:")
            resc_code(Z, qk)
            Z(f"s_branch L_{nm}_resc_ret")
            self.resc = Z
        self.segs = segs

    def trace(self, rare):
        if not rare or self.mask is None:
            return list(self.segs)
        s = self.segs
        return [s[0], s[1], self.mask, s[2], self.rare, s[3], self.resc, s[4]]

    def out_of_line(self):
        return [x for x in (self.mask, self.rare, self.resc) if x is not None]


def epilogue(S, qt, so, flavor="sc1"):
    T = V_T
    ls = V_LS[qt]
    S(f"v_add_f32 v{ls}, v{ls}, v{ls+1}")
    S(f"v_mov_b32 v{ls+1}, v{ls}")
    S(f"v_permlane32_swap_b32 v{ls}, v{ls+1}")
    S(f"v_add_f32 v{ls}, v{ls}, v{ls+1}")
    S(f"v_rcp_f32 v{ls}, v{ls}")
    S("s_nop 7")
    k = 0
    for dt in range(4):
        for t in range(2):
            D = T + 8 + 4 * (k & 1)
            k += 1
            for j in range(8):
                S(f"v_accvgpr_read_b32 v{T+j}, a{oreg(qt, dt) + 8*t + j}")
            for j in range(8):
                S(f"v_mul_f32 v{T+j}, v{T+j}, v{ls}")
            for u in range(4):
                S(f"v_cvt_pk_bf16_f32 v{D+u}, v{T+2*u}, v{T+2*u+1}")
            S(f"buffer_store_dwordx4 {vr(D,4)}, v{V_CST}, {sr(SRD_CTX,4)}, s{so} offen offset:{dt*1024 + t*512} {flavor}")


def p3_prologue(nm):
    A = Seg()
    A("s_waitcnt vmcnt(8) lgkmcnt(0)\ns_barrier")
    for g in kv_dma("K", 2, 3) + kv_dma("V", 1, 2) + kv_dma("K", 3, 0) + kv_dma("V", 2, 3):
        A.add(g)
    A(f"v_xor_b32 v{V_T+4}, 0x8000, v{V_KA}")
    for f in range(16):
        A(f"ds_read_b128 {ar(A_K + 4*f, 4)}, v{V_T+4} offset:{16384 + 1024*f}")
    for qt in range(2):
        for p in range(4):
            for e in range(2):
                for u in range(4):
                    a = acc2(2 * p + (u >> 1), 2 * qt + e) + 2 * (u & 1)
                    A(f"v_cvt_pk_bf16_f32 v{qreg(qt, 2*p+e) + u}, v{a}, v{a+1}")
    for qt in range(2):
        for p in range(4):
            for u in range(4):
                A(f"v_permlane16_swap_b32 v{qreg(qt, 2*p) + u}, v{qreg(qt, 2*p+1) + u}")
    for qt in range(2):
        A(f"v_mov_b32 v{V_LS[qt]}, 0\nv_mov_b32 v{V_LS[qt]+1}, 0")
    A.add(qk_mfmas(0, [0, 1], czero=True))
    A("s_waitcnt vmcnt(8)\ns_barrier")
    for g in kv_dma("K", 4, 1) + kv_dma("V", 3, 0):
        A.add(g)
    for f in range(16):
        A(rd_k(f, 0))
    A(f"s_mov_b32 s{S_KVO}, {5*16384}\ns_mov_b32 s{S_N1}, 1\ns_mov_b32 s{S_TMP}, 0")
    A(f"s_cmp_eq_u32 s{S_ND}, 2\ns_cbranch_scc1 L_{nm}_pmask")
    M = Seg()
    M(f"L_{nm}_pmask:\ns_nop 7")
    mask_code(M, 0, 1, S_TMP)
    M(f"s_branch L_{nm}_pmask_ret")
    B = Seg()
    B(f"L_{nm}_pmask_ret:")
    B.add(max_stream(0, [0, 1]))
    for qt in range(2):
        rowmax_code(B, qt, False)
        for r in range(16):
            B(f"v_sub_f32 v{V_NM+16*qt+r}, 0, v{V_T+2}")
        for kvh in range(2):
            for r in range(16):
                x = sreg(0, kvh, qt) + r
                B(f"v_sub_f32 v{x}, v{x}, v{V_T+2}")
    B.add(exp_stream(0, all_pairs([0, 1])[:NA[2]]))
    B(f"s_sub_u32 s{S_CNT}, s{S_ND}, 1")
    return A, M, B


def p3(nm, st):
    PA, PM, PB = p3_prologue(nm)
    st(PB)
    D0, D1 = Body(nm + "_d0", 0, [0, 1], [0, 1]), Body(nm + "_d1", 1, [0, 1], [0, 1])
    MX = Body(nm + "_mx", 1, [0], [0, 1])
    S0, S1 = Body(nm + "_s0", 0, [0], [0]), Body(nm + "_s1", 1, [0], [0])
    LA = Body(nm + "_la", 1, [], [0])
    lab = lambda s: Seg()(s)
    hD = lab(f".p2align 5\nL_{nm}_dual:")
    tD0 = lab(f"s_sub_u32 s{S_CNT}, s{S_CNT}, 1\ns_cmp_eq_u32 s{S_CNT}, 0\ns_cbranch_scc1 L_{nm}_mixed")
    tD1 = lab(f"s_sub_u32 s{S_CNT}, s{S_CNT}, 1\ns_branch L_{nm}_dual")
    hM = lab(f"L_{nm}_mixed:")
    EP_S = Seg()
    st(EP_S)
    epilogue(EP_S, 1, S_CS)
    st(EP_S)
    EP_S(f"s_sub_u32 s{S_CNT}, s{S_NT}, s{S_ND}\ns_sub_u32 s{S_CNT}, s{S_CNT}, 1")
    hS = lab(f".p2align 5\nL_{nm}_single:")
    tS0 = lab(f"s_sub_u32 s{S_CNT}, s{S_CNT}, 1\ns_cmp_eq_u32 s{S_CNT}, 0\ns_cbranch_scc1 L_{nm}_last")
    tS1 = lab(f"s_sub_u32 s{S_CNT}, s{S_CNT}, 1\ns_branch L_{nm}_single")
    hL = lab(f"L_{nm}_last:")
    EP_L = Seg()
    st(EP_L)
    epilogue(EP_L, 0, S_CL)
    st(EP_L)
    lin = [PA, PB, hD] + D0.segs + [tD0] + D1.segs + [tD1, hM] + MX.segs + [EP_S, hS] + S0.segs + [tS0] + \
        S1.segs + [tS1, hL] + LA.segs + [EP_L]
    ool = [PM]
    for b in (D0, D1, MX, S0, S1):
        ool += b.out_of_line()
    traces = []
    for rare in (False, True):
        for nloop in (0, 1, 2):
            t = [PA] + ([PM] if rare else []) + [PB]
            for _ in range(nloop):
                t += D0.trace(rare) + [tD0] + D1.trace(rare) + [tD1]
            t += D0.trace(rare) + [tD0] + MX.trace(rare) + [EP_S]
            for _ in range(nloop):
                t += S0.trace(rare) + [tS0] + S1.trace(rare) + [tS1]
            t += S0.trace(rare) + [tS0] + LA.trace(rare) + [EP_L]
            traces.append(t)
    return lin, ool, traces


def standalone(name):
    H = Seg()
    H(kernel_header(name))
    H(f"s_cmp_ge_u32 s2, 256\ns_cbranch_scc1 L_{name}_end")
    st = Stamps(8, 4, 1)
    st(H)
    setup(H)
    p2_prologue(H)
    st(H)
    p2_body(H)
    st(H)
    lin, ool, traces = p3(name, st)
    E = Seg()
    st.dump(E, 40, S_W)
    E(f"L_{name}_end:\ns_endpgm")
    exp_filter([H] + lin)
    resolve([[H] + t for t in traces])
    return text_of([H] + lin + [E] + ool) + kernel_desc(name), 147456
```

```python
from common import *

S_W = 3
SRD_CX = 8
SRD_WO = 12
SRD_XI = 16
SRD_Y = 20
SRD_OUT = 24
SRD_G = 28
S_CO = 64
S_WO = 65
S_MW = 66
S_CNT = 67
S_T = 68
S_XO = 74
S_YO = 75
S_GO = 76

V_L = 1
V_CD = 2
V_WD = 4
V_WA = 8
V_XV = 16
V_YV = 17
V_ACC = 20
V_WF = 52
V_X = 84
V_Y = 100
V_G = 116
V_A = 120
V_T = 152
A_C = 0

NS = 32


def acc(ct, rt):
    return V_ACC + (ct * 2 + rt) * 4


def setup(S):
    S(f"s_load_dwordx2 s[32:33], s[0:1], {KA_Q}")
    S(f"s_load_dwordx2 s[34:35], s[0:1], {KA_WO}")
    S(f"s_load_dwordx2 s[36:37], s[0:1], {KA_OUT}")
    S(f"s_load_dwordx2 s[40:41], s[0:1], {KA_WS}")
    T, t, l = V_T, S_T, V_L
    S(f"v_lshrrev_b32 v{T}, 6, v0")
    S(f"v_and_b32 v{l}, 63, v0")
    S(f"v_readfirstlane_b32 s{S_W}, v{T}")
    S(f"s_and_b32 s{t}, s2, 3")
    S(f"s_lshl_b32 s{t}, s{t}, 2")
    S(f"s_bfe_u32 s{t+1}, s2, 0x20003")
    S(f"s_add_u32 s{t}, s{t}, s{t+1}")
    S(f"s_bfe_u32 s{t+1}, s2, 0x10002")
    S(f"s_lshl_b32 s{t+1}, s{t+1}, 3")
    S(f"s_lshr_b32 s{t+2}, s2, 5")
    S(f"s_add_u32 s{t+1}, s{t+1}, s{t+2}")
    S(f"s_lshl_b32 s{t+2}, s{t}, 2")
    S(f"s_add_u32 s{t+2}, s{t+2}, s{S_W}")
    S(f"s_lshl_b32 s{S_CO}, s{t+2}, 18")
    S(f"s_lshl_b32 s{S_WO}, s{S_W}, 16")
    S(f"s_lshl_b32 s{t+3}, s{t+1}, 7")
    S(f"s_add_u32 s{S_WO}, s{S_WO}, s{t+3}")
    S(f"s_lshl_b32 s{S_MW}, s{S_W}, 12")
    S(f"s_lshl_b32 s{S_XO}, s{t+2}, 16")
    S(f"s_add_u32 s{S_XO}, s{S_XO}, s{t+3}")
    S(f"s_lshl_b32 s{S_YO}, s{t+1}, 18")
    S(f"s_lshl_b32 s{t+3}, s{t+2}, 8")
    S(f"s_add_u32 s{S_YO}, s{S_YO}, s{t+3}")
    S(f"s_lshl_b32 s{S_GO}, s{t+2}, 7")
    S(f"v_lshlrev_b32 v{V_CD}, 4, v{l}")
    S(f"v_add_u32 v{V_CD+1}, 0x20000, v{V_CD}")
    S(f"v_lshrrev_b32 v{T}, 3, v{l}")
    S(f"v_lshlrev_b32 v{T}, 11, v{T}")
    S(f"v_lshrrev_b32 v{T+1}, 4, v{l}")
    S(f"v_lshlrev_b32 v{T+2}, 1, v{T+1}")
    S(f"v_and_b32 v{T+3}, 7, v{l}")
    S(f"v_xor_b32 v{T+2}, v{T+2}, v{T+3}")
    S(f"v_lshl_add_u32 v{T}, v{T+2}, 4, v{T}")
    for i in range(4):
        S(f"v_add_u32 v{V_WD+i}, {16384*i - 1024*i}, v{T}")
    S(f"v_bfe_u32 v{T}, v{l}, 2, 2")
    S(f"v_and_b32 v{T+2}, 1, v{T+1}")
    S(f"v_lshrrev_b32 v{T+3}, 1, v{T}")
    S(f"v_lshl_add_u32 v{T+3}, v{T+2}, 1, v{T+3}")
    S(f"v_lshl_add_u32 v{T}, v{T+2}, 2, v{T}")
    S(f"v_lshrrev_b32 v{T+4}, 5, v{l}")
    S(f"v_lshl_add_u32 v{T}, v{T+4}, 4, v{T}")
    S(f"v_lshlrev_b32 v{T}, 7, v{T}")
    S(f"v_and_b32 v{T+5}, 3, v{l}")
    S(f"v_lshl_add_u32 v{T}, v{T+5}, 3, v{T}")
    for ct in range(4):
        S(f"v_xor_b32 v{T+5}, {ct}, v{T+3}")
        S(f"v_lshl_add_u32 v{V_WA+ct}, v{T+5}, 5, v{T}")
        S(f"v_add_u32 v{V_WA+4+ct}, 0x10000, v{V_WA+ct}")
    S(f"v_and_b32 v{T}, 15, v{l}")
    S(f"v_lshlrev_b32 v{T+5}, 5, v{T+2}")
    S(f"v_lshl_add_u32 v{T+5}, v{T+4}, 4, v{T+5}")
    S(f"v_lshl_add_u32 v{V_XV}, v{T}, 11, v{T+5}")
    S(f"v_lshlrev_b32 v{T+5}, 11, v{T+5}")
    S(f"v_lshl_add_u32 v{V_YV}, v{T}, 3, v{T+5}")
    S(f"v_lshlrev_b32 v{V_T+6}, 2, v{T}")
    S("s_waitcnt lgkmcnt(0)")
    srd(S, SRD_CX, 40, 16 * MB, off=WS_CTX)
    srd(S, SRD_WO, 34, 4096 * 1024 * 2)
    srd(S, SRD_XI, 32, 2048 * 1024 * 2)
    srd(S, SRD_Y, 40, 4 * MB, off=WS_Y4)
    srd(S, SRD_OUT, 36, 2048 * 1024 * 2)
    srd(S, SRD_G, 40, 8192, off=WS_G)


def ld_ctx(ring, kq, rt):
    return f"buffer_load_dwordx4 {ar(A_C + ring*32 + (kq*2 + rt)*4, 4)}, v{V_CD+rt}, {sr(SRD_CX,4)}, s{S_CO} offen offset:{1024*kq}"


def dma_w(slot, i):
    g = [f"s_add_u32 m0, s{S_MW}, {slot*16384}"] if i == 0 else []
    return g, f"buffer_load_dwordx4 v{V_WD+i}, {sr(SRD_WO,4)}, s{S_WO} offen offset:{1024*i} lds"


ADV = [f"s_add_u32 s{S_CO}, s{S_CO}, 4096", f"s_add_u32 s{S_WO}, s{S_WO}, {128*2048}"]


def rd_w(slot, kq, ct):
    va = V_WA + ct + (4 if slot >= 4 else 0)
    return [f"ds_read_b64_tr_b16 {vr(V_WF + (kq & 1)*16 + ct*4 + 2*a, 2)}, v{va} offset:{(slot & 3)*16384 + (32*kq + 8*a)*128}"
            for a in range(2)]


def ep_loads():
    out = []
    for rt in range(2):
        out.append([f"s_add_u32 s{S_T}, s{S_XO}, {rt*32768}"] +
                   [f"buffer_load_dwordx4 {vr(V_X + (rt*2 + pr)*4, 4)}, v{V_XV}, {sr(SRD_XI,4)}, s{S_T} offen offset:{64*pr}"
                    for pr in range(2)])
        out.append([f"buffer_load_dword v{V_G+rt}, v{V_T+6}, {sr(SRD_G,4)}, s{S_GO} offen offset:{64*rt}"])
        for pr in range(2):
            for e in range(2):
                out.append([f"s_add_u32 s{S_T}, s{S_YO}, {(8*pr + e)*16384}",
                            f"buffer_load_dwordx2 {vr(V_Y + ((rt*2 + pr)*2 + e)*2, 2)}, v{V_YV}, {sr(SRD_Y,4)}, s{S_T} offen offset:{128*rt}"])
    return out


def ep_pre():
    out = []
    T = V_T
    for rt in range(2):
        out.append(f"v_sub_f32 v{V_G+2+rt}, 1.0, v{V_G+rt}")
        for pr in range(2):
            for u in range(4):
                x = V_X + (rt * 2 + pr) * 4 + u
                y = V_Y + (rt * 2 + pr) * 4 + u
                a = V_A + (rt * 2 + pr) * 8 + 2 * u
                out += [f"v_lshlrev_b32 v{a}, 16, v{x}", f"v_lshlrev_b32 v{T}, 16, v{y}",
                        f"v_and_b32 v{a+1}, 0xffff0000, v{x}", f"v_and_b32 v{T+1}, 0xffff0000, v{y}",
                        f"v_mul_f32 v{a}, v{a}, v{T}", f"v_mul_f32 v{a+1}, v{a+1}, v{T+1}",
                        f"v_mul_f32 v{a}, v{a}, v{V_G+rt}", f"v_mul_f32 v{a+1}, v{a+1}, v{V_G+rt}"]
    return out


def stage(u, first=False, more=True, nxt=True, fill=None):
    S = Seg()
    slot, ring = u & 7, u & 3
    for kq in range(4):
        mf = []
        for ct in range(4):
            for rt in range(2):
                mf.append(mfma16(vr(acc(ct, rt), 4), vr(V_WF + (kq & 1) * 16 + ct * 4, 4),
                                 ar(A_C + ring * 32 + (kq * 2 + rt) * 4, 4), "0" if (first and kq == 0) else None))
        g = [[] for _ in mf]
        head = []
        if kq < 3:
            rd = [x for ct in range(4) for x in rd_w(slot, kq + 1, ct)]
        elif nxt:
            rd = [x for ct in range(4) for x in rd_w((slot + 1) & 7, 0, ct)]
            head = ["@vm", "s_barrier"]
        else:
            rd = []
        spread(g, rd, 0, 6)
        if more:
            pre, d = dma_w((slot + 4) & 7, kq)
            g[2] += pre
            g[4].append(d)
            g[6].append(ld_ctx(ring, kq, 0))
            g[7].append(ld_ctx(ring, kq, 1))
            if kq == 3:
                g[7] += ADV
        if fill:
            fill(kq, g)
        S.add(interleave(mf, g, [h for h in head if h != "@vm"] if False else
                         [(f"s_waitcnt vmcnt({fill_vm(more, u)})" if h == "@vm" else h) for h in head]))
    return S


VM_STEADY = 12 + 12 + 9 + 2


def fill_vm(more, u):
    if more:
        return VM_STEADY
    return {4: 12 + 12 + 2, 5: 12 + 2, 6: 2}[u]


def prologue(S):
    for n in range(4):
        for kq in range(4):
            pre, d = dma_w(n, kq)
            S.add(pre + [d, ld_ctx(n, kq, 0), ld_ctx(n, kq, 1)])
        S.add(ADV)
    S("s_waitcnt vmcnt(38)\ns_barrier")
    for ct in range(4):
        S.add(rd_w(0, 0, ct))


def epilogue(S):
    for rt in range(2):
        for pr in range(2):
            for r in range(4):
                S(f"v_permlane16_swap_b32 v{acc(2*pr, rt) + r}, v{acc(2*pr+1, rt) + r}")
    for rt in range(2):
        S(f"s_add_u32 s{S_T}, s{S_XO}, {rt*32768}")
        for pr in range(2):
            a = V_A + (rt * 2 + pr) * 8
            for j in range(8):
                S(f"v_fma_f32 v{a+j}, v{acc(2*pr + (j >> 2), rt) + (j & 3)}, v{V_G+2+rt}, v{a+j}")
            D = V_X + (rt * 2 + pr) * 4
            for u in range(4):
                S(f"v_cvt_pk_bf16_f32 v{D+u}, v{a+2*u}, v{a+2*u+1}")
            S(f"buffer_store_dwordx4 {vr(D,4)}, v{V_XV}, {sr(SRD_OUT,4)}, s{S_T} offen offset:{64*pr}")


def body(nm, st):
    P = Seg()
    for g in ep_loads():
        P.add(g)
    prologue(P)
    st(P)
    A = [stage(u, first=(u == 0)) for u in range(8)]
    hL = Seg()(f"s_mov_b32 s{S_CNT}, 2\n.p2align 5\nL_{nm}_loop:")
    B = [stage(u) for u in range(8)]
    tL = Seg()(f"s_sub_u32 s{S_CNT}, s{S_CNT}, 1\ns_cmp_lg_u32 s{S_CNT}, 0\ns_cbranch_scc1 L_{nm}_loop")
    pre = ep_pre()
    chunks = [pre[i * len(pre) // 16:(i + 1) * len(pre) // 16] for i in range(16)]
    C = []
    for u in range(8):
        f = None
        if u < 4:
            f = lambda kq, g, u=u: spread(g, chunks[u * 4 + kq], 0, 8)
        C.append(stage(u, more=(u < 4), nxt=(u < 7), fill=f))
    E = Seg()
    st(E)
    epilogue(E)
    lin = [P] + A + [hL] + B + [tL] + C + [E]
    traces = [[P] + A + [hL] + B + [tL] + B + [tL] + C + [E]]
    return lin, traces


def standalone(name):
    H = Seg()
    H(kernel_header(name))
    H(f"s_cmp_ge_u32 s2, 256\ns_cbranch_scc1 L_{name}_end")
    st = Stamps(44, 4, 3)
    st(H)
    setup(H)
    lin, traces = body(name, st)
    E = Seg()
    st.dump(E, 40, S_W)
    E(f"L_{name}_end:\ns_endpgm")
    exp_filter([H] + lin)
    resolve([[H] + t for t in traces])
    return text_of([H] + lin + [E]) + kernel_desc(name), 131072
```

```python
import sys
from common import *
import p1

def build(parts, out):
    launches, body = [], []
    for name, fn in parts:
        txt, lds = fn(name)
        launches.append(f"; @launch kernel={name} grid=(256,1,1) block=(256,1,1) lds={lds}")
        body.append(txt)
    hdr = "\n".join(launches) + '\n.amdgcn_target "amdgcn-amd-amdhsa--gfx950"\n.text\n'
    open(out, "w").write(hdr + "".join(body))

if __name__ == "__main__":
    which = sys.argv[1].split(",")
    table = {"a": ("ka_kernel", p1.standalone)}
    try:
        import p23; table["b"] = ("kb_kernel", p23.standalone)
    except ImportError: pass
    try:
        import p5; table["d"] = ("kd_kernel", p5.standalone)
    except ImportError: pass
    try:
        import p04; table["z"] = ("kz_kernel", p04.standalone_p0); table["c"] = ("kc_kernel", p04.standalone_p4)
    except ImportError: pass
    build([table[w] for w in which], sys.argv[2])
```

```python
from common import *

def trivial(name):
    H = Seg(); H(kernel_header(name)); H("s_endpgm")
    return text_of([H]) + kernel_desc(name, vgpr=8, accum=8), 0

def writer(name, off=128*MB, per=131072, flavor="sc1"):
    H = Seg(); H(kernel_header(name))
    H(f"s_cmp_ge_u32 s2, 256\ns_cbranch_scc1 L_{name}_end")
    H(f"s_load_dwordx2 s[40:41], s[0:1], {KA_WS}\ns_waitcnt lgkmcnt(0)")
    srd(H, 8, 40, 64*MB, off=off)
    H(f"v_lshlrev_b32 v1, 4, v0\ns_mul_i32 s19, s2, {per}\ns_add_u32 s20, s19, {per}")
    H("v_mov_b32 v8, v0\nv_mov_b32 v9, v0\nv_mov_b32 v10, v0\nv_mov_b32 v11, v0")
    H(f"L_{name}_l:")
    for i in range(4):
        H(f"buffer_store_dwordx4 v[8:11], v1, s[8:11], s19 offen {flavor}\ns_add_u32 s19, s19, 4096")
    H(f"s_cmp_lt_u32 s19, s20\ns_cbranch_scc1 L_{name}_l")
    H(f"L_{name}_end:\ns_endpgm")
    return text_of([H]) + kernel_desc(name, vgpr=16, accum=16), 0

def reader(name):
    H = Seg(); H(kernel_header(name))
    H(f"s_cmp_ge_u32 s2, 256\ns_cbranch_scc1 L_{name}_end")
    H("v_lshlrev_b32 v1, 4, v0")
    k = 0
    for ka, size in [(KA_C, 2), (KA_WUK, 4), (KA_WUV, 4), (KA_Q, 4), (KA_K, 4), (KA_V, 4), (KA_WQ, 8), (KA_SSMK, 4), (KA_WO, 8)]:
        H(f"s_load_dwordx2 s[40:41], s[0:1], {ka}\ns_waitcnt lgkmcnt(0)")
        srd(H, 8, 40, size*MB)
        per = size*MB//256
        H(f"s_mul_i32 s19, s2, {per}")
        for i in range(per//4096):
            H(f"buffer_load_dwordx4 v[{8+4*(k%12)}:{11+4*(k%12)}], v1, s[8:11], s19 offen\ns_add_u32 s19, s19, 4096")
            k += 1
    H("s_waitcnt vmcnt(0)")
    H(f"L_{name}_end:\ns_endpgm")
    return text_of([H]) + kernel_desc(name, vgpr=64, accum=64), 0
```

```python
import sys
from common import *
import p1

def build(parts, out):
    launches, body = [], []
    seen = {}
    for name, fn in parts:
        if name not in seen:
            txt, seen[name] = fn(name)
            body.append(hdiag_wrap(txt, name, len(launches), len(parts)))
        launches.append(f"; @launch kernel={name} grid=(256,1,1) block=(256,1,1) lds={seen[name]}")
    hdr = "\n".join(launches) + '\n.amdgcn_target "amdgcn-amd-amdhsa--gfx950"\n.text\n'
    open(out, "w").write(hdr + "".join(body))

if __name__ == "__main__":
    which = sys.argv[1].split(",")
    table = {"a": ("ka_kernel", p1.standalone)}
    try:
        import p23; table["b"] = ("kb_kernel", p23.standalone)
    except ImportError: pass
    try:
        import p5; table["d"] = ("kd_kernel", p5.standalone)
    except ImportError: pass
    try:
        import p04; table["z"] = ("kz_kernel", p04.standalone_p0); table["c"] = ("kc_kernel", p04.standalone_p4)
    except ImportError: pass
    import probes
    table["T"] = ("kt_kernel", probes.trivial); table["W"] = ("kw_kernel", probes.writer); table["R"] = ("kr_kernel", probes.reader)
    table["W0"] = ("kw0_kernel", lambda n: probes.writer(n, off=0))
    build([table[w] for w in which], sys.argv[2])
```

```python
from asmlib import *

KA_Q, KA_K, KA_V, KA_SHIFT, KA_SSMK, KA_SSMD, KA_BX, KA_C, KA_WQ, KA_WUK, KA_WUV, KA_WO, KA_GW, KA_OUT, KA_DBG, KA_WS = \
    [8 * i for i in range(16)]

MB = 1 << 20
WS_KF = 0
WS_VF = 16 * MB
WS_CTX = 32 * MB
WS_UR = 48 * MB
WS_Y4 = 52 * MB
WS_G = 56 * MB
WS_FLAG = 57 * MB

SCALE_K = 0x3e0293ee
import struct, math
assert struct.unpack("<I", struct.pack("<f", math.log2(math.e) / math.sqrt(128.0)))[0] == SCALE_K


def vr(b, n=1):
    return f"v{b}" if n == 1 else f"v[{b}:{b+n-1}]"


def ar(b, n=1):
    return f"a{b}" if n == 1 else f"a[{b}:{b+n-1}]"


def sr(b, n=1):
    return f"s{b}" if n == 1 else f"s[{b}:{b+n-1}]"


def srd(S, d, ptr, nbytes, off=None):
    if off is None:
        S(f"s_mov_b32 s{d}, s{ptr}\ns_mov_b32 s{d+1}, s{ptr+1}")
    else:
        S(f"s_add_u32 s{d}, s{ptr}, {off}\ns_addc_u32 s{d+1}, s{ptr+1}, 0")
    S(f"s_mov_b32 s{d+2}, {nbytes}\ns_mov_b32 s{d+3}, 0x20000")


def mfma16(d, a, b, c=None):
    return f"v_mfma_f32_16x16x32_bf16 {d}, {a}, {b}, {d if c is None else c}"


def mfma32(d, a, b, c=None):
    return f"v_mfma_f32_32x32x16_bf16 {d}, {a}, {b}, {d if c is None else c}"


def kernel_header(name):
    return f".globl {name}\n.p2align 8\n.type {name},@function\n{name}:"


def kernel_desc(name, vgpr=512, accum=256, sgpr=102):
    return (f'.section .rodata,"a"\n.p2align 6\n.amdhsa_kernel {name}\n'
            f"  .amdhsa_next_free_vgpr {vgpr}\n  .amdhsa_next_free_sgpr {sgpr}\n  .amdhsa_accum_offset {accum}\n"
            "  .amdhsa_group_segment_fixed_size 0\n  .amdhsa_kernarg_size 128\n  .amdhsa_user_sgpr_count 2\n"
            "  .amdhsa_user_sgpr_kernarg_segment_ptr 1\n  .amdhsa_system_sgpr_workgroup_id_x 1\n"
            "  .amdhsa_float_denorm_mode_32 3\n"
            ".end_amdhsa_kernel\n.text\n")


import os
DIAG = bool(os.environ.get("DIAG"))
WS_DIAG = 64 * MB


class Stamps:
    def __init__(self, base, tmp, region):
        self.base, self.tmp, self.region, self.n = base, tmp, region, 0

    def __call__(self, S):
        if not DIAG:
            return
        t = self.tmp
        S(f"s_memtime s[{t}:{t+1}]\ns_memrealtime s[{t+2}:{t+3}]\ns_waitcnt lgkmcnt(0)")
        S(f"s_mov_b32 s{self.base+2*self.n}, s{t}\ns_mov_b32 s{self.base+2*self.n+1}, s{t+2}")
        self.n += 1

    def dump(self, S, wsptr, wave_sgpr):
        if not DIAG:
            return
        t = self.tmp
        S("s_waitcnt vmcnt(0)")
        self(S)
        srd(S, t, wsptr, MB, off=WS_DIAG + self.region * MB)
        S(f"s_lshl_b32 s{wsptr}, s2, 2\ns_add_u32 s{wsptr}, s{wsptr}, s{wave_sgpr}\ns_lshl_b32 s{wsptr}, s{wsptr}, 7")
        S("v_mov_b32 v2, 0")
        for k in range(2 * self.n):
            S(f"v_mov_b32 v3, s{self.base+k}")
            S(f"buffer_store_dword v3, v2, s[{t}:{t+3}], s{wsptr} offen offset:{4*k}")
            S("s_nop 1")


EXP = set(os.environ.get("EXP", "").split(","))


def exp_filter(segs):
    if not (EXP - {""}):
        return
    for s in segs:
        keep = []
        for i in s:
            if "nodma" in EXP and i.kind == "dma":
                continue
            if "nobar" in EXP and i.op == "s_barrier":
                continue
            if "novm" in EXP and i.kind == "wait" and "vmcnt" in i.text:
                i = I(re.sub(r"vmcnt\(\d+\)", "vmcnt(63)", i.text))
            if "nods" in EXP and i.kind == "dsr":
                continue
            if "noexp" in EXP and i.op.startswith("v_exp"):
                continue
            if "nomax" in EXP and i.op.startswith("v_max3"):
                continue
            if "noadd" in EXP and i.op == "v_add_f32":
                continue
            keep.append(i)
        s[:] = keep


HDIAG = bool(os.environ.get("HDIAG"))


def hdiag_wrap(txt, name, idx):
    if not HDIAG:
        return txt
    txt = txt.replace(f"{name}:\n", f"{name}:\ns_memrealtime s[4:5]\ns_waitcnt lgkmcnt(0)\n", 1)
    tail = (f"s_waitcnt vmcnt(0) lgkmcnt(0)\ns_memrealtime s[6:7]\ns_load_dwordx2 s[8:9], s[0:1], {KA_DBG}\ns_waitcnt lgkmcnt(0)\n"
            f"s_sub_u32 s8, s8, {512*idx}\ns_subb_u32 s9, s9, 0\ns_mov_b32 s10, 256\ns_mov_b32 s11, 0x20000\n"
            "s_not_b32 s4, s4\nv_mov_b32 v2, s4\nv_mov_b32 v3, s6\nv_and_b32 v4, 63, v0\nv_lshlrev_b32 v4, 10, v4\ns_nop 4\n"
            f"buffer_atomic_umax v2, v4, s[8:11], 0 offen offset:{8*idx}\nbuffer_atomic_umax v3, v4, s[8:11], 0 offen offset:{8*idx+4}\n"
            "s_waitcnt vmcnt(0)\ns_endpgm\n")
    lines = txt.split("\n")
    out = []
    for k, l in enumerate(lines):
        if l.strip() == "s_endpgm" and not lines[k - 1].strip().endswith("_end:"):
            out.append(tail)
        elif l.strip() == "s_endpgm":
            out[-1:] = [tail, lines[k - 1], l]
        else:
            out.append(l)
    return "\n".join(out)
```

```python
from asmlib import *

KA_Q, KA_K, KA_V, KA_SHIFT, KA_SSMK, KA_SSMD, KA_BX, KA_C, KA_WQ, KA_WUK, KA_WUV, KA_WO, KA_GW, KA_OUT, KA_DBG, KA_WS = \
    [8 * i for i in range(16)]

MB = 1 << 20
WS_KF = 0
WS_VF = 16 * MB
WS_CTX = 32 * MB
WS_UR = 48 * MB
WS_Y4 = 52 * MB
WS_G = 56 * MB
WS_FLAG = 57 * MB

SCALE_K = 0x3e0293ee
import struct, math
assert struct.unpack("<I", struct.pack("<f", math.log2(math.e) / math.sqrt(128.0)))[0] == SCALE_K


def vr(b, n=1):
    return f"v{b}" if n == 1 else f"v[{b}:{b+n-1}]"


def ar(b, n=1):
    return f"a{b}" if n == 1 else f"a[{b}:{b+n-1}]"


def sr(b, n=1):
    return f"s{b}" if n == 1 else f"s[{b}:{b+n-1}]"


def srd(S, d, ptr, nbytes, off=None):
    if off is None:
        S(f"s_mov_b32 s{d}, s{ptr}\ns_mov_b32 s{d+1}, s{ptr+1}")
    else:
        S(f"s_add_u32 s{d}, s{ptr}, {off}\ns_addc_u32 s{d+1}, s{ptr+1}, 0")
    S(f"s_mov_b32 s{d+2}, {nbytes}\ns_mov_b32 s{d+3}, 0x20000")


def mfma16(d, a, b, c=None):
    return f"v_mfma_f32_16x16x32_bf16 {d}, {a}, {b}, {d if c is None else c}"


def mfma32(d, a, b, c=None):
    return f"v_mfma_f32_32x32x16_bf16 {d}, {a}, {b}, {d if c is None else c}"


def kernel_header(name):
    return f".globl {name}\n.p2align 8\n.type {name},@function\n{name}:"


def kernel_desc(name, vgpr=512, accum=256, sgpr=102):
    return (f'.section .rodata,"a"\n.p2align 6\n.amdhsa_kernel {name}\n'
            f"  .amdhsa_next_free_vgpr {vgpr}\n  .amdhsa_next_free_sgpr {sgpr}\n  .amdhsa_accum_offset {accum}\n"
            "  .amdhsa_group_segment_fixed_size 0\n  .amdhsa_kernarg_size 128\n  .amdhsa_user_sgpr_count 2\n"
            "  .amdhsa_user_sgpr_kernarg_segment_ptr 1\n  .amdhsa_system_sgpr_workgroup_id_x 1\n"
            "  .amdhsa_float_denorm_mode_32 3\n"
            ".end_amdhsa_kernel\n.text\n")


import os
DIAG = bool(os.environ.get("DIAG"))
WS_DIAG = 64 * MB


class Stamps:
    def __init__(self, base, tmp, region):
        self.base, self.tmp, self.region, self.n = base, tmp, region, 0

    def __call__(self, S):
        if not DIAG:
            return
        t = self.tmp
        S(f"s_memtime s[{t}:{t+1}]\ns_memrealtime s[{t+2}:{t+3}]\ns_waitcnt lgkmcnt(0)")
        S(f"s_mov_b32 s{self.base+2*self.n}, s{t}\ns_mov_b32 s{self.base+2*self.n+1}, s{t+2}")
        self.n += 1

    def dump(self, S, wsptr, wave_sgpr):
        if not DIAG:
            return
        t = self.tmp
        S("s_waitcnt vmcnt(0)")
        self(S)
        srd(S, t, wsptr, MB, off=WS_DIAG + self.region * MB)
        S(f"s_lshl_b32 s{wsptr}, s2, 2\ns_add_u32 s{wsptr}, s{wsptr}, s{wave_sgpr}\ns_lshl_b32 s{wsptr}, s{wsptr}, 7")
        S("v_mov_b32 v2, 0")
        for k in range(2 * self.n):
            S(f"v_mov_b32 v3, s{self.base+k}")
            S(f"buffer_store_dword v3, v2, s[{t}:{t+3}], s{wsptr} offen offset:{4*k}")
            S("s_nop 1")


EXP = set(os.environ.get("EXP", "").split(","))


def exp_filter(segs):
    if not (EXP - {""}):
        return
    for s in segs:
        keep = []
        for i in s:
            if "nodma" in EXP and i.kind == "dma":
                continue
            if "nobar" in EXP and i.op == "s_barrier":
                continue
            if "novm" in EXP and i.kind == "wait" and "vmcnt" in i.text:
                i = I(re.sub(r"vmcnt\(\d+\)", "vmcnt(63)", i.text))
            if "nods" in EXP and i.kind == "dsr":
                continue
            if "noexp" in EXP and i.op.startswith("v_exp"):
                continue
            if "nomax" in EXP and i.op.startswith("v_max3"):
                continue
            if "noadd" in EXP and i.op == "v_add_f32":
                continue
            keep.append(i)
        s[:] = keep


HDIAG = bool(os.environ.get("HDIAG"))


def hdiag_wrap(txt, name, idx, nl):
    if not HDIAG:
        return txt
    txt = txt.replace(f"{name}:\n", f"{name}:\ns_memrealtime s[4:5]\ns_waitcnt lgkmcnt(0)\n", 1)
    tail = (f"s_waitcnt vmcnt(0) lgkmcnt(0)\ns_memrealtime s[6:7]\ns_load_dwordx2 s[8:9], s[0:1], {KA_DBG}\ns_waitcnt lgkmcnt(0)\n"
            f"s_add_u32 s8, s8, {512*(nl-1-idx)}\ns_addc_u32 s9, s9, 0\ns_mov_b32 s10, 256\ns_mov_b32 s11, 0x20000\n"
            "s_not_b32 s4, s4\nv_mov_b32 v2, s4\nv_mov_b32 v3, s6\ns_and_b32 s12, s2, 31\ns_cmp_lt_u32 s12, 2\ns_cbranch_scc0 L_hd_skip_%d_@\nv_lshlrev_b32 v4, 10, v0\ns_nop 4\n" % idx +
            f"buffer_atomic_umax v2, v4, s[8:11], 0 offen offset:{8*idx}\nbuffer_atomic_umax v3, v4, s[8:11], 0 offen offset:{8*idx+4}\n"
            f"s_waitcnt vmcnt(0)\nL_hd_skip_{idx}_@:\ns_endpgm\n")
    lines = txt.split("\n")
    out = []
    for k, l in enumerate(lines):
        if l.strip() == "s_endpgm" and not lines[k - 1].strip().endswith("_end:"):
            out.append(tail.replace("@", str(k)))
        elif l.strip() == "s_endpgm":
            out[-1:] = [tail.replace("@", str(k)), lines[k - 1], l]
        else:
            out.append(l)
    return "\n".join(out)
```

```python
import os
import re

REG_RE = re.compile(r"^(-|abs\()?([vas])(?:\[(\d+):(\d+)\]|(\d+))\)?$")


def parse_reg(tok):
    tok = tok.strip()
    if tok in ("vcc", "exec", "m0", "scc"):
        return [tok]
    if tok in ("vcc_lo", "vcc_hi"):
        return ["vcc"]
    if tok in ("exec_lo", "exec_hi"):
        return ["exec"]
    m = REG_RE.match(tok)
    if not m:
        return []
    k = m.group(2)
    if m.group(3) is not None:
        return [f"{k}{i}" for i in range(int(m.group(3)), int(m.group(4)) + 1)]
    return [f"{k}{m.group(5)}"]


TRANS = ("v_exp_f32", "v_log_f32", "v_rcp_f32", "v_rsq_f32", "v_sqrt_f32", "v_sin_f32", "v_cos_f32")


class I:
    def __init__(self, text, tag=None):
        text = text.strip()
        if "#" in text and not text.startswith("."):
            text, tag = [x.strip() for x in text.split("#", 1)]
        self.text = text
        self.tag = tag
        if text.startswith("@vmwait"):
            p = text.split()[1:]
            self.also_lgkm = "lgkm" in p
            self.groups = [x for x in p if x != "lgkm"]
            self.gn = None
            self.pre_lgkm = self.pre_vm = None
            self.pre_nop = 0
            self.is_label = self.is_dir = False
            self.op, self.reads, self.writes, self.kind = "@vmwait", [], [], "gwait"
            return
        self.pre_lgkm = None
        self.pre_vm = None
        self.pre_nop = 0
        t = self.text.split(";")[0].strip()
        self.is_label = t.endswith(":")
        self.is_dir = t.startswith(".") or t == ""
        self.op = ""
        self.reads, self.writes = [], []
        self.kind = "none"
        if self.is_label or self.is_dir:
            return
        parts = t.split(None, 1)
        self.op = op = parts[0]
        rest = parts[1] if len(parts) > 1 else ""
        ops = [x.strip() for x in rest.split(",")] if rest else []
        mods = []
        if ops:
            last = ops[-1].split()
            ops[-1] = last[0]
            mods = last[1:]
        self.ops, self.mods = ops, mods
        R = lambda i: parse_reg(ops[i]) if i < len(ops) else []
        allr = lambda a: [r for i in range(a, len(ops)) for r in R(i)]
        if op.startswith("v_mfma"):
            self.kind = "mfma"
            self.writes = R(0)
            self.srcA, self.srcB, self.srcC = R(1), R(2), R(3)
            self.reads = self.srcA + self.srcB + self.srcC
            self.passes = 8 if "32x32" in op else 4
        elif op.startswith("ds_read"):
            self.kind = "dsr"
            self.writes = R(0)
            self.reads = R(1)
        elif op.startswith("ds_write"):
            self.kind = "dsw"
            self.reads = allr(0)
        elif op.startswith("ds_bpermute") or op.startswith("ds_swizzle"):
            self.kind = "dsr"
            self.writes = R(0)
            self.reads = allr(1)
        elif op.startswith("buffer_load") or op.startswith("global_load"):
            if "lds" in mods:
                self.kind = "dma"
                self.reads = allr(0) + ["m0"]
            else:
                self.kind = "vld"
                self.writes = R(0)
                self.reads = allr(1)
        elif op.startswith("buffer_store") or op.startswith("global_store"):
            self.kind = "vst"
            self.reads = allr(0)
            self.wide = op.endswith("x4") or op.endswith("x3")
            self.data = R(0) if op.startswith("buffer") else R(1)
        elif op.startswith("buffer_atomic") or op.startswith("global_atomic"):
            self.kind = "vst"
            self.reads = allr(0)
            self.wide = False
            self.data = []
            if "sc0" in mods:
                self.kind = "vld"
                self.writes = R(0)
        elif op.startswith("buffer_wbl2") or op.startswith("buffer_inv"):
            self.kind = "vst"
            self.wide = False
            self.data = []
        elif op.startswith("v_"):
            self.kind = "valu"
            self.writes = R(0)
            self.reads = allr(1)
            if op.startswith("v_cmp"):
                pass
            elif op.startswith("v_fmac") or op.startswith("v_dot2c") or op.startswith("v_writelane"):
                self.reads += R(0)
            elif op.startswith("v_permlane") and "swap" in op:
                self.reads = R(0) + R(1)
                self.writes = R(0) + R(1)
            elif op.startswith("v_cndmask") and len(ops) == 3:
                self.reads += ["vcc"]
            elif op.startswith("v_add_co") or op.startswith("v_addc_co") or op.startswith("v_sub_co"):
                self.writes = R(0) + R(1)
                self.reads = allr(2)
            if any(m.startswith("row_") or m.startswith("quad_perm") or m.startswith("wave_") for m in mods):
                self.dpp = True
                self.reads += R(0)
            self.trans = op.replace("_e32", "").replace("_e64", "") in TRANS
        elif op == "s_waitcnt":
            self.kind = "wait"
        elif op == "s_nop":
            self.kind = "nop"
            self.n = int(ops[0], 0) + 1
        elif op.startswith("s_load") or op.startswith("s_mem"):
            self.kind = "smem"
            self.writes = R(0)
            self.reads = allr(1)
        elif op.startswith("s_cmp") or op.startswith("s_bitcmp"):
            self.kind = "salu"
            self.reads = allr(0)
        elif op.startswith("s_cbranch") or op in ("s_branch", "s_barrier", "s_endpgm", "s_setprio", "s_sleep",
                                                   "s_setpc_b64"):
            self.kind = "ctl"
            if "vcc" in op:
                self.reads = ["vcc"]
        elif op.startswith("s_"):
            self.kind = "salu"
            self.writes = R(0)
            self.reads = allr(1)
        else:
            raise ValueError("unknown op " + text)

    def emit(self):
        out = []
        if self.kind == "gwait":
            w = []
            if self.gn is not None:
                w.append(f"vmcnt({self.gn})")
            if self.also_lgkm:
                w.append("lgkmcnt(0)")
            return ["s_waitcnt " + " ".join(w)] if w else ["s_nop 0"]
        w = []
        if self.pre_vm is not None:
            w.append(f"vmcnt({self.pre_vm})")
        if self.pre_lgkm is not None:
            w.append(f"lgkmcnt({self.pre_lgkm})")
        if w:
            out.append("s_waitcnt " + " ".join(w))
        n = self.pre_nop
        while n > 0:
            k = min(n, 16)
            out.append(f"s_nop {k-1}")
            n -= k
        out.append(self.text if (self.is_label or self.is_dir) else "  " + self.text)
        return out


class Seg(list):
    def __call__(self, text, tag=None):
        for line in text.split("\n"):
            line = line.strip()
            if line:
                self.append(I(line, tag))
        return self

    def add(self, items):
        for x in items:
            if isinstance(x, str):
                self(x)
            else:
                self.append(x)
        return self


def mk(items):
    s = Seg()
    s.add(items)
    return list(s)


def interleave(mf, gaps, head=()):
    s = Seg()
    s.add(head)
    for m, g in zip(mf, gaps):
        s.add([m])
        s.add(g)
    return s


def spread(gaps, items, lo, hi):
    n = len(items)
    if n == 0:
        return
    span = hi - lo
    for k, it in enumerate(items):
        g = lo + (k * span) // n
        if isinstance(it, (list, tuple)):
            gaps[g].extend(it)
        else:
            gaps[g].append(it)


WAIT_RE = re.compile(r"(vmcnt|lgkmcnt)\((\d+)\)")


def lg_after(lg, n):
    if n == 0:
        return []
    keep, k = [], 0
    for e in reversed(lg):
        if "$smem" in e:
            keep.append(e)
        elif k < n:
            keep.append(e)
            k += 1
    return keep[::-1]


def _walk_waits(trace, fix):
    lg, vm = [], []
    seen_tags = set()
    changes = 0
    for ins in trace:
        if ins.is_label or ins.is_dir:
            continue
        if ins.pre_lgkm is not None:
            lg = lg_after(lg, ins.pre_lgkm)
        if ins.pre_vm is not None:
            vm = vm[len(vm) - ins.pre_vm:] if ins.pre_vm < len(vm) else vm
            if ins.pre_vm == 0:
                vm = []
        if ins.kind == "wait":
            for c, n in WAIT_RE.findall(ins.text):
                n = int(n)
                if c == "lgkmcnt":
                    lg = lg_after(lg, n)
                else:
                    vm = vm[len(vm) - n:] if 0 < n < len(vm) else ([] if n == 0 else vm)
            continue
        if ins.kind == "gwait":
            last = -1
            for k, e in enumerate(vm):
                if e & {"#" + g for g in ins.groups}:
                    last = k
            for g in ins.groups:
                assert g in seen_tags or os.environ.get("EXP"), f"vmwait on unknown group {g}"
            if last >= 0:
                n = min(63, len(vm) - 1 - last)
                if ins.gn is None or n < ins.gn:
                    if not fix:
                        raise RuntimeError("group wait too loose")
                    ins.gn = n
                    changes += 1
            if ins.gn is not None and ins.gn < len(vm):
                vm = vm[len(vm) - ins.gn:] if ins.gn else []
            if ins.also_lgkm:
                lg = []
            continue
        touched = set(ins.reads) | set(ins.writes)
        for name, q in (("lg", lg), ("vm", vm)):
            last = -1
            for k, e in enumerate(q):
                if e & touched:
                    if (name == "lg" and ins.kind == "dsr" or name == "vm" and ins.kind == "vld") and \
                            not (e & set(ins.reads)):
                        continue
                    last = k
            if last >= 0:
                n = len(q) - 1 - last
                if name == "lg":
                    n = 0 if "$smem" in q[last] else sum(1 for e in q[last + 1:] if "$smem" not in e)
                changes += 1
                if not fix:
                    raise RuntimeError(f"missing wait before {ins.text}")
                if name == "lg":
                    n = min(n, 15)
                    ins.pre_lgkm = n if ins.pre_lgkm is None else min(ins.pre_lgkm, n)
                    lg = lg_after(lg, n)
                else:
                    n = min(n, 63)
                    ins.pre_vm = n if ins.pre_vm is None else min(ins.pre_vm, n)
                    vm = vm[len(vm) - n:] if n else []
        if ins.kind == "dsr":
            lg.append(set(ins.writes))
        elif ins.kind == "dsw":
            lg.append(set())
        elif ins.kind == "smem":
            lg.append(set(ins.writes) | {"$smem"})
        elif ins.kind in ("vld", "dma", "vst"):
            e = set(ins.writes)
            if ins.tag:
                e.add("#" + ins.tag)
                seen_tags.add(ins.tag)
            vm.append(e)
    return changes


def _need(prod, cons):
    need = 0
    pw, cr, cw = set(prod.writes), set(cons.reads), set(cons.writes)
    if prod.kind == "valu":
        vw = {r for r in pw if r[0] in "va" and r != "vcc"}
        sw = pw - vw
        if cons.kind == "mfma" and vw & cr:
            need = max(need, 2)
        if cons.kind == "valu":
            if getattr(prod, "trans", False) and not getattr(cons, "trans", False) and vw & cr:
                need = max(need, 1)
            if (cons.op.startswith("v_readfirstlane") or cons.op.startswith("v_readlane")) and vw & cr:
                need = max(need, 1)
            if cons.op.startswith("v_permlane") and vw & cr:
                need = max(need, 2)
            if getattr(cons, "dpp", False) and vw & cr:
                need = max(need, 2)
            if sw & cr:
                need = max(need, 2)
                if cons.op.startswith("v_readlane") or cons.op.startswith("v_writelane"):
                    need = max(need, 4)
        if cons.kind in ("vld", "vst", "dma") and sw & cr:
            need = max(need, 5)
        if cons.kind in ("salu",) and sw & cr:
            need = max(need, 1)
    elif prod.kind == "mfma":
        p8 = prod.passes == 8
        if cons.kind == "mfma":
            if pw & (set(cons.srcA) | set(cons.srcB)):
                need = max(need, 12 if p8 else 8)
            if pw & set(cons.srcC):
                if not (prod.writes == cons.srcC and prod.passes == cons.passes):
                    need = max(need, 10 if p8 else 6)
            elif pw & cw:
                need = max(need, 10 if p8 else 6)
        elif cons.kind in ("valu", "vld", "vst", "dma", "dsr", "dsw"):
            if pw & (cr | cw):
                need = max(need, 12 if p8 else 8)
            if cons.kind == "valu" and set(prod.srcC) & cw:
                need = max(need, 7 if p8 else 3)
    elif prod.kind == "salu":
        if "m0" in pw and cons.kind == "dma":
            need = max(need, 1)
    elif prod.kind == "vst":
        if getattr(prod, "wide", False) and cons.kind in ("valu", "mfma", "dsr", "vld") and set(prod.data) & cw:
            need = max(need, 2)
    return need


def _walk_hazards(trace, fix, log):
    hist = []
    pos = 0
    changes = 0
    for ins in trace:
        if ins.is_label or ins.is_dir:
            continue
        extra = ins.pre_nop + (1 if (ins.pre_lgkm is not None or ins.pre_vm is not None) else 0)
        p = pos + extra
        short = 0
        for prod, ppos in hist[-24:]:
            n = _need(prod, ins)
            if n and p - ppos < n:
                short = max(short, n - (p - ppos))
                if log is not None:
                    log.append(f"pad {n-(p-ppos)} : {prod.text}  ->  {ins.text}")
        if short:
            changes += 1
            if not fix:
                raise RuntimeError("hazard before " + ins.text)
            ins.pre_nop += short
            p += short
        pos = p + (ins.n if ins.kind == "nop" else 1)
        hist.append((ins, pos))
    return changes


def resolve(traces, verbose=True):
    flat = [[i for seg in t for i in seg] for t in traces]
    for _ in range(20):
        if sum(_walk_waits(t, True) for t in flat) == 0:
            break
    log = []
    for _ in range(20):
        if sum(_walk_hazards(t, True, log) for t in flat) == 0:
            break
    for t in flat:
        _walk_waits(t, False)
        _walk_hazards(t, False, None)
    if verbose and log:
        seen = []
        for l in log:
            if l not in seen:
                seen.append(l)
        for l in seen[:40]:
            print(";   " + l)


MACROS = """.macro MA d,x,a,y,b
v_mfma_f32_16x16x32_bf16 a[\\d:\\d+3], \\x[\\a:\\a+3], \\y[\\b:\\b+3], a[\\d:\\d+3]
.endm
.macro MV d,x,a,y,b
v_mfma_f32_16x16x32_bf16 v[\\d:\\d+3], \\x[\\a:\\a+3], \\y[\\b:\\b+3], v[\\d:\\d+3]
.endm
.macro TR d,a,o
ds_read_b64_tr_b16 v[\\d:\\d+1], v\\a offset:\\o
.endm
"""
_M16 = re.compile(r"^v_mfma_f32_16x16x32_bf16 ([av])\[(\d+):\d+\], ([av])\[(\d+):\d+\], ([av])\[(\d+):\d+\], ([av])\[(\d+):\d+\]$")
_TR = re.compile(r"^ds_read_b64_tr_b16 v\[(\d+):\d+\], v(\d+) offset:(\d+)$")


def squeeze(line):
    line = line.strip()
    m = _M16.match(line)
    if m and m.group(1) == m.group(7) and m.group(2) == m.group(8):
        return f"M{m.group(1).upper()} {m.group(2)},{m.group(3)},{m.group(4)},{m.group(5)},{m.group(6)}"
    m = _TR.match(line)
    if m:
        return f"TR {m.group(1)},{m.group(2)},{m.group(3)}"
    return line


def text_of(segs):
    out = []
    for s in segs:
        for i in s:
            out += [squeeze(x) for x in i.emit()]
    return "\n".join(out) + "\n"


def cost_of(x):
    if isinstance(x, (list, tuple)):
        return sum(cost_of(y) for y in x)
    t = x.text if isinstance(x, I) else x
    t = t.strip()
    if t.endswith(":") or t.startswith("@mask") or t.startswith("@rare"):
        return 0
    op = t.split()[0]
    if op == "s_nop":
        return int(t.split()[1]) + 1
    return 2 if op in TRANS else 1


class Sched:
    def __init__(self, mf, cap):
        self.mf, self.cap = mf, cap
        self.fixed = [[] for _ in mf]
        self.streams = []

    def pin(self, g, items):
        self.fixed[g] += list(items)

    def stream(self, items, lo=0, hi=None, at=None, prio=0):
        n = len(items)
        if not n:
            return
        hi = len(self.mf) if hi is None else hi
        if at is None:
            tot = sum(cost_of(x) for x in items) or 1
            at, acc = [], 0
            for x in items:
                at.append(lo + (acc * (hi - lo)) // tot)
                acc += cost_of(x)
        self.streams.append([list(items), list(at), prio, 0])

    def build(self, head=()):
        n = len(self.mf)
        gaps = []
        for g in range(n):
            cur = list(self.fixed[g])
            used = cost_of(cur)
            while True:
                cand = [s for s in self.streams if s[3] < len(s[0]) and s[1][s[3]] <= g]
                if g < n - 1:
                    cand = [s for s in cand if used + cost_of(s[0][s[3]]) <= self.cap or
                            (used == 0 and cost_of(s[0][s[3]]) > self.cap)]
                else:
                    cand = [s for s in self.streams if s[3] < len(s[0])]
                if not cand:
                    break
                s = max(cand, key=lambda s: (s[2], g - s[1][s[3]]))
                x = s[0][s[3]]
                s[3] += 1
                cur += list(x) if isinstance(x, (list, tuple)) else [x]
                used += cost_of(x)
            gaps.append(cur)
        self.gaps = gaps
        return interleave(self.mf, gaps, head)


def overflow_report(name, segs):
    over = cur = nm = 0
    cap = None
    for s in segs:
        for i in s:
            extra = (1 if (i.pre_lgkm is not None or i.pre_vm is not None) else 0) + i.pre_nop
            if i.kind == "mfma":
                cur += extra
                if cap is not None:
                    over += max(0, cur - cap)
                cap, cur = (6 if i.passes == 8 else 2), 0
                nm += 1
            elif not (i.is_label or i.is_dir):
                cur += extra + (i.n if i.kind == "nop" else 2 if getattr(i, "trans", False) else 1)
    print(f"; {name}: {nm} mfma, overflow ~{4*over} cycles")
```

```python
from asmlib import *

KA_Q, KA_K, KA_V, KA_SHIFT, KA_SSMK, KA_SSMD, KA_BX, KA_C, KA_WQ, KA_WUK, KA_WUV, KA_WO, KA_GW, KA_OUT, KA_DBG, KA_WS = \
    [8 * i for i in range(16)]

MB = 1 << 20
WS_KF = 0
WS_VF = 16 * MB
WS_CTX = 32 * MB
WS_UR = 48 * MB
WS_Y4 = 52 * MB
WS_G = 56 * MB
WS_FLAG = 57 * MB

SCALE_K = 0x3e0293ee
import struct, math
assert struct.unpack("<I", struct.pack("<f", math.log2(math.e) / math.sqrt(128.0)))[0] == SCALE_K


def vr(b, n=1):
    return f"v{b}" if n == 1 else f"v[{b}:{b+n-1}]"


def ar(b, n=1):
    return f"a{b}" if n == 1 else f"a[{b}:{b+n-1}]"


def sr(b, n=1):
    return f"s{b}" if n == 1 else f"s[{b}:{b+n-1}]"


def srd(S, d, ptr, nbytes, off=None):
    if off is None:
        S(f"s_mov_b32 s{d}, s{ptr}\ns_mov_b32 s{d+1}, s{ptr+1}")
    else:
        S(f"s_add_u32 s{d}, s{ptr}, {off}\ns_addc_u32 s{d+1}, s{ptr+1}, 0")
    S(f"s_mov_b32 s{d+2}, {nbytes}\ns_mov_b32 s{d+3}, 0x20000")


def mfma16(d, a, b, c=None):
    return f"v_mfma_f32_16x16x32_bf16 {d}, {a}, {b}, {d if c is None else c}"


def mfma32(d, a, b, c=None):
    return f"v_mfma_f32_32x32x16_bf16 {d}, {a}, {b}, {d if c is None else c}"


def kernel_header(name):
    return f".globl {name}\n.p2align 8\n.type {name},@function\n{name}:"


def kernel_desc(name, vgpr=512, accum=256, sgpr=102):
    return (f'.section .rodata,"a"\n.p2align 6\n.amdhsa_kernel {name}\n'
            f"  .amdhsa_next_free_vgpr {vgpr}\n  .amdhsa_next_free_sgpr {sgpr}\n  .amdhsa_accum_offset {accum}\n"
            "  .amdhsa_group_segment_fixed_size 0\n  .amdhsa_kernarg_size 128\n  .amdhsa_user_sgpr_count 2\n"
            "  .amdhsa_user_sgpr_kernarg_segment_ptr 1\n  .amdhsa_system_sgpr_workgroup_id_x 1\n"
            "  .amdhsa_float_denorm_mode_32 3\n"
            ".end_amdhsa_kernel\n.text\n")


import os
DIAG = bool(os.environ.get("DIAG"))
WS_DIAG = 64 * MB


class Stamps:
    def __init__(self, base, tmp, region):
        self.base, self.tmp, self.region, self.n = base, tmp, region, 0

    def __call__(self, S):
        if not DIAG:
            return
        t = self.tmp
        S(f"s_memtime s[{t}:{t+1}]\ns_memrealtime s[{t+2}:{t+3}]\ns_waitcnt lgkmcnt(0)")
        S(f"s_mov_b32 s{self.base+2*self.n}, s{t}\ns_mov_b32 s{self.base+2*self.n+1}, s{t+2}")
        self.n += 1

    def dump(self, S, wsptr, wave_sgpr):
        if not DIAG:
            return
        t = self.tmp
        S("s_waitcnt vmcnt(0)")
        self(S)
        srd(S, t, wsptr, MB, off=WS_DIAG + self.region * MB)
        S(f"s_lshl_b32 s{wsptr}, s2, 2\ns_add_u32 s{wsptr}, s{wsptr}, s{wave_sgpr}\ns_lshl_b32 s{wsptr}, s{wsptr}, 7")
        S("v_mov_b32 v2, 0")
        for k in range(2 * self.n):
            S(f"v_mov_b32 v3, s{self.base+k}")
            S(f"buffer_store_dword v3, v2, s[{t}:{t+3}], s{wsptr} offen offset:{4*k}")
            S("s_nop 1")


EXP = set(os.environ.get("EXP", "").split(","))


def exp_filter(segs):
    if not (EXP - {""}):
        return
    for s in segs:
        keep = []
        for i in s:
            if "nodma" in EXP and i.kind == "dma":
                continue
            if "nodma" in EXP and i.kind == "gwait":
                i = I("s_waitcnt lgkmcnt(0)" if i.also_lgkm else "s_nop 0")
            if "nobar" in EXP and i.op == "s_barrier":
                continue
            if "novm" in EXP and i.kind == "wait" and "vmcnt" in i.text:
                i = I(re.sub(r"vmcnt\(\d+\)", "vmcnt(63)", i.text))
            if "novm" in EXP and i.kind == "gwait":
                i = I("s_waitcnt lgkmcnt(0)" if i.also_lgkm else "s_nop 0")
            if "nost" in EXP and i.kind == "vst" and i.tag == "kvst":
                i = I("s_nop 0")
            if "plainst" in EXP and i.kind == "vst" and i.tag == "kvst":
                i = I(i.text.replace(" sc1", "") + " #kvst")
            if "novld" in EXP and i.kind == "vld" and "a[" in i.text:
                i = I("s_nop 0")
            if "nods" in EXP and i.kind == "dsr":
                continue
            if "noexp" in EXP and i.op.startswith("v_exp"):
                continue
            if "nomax" in EXP and i.op.startswith("v_max3"):
                continue
            if "noadd" in EXP and i.op == "v_add_f32":
                continue
            keep.append(i)
        s[:] = keep


HDIAG = bool(os.environ.get("HDIAG"))


def hdiag_wrap(txt, name, idx, nl):
    if not HDIAG:
        return txt
    txt = txt.replace(f"{name}:\n", f"{name}:\ns_memrealtime s[4:5]\ns_waitcnt lgkmcnt(0)\n", 1)
    tail = (f"s_waitcnt vmcnt(0) lgkmcnt(0)\ns_memrealtime s[6:7]\ns_load_dwordx2 s[8:9], s[0:1], {KA_DBG}\ns_waitcnt lgkmcnt(0)\n"
            f"s_add_u32 s8, s8, {512*(nl-1-idx)}\ns_addc_u32 s9, s9, 0\ns_mov_b32 s10, 256\ns_mov_b32 s11, 0x20000\n"
            "s_not_b32 s4, s4\nv_mov_b32 v2, s4\nv_mov_b32 v3, s6\ns_and_b32 s12, s2, 31\ns_cmp_lt_u32 s12, 2\ns_cbranch_scc0 L_hd_skip_%d_@\nv_lshlrev_b32 v4, 10, v0\ns_nop 4\n" % idx +
            f"buffer_atomic_umax v2, v4, s[8:11], 0 offen offset:{8*idx}\nbuffer_atomic_umax v3, v4, s[8:11], 0 offen offset:{8*idx+4}\n"
            f"s_waitcnt vmcnt(0)\nL_hd_skip_{idx}_@:\ns_endpgm\n")
    lines = txt.split("\n")
    out = []
    for k, l in enumerate(lines):
        if l.strip() == "s_endpgm" and not lines[k - 1].strip().endswith("_end:"):
            out.append(tail.replace("@", str(k)))
        elif l.strip() == "s_endpgm":
            out[-1:] = [tail.replace("@", str(k)), lines[k - 1], l]
        else:
            out.append(l)
    return "\n".join(out)


def groupify(items):
    out = []
    for it in items:
        t = it if isinstance(it, str) else it[0]
        if t.split()[0] in ("s_addc_u32", "s_subb_u32", "s_cselect_b32", "s_cselect_b64"):
            prev = out.pop()
            out.append((prev if isinstance(prev, list) else [prev]) + (it if isinstance(it, list) else [it]))
        else:
            out.append(it)
    return out


def flat(items):
    out = []
    for it in items:
        out += it if isinstance(it, (list, tuple)) else [it]
    return out


def chunks(items, n):
    return [items[i * len(items) // n:(i + 1) * len(items) // n] for i in range(n)]


class VStamps:
    def __init__(self):
        self.n = 0

    def __call__(self, S):
        if not DIAG:
            return
        S("s_memtime s[4:5]\ns_memrealtime s[6:7]\ns_waitcnt lgkmcnt(0)")
        S(f"v_writelane_b32 v0, s4, {2*self.n}\nv_writelane_b32 v0, s6, {2*self.n+1}")
        self.n += 1

    def dump(self, S):
        if not DIAG:
            return
        S("s_waitcnt vmcnt(0)")
        self(S)
        srd(S, 4, 40, MB, off=WS_DIAG)
        S("s_lshl_b32 s8, s2, 2\ns_add_u32 s8, s8, s3\ns_lshl_b32 s8, s8, 8\nv_lshlrev_b32 v2, 2, v1")
        S("buffer_store_dword v0, v2, s[4:7], s8 offen")


NT = "" if "nont" in EXP else " nt"
```

```python
from common import *

S_W = 3
V_L = 1

SRD_C, SRD_W, SRD_O = 8, 12, 16
S_COFF, S_WOFF, S_MC, S_MW = 20, 21, 22, 23
S_D = 24
S_T = 36
S_WS = 40
S_TYPE = 42
P_C, P_WU = 88, 92
V_CF, V_WF = 80, 144
V_CD, V_WD, V_CA, V_WA = 176, 184, 192, 196
V_T = 204
V_ST = 228
V_EP = 230
LDS_W = 98304

F_1, F_2S, F_2L, F_3 = 0, 1024, 2048, 3072


def acc(typ, ct, rt):
    if typ == "K":
        p = ct >> 1
        k = (rt >> 1) * 8 + (rt & 1) + 2 * (p & 1) + 4 * (p >> 1)
        return (k * 2 + (ct & 1)) * 4
    k = (rt >> 1) * 8 + ct
    return (k * 2 + (rt & 1)) * 4


def setup(S):
    t, T, l = S_T, V_T, V_L
    S(f"s_and_b32 s{t}, s2, 7")
    S(f"s_lshr_b32 s{t+1}, s2, 3")
    S(f"s_and_b32 s{t+2}, s{t+1}, 7")
    S(f"s_lshr_b32 s{t+1}, s{t+1}, 3")
    S(f"s_lshr_b32 s{S_TYPE}, s{t+1}, 1")
    S(f"s_and_b32 s{t+1}, s{t+1}, 1")
    S(f"s_lshl_b32 s{t}, s{t}, 1")
    S(f"s_add_u32 s{t}, s{t}, s{t+1}")
    S(f"s_lshl_b32 s{S_COFF}, s{t+2}, 18")
    S(f"s_lshl_b32 s{t+3}, s{S_W}, 16")
    S(f"s_add_u32 s{S_COFF}, s{S_COFF}, s{t+3}")
    S(f"s_lshl_b32 s{S_WOFF}, s{S_W}, 17")
    S(f"s_lshl_b32 s{t+3}, s{t}, 9")
    S(f"s_add_u32 s{S_WOFF}, s{S_WOFF}, s{t+3}")
    S(f"s_lshl_b32 s{S_MC}, s{S_W}, 13")
    S(f"s_add_u32 s{S_MW}, s{S_MC}, {LDS_W}")
    S(f"v_lshrrev_b32 v{T}, 3, v{l}")
    S(f"v_lshlrev_b32 v{T}, 10, v{T}")
    S(f"v_lshrrev_b32 v{T+1}, 4, v{l}")
    S(f"v_and_b32 v{T+2}, 7, v{l}")
    S(f"v_xor_b32 v{T+2}, v{T+2}, v{T+1}")
    S(f"v_lshl_add_u32 v{T}, v{T+2}, 4, v{T}")
    S(f"v_xor_b32 v{T+3}, 64, v{T}")
    for i in range(8):
        S(f"v_add_u32 v{V_CD+i}, {8192*i - 1024*(i&3)}, v{T + (3 if i & 1 else 0)}")
    S(f"v_lshrrev_b32 v{T}, 5, v{l}")
    S(f"v_and_b32 v{T+2}, 31, v{l}")
    S(f"v_lshlrev_b32 v{T+3}, 1, v{T}")
    S(f"v_xor_b32 v{T+2}, v{T+2}, v{T+3}")
    S(f"v_lshlrev_b32 v{T}, 13, v{T}")
    for i in range(8):
        x = (2 * (i & 1) + 4 * ((i >> 2) & 1)) << 1
        S(f"v_xor_b32 v{T+3}, {x}, v{T+2}")
        S(f"v_lshl_add_u32 v{T+3}, v{T+3}, 4, v{T}")
        S(f"v_add_u32 v{V_WD+i}, {16384*i - 1024*(i&3)}, v{T+3}")
    S("s_waitcnt lgkmcnt(0)")
    srd(S, SRD_C, P_C, 2048 * 512 * 2)
    S(f"s_cmp_eq_u32 s{S_TYPE}, 0")
    S(f"s_cselect_b32 s{SRD_W}, s{P_WU}, s{P_WU+2}")
    S(f"s_cselect_b32 s{SRD_W+1}, s{P_WU+1}, s{P_WU+3}")
    S(f"s_mov_b32 s{SRD_W+2}, {512*4096*2}\ns_mov_b32 s{SRD_W+3}, 0x20000")


def setup2(S):
    t, T, l = S_T, V_T, V_L
    S(f"v_and_b32 v{T}, 15, v{l}")
    S(f"v_lshrrev_b32 v{T+2}, 1, v{T}")
    S(f"v_xor_b32 v{T+2}, v{T+2}, v{T+1}")
    S(f"v_lshlrev_b32 v{T+2}, 4, v{T+2}")
    S(f"v_lshl_add_u32 v{T+2}, v{T}, 7, v{T+2}")
    S(f"s_and_b32 s{t+3}, s{S_W}, 1")
    S(f"s_lshl_b32 s{t+3}, s{t+3}, 14")
    S(f"v_add_u32 v{V_CA}, s{t+3}, v{T+2}")
    S(f"v_xor_b32 v{V_CA+1}, 64, v{V_CA}")
    S(f"v_add_u32 v{V_CA+2}, 0x10000, v{V_CA}")
    S(f"v_add_u32 v{V_CA+3}, 0x10000, v{V_CA+1}")
    S(f"v_bfe_u32 v{T}, v{l}, 2, 2")
    S(f"v_and_b32 v{T+2}, 1, v{T+1}")
    S(f"v_lshl_or_b32 v{T+2}, v{T+2}, 2, v{T}")
    S(f"v_lshl_add_u32 v{T}, v{T+1}, 3, v{T}")
    S(f"v_lshlrev_b32 v{T}, 9, v{T}")
    S(f"v_and_b32 v{T+3}, 3, v{l}")
    S(f"v_lshl_add_u32 v{T}, v{T+3}, 3, v{T}")
    S(f"s_lshr_b32 s{t+3}, s{S_W}, 1")
    S(f"s_lshl_b32 s{t+3}, s{t+3}, 8")
    S(f"s_add_u32 s{t+3}, s{t+3}, {LDS_W}")
    S(f"v_add_u32 v{T}, s{t+3}, v{T}")
    for ct in range(8):
        S(f"v_xor_b32 v{T+3}, {ct}, v{T+2}")
        S(f"v_lshl_add_u32 v{V_WA+ct}, v{T+3}, 5, v{T}")
    S(f"s_lshl_b32 s{t}, s{t}, 1")
    S(f"s_lshr_b32 s{t+3}, s{S_W}, 1")
    S(f"s_add_u32 s{t}, s{t}, s{t+3}")
    S(f"s_lshl_b32 s{S_D}, s{t}, 19")
    S(f"s_lshl_b32 s{t+2}, s{t+2}, 16")
    S(f"s_add_u32 s{S_D}, s{S_D}, s{t+2}")
    S(f"s_and_b32 s{t+3}, s{S_W}, 1")
    S(f"s_lshl_b32 s{t+3}, s{t+3}, 15")
    S(f"s_add_u32 s{S_D}, s{S_D}, s{t+3}")
    S(f"s_lshl_b32 s{t}, s{S_TYPE}, 24")
    srd(S, SRD_O, S_WS, 16 * MB, off=f"s{t}")


def type_setup(typ):
    bits = (128, 2048, 4096) if typ == "K" else (256, 1024, 2048)
    return [f"s_add_u32 s{S_D+j}, s{S_D}, {sum(b for q, b in enumerate(bits) if j >> q & 1)}" for j in range(1, 8)]


def store_addr(typ):
    T, l = V_EP, V_L
    if typ == "K":
        return [f"v_bfe_u32 v{T}, v{l}, 4, 1", f"v_lshlrev_b32 v{T}, 10, v{T}", f"v_bfe_u32 v{T+1}, v{l}, 3, 1",
                f"v_lshl_add_u32 v{T}, v{T+1}, 8, v{T}", f"v_and_b32 v{T+1}, 7, v{l}",
                f"v_lshl_add_u32 v{T}, v{T+1}, 4, v{T}", f"v_lshrrev_b32 v{T+1}, 5, v{l}",
                f"v_lshl_add_u32 v{V_ST}, v{T+1}, 9, v{T}"]
    return [f"v_lshrrev_b32 v{T}, 5, v{l}", f"v_lshlrev_b32 v{T}, 12, v{T}", f"v_and_b32 v{T+1}, 15, v{l}",
            f"v_lshl_add_u32 v{T}, v{T+1}, 4, v{T}", f"v_bfe_u32 v{T+1}, v{l}, 4, 1",
            f"v_lshl_add_u32 v{V_ST}, v{T+1}, 9, v{T}"]


def dma_c(n):
    out = []
    for i in range(8):
        if i % 4 == 0:
            out.append(f"s_add_u32 m0, s{S_MC}, {(n % 3)*32768 + (i >> 2)*4096}")
        out.append(f"buffer_load_dwordx4 v{V_CD+i}, {sr(SRD_C,4)}, s{S_COFF} offen offset:{1024*(i&3)} lds #c{n}")
    out.append(f"s_add_u32 s{S_COFF}, s{S_COFF}, 128")
    return out


def dma_w(n):
    out = []
    for i in range(8):
        if i % 4 == 0:
            out.append(f"s_add_u32 m0, s{S_MW}, {(n & 1)*32768 + (i >> 2)*4096}")
        out.append(f"buffer_load_dwordx4 v{V_WD+i}, {sr(SRD_W,4)}, s{S_WOFF} offen offset:{1024*(i&3)} lds #w{n}")
    out.append(f"s_add_u32 s{S_WOFF}, s{S_WOFF}, {64*8192}")
    return out


def rd_c(n, kk, rt):
    slot = n % 3
    va = V_CA + kk + (2 if slot == 2 else 0)
    return f"ds_read_b128 {vr(V_CF + kk*32 + rt*4, 4)}, v{va} offset:{(slot & 1)*32768 + rt*2048}"


def rd_w(n, kk, ct):
    return [f"ds_read_b64_tr_b16 {vr(V_WF + ct*4 + 2*a, 2)}, v{V_WA+ct} offset:{(n & 1)*32768 + (32*kk + 4*a)*512}"
            for a in range(2)]


def kstep(typ, n, kk, vm=None, fill=None, last=None):
    mf = []
    for ct in range(8):
        for rt in range(8):
            w, c, d = vr(V_WF + ct * 4, 4), vr(V_CF + kk * 32 + rt * 4, 4), ar(acc(typ, ct, rt), 4)
            cin = "0" if (n == 0 and kk == 0) else None
            mf.append(mfma16(d, w, c, cin) if typ == "K" else mfma16(d, c, w, cin))
    sc = Sched(mf, 2)
    fg = 0
    sc.pin(0, [] if (n == 0 and kk == 0) else [])
    if last:
        last(sc)
    else:
        nn, nkk = (n, 1) if kk == 0 else (n + 1, 0)
        if kk == 1:
            sc.pin(9, [f"@vmwait c{n+1} w{n+1} lgkm", "s_barrier"])
            fg = 10
        rw, at = [], []
        for ct in range(8):
            rw += rd_w(nn, nkk, ct)
            at += [max(8 * ct + 7, fg + 2 * ct)] * 2
        sc.stream(rw, at=at, prio=3)
        sc.stream([rd_c(nn, nkk, rt) for rt in range(8)], fg + 1, 52, prio=2)
    if vm:
        sc.stream(vm, fg, 62, prio=1)
    if fill:
        sc.stream(fill, fg if kk == 1 else 0, 62)
    head = [] if (n == 0 and kk == 0) else ["s_waitcnt lgkmcnt(2)"]
    return sc.build(head)


def epilogue_items(flavor="sc1"):
    items = []
    for k in range(32):
        T = V_EP + (k & 1) * 12
        for j in range(8):
            items.append(f"v_accvgpr_read_b32 v{T+4+j}, a{8*k+j}")
        for u in range(4):
            items.append(f"v_cvt_pk_bf16_f32 v{T+u}, v{T+4+2*u}, v{T+5+2*u}")
        if k >> 3:
            items.append(f"s_add_u32 s{S_T}, s{S_D + (k & 7)}, {(k >> 3)*8192}")
            items.append(f"buffer_store_dwordx4 {vr(T,4)}, v{V_ST}, {sr(SRD_O,4)}, s{S_T} offen {flavor} #kvst")
        else:
            items.append(f"buffer_store_dwordx4 {vr(T,4)}, v{V_ST}, {sr(SRD_O,4)}, s{S_D+k} offen {flavor} #kvst")
    return items


class P0:
    V_K, V_V, V_SH, V_A = 16, 38, 54, 62
    V_GX, V_GW, V_KF, V_WF = 208, 224, 208, 230
    V_P, V_T = 240, 248
    V_KO, V_UO, V_SO, V_XO, V_GWO, V_GO = 252, 253, 254, 255, 78, 79
    SRD_K, SRD_V, SRD_SH, SRD_X, SRD_GW, SRD_U, SRD_G = [44 + 4 * i for i in range(7)]
    S_T = 72
    ptr = 76

    def setup(self):
        S = Seg()
        p, t, T, l = self.ptr, self.S_T, self.V_T, V_L
        srd(S, self.SRD_X, p, 4 * MB)
        srd(S, self.SRD_K, p + 2, 4 * MB)
        srd(S, self.SRD_V, p + 4, 4 * MB)
        srd(S, self.SRD_SH, p + 6, 8192)
        srd(S, self.SRD_GW, p + 8, 2048)
        srd(S, self.SRD_U, S_WS, 4 * MB, off=WS_UR)
        srd(S, self.SRD_G, S_WS, 8192, off=WS_G)
        S(f"s_and_b32 s{t}, s2, 15")
        S(f"s_lshl_b32 s{t}, s{t}, 2")
        S(f"s_add_u32 s{t}, s{t}, s{S_W}")
        S(f"s_lshr_b32 s{t+1}, s2, 4")
        S(f"v_and_b32 v{T}, 3, v{l}")
        S(f"v_lshrrev_b32 v{T+1}, 2, v{l}")
        S(f"s_lshl_b32 s{t+2}, s{t}, 2")
        S(f"v_add_u32 v{T}, s{t+2}, v{T}")
        S(f"s_lshl_b32 s{t+2}, s{t+1}, 4")
        S(f"v_add_u32 v{T+1}, s{t+2}, v{T+1}")
        S(f"v_lshlrev_b32 v{T+2}, 14, v{T+1}")
        S(f"v_lshl_add_u32 v{T+2}, v{T}, 3, v{T+2}")
        S(f"v_add_u32 v{self.V_KO}, {-3*2048}, v{T+2}")
        S(f"v_lshlrev_b32 v{self.V_SO}, 5, v{T}")
        S(f"v_lshlrev_b32 v{T+2}, 4, v{T+1}")
        S(f"v_sub_u32 v{T+2}, 4080, v{T+2}")
        S(f"v_lshl_add_u32 v{self.V_UO}, v{T}, 14, v{T+2}")
        S(f"v_and_b32 v{T}, 31, v{l}")
        S(f"v_lshlrev_b32 v{self.V_GWO}, 4, v{T}")
        S(f"s_lshl_b32 s{t+2}, s2, 2")
        S(f"s_add_u32 s{t+2}, s{t+2}, s{S_W}")
        S(f"s_lshl_b32 s{t+2}, s{t+2}, 1")
        S(f"v_lshrrev_b32 v{T+1}, 5, v{l}")
        S(f"v_add_u32 v{T+1}, s{t+2}, v{T+1}")
        S(f"v_lshl_add_u32 v{self.V_XO}, v{T+1}, 11, v{self.V_GWO}")
        S(f"v_lshlrev_b32 v{T+1}, 2, v{T+1}")
        S(f"v_lshl_add_u32 v{self.V_GO}, v{T}, 20, v{T+1}")
        return [i.text for i in S]

    def loads(self):
        out = []
        T = self.V_T
        for i in range(4):
            out.append(f"buffer_load_dwordx4 {vr(self.V_GX+4*i,4)}, v{self.V_XO}, {sr(self.SRD_X,4)}, 0 offen offset:{512*i}")
            out.append(f"buffer_load_dwordx4 {vr(self.V_GW+4*i,4)}, v{self.V_GWO}, {sr(self.SRD_GW,4)}, 0 offen offset:{512*i}")
        for i in range(2):
            out.append(f"buffer_load_dwordx4 {vr(self.V_SH+4*i,4)}, v{self.V_SO}, {sr(self.SRD_SH,4)}, 0 offen offset:{16*i}")
        for i in range(11):
            tmp = T + (i & 3)
            out += [f"v_add_u32 v{tmp}, {2048*i}, v{self.V_KO}",
                    f"buffer_load_dwordx2 {vr(self.V_K+2*i,2)}, v{tmp}, {sr(self.SRD_K,4)}, 0 offen"]
            if i >= 3:
                out.append(f"buffer_load_dwordx2 {vr(self.V_V+2*(i-3),2)}, v{tmp}, {sr(self.SRD_V,4)}, 0 offen")
        return out

    def compute(self, flavor="sc1"):
        out = []
        T = self.V_T
        a = T
        out.append(f"v_mov_b32 v{a}, 0")
        out.append(f"v_mov_b32 v{a+1}, 0")
        for i in range(16):
            out.append(f"v_dot2_f32_bf16 v{a + (i & 1)}, v{self.V_GX+i}, v{self.V_GW+i}, v{a + (i & 1)}")
        out.append(["s_nop 2", f"v_add_f32 v{a}, v{a}, v{a+1}"])
        for r in (8, 4, 2, 1):
            out.append(f"v_add_f32_dpp v{a}, v{a}, v{a} row_ror:{r} row_mask:0xf bank_mask:0xf")
        out.append(f"v_mov_b32 v{a+1}, v{a}")
        out.append(f"v_permlane16_swap_b32 v{a}, v{a+1}")
        out.append(f"v_add_f32 v{a}, v{a}, v{a+1}")
        out.append(f"v_mul_f32 v{a}, 0xbfb8aa3b, v{a}")
        out.append(f"v_exp_f32 v{a}, v{a}")
        out.append(f"v_add_f32 v{a}, 1.0, v{a}")
        out.append(f"v_rcp_f32 v{a}, v{a}")
        out.append(["s_nop 0", f"buffer_store_dword v{a}, v{self.V_GO}, {sr(self.SRD_G,4)}, 0 offen {flavor}"])
        for cp in range(2):
            for c in range(2):
                sh = self.V_SH + 4 * cp + 2 * c
                w = self.V_WF + 4 * c
                out += [f"v_lshlrev_b32 v{w}, 16, v{sh}", f"v_and_b32 v{w+1}, 0xffff0000, v{sh}",
                        f"v_lshlrev_b32 v{w+2}, 16, v{sh+1}", f"v_and_b32 v{w+3}, 0xffff0000, v{sh+1}"]
            for i in range(11):
                k = self.V_K + 2 * i + cp
                out += [f"v_lshlrev_b32 v{self.V_KF+2*i}, 16, v{k}", f"v_and_b32 v{self.V_KF+2*i+1}, 0xffff0000, v{k}"]
            for rho in range(8):
                v = self.V_V + 2 * rho + cp
                out += [f"v_lshlrev_b32 v{T+2}, 16, v{v}", f"v_and_b32 v{T+3}, 0xffff0000, v{v}"]
                for j in range(4):
                    for c in range(2):
                        A = self.V_A + 8 * c + rho
                        kf = self.V_KF + 2 * (rho + 3 - j) + c
                        w = self.V_WF + 4 * c + j
                        out.append(f"v_mul_f32 v{A}, v{kf}, v{w}" if j == 0 else f"v_fmac_f32 v{A}, v{kf}, v{w}")
                for c in range(2):
                    A = self.V_A + 8 * c + rho
                    out.append(f"v_mul_f32 v{A}, v{A}, v{T+2+c}")
            for c in range(2):
                P = self.V_P + 4 * c
                A = self.V_A + 8 * c
                for e in range(4):
                    out.append(f"v_cvt_pk_bf16_f32 v{P+e}, v{A+7-2*e}, v{A+6-2*e}")
                out += [f"s_mov_b32 s{self.S_T}, {4096*(2*cp + c)}",
                        f"buffer_store_dwordx4 {vr(P,4)}, v{self.V_UO}, {sr(self.SRD_U,4)}, s{self.S_T} offen {flavor}"]
        return out
```

```python
from common import *
import f1

S_W = 3
SRD_X = 44
SRD_WQ = 48
SRD_K = 52
SRD_V = 56
SRD_CTX = 60
S_XL, S_XS, S_WQO = 64, 65, 66
S_MX, S_MWQ = 67, 68
S_HEAD, S_I = 69, 70
S_KVO = 71
S_MK, S_MV = 72, 73
S_CNT = 74
S_N1 = 75
S_ND, S_NT = 76, 77
S_RESC = 78
S_THR = 79
S_TMP = 80
S_MSK = 84
S_CL, S_CS = 100, 101

V_L = 1
V_LS = [2, 4]
V_MX = [6, 7]
V_F = [8, 9]
V_KA, V_VA, V_DO = 10, 11, 12
V_Q4, V_NINF, V_CST = 13, 14, 15
V_Q = 16
V_S = 80
V_NM = 208
V_T = 240
V_WF = 16
V_XF = 48
V_XD, V_WD, V_WA, V_XA = 208, 212, 216, 224
A_O = 0
A_K = 128
A_V = 192

X_SLOT = (65536, 0, 32768)
LDS_WQ = 98304
COH = 'sc1'
THR = 0x41000000


def qreg(qt, t):
    return V_Q + 32 * qt + 4 * t


def sreg(par, kvh, qt):
    return V_S + 64 * par + 32 * kvh + 16 * qt


def oreg(qt, dt):
    return A_O + 64 * qt + 16 * dt


def acc2(ct, rt):
    return V_S + (ct * 4 + rt) * 4


def ptr_loads():
    return [f"s_load_dwordx2 s[32:33], s[0:1], {KA_Q}", f"s_load_dwordx2 s[34:35], s[0:1], {KA_WQ}",
            f"s_load_dwordx2 s[38:39], s[0:1], {KA_DBG}"]


def setup():
    S = Seg()
    T = V_T
    t = S_TMP
    S(f"s_and_b32 s{t}, s2, 7")
    S(f"s_lshr_b32 s{t+1}, s2, 3")
    S(f"s_and_b32 s{S_HEAD}, s{t+1}, 3")
    S(f"s_lshl_b32 s{t}, s{t}, 2")
    S(f"s_add_u32 s{S_HEAD}, s{S_HEAD}, s{t}")
    S(f"s_lshr_b32 s{S_I}, s{t+1}, 2")
    S(f"s_lshl_b32 s{t}, s{S_W}, 16")
    S(f"s_lshl_b32 s{S_XS}, s{S_I}, 18")
    S(f"s_sub_u32 s{S_XL}, {15 << 18}, s{S_XS}")
    S(f"s_add_u32 s{S_XS}, s{S_XS}, s{t}")
    S(f"s_add_u32 s{S_XL}, s{S_XL}, s{t}")
    S(f"s_lshl_b32 s{t+1}, s{S_HEAD}, 12")
    S(f"s_lshl_b32 s{S_CL}, s{S_XL}, 2")
    S(f"s_add_u32 s{S_CL}, s{S_CL}, s{t+1}")
    S(f"s_lshl_b32 s{S_CS}, s{S_XS}, 2")
    S(f"s_add_u32 s{S_CS}, s{S_CS}, s{t+1}")
    S(f"s_lshl_b32 s{S_WQO}, s{S_W}, 17")
    S(f"s_lshl_b32 s{t+1}, s{S_HEAD}, 8")
    S(f"s_add_u32 s{S_WQO}, s{S_WQO}, s{t+1}")
    S(f"s_lshl_b32 s{S_MX}, s{S_W}, 13")
    S(f"s_lshl_b32 s{S_MWQ}, s{S_W}, 12")
    S(f"s_lshl_b32 s{S_ND}, s{S_I}, 1")
    S(f"s_sub_u32 s{S_NT}, 32, s{S_ND}")
    S(f"s_add_u32 s{S_ND}, s{S_ND}, 2")
    S(f"s_mov_b32 s{S_THR}, {THR:#x}")
    S(f"s_mov_b32 s{S_RESC}, 0")
    l = V_L
    S(f"v_lshrrev_b32 v{T}, 3, v{l}")
    S(f"v_lshlrev_b32 v{T}, 11, v{T}")
    S(f"v_lshrrev_b32 v{T+1}, 4, v{l}")
    S(f"v_and_b32 v{T+2}, 7, v{l}")
    S(f"v_xor_b32 v{T+2}, v{T+2}, v{T+1}")
    S(f"v_lshl_add_u32 v{T}, v{T+2}, 4, v{T}")
    S(f"v_xor_b32 v{T+3}, 64, v{T}")
    for i in range(4):
        S(f"v_add_u32 v{V_XD+i}, {16384*i - 1024*i}, v{T + (3 if i & 1 else 0)}")
    S(f"v_and_b32 v{T+2}, 15, v{l}")
    S(f"v_lshlrev_b32 v{T+3}, 1, v{T+1}")
    S(f"v_xor_b32 v{T+2}, v{T+2}, v{T+3}")
    S(f"v_lshlrev_b32 v{T}, 13, v{T+1}")
    for i in range(4):
        S(f"v_xor_b32 v{T+3}, {(i >> 1) << 3}, v{T+2}")
        S(f"v_lshl_add_u32 v{T+3}, v{T+3}, 4, v{T}")
        S(f"v_add_u32 v{V_WD+i}, {32768*i - 1024*i}, v{T+3}")
    S(f"v_and_b32 v{T}, 15, v{l}")
    S(f"v_lshrrev_b32 v{T+2}, 1, v{T}")
    S(f"v_xor_b32 v{T+2}, v{T+2}, v{T+1}")
    S(f"v_lshlrev_b32 v{T+2}, 4, v{T+2}")
    S(f"v_lshl_add_u32 v{T+2}, v{T}, 7, v{T+2}")
    S(f"v_add_u32 v{V_XA}, s{S_MX}, v{T+2}")
    S(f"v_xor_b32 v{V_XA+1}, 64, v{V_XA}")
    S(f"v_add_u32 v{V_XA+2}, 0x10000, v{V_XA}")
    S(f"v_add_u32 v{V_XA+3}, 0x10000, v{V_XA+1}")
    S(f"v_bfe_u32 v{T}, v{l}, 2, 2")
    S(f"v_and_b32 v{T+2}, 1, v{T+1}")
    S(f"v_lshl_or_b32 v{T+2}, v{T+2}, 2, v{T}")
    S(f"v_lshl_add_u32 v{T}, v{T+1}, 3, v{T}")
    S(f"v_lshlrev_b32 v{T}, 8, v{T}")
    S(f"v_and_b32 v{T+3}, 3, v{l}")
    S(f"v_lshl_add_u32 v{T}, v{T+3}, 3, v{T}")
    S(f"v_add_u32 v{T}, {LDS_WQ}, v{T}")
    for ct in range(8):
        S(f"v_xor_b32 v{T+3}, {ct}, v{T+2}")
        S(f"v_lshl_add_u32 v{V_WA+ct}, v{T+3}, 5, v{T}")
    S(f"v_lshlrev_b32 v{T}, 4, v{l}")
    S(f"s_lshl_b32 s{t}, s{S_W}, 12")
    S(f"v_add_u32 v{V_DO}, s{t}, v{T}")
    S(f"v_add_u32 v{V_KA}, 0x8000, v{T}")
    S(f"v_add_u32 v{V_VA}, 0x10000, v{T}")
    S(f"s_add_u32 s{S_MK}, s{t}, 0x8000")
    S(f"s_add_u32 s{S_MV}, s{t}, 0x10000")
    S(f"v_and_b32 v{T}, 31, v{l}")
    S(f"v_lshrrev_b32 v{T+2}, 5, v{l}")
    S(f"v_lshlrev_b32 v{T+3}, 2, v{T+2}")
    S(f"v_sub_u32 v{V_Q4}, v{T}, v{T+3}")
    S(f"v_mov_b32 v{V_NINF}, 0xff800000")
    S(f"v_and_b32 v{T}, 15, v{l}")
    S(f"v_lshl_add_u32 v{T}, v{T+2}, 4, v{T}")
    S(f"v_lshlrev_b32 v{T}, 4, v{T}")
    S(f"v_bfe_u32 v{T+3}, v{l}, 4, 1")
    S(f"v_lshl_add_u32 v{V_CST}, v{T+3}, 17, v{T}")
    srd(S, SRD_X, 32, 2048 * 1024 * 2)
    srd(S, SRD_WQ, 34, 1024 * 4096 * 2)
    srd(S, SRD_CTX, 40, 16 * MB, off=WS_CTX)
    S(f"s_lshl_b32 s{t}, s{S_HEAD}, 19")
    S(f"s_add_u32 s{SRD_K}, s40, s{t}\ns_addc_u32 s{SRD_K+1}, s41, 0")
    S(f"s_lshl_b32 s{SRD_K+2}, s{S_NT}, 14\ns_mov_b32 s{SRD_K+3}, 0x20000")
    S(f"s_add_u32 s{t}, s{t}, {WS_VF - 16384}")
    S(f"s_add_u32 s{SRD_V}, s40, s{t}\ns_addc_u32 s{SRD_V+1}, s41, 0")
    S(f"s_add_u32 s{SRD_V+2}, s{SRD_K+2}, 16384\ns_mov_b32 s{SRD_V+3}, 0x20000")
    return [i.text for i in S]


def dma_x(n):
    out = []
    for half, so in ((0, S_XL), (1, S_XS)):
        for i in range(4):
            if i == 0:
                out.append(f"s_add_u32 m0, s{S_MX}, {X_SLOT[n % 3] + half*4096}")
            out.append(f"buffer_load_dwordx4 v{V_XD+i}, {sr(SRD_X,4)}, s{so} offen offset:{1024*i} lds #x{n}")
        out.append(f"s_add_u32 s{so}, s{so}, 128")
    return out


def dma_q(n):
    out = []
    for i in range(4):
        if i == 0:
            out.append(f"s_add_u32 m0, s{S_MWQ}, {LDS_WQ + (n % 3)*16384}")
        out.append(f"buffer_load_dwordx4 v{V_WD+i}, {sr(SRD_WQ,4)}, s{S_WQO} offen offset:{1024*i}{NT} lds #q{n}")
    out.append(f"s_add_u32 s{S_WQO}, s{S_WQO}, {64*8192}")
    return out


def kv_dma(which, tile, slot):
    base = slot * 16384 + (0x10000 if which == "V" else 0)
    so = (tile + (1 if which == "V" else 0)) * 16384
    srd_ = SRD_K if which == "K" else SRD_V
    out = [f"s_add_u32 m0, s{S_MWQ}, {base}", f"s_mov_b32 s{S_TMP}, {so}"]
    for i in range(4):
        out.append(f"buffer_load_dwordx4 v{V_DO}, {sr(srd_,4)}, s{S_TMP} offen offset:{1024*i} {COH} lds #{which}{tile}")
    return out


def rd_x(n, kk, rt):
    base = X_SLOT[n % 3]
    return f"ds_read_b128 {vr(V_XF + kk*16 + rt*4, 4)}, v{V_XA + kk + (2 if base == 65536 else 0)} offset:{base % 65536 + rt*2048}"


def rd_wq(n, kk, ct):
    return [f"ds_read_b64_tr_b16 {vr(V_WF + ct*4 + 2*a, 2)}, v{V_WA+ct} offset:{(n % 3)*16384 + (32*kk + 4*a)*256}"
            for a in range(2)]


def kstep2(n, kk, fill=None, after_bar=None):
    mf = []
    for ct in range(8):
        for rt in range(4):
            d = vr(acc2(ct, rt), 4)
            mf.append(mfma16(d, vr(V_WF + ct * 4, 4), vr(V_XF + kk * 16 + rt * 4, 4),
                             "0" if (n == 0 and kk == 0) else None))
    sc = Sched(mf, 2)
    last = (n == 15 and kk == 1)
    fg = 0
    if not last:
        nn, nkk = (n, 1) if kk == 0 else (n + 1, 0)
        if kk == 1:
            sc.pin(7, [f"@vmwait x{n+1} q{n+1} lgkm", "s_barrier"])
            if after_bar:
                sc.pin(8, after_bar)
            fg = 8
        m = n + 3 if kk == 1 else n + 2
        if m <= 15 and not (n == 0 and kk == 0):
            d = dma_q(m) + dma_x(m)
            if kk == 1:
                sc.stream(d[:8], 8, 31, prio=1)
            else:
                sc.stream(d[8:], 0, 31, prio=1)
        rw, at = [], []
        for ct in range(8):
            rw += rd_wq(nn, nkk, ct)
            at += [min(31, max(4 * ct + 3, fg + 2 * ct))] * 2
        sc.stream(rw, at=at, prio=3)
        sc.stream([rd_x(nn, nkk, rt) for rt in range(4)], fg + 1, 24, prio=2)
    if fill:
        sc.stream(fill, 0, 30)
    return sc.build(["s_waitcnt lgkmcnt(4)"])


def p1_last_hook(sc):
    sc.pin(9, ["@vmwait x0 q0 lgkm", "s_barrier"])
    sc.stream([rd_x(0, 0, rt) for rt in range(4)] + [x for ct in range(8) for x in rd_wq(0, 0, ct)], 10, 50, prio=2)
    sc.stream(dma_q(2) + dma_x(2), 10, 62, prio=1)


def rd_k(f, imm):
    return f"ds_read_b128 {ar(A_K + 4*f, 4)}, v{V_KA} offset:{imm + 1024*f}"


def rd_v(f, imm):
    return f"ds_read_b128 {ar(A_V + 4*f, 4)}, v{V_VA} offset:{imm + 1024*f}"


def qk_mfmas(par, qts, czero=False):
    mf = []
    for kvh in range(2):
        for t in range(8):
            for qt in qts:
                d = vr(sreg(par, kvh, qt), 16)
                c = None if t else ("0" if czero else vr(V_NM + 16 * qt, 16))
                mf.append(mfma32(d, ar(A_K + 4 * (8 * kvh + t), 4), vr(qreg(qt, t), 4), c))
    return mf


def pv_mfmas(par, qts):
    mf = []
    for t in range(4):
        for dt in range(4):
            for qt in qts:
                mf.append(mfma32(ar(oreg(qt, dt), 16), ar(A_V + 4 * (4 * t + dt), 4),
                                 vr(sreg(par, t >> 1, qt) + 8 * (t & 1), 4)))
    return mf


def exp_stream(par, pairs):
    out = []
    prev = None

    def fin(p):
        kvh, qt, u = p
        b = sreg(par, kvh, qt)
        r = b + 2 * u
        return [f"v_add_f32 v{V_LS[qt]}, v{V_LS[qt]}, v{r}",
                f"v_add_f32 v{V_LS[qt]+1}, v{V_LS[qt]+1}, v{r+1}",
                f"v_cvt_pk_bf16_f32 v{b + 8*(u >> 2) + (u & 3)}, v{r}, v{r+1}"]
    for p in pairs:
        kvh, qt, u = p
        r = sreg(par, kvh, qt) + 2 * u
        f = fin(prev) if prev else []
        out.append(f"v_exp_f32 v{r}, v{r}")
        out += f[:1]
        out.append(f"v_exp_f32 v{r+1}, v{r+1}")
        out += f[1:]
        prev = p
    if prev:
        out += fin(prev)
    return out


def all_pairs(qts):
    return [(kvh, qt, u) for kvh in range(2) for qt in qts for u in range(8)]


NA = {2: 12, 1: 6}


def max_stream(par, qts):
    chains = []
    for qt in qts:
        regs = [sreg(par, kvh, qt) + r for kvh in range(2) for r in range(16)]
        m = V_MX[qt]
        c = [f"v_max3_f32 v{m}, v{regs[0]}, v{regs[1]}, v{regs[2]}"]
        k = 3
        while k + 1 < 32:
            c.append(f"v_max3_f32 v{m}, v{m}, v{regs[k]}, v{regs[k+1]}")
            k += 2
        c.append(f"v_max_f32 v{m}, v{m}, v{regs[31]}")
        chains.append(c)
    out = []
    for x in zip(*chains):
        out += list(x)
    return out


def mask_code(S, par, qt, dpos_sgpr):
    T = V_T
    t = S_TMP + 1
    S(f"s_lshl_b32 s{t}, s{dpos_sgpr}, 1")
    S(f"s_sub_u32 s{t}, s{S_W}, s{t}")
    S(f"s_lshl_b32 s{t}, s{t}, 5")
    S(f"v_add_u32 v{T}, s{t}, v{V_Q4}")
    S(f"v_add_u32 v{T+1}, -32, v{T}")
    for kvh in range(2):
        for half in range(2):
            for k in range(8):
                r = 8 * half + k
                c = 16 * ((r >> 2) & 1) + 8 * (r >> 3) + (r & 3)
                S(f"v_cmp_gt_i32_e64 {sr(S_MSK + 2*k, 2)}, {c}, v{T+kvh}")
            for k in range(8):
                r = sreg(par, kvh, qt) + 8 * half + k
                S(f"v_cndmask_b32_e64 v{r}, v{r}, v{V_NINF}, {sr(S_MSK + 2*k, 2)}")


def rowmax_code(S, qt, clamp):
    T = V_T
    S(f"v_mov_b32 v{T}, v{V_MX[qt]}\nv_mov_b32 v{T+1}, v{V_MX[qt]}")
    S(f"v_permlane32_swap_b32 v{T}, v{T+1}")
    S(f"v_max_f32 v{T+2}, v{T}, v{T+1}")
    if clamp:
        S(f"v_max_f32 v{T+2}, 0, v{T+2}")


def rare_code(S, par, qts):
    T = V_T
    for qt in qts:
        rowmax_code(S, qt, True)
        S(f"v_exp_f32 v{V_F[qt]}, -v{T+2}")
        for r in range(16):
            S(f"v_sub_f32 v{V_NM+16*qt+r}, v{V_NM+16*qt+r}, v{T+2}")
        S(f"v_mul_f32 v{V_LS[qt]}, v{V_LS[qt]}, v{V_F[qt]}")
        S(f"v_mul_f32 v{V_LS[qt]+1}, v{V_LS[qt]+1}, v{V_F[qt]}")
        for kvh in range(2):
            for r in range(16):
                x = sreg(par, kvh, qt) + r
                S(f"v_sub_f32 v{x}, v{x}, v{T+2}")
    S(f"s_mov_b32 s{S_RESC}, 1")


def resc_code(S, qts):
    T = V_T
    S("s_nop 15")
    for qt in qts:
        for b in range(0, 64, 8):
            for k in range(8):
                S(f"v_accvgpr_read_b32 v{T+k}, a{A_O+64*qt+b+k}")
            for k in range(8):
                S(f"v_mul_f32 v{T+k}, v{T+k}, v{V_F[qt]}")
            for k in range(8):
                S(f"v_accvgpr_write_b32 a{A_O+64*qt+b+k}, v{T+k}")
    S(f"s_mov_b32 s{S_RESC}, 0\ns_nop 1")


class Body:
    def __init__(self, nm, par, qk, pv):
        self.nm, self.par = nm, par
        a, b = par, par ^ 1
        restA = all_pairs(pv)[NA[len(pv)]:]
        valu1 = exp_stream(a, restA)
        vimm = 16384 if par == 0 else 0
        vrd = [rd_v(f, vimm) for f in range(16)]
        s1 = Seg()
        head = [f"v_xor_b32 v{V_VA}, 0x8000, v{V_VA}"] if par == 1 else []
        if qk:
            mf = qk_mfmas(b, qk)
            n1 = len(mf)
            g = [[] for _ in mf]
            spread(g, vrd, 0, (n1 * 3) // 4)
            spread(g, valu1, 0, n1)
            s1 = interleave(mf, g, head + ["s_waitcnt lgkmcnt(0)"])
        else:
            s1.add(head)
            s1.add(vrd)
            s1.add(valu1)
        mf = pv_mfmas(a, pv)
        n2 = len(mf)
        g = [[] for _ in mf]
        h2 = []
        self.mask = self.rare = None
        cut_mask = cut_rare = None
        if qk:
            h2 = ["s_waitcnt vmcnt(16) lgkmcnt(0)", "s_barrier"]
            kimm = 16384 if par == 0 else 0
            dk = [[f"s_add_u32 m0, s{S_MK}, {0 if par == 0 else 16384}"]]
            if par == 1:
                g[0] += [f"v_xor_b32 v{V_KA}, 0x8000, v{V_KA}", f"s_xor_b32 s{S_MV}, s{S_MV}, 0x8000"]
            for i in range(4):
                dk.append([f"buffer_load_dwordx4 v{V_DO}, {sr(SRD_K,4)}, s{S_KVO} offen offset:{1024*i} {COH} lds"])
            dk.append([f"s_add_u32 m0, s{S_MV}, {16384 if par == 0 else 0}"])
            for i in range(4):
                dk.append([f"buffer_load_dwordx4 v{V_DO}, {sr(SRD_V,4)}, s{S_KVO} offen offset:{1024*i} {COH} lds"])
            dk.append([f"s_add_u32 s{S_KVO}, s{S_KVO}, 16384"] +
                      ([f"s_xor_b32 s{S_MK}, s{S_MK}, 0x8000"] if par == 1 else []))
            mq = qk[-1]
            md = S_ND if len(qk) == 2 else S_NT
            g[0] += [f"s_sub_u32 s{S_TMP}, s{S_N1}, s{md}", f"s_add_u32 s{S_TMP}, s{S_TMP}, 2"]
            cm = 1 if n2 == 32 else 1
            g[cm] += [f"s_cmp_lt_u32 s{S_TMP}, 2", f"s_cbranch_scc1 L_{nm}_mask", "@mask"]
            mx = max_stream(b, qk)
            nmx = 6 if len(qk) == 2 else 3
            if n2 == 32 and len(qk) == 1:
                nmx = 4
            spread(g, mx, cm + 1, cm + 1 + nmx)
            cg = cm + 1 + nmx
            if len(qk) == 2:
                g[cg - 1] += [f"v_max_f32 v{V_T}, v{V_MX[0]}, v{V_MX[1]}", f"v_cmp_lt_f32 vcc, s{S_THR}, v{V_T}"]
            else:
                g[cg - 1] += [f"v_cmp_lt_f32 vcc, s{S_THR}, v{V_MX[0]}"]
            g[cg] += [f"s_cbranch_vccnz L_{nm}_rare", "@rare", f"s_add_u32 s{S_N1}, s{S_N1}, 1"]
            valu2 = exp_stream(b, all_pairs(qk)[:NA[len(qk)]])
            spread(g, [rd_k(f, kimm) for f in range(16)], 1, n2 - 2)
            spread(g, dk, cg, n2)
            spread(g, valu2, cg + 1 if n2 == 32 else cg, n2)
            M = Seg()
            M(f"L_{nm}_mask:\ns_nop 7")
            mask_code(M, b, mq, S_TMP)
            M(f"s_branch L_{nm}_mask_ret")
            self.mask = M
            R = Seg()
            R(f"L_{nm}_rare:")
            rare_code(R, b, qk)
            R(f"s_branch L_{nm}_rare_ret")
            self.rare = R
        else:
            h2 = ["s_waitcnt vmcnt(0) lgkmcnt(0)", "s_barrier"]
        segs = [s1, Seg()]
        segs[-1].add(h2)
        for m, gg in zip(mf, g):
            segs[-1].add([m])
            for x in gg:
                if x == "@mask" or x == "@rare":
                    segs.append(Seg())
                    segs[-1](f"L_{nm}_{x[1:]}_ret:")
                else:
                    segs[-1].add([x])
        self.resc = None
        if qk:
            segs[-1](f"s_cmp_lg_u32 s{S_RESC}, 0\ns_cbranch_scc1 L_{nm}_resc")
            segs.append(Seg())
            segs[-1](f"L_{nm}_resc_ret:")
            Z = Seg()
            Z(f"L_{nm}_resc:")
            resc_code(Z, qk)
            Z(f"s_branch L_{nm}_resc_ret")
            self.resc = Z
        self.segs = segs

    def trace(self, rare):
        if not rare or self.mask is None:
            return list(self.segs)
        s = self.segs
        return [s[0], s[1], self.mask, s[2], self.rare, s[3], self.resc, s[4]]

    def out_of_line(self):
        return [x for x in (self.mask, self.rare, self.resc) if x is not None]


def epilogue(S, qt, so, flavor="sc1"):
    T = V_T
    ls = V_LS[qt]
    S(f"v_add_f32 v{ls}, v{ls}, v{ls+1}")
    S(f"v_mov_b32 v{ls+1}, v{ls}")
    S(f"v_permlane32_swap_b32 v{ls}, v{ls+1}")
    S(f"v_add_f32 v{ls}, v{ls}, v{ls+1}")
    S(f"v_rcp_f32 v{ls}, v{ls}")
    S("s_nop 7")
    k = 0
    for dt in range(4):
        for t in range(2):
            D = T + 8 + 4 * (k & 1)
            k += 1
            for j in range(8):
                S(f"v_accvgpr_read_b32 v{T+j}, a{oreg(qt, dt) + 8*t + j}")
            for j in range(8):
                S(f"v_mul_f32 v{T+j}, v{T+j}, v{ls}")
            for u in range(4):
                S(f"v_cvt_pk_bf16_f32 v{D+u}, v{T+2*u}, v{T+2*u+1}")
            S(f"buffer_store_dwordx4 {vr(D,4)}, v{V_CST}, {sr(SRD_CTX,4)}, s{so} offen offset:{dt*1024 + t*512} {flavor} #ctx{qt}")


def p3_prologue(nm, extra):
    A = Seg()
    A("s_waitcnt lgkmcnt(0)\ns_barrier")
    A.add(kv_dma("K", 0, 1) + kv_dma("K", 1, 2) + kv_dma("V", 0, 1) + extra +
          kv_dma("K", 2, 3) + kv_dma("V", 1, 2) + kv_dma("K", 3, 0) + kv_dma("V", 2, 3))
    A(f"s_mov_b32 s{S_TMP+2}, {SCALE_K:#x}\ns_mov_b32 s{S_TMP+3}, {SCALE_K:#x}")
    for r in range(V_S, V_S + 128, 2):
        A(f"v_pk_mul_f32 {vr(r,2)}, {vr(r,2)}, {sr(S_TMP+2,2)}")
    for qt in range(2):
        for p in range(4):
            for e in range(2):
                for u in range(4):
                    a = acc2(2 * p + (u >> 1), 2 * qt + e) + 2 * (u & 1)
                    A(f"v_cvt_pk_bf16_f32 v{qreg(qt, 2*p+e) + u}, v{a}, v{a+1}")
    for qt in range(2):
        for p in range(4):
            for u in range(4):
                A(f"v_permlane16_swap_b32 v{qreg(qt, 2*p) + u}, v{qreg(qt, 2*p+1) + u}")
    for qt in range(2):
        A(f"v_mov_b32 v{V_LS[qt]}, 0\nv_mov_b32 v{V_LS[qt]+1}, 0")
    A(f"v_xor_b32 v{V_T+4}, 0x8000, v{V_KA}")
    A("@vmwait K0\ns_barrier")
    for f in range(16):
        A(f"ds_read_b128 {ar(A_K + 4*f, 4)}, v{V_T+4} offset:{16384 + 1024*f}")
    A.add(qk_mfmas(0, [0, 1], czero=True))
    A("@vmwait K1 V0\ns_barrier")
    A.add(kv_dma("K", 4, 1) + kv_dma("V", 3, 0))
    for f in range(16):
        A(rd_k(f, 0))
    A(f"s_mov_b32 s{S_KVO}, {5*16384}\ns_mov_b32 s{S_N1}, 1\ns_mov_b32 s{S_TMP}, 0")
    A(f"s_cmp_eq_u32 s{S_ND}, 2\ns_cbranch_scc1 L_{nm}_pmask")
    M = Seg()
    M(f"L_{nm}_pmask:\ns_nop 7")
    mask_code(M, 0, 1, S_TMP)
    M(f"s_branch L_{nm}_pmask_ret")
    B = Seg()
    B(f"L_{nm}_pmask_ret:")
    B.add(max_stream(0, [0, 1]))
    for qt in range(2):
        rowmax_code(B, qt, False)
        for r in range(16):
            B(f"v_sub_f32 v{V_NM+16*qt+r}, 0, v{V_T+2}")
        for kvh in range(2):
            for r in range(16):
                x = sreg(0, kvh, qt) + r
                B(f"v_sub_f32 v{x}, v{x}, v{V_T+2}")
    B.add(exp_stream(0, all_pairs([0, 1])[:NA[2]]))
    B(f"s_sub_u32 s{S_CNT}, s{S_ND}, 1")
    return A, M, B


def p3(nm, st, pro_extra, after_s, before_last):
    PA, PM, PB = p3_prologue(nm, pro_extra)
    st(PB)
    D0, D1 = Body(nm + "_d0", 0, [0, 1], [0, 1]), Body(nm + "_d1", 1, [0, 1], [0, 1])
    MX = Body(nm + "_mx", 1, [0], [0, 1])
    S0, S1 = Body(nm + "_s0", 0, [0], [0]), Body(nm + "_s1", 1, [0], [0])
    LA = Body(nm + "_la", 1, [], [0])
    lab = lambda s: Seg()(s)
    hD = lab(f".p2align 5\nL_{nm}_dual:")
    tD0 = lab(f"s_sub_u32 s{S_CNT}, s{S_CNT}, 1\ns_cmp_eq_u32 s{S_CNT}, 0\ns_cbranch_scc1 L_{nm}_mixed")
    tD1 = lab(f"s_sub_u32 s{S_CNT}, s{S_CNT}, 1\ns_branch L_{nm}_dual")
    hM = lab(f"L_{nm}_mixed:")
    EP_S = Seg()
    st(EP_S)
    epilogue(EP_S, 1, S_CS)
    EP_S.add(after_s)
    st(EP_S)
    EP_S(f"s_sub_u32 s{S_CNT}, s{S_NT}, s{S_ND}\ns_sub_u32 s{S_CNT}, s{S_CNT}, 1")
    hS = lab(f".p2align 5\nL_{nm}_single:")
    tS0 = lab(f"s_sub_u32 s{S_CNT}, s{S_CNT}, 1\ns_cmp_eq_u32 s{S_CNT}, 0\ns_cbranch_scc1 L_{nm}_last")
    tS1 = lab(f"s_sub_u32 s{S_CNT}, s{S_CNT}, 1\ns_branch L_{nm}_single")
    hL = lab(f"L_{nm}_last:")
    hL.add(before_last)
    EP_L = Seg()
    st(EP_L)
    epilogue(EP_L, 0, S_CL)
    st(EP_L)
    lin = [PA, PB, hD] + D0.segs + [tD0] + D1.segs + [tD1, hM] + MX.segs + [EP_S, hS] + S0.segs + [tS0] + \
        S1.segs + [tS1, hL] + LA.segs + [EP_L]
    ool = [PM]
    for b in (D0, D1, MX, S0, S1):
        ool += b.out_of_line()
    traces = []
    for rare in (False, True):
        for nloop in (0, 1, 2):
            t = [PA] + ([PM] if rare else []) + [PB]
            for _ in range(nloop):
                t += D0.trace(rare) + [tD0] + D1.trace(rare) + [tD1]
            t += D0.trace(rare) + [tD0] + MX.trace(rare) + [EP_S]
            for _ in range(nloop):
                t += S0.trace(rare) + [tS0] + S1.trace(rare) + [tS1]
            t += S0.trace(rare) + [tS0, hL] + LA.trace(rare) + [EP_L]
            traces.append(t)
    return lin, ool, traces
```

```python
from common import *

S_W = 3
V_L = 1

SRD_H, SRD_UR, SRD_YO, SRD_D = 16, 20, 24, 28
S_T4 = 36
S_DO = 42
S_UB = 43
V_AA, V_BA = 4, 5
V_HW = 6
V_YW, V_YR, V_YS = 7, 8, 9
V_T4 = 12
V_O = 20
V_DA = 32
V_H = 48
V_HO = 72
V_D = 74
V_ACC4 = 76
V_FR = 108
H_STRIDE = 4160
H_WAVE = 4 * H_STRIDE
U_LDS, U_WAVE = 131072, 4608
Y_LDS = 4 * H_WAVE


def p4_ptr_loads():
    return [f"s_load_dwordx4 s[32:35], s[0:1], {KA_SSMK}"]


def p4_srds():
    S = Seg()
    t = S_T4
    S(f"s_lshl_b32 s{t}, s2, 2")
    S(f"s_add_u32 s{t}, s{t}, s{S_W}")
    S(f"s_lshl_b32 s{S_DO}, s{t}, 1")
    S(f"s_lshl_b32 s{t+1}, s{t}, 12")
    srd(S, SRD_H, 32, 4096, off=f"s{t+1}")
    S(f"s_add_u32 s{t+1}, s{t+1}, {WS_UR}")
    srd(S, SRD_UR, 40, 4096, off=f"s{t+1}")
    S(f"s_lshl_b32 s{t+1}, s2, 14")
    S(f"s_add_u32 s{t+1}, s{t+1}, {WS_Y4}")
    srd(S, SRD_YO, 40, 16384, off=f"s{t+1}")
    srd(S, SRD_D, 34, 2048)
    S(f"s_mul_i32 s{S_UB}, s{S_W}, {U_WAVE}")
    S(f"s_add_u32 s{S_UB}, s{S_UB}, {U_LDS}")
    return groupify([i.text for i in S])


def p4_ur_dma(tmp):
    out = [f"v_lshlrev_b32 v{tmp}, 4, v{V_L}", f"s_mov_b32 m0, s{S_UB}", "s_nop 0"]
    for i in range(4):
        out.append(f"buffer_load_dwordx4 v{tmp}, {sr(SRD_UR,4)}, 0 offen offset:{1024*i} sc1 lds")
    return out


def p4_h_loads():
    out = [f"v_lshlrev_b32 v{V_HO}, 4, v{V_L}", f"v_add_u32 v{V_HO+1}, -8, v{V_HO}", f"v_mov_b32 v{V_D+1}, 0",
           f"buffer_load_ushort v{V_D}, v{V_D+1}, {sr(SRD_D,4)}, s{S_DO} offen"]
    for i in range(4):
        if i == 0:
            out.append(f"buffer_load_dwordx2 {vr(V_H,2)}, v{V_HO+1}, {sr(SRD_H,4)}, 0 offen")
        else:
            out.append(f"buffer_load_dwordx2 {vr(V_H+6*i,2)}, v{V_HO}, {sr(SRD_H,4)}, 0 offen offset:{1024*i - 8}")
        out.append(f"buffer_load_dwordx4 {vr(V_H+6*i+2,4)}, v{V_HO}, {sr(SRD_H,4)}, 0 offen offset:{1024*i}")
    return out


def p4_setup(S):
    T, t, l = V_T4, S_T4, V_L
    S(f"s_mul_i32 s{t}, s{S_W}, {H_WAVE}")
    S(f"v_and_b32 v{T}, 15, v{l}")
    S(f"v_lshrrev_b32 v{T+1}, 4, v{l}")
    S(f"v_add_u32 v{T+2}, 13, v{T}")
    S(f"v_and_b32 v{T+3}, 3, v{T+2}")
    S(f"v_cmp_eq_u32 vcc, 0, v{T+3}")
    S(f"v_lshrrev_b32 v{T+2}, 2, v{T+2}")
    S(f"v_mul_u32_u24 v{T+3}, {H_STRIDE}, v{T+3}")
    S(f"v_cndmask_b32 v{T+3}, v{T+3}, 8, vcc")
    S(f"v_lshl_add_u32 v{T+3}, v{T+2}, 3, v{T+3}")
    S(f"v_lshl_add_u32 v{T+3}, v{T+1}, 4, v{T+3}")
    S(f"v_add_u32 v{V_AA}, s{t}, v{T+3}")
    S(f"v_add_u32 v{V_HW}, s{t}, v{V_HO}")
    S(f"v_lshlrev_b32 v{T+2}, 5, v{T}")
    S(f"v_lshlrev_b32 v{T+3}, 4, v{T+1}")
    S(f"v_sub_u32 v{T+3}, v{T+3}, v{T+2}")
    S(f"s_add_u32 s{t+1}, s{S_UB}, 480")
    S(f"v_add_u32 v{V_BA}, s{t+1}, v{T+3}")
    S(f"v_mul_u32_u24 v{T+2}, 136, v{T}")
    S(f"v_lshl_add_u32 v{T+2}, v{T+1}, 5, v{T+2}")
    S(f"s_lshl_b32 s{t+1}, s{S_W}, 1")
    S(f"s_add_u32 s{t+1}, s{t+1}, {Y_LDS}")
    S(f"v_add_u32 v{V_YW}, s{t+1}, v{T+2}")
    S(f"v_lshrrev_b32 v{T+2}, 3, v{l}")
    S(f"v_mul_u32_u24 v{T+2}, 136, v{T+2}")
    S(f"v_and_b32 v{T+3}, 7, v{l}")
    S(f"v_lshl_add_u32 v{T+2}, v{T+3}, 4, v{T+2}")
    S(f"s_mul_i32 s{t+1}, s{S_W}, {4*1088}")
    S(f"s_add_u32 s{t+1}, s{t+1}, {Y_LDS}")
    S(f"v_add_u32 v{V_YR}, s{t+1}, v{T+2}")
    S(f"s_lshl_b32 s{t+1}, s{S_W}, 12")
    S(f"v_add_u32 v{V_YS}, s{t+1}, v{V_HO}")
    S(f"v_lshl_add_u32 v{T+2}, v{T+1}, 3, v{T}")
    S(f"v_sub_u32 v{V_D+1}, 15, v{T+2}")


def p4_prep(S):
    T, l = V_T4, V_L
    Z = T + 4
    for k in range(4):
        S(f"v_mov_b32 v{Z+k}, 0")
    S(f"v_and_b32 v{T}, 3, v{l}")
    S(f"v_mul_u32_u24 v{T}, {H_STRIDE}, v{T}")
    S(f"v_lshrrev_b32 v{T+1}, 2, v{l}")
    S(f"v_min_u32 v{T+1}, 3, v{T+1}")
    S(f"v_lshl_add_u32 v{T}, v{T+1}, 4, v{T}")
    S(f"v_add_u32 v{T}, s{S_T4}, v{T}")
    S(f"ds_write_b128 v{T}, {vr(Z,4)}")
    S(f"v_and_b32 v{T+1}, 31, v{l}")
    S(f"v_lshlrev_b32 v{T+1}, 4, v{T+1}")
    S(f"v_add_u32 v{T+1}, s{S_UB}, v{T+1}")
    S(f"ds_write_b128 v{T+1}, {vr(Z,4)} offset:4096")
    for i in range(4):
        D = V_H + 6 * i
        O = V_O + 6 * (i & 1)
        for k in range(5):
            S(f"v_alignbit_b32 v{O+k}, v{D+k+1}, v{D+k}, 16")
        off = 48 + 1024 * i
        S(f"ds_write_b128 v{V_HW}, {vr(D+2,4)} offset:{off + 16}")
        S(f"ds_write_b128 v{V_HW}, {vr(O,4)} offset:{off + H_STRIDE}")
        for c, R in ((2, D + 1), (3, O + 1)):
            for k in range(4):
                S(f"v_mov_b32 v{T+k}, v{R+k}")
            S(f"ds_write_b128 v{V_HW}, {vr(T,4)} offset:{off + c*H_STRIDE}")
    S(f"v_lshlrev_b32 v{T}, 16, v{V_D}")
    for i in range(4):
        S(f"v_cmp_eq_u32 vcc, {2*i}, v{V_D+1}")
        S(f"v_cndmask_b32 v{V_DA+i}, 0, v{V_D}, vcc")
        S(f"v_cmp_eq_u32 vcc, {2*i+1}, v{V_D+1}")
        S(f"v_cndmask_b32 v{V_DA+i}, v{V_DA+i}, v{T}, vcc")
    S("s_waitcnt lgkmcnt(0)")


def afr(rho, q):
    return V_FR + (rho & 1) * 64 + q * 4


def bfr(rho, p):
    return V_FR + (rho & 1) * 64 + 32 + p * 4


def p4_reads(rho):
    out = []
    for k in range(8):
        out.append(f"ds_read_b128 {vr(bfr(rho, k),4)}, v{V_BA} offset:{512*(7-k) + 64*rho}")
        for a in range(2):
            out.append(f"ds_read_b64 {vr(afr(rho, k) + 2*a, 2)}, v{V_AA} offset:{64*(8*k + rho) + 8*a}")
    return out


def p4_main(S, fill):
    S.add(p4_reads(0))
    for rho in range(8):
        mf = []
        for q in range(8):
            for p in range(8 - q):
                d = vr(V_ACC4 + 4 * (p + q), 4)
                mf.append(mfma16(d, vr(afr(rho, q), 4), vr(bfr(rho, p), 4), "0" if (rho == 0 and q == 0) else None))
            if rho == 0 and q == 0:
                for p in range(8):
                    mf.append(mfma16(vr(V_ACC4 + 4 * p, 4), vr(V_DA, 4), vr(bfr(0, p), 4)))
        g = [[] for _ in mf]
        if rho < 7:
            spread(g, p4_reads(rho + 1), 0, 30)
        head, items = fill.get(rho, ([], []))
        spread(g, items, 1, len(mf))
        S.add(interleave(mf, g, head))


def p4_out(S, after_bar, flavor="sc1"):
    T = V_T4
    for tt in range(8):
        a = V_ACC4 + 4 * tt
        r = T + 2 * (tt & 1)
        S(f"v_cvt_pk_bf16_f32 v{r}, v{a}, v{a+1}")
        S(f"v_cvt_pk_bf16_f32 v{r+1}, v{a+2}, v{a+3}")
        for k in range(2):
            S(f"ds_write_b16 v{V_YW}, v{r+k} offset:{2176*tt + 16*k}")
            S(f"ds_write_b16_d16_hi v{V_YW}, v{r+k} offset:{2176*tt + 16*k + 8}")
    S("s_waitcnt lgkmcnt(0)\ns_barrier")
    S.add(after_bar)
    for i in range(4):
        for a in range(2):
            S(f"ds_read_b64 {vr(V_FR + 4*i + 2*a, 2)}, v{V_YR} offset:{1088*i + 8*a}")
    for i in range(4):
        S(f"buffer_store_dwordx4 {vr(V_FR + 4*i, 4)}, v{V_YS}, {sr(SRD_YO,4)}, 0 offen offset:{1024*i} {flavor} #yst")


SRD_CX, SRD_WO, SRD_XI, SRD_Y, SRD_OUT, SRD_G = 44, 48, 52, 56, 60, 64
S_CO = 68
S_WO = 69
S_MW = 70
S_CNT = 71
S_T = 72
S_XO, S_YO, S_GO, S_RB, S_CB = 78, 79, 80, 81, 82
P_X, P_WO, P_OUT = 84, 86, 88

V_CD = 236
V_WD = 238
V_WA = 242
V_XV, V_YV, V_GV = 250, 251, 252
V_PL = 253
V_ACC = 20
V_WF = 52
V_X = 84
V_Y = 100
V_G = 116
V_A = 120
V_T = 36
V_TE = 152
A_C = 0
SLOT0 = 6

NS = 32


def acc5(ct, rt):
    return V_ACC + (ct * 2 + rt) * 4


def p5_ptr_loads():
    return [f"s_load_dwordx2 {sr(P_X,2)}, s[0:1], {KA_Q}", f"s_load_dwordx2 {sr(P_WO,2)}, s[0:1], {KA_WO}",
            f"s_load_dwordx2 {sr(P_OUT,2)}, s[0:1], {KA_OUT}"]


def rb_cb(S, rb, cb, t):
    S(f"s_and_b32 s{rb}, s2, 3")
    S(f"s_lshl_b32 s{rb}, s{rb}, 1")
    S(f"s_sub_u32 s{t}, 14, s{rb}")
    S(f"s_bitcmp1_b32 s2, 4")
    S(f"s_cselect_b32 s{rb}, s{t}, s{rb}")
    S(f"s_bfe_u32 s{t}, s2, 0x10003")
    S(f"s_add_u32 s{rb}, s{rb}, s{t}")
    S(f"s_bfe_u32 s{cb}, s2, 0x10002")
    S(f"s_lshl_b32 s{cb}, s{cb}, 3")
    S(f"s_lshr_b32 s{t}, s2, 5")
    S(f"s_add_u32 s{cb}, s{cb}, s{t}")


def p5_setup():
    S = Seg()
    T, t, l = V_T, S_T, V_L
    rb_cb(S, S_RB, S_CB, t + 2)
    S(f"s_mov_b32 s{t}, s{S_RB}\ns_mov_b32 s{t+1}, s{S_CB}")
    S(f"s_lshl_b32 s{t+2}, s{t}, 2")
    S(f"s_add_u32 s{t+2}, s{t+2}, s{S_W}")
    S(f"s_lshl_b32 s{S_CO}, s{t+2}, 18")
    S(f"s_lshl_b32 s{S_WO}, s{S_W}, 16")
    S(f"s_lshl_b32 s{t+3}, s{t+1}, 7")
    S(f"s_add_u32 s{S_WO}, s{S_WO}, s{t+3}")
    S(f"s_lshl_b32 s{S_MW}, s{S_W}, 12")
    S(f"s_lshl_b32 s{S_XO}, s{t+2}, 16")
    S(f"s_add_u32 s{S_XO}, s{S_XO}, s{t+3}")
    S(f"s_lshl_b32 s{S_YO}, s{t+1}, 18")
    S(f"s_lshl_b32 s{t+3}, s{t+2}, 8")
    S(f"s_add_u32 s{S_YO}, s{S_YO}, s{t+3}")
    S(f"s_lshl_b32 s{S_GO}, s{t+2}, 7")
    S(f"v_lshlrev_b32 v{V_CD}, 4, v{l}")
    S(f"v_add_u32 v{V_CD+1}, 0x20000, v{V_CD}")
    S(f"v_lshrrev_b32 v{T}, 3, v{l}")
    S(f"v_lshlrev_b32 v{T}, 11, v{T}")
    S(f"v_lshrrev_b32 v{T+1}, 4, v{l}")
    S(f"v_lshlrev_b32 v{T+2}, 1, v{T+1}")
    S(f"v_and_b32 v{T+3}, 7, v{l}")
    S(f"v_xor_b32 v{T+2}, v{T+2}, v{T+3}")
    S(f"v_lshl_add_u32 v{T}, v{T+2}, 4, v{T}")
    for i in range(4):
        S(f"v_add_u32 v{V_WD+i}, {16384*i - 1024*i}, v{T}")
    S(f"v_bfe_u32 v{T}, v{l}, 2, 2")
    S(f"v_and_b32 v{T+2}, 1, v{T+1}")
    S(f"v_lshrrev_b32 v{T+3}, 1, v{T}")
    S(f"v_lshl_add_u32 v{T+3}, v{T+2}, 1, v{T+3}")
    S(f"v_lshl_add_u32 v{T}, v{T+2}, 2, v{T}")
    S(f"v_lshrrev_b32 v{T+4}, 5, v{l}")
    S(f"v_lshl_add_u32 v{T}, v{T+4}, 4, v{T}")
    S(f"v_lshlrev_b32 v{T}, 7, v{T}")
    S(f"v_and_b32 v{T+5}, 3, v{l}")
    S(f"v_lshl_add_u32 v{T}, v{T+5}, 3, v{T}")
    for ct in range(4):
        S(f"v_xor_b32 v{T+5}, {ct}, v{T+3}")
        S(f"v_lshl_add_u32 v{V_WA+ct}, v{T+5}, 5, v{T}")
        S(f"v_add_u32 v{V_WA+4+ct}, 0x10000, v{V_WA+ct}")
    S(f"v_and_b32 v{T}, 15, v{l}")
    S(f"v_lshlrev_b32 v{T+5}, 5, v{T+2}")
    S(f"v_lshl_add_u32 v{T+5}, v{T+4}, 4, v{T+5}")
    S(f"v_lshl_add_u32 v{V_XV}, v{T}, 11, v{T+5}")
    S(f"v_lshlrev_b32 v{T+5}, 11, v{T+5}")
    S(f"v_lshl_add_u32 v{V_YV}, v{T}, 3, v{T+5}")
    S(f"v_lshlrev_b32 v{V_GV}, 2, v{T}")
    srd(S, SRD_CX, 40, 16 * MB, off=WS_CTX)
    srd(S, SRD_WO, P_WO, 4096 * 1024 * 2)
    srd(S, SRD_XI, P_X, 2048 * 1024 * 2)
    srd(S, SRD_Y, 40, 4 * MB, off=WS_Y4)
    srd(S, SRD_OUT, P_OUT, 2048 * 1024 * 2)
    srd(S, SRD_G, 40, 8192, off=WS_G)
    return groupify([i.text for i in S])


def ld_ctx(n, kq, rt):
    return f"buffer_load_dwordx4 {ar(A_C + (n & 3)*32 + (kq*2 + rt)*4, 4)}, v{V_CD+rt}, {sr(SRD_CX,4)}, s{S_CO} offen offset:{1024*kq} sc1"


def dma_wo(n, i):
    g = [f"s_add_u32 m0, s{S_MW}, {((n + SLOT0) & 7)*16384}"] if i == 0 else []
    return g, f"buffer_load_dwordx4 v{V_WD+i}, {sr(SRD_WO,4)}, s{S_WO} offen offset:{1024*i} lds #o{n & 7}"


ADV_C = f"s_add_u32 s{S_CO}, s{S_CO}, 4096"
ADV_W = f"s_add_u32 s{S_WO}, s{S_WO}, {128*2048}"


def wo_stage(n):
    out = []
    for i in range(4):
        pre, d = dma_wo(n, i)
        out.append(pre + (["s_nop 0"] if pre else []) + [d])
    out[-1].append(ADV_W)
    return out


def ctx_stage(n):
    return [ld_ctx(n, kq, rt) for kq in range(4) for rt in range(2)] + [ADV_C]


def rd_wo(n, kq, ct):
    slot = (n + SLOT0) & 7
    va = V_WA + ct + (4 if slot >= 4 else 0)
    return [f"ds_read_b64_tr_b16 {vr(V_WF + (kq & 1)*16 + ct*4 + 2*a, 2)}, v{va} offset:{(slot & 3)*16384 + (32*kq + 8*a)*128}"
            for a in range(2)]


def ep_loads(which):
    out = []
    for rt in range(2):
        if which == "x":
            out.append([f"s_add_u32 s{S_T}, s{S_XO}, {rt*32768}"] +
                       [f"buffer_load_dwordx4 {vr(V_X + (rt*2 + pr)*4, 4)}, v{V_XV}, {sr(SRD_XI,4)}, s{S_T} offen offset:{64*pr}"
                        for pr in range(2)])
            out.append([f"buffer_load_dword v{V_G+rt}, v{V_GV}, {sr(SRD_G,4)}, s{S_GO} offen offset:{64*rt} sc1"])
        else:
            for pr in range(2):
                for e in range(2):
                    out.append([f"s_add_u32 s{S_T}, s{S_YO}, {(8*pr + e)*16384}",
                                f"buffer_load_dwordx2 {vr(V_Y + ((rt*2 + pr)*2 + e)*2, 2)}, v{V_YV}, {sr(SRD_Y,4)}, s{S_T} offen offset:{128*rt} sc1"])
    return out


def ep_pre():
    out = []
    T = V_TE
    for rt in range(2):
        out.append(f"v_sub_f32 v{V_G+2+rt}, 1.0, v{V_G+rt}")
        for pr in range(2):
            for u in range(4):
                x = V_X + (rt * 2 + pr) * 4 + u
                y = V_Y + (rt * 2 + pr) * 4 + u
                a = V_A + (rt * 2 + pr) * 8 + 2 * u
                out += [f"v_lshlrev_b32 v{a}, 16, v{x}", f"v_lshlrev_b32 v{T}, 16, v{y}",
                        f"v_and_b32 v{a+1}, 0xffff0000, v{x}", f"v_and_b32 v{T+1}, 0xffff0000, v{y}",
                        f"v_mul_f32 v{a}, v{a}, v{T}", f"v_mul_f32 v{a+1}, v{a+1}, v{T+1}",
                        f"v_mul_f32 v{a}, v{a}, v{V_G+rt}", f"v_mul_f32 v{a+1}, v{a+1}, v{V_G+rt}"]
    return out


def stage(u, first=False, more=True, nxt=True, fill=None, bar_tags=(), after_bar=()):
    S = Seg()
    for kq in range(4):
        mf = []
        for ct in range(4):
            for rt in range(2):
                mf.append(mfma16(vr(acc5(ct, rt), 4), vr(V_WF + (kq & 1) * 16 + ct * 4, 4),
                                 ar(A_C + (u & 3) * 32 + (kq * 2 + rt) * 4, 4), "0" if (first and kq == 0) else None))
        g = [[] for _ in mf]
        head = []
        if kq < 3:
            rd = [x for ct in range(4) for x in rd_wo(u, kq + 1, ct)]
        elif nxt:
            rd = [x for ct in range(4) for x in rd_wo(u + 1, 0, ct)]
            head = [f"@vmwait o{(u + 1) & 7} " + " ".join(bar_tags), "s_barrier"] + list(after_bar)
        else:
            rd = []
        spread(g, rd, 0, 6)
        if more:
            pre, d = dma_wo(u + 4, kq)
            g[2] += pre
            g[4].append(d)
            g[6].append(ld_ctx(u, kq, 0))
            g[7].append(ld_ctx(u, kq, 1))
            if kq == 3:
                g[7] += [ADV_C, ADV_W]
        if fill and fill[kq]:
            spread(g, fill[kq], 0, 8)
        S.add(interleave(mf, g, head))
    return S


def p5_epilogue(S):
    for rt in range(2):
        for pr in range(2):
            for r in range(4):
                S(f"v_permlane16_swap_b32 v{acc5(2*pr, rt) + r}, v{acc5(2*pr+1, rt) + r}")
    for rt in range(2):
        S(f"s_add_u32 s{S_T}, s{S_XO}, {rt*32768}")
        for pr in range(2):
            a = V_A + (rt * 2 + pr) * 8
            for j in range(8):
                S(f"v_fma_f32 v{a+j}, v{acc5(2*pr + (j >> 2), rt) + (j & 3)}, v{V_G+2+rt}, v{a+j}")
            D = V_X + (rt * 2 + pr) * 4
            for u in range(4):
                S(f"v_cvt_pk_bf16_f32 v{D+u}, v{a+2*u}, v{a+2*u+1}")
            S(f"buffer_store_dwordx4 {vr(D,4)}, v{V_XV}, {sr(SRD_OUT,4)}, s{S_T} offen offset:{64*pr}")
```

```python
import sys
from common import *
import f1, f2, f3

NAME = "gated_mix__ssm_conv_h3__compressed_kv_cla__prompt_kernel"
SRD_F, SRD_DBG = 8, 12
S_W, V_L = 3, 1
V_PF = 15
SPIN = 400000
ool = []


def sig_off(v, t):
    return [f"v_lshlrev_b32 v{v}, 20, v{V_L}", f"s_lshl_b32 s{t}, s{S_W}, 26", f"v_add_u32 v{v}, s{t}, v{v}"]


def signal(F, voff, vone, t):
    return [f"v_mov_b32 v{vone}, 1", f"s_lshl_b32 s{t}, s2, 2",
            f"buffer_store_dword v{vone}, v{voff}, {sr(SRD_F,4)}, s{t} offen offset:{F} sc1"]


def poll(tag, load, vp, t):
    S = Seg()
    S(f"L_spin_{tag}:\ns_mov_b32 s{t}, {SPIN}\nL_spin_{tag}_l:\ns_sleep 1")
    S(load)
    S(f"s_waitcnt vmcnt(0)\nv_cmp_ne_u32 vcc, 1, v{vp}\ns_nop 4\ns_cbranch_vccz L_spin_{tag}_ret")
    S(f"s_sub_u32 s{t}, s{t}, 1\ns_cmp_lg_u32 s{t}, 0\ns_cbranch_scc1 L_spin_{tag}_l\ns_branch L_spin_{tag}_ret")
    ool.append(S)
    return [f"v_cmp_ne_u32 vcc, 1, v{vp}", "s_nop 4", f"s_cbranch_vccnz L_spin_{tag}", f"L_spin_{tag}_ret:"]


def touch_row(ptr, nbytes, shift_sgpr_expr, tmpv):
    return [[f"s_mov_b32 s4, s{ptr}", f"s_mov_b32 s5, s{ptr+1}", f"s_mov_b32 s6, {nbytes}", "s_mov_b32 s7, 0x20000"],
            f"v_lshlrev_b32 v{tmpv}, 7, v{V_L}",
            [f"s_lshl_b32 s{shift_sgpr_expr}, s2, 2", f"s_add_u32 s{shift_sgpr_expr}, s{shift_sgpr_expr}, s{S_W}",
             f"s_lshl_b32 s{shift_sgpr_expr}, s{shift_sgpr_expr}, 13",
             f"buffer_load_dword v{V_PF}, v{tmpv}, s[4:7], s{shift_sgpr_expr} offen"]]


def start(st):
    H = Seg()
    H(kernel_header(NAME))
    H(f"s_cmp_ge_u32 s2, 256\ns_cbranch_scc1 L_end")
    p0 = f1.P0
    H(f"s_load_dwordx2 {sr(f1.P_C,2)}, s[0:1], {KA_C}")
    H(f"s_load_dwordx4 {sr(f1.P_WU,4)}, s[0:1], {KA_WUK}")
    H(f"s_load_dwordx2 {sr(f1.S_WS,2)}, s[0:1], {KA_WS}")
    H(f"s_load_dwordx8 {sr(p0.ptr,8)}, s[0:1], {KA_Q}")
    H(f"s_load_dwordx2 {sr(p0.ptr+8,2)}, s[0:1], {KA_GW}")
    H(f"s_load_dwordx2 s[90:91], s[0:1], {KA_WQ}")
    H(f"s_load_dwordx2 s[96:97], s[0:1], {KA_DBG}")
    H(f"v_lshrrev_b32 v2, 6, v0\nv_and_b32 v{V_L}, 63, v0\nv_lshlrev_b32 v3, 4, v0")
    H(f"v_readfirstlane_b32 s{S_W}, v2")
    f1.setup(H)
    st(H)
    srd(H, 4, f1.S_WS, 4096, off=WS_FLAG)
    H("s_lshl_b32 s43, s2, 20\nv_add_u32 v3, s43, v3")
    H("v_mov_b32 v4, 0\nv_mov_b32 v5, 0\nv_mov_b32 v6, 0\nv_mov_b32 v7, 0")
    H("buffer_store_dwordx4 v[4:7], v3, s[4:7], 0 offen sc1")
    H.add(flat(f1.dma_w(0) + f1.dma_c(0) + f1.dma_w(1) + f1.dma_c(1)))
    H(f"s_lshl_b32 s43, s2, 2\ns_add_u32 s43, s43, s{S_W}")
    H(f"v_lshlrev_b32 v8, 7, v{V_L}")
    H("s_bitcmp1_b32 s43, 0")
    H(f"s_cselect_b32 s4, s{f1.P_WU+2}, s{f1.P_WU}\ns_cselect_b32 s5, s{f1.P_WU+3}, s{f1.P_WU+1}")
    H(f"s_mov_b32 s6, {4*MB}\ns_lshr_b32 s98, s43, 1\ns_lshl_b32 s98, s98, 13")
    H(f"buffer_load_dword v{V_PF}, v8, s[4:7], s98 offen")
    H(f"v_lshrrev_b32 v9, 4, v{V_L}\nv_lshl_add_u32 v9, v9, 24, v8\ns_lshl_b32 s98, s43, 11")
    H(f"buffer_load_dword v{V_PF}, v9, {sr(f1.SRD_C,4)}, s98 offen")
    H(f"s_getpc_b64 s[4:5]\nL_pc:\ns_lshr_b32 s98, s2, 3\ns_lshl_b32 s98, s98, 2\ns_add_u32 s98, s98, s{S_W}\ns_lshl_b32 s98, s98, 10")
    H("v_and_b32 v9, 0x380, v8\nv_add_u32 v9, s98, v9\nv_min_u32 v9, L_code_end - L_pc - 4, v9")
    H("v_mov_b32 v11, s5\nv_add_co_u32 v10, vcc, s4, v9\nv_addc_co_u32 v11, vcc, 0, v11, vcc")
    H(f"global_load_dword v{V_PF}, v[10:11], off")
    f1.setup2(H)
    H("s_mov_b32 s98, 256\ns_mov_b32 s99, 0x20000")
    H(f"v_lshlrev_b32 v3, 16, v3\nv_mov_b32 v4, 1")
    H(f"s_cmp_lg_u32 s2, 0\ns_cselect_b32 s43, 0x10000000, 0\nv_or_b32 v3, s43, v3")
    H("@vmwait c0 w0\ns_barrier")
    if os.environ.get("DIAG") == "2":
        st(H)
    H("buffer_store_dword v4, v3, s[96:99], 0 offen sc1")
    for rt in range(8):
        H(f1.rd_c(0, 0, rt))
    for ct in range(8):
        H.add(f1.rd_w(0, 0, ct))
    H(f"s_cmp_eq_u32 s{f1.S_TYPE}, 0\ns_cbranch_scc0 L_p1_V")
    return H


FINE = os.environ.get('DIAG') == '2'


def p1(typ, st):
    B = Seg()
    n0 = st.n
    if typ == "V":
        B("L_p1_V:")
    p0 = f1.P0()
    ld = chunks(p0.loads(), 3)
    cp = chunks(groupify(p0.compute()), 4)
    su = groupify(f2.setup())
    cut = len(su) * 3 // 5
    vm = {(0, 0): f1.dma_c(2), (6, 0): f2.dma_x(0), (6, 1): f2.dma_q(0) + f2.dma_q(1), (7, 0): f2.dma_x(1)}
    for n in range(6):
        vm[(n, 1)] = f1.dma_w(n + 2)
    for n in range(1, 6):
        vm[(n, 0)] = f1.dma_c(n + 2)
    fill = {(0, 0): groupify(p0.setup()) + f1.type_setup(typ), (0, 1): ld[0], (1, 0): ld[1], (1, 1): ld[2],
            (2, 0): touch_row(90, 8 * MB, 43, 14),
            (3, 0): cp[0], (3, 1): cp[1], (4, 0): cp[2], (4, 1): f2.ptr_loads() + cp[3],
            (5, 0): su[:cut], (5, 1): su[cut:] + f1.store_addr(typ)}
    for n in range(8):
        for kk in range(2):
            B.add(f1.kstep(typ, n, kk, vm.get((n, kk)), fill.get((n, kk)),
                           f2.p1_last_hook if (n, kk) == (7, 1) else None))
            if FINE and kk == 1 and n < 7:
                st(B)
    if typ == "K":
        st.n = n0
    if typ == "K":
        B("s_branch L_p2")
    return B


def p2(st):
    B = Seg()
    B("L_p2:")
    NE = 20
    ep = chunks(f1.epilogue_items(), NE)
    fill = {k: list(ep[k]) for k in range(NE)}
    S = Seg()
    srd(S, SRD_F, 40, 4096, off=WS_FLAG)
    srd(S, SRD_DBG, 38, 256)
    fill[0] = groupify([i.text for i in S]) + fill[0]
    go_ld = f"buffer_load_dword v254, off, {sr(SRD_DBG,4)}, 0 sc1"
    fill[14] = fill[14] + [go_ld]
    zero = [f"v_accvgpr_write_b32 a{f2.A_O+i}, 0" for i in range(128)]
    for k, z in enumerate(chunks(zero, 8)):
        fill[NE + 2 + k] = z
    T, t = 230, 36
    fill[20] = sig_off(255, t)
    after = {11: poll("go", go_ld, 254, t) + signal(f1.F_1, 255, 254, t) + f3.p4_ptr_loads() +
             [f"s_load_dwordx2 s[4:5], s[0:1], {KA_WO}"]}
    S = Seg()
    f3.rb_cb(S, t, t + 1, 43)
    S(f"v_and_b32 v{T}, 15, v{V_L}")
    S(f"s_lshl_b32 s{t}, s{t}, 4\nv_add_u32 v{T+1}, s{t}, v{T}")
    S(f"s_lshr_b32 s{t}, s2, 4\nv_lshl_add_u32 v{T+2}, v{T}, 4, s{t}")
    S(f"v_and_b32 v{T+3}, 7, v{V_L}\nv_bfe_u32 v{T+4}, v{V_L}, 3, 1\nv_lshlrev_b32 v{T+3}, 3, v{T+3}")
    S(f"v_lshl_add_u32 v{T+3}, v{T+4}, 7, v{T+3}")
    S(f"s_bfe_u32 s{t}, s2, 0x10004\ns_lshl_b32 s{t}, s{t}, 6\ns_and_b32 s{t+1}, s2, 7\ns_add_u32 s{t}, s{t}, s{t+1}")
    S(f"v_add_u32 v{T+3}, s{t}, v{T+3}")
    S(f"v_lshrrev_b32 v{T+4}, 4, v{V_L}")
    items = groupify([i.text for i in S])
    items.append([f"v_cmp_eq_u32 vcc, 1, v{T+4}", "s_nop 1", f"v_cndmask_b32 v{T+3}, v{T+3}, v{T+2}, vcc"])
    items.append([f"v_cmp_eq_u32 vcc, 2, v{T+4}", "s_nop 1", f"v_cndmask_b32 v{T+3}, v{T+3}, v{T+1}, vcc"])
    items.append(f"v_lshlrev_b32 v{T+3}, 2, v{T+3}")
    fill[24] = fill[24] + items
    fill[26] = fill[26] + f3.p4_srds()
    fill[27] = fill[27] + [["s_mov_b32 s6, 0x800000", "s_mov_b32 s7, 0x20000"], f"v_lshlrev_b32 v{T+5}, 7, v{V_L}",
                           [f"s_lshl_b32 s{t}, s2, 2", f"s_add_u32 s{t}, s{t}, s{S_W}", f"s_lshl_b32 s{t}, s{t}, 13",
                            f"buffer_load_dword v{T+6}, v{T+5}, s[4:7], s{t} offen"]]
    f1_ld = f"buffer_load_dword v{T+7}, v{T+3}, {sr(SRD_F,4)}, 0 offen offset:{f1.F_1} sc1"
    fill[30] = [f1_ld]
    for n in range(16):
        for kk in range(2):
            ab = after.get(n) if kk == 1 else None
            seg = f2.kstep2(n, kk, fill.get(2 * n + kk), ab)
            if n == 11 and kk == 1:
                for i in seg:
                    if i.kind == "gwait":
                        i.groups.append("kvst")
            B.add(seg)
            if FINE and kk == 1 and n in (1, 3, 5, 7, 9, 10, 14):
                st(B)
    if FINE:
        st(B)
    B.add(poll("f1", f1_ld, T + 7, t))
    return B


def p45(st):
    B = Seg()
    f3.p4_setup(B)
    f3.p4_prep(B)
    st(B)
    t, VP, VO, VS = 36, f3.V_PL, 254, 255
    S = Seg()
    S(f"s_sub_u32 s{t}, 15, s{f3.S_RB}\ns_min_u32 s{t}, s{t}, s{f3.S_RB}\ns_lshl_b32 s{t}, s{t}, 5")
    S(f"v_and_b32 v{VO}, 3, v{V_L}\nv_lshlrev_b32 v{VO}, 3, v{VO}\nv_bfe_u32 v{VP}, v{V_L}, 2, 3")
    S(f"v_add3_u32 v{VO}, v{VO}, v{VP}, s{t}\nv_lshlrev_b32 v{VO}, 2, v{VO}")
    f2_off = [i.text for i in S]
    f2_ld = f"buffer_load_dword v{VP}, v{VO}, {sr(SRD_F,4)}, 0 offen offset:{f1.F_2L} sc1"
    su = f3.p5_setup()
    fill = {0: ([], su[:len(su) // 2]), 1: ([], su[len(su) // 2:] + sig_off(VS, t)),
            2: (["@vmwait ctx0", "s_barrier"] + signal(f1.F_2L, VS, VP, t), f2_off),
            3: ([], f3.wo_stage(0)), 4: ([], f3.wo_stage(1)), 7: ([f2_ld], [])}
    f3.p4_main(B, fill)
    st(B)
    B.add(poll("f2", f2_ld, VP, t))
    st(B)
    for n in range(4):
        B.add(f3.ctx_stage(n))
    f3.p4_out(B, flat(f3.wo_stage(2) + f3.wo_stage(3)))
    B("@vmwait o0\ns_barrier")
    for ct in range(4):
        B.add(f3.rd_wo(0, 0, ct))
    st(B)
    f3_ld = f"buffer_load_dword v{VP}, v{VO}, {sr(SRD_F,4)}, 0 offen offset:{f1.F_3} sc1"
    f3_off = [f"v_and_b32 v{VO}, 15, v{V_L}", f"s_lshl_b32 s{t}, s{f3.S_CB}, 4", f"v_add_u32 v{VO}, s{t}, v{VO}",
              f"v_lshlrev_b32 v{VO}, 2, v{VO}"]
    pre = chunks(f3.ep_pre(), 20)
    for u in range(32):
        fl, tags, ab = [None] * 4, (), ()
        if u == 3:
            tags, ab = ("yst",), signal(f1.F_3, VS, VP, t)
        if u == 6:
            fl = chunks(f3.ep_loads("x"), 4)
        if u == 11:
            fl = [f3_off, [f3_ld], None, None]
        if u == 16:
            yl = chunks(f3.ep_loads("y"), 4)
            fl = [[poll("f3", f3_ld, VP, t)] + yl[0], yl[1], yl[2], yl[3]]
        if 22 <= u < 27:
            fl = pre[(u - 22) * 4:(u - 21) * 4]
        B.add(f3.stage(u, first=(u == 0), more=(u < 28), nxt=(u < 31), fill=fl, bar_tags=tags, after_bar=ab))
    st(B)
    f3.p5_epilogue(B)
    return B


def build(out):
    st = VStamps()
    H = start(st)
    K, V = p1("K", st), p1("V", st)
    J = Seg()
    P2 = p2(st)
    st(P2)
    lin, o3, traces = f2.p3("p3", st, f3.p4_ur_dma(f2.V_T + 5), f3.p4_h_loads(), f3.p5_ptr_loads())
    P45 = p45(st)
    E = Seg()
    st.dump(E)
    E("L_end:\ns_endpgm")
    Z = Seg()
    Z("L_code_end:\ns_endpgm")
    if DIAG:
        X = Seg()
        st(X)
        P2[1:1] = list(X)
    allseg = [H, K, V, P2] + lin + [P45, E] + o3 + ool + [Z]
    exp_filter([K, V, P2] + lin + [P45])
    resolve([[H, B, P2] + t + [P45, E] for B in (K, V) for t in traces], verbose="-v" in sys.argv)
    resolve([[s] for s in ool], verbose=False)
    if "-v" in sys.argv:
        for nm_, sg in (("p1K", [K]), ("p1V", [V]), ("p2", [P2]), ("p45", [P45])):
            overflow_report(nm_, sg)
        for k_, sg in enumerate(lin):
            if any(i.kind == "mfma" for i in sg):
                overflow_report(f"p3[{k_}]", [sg])
    hdr = "; @launch grid=(256,1,1) block=(256,1,1) lds=163840\n" + '.amdgcn_target "amdgcn-amd-amdhsa--gfx950"\n.text\n' + MACROS
    open(out, "w").write(hdr + text_of(allseg) + kernel_desc(NAME))


if __name__ == "__main__":
    build(sys.argv[1])
```

```python
from common import *

S_W = 3
V_L = 1

SRD_C, SRD_W, SRD_O = 8, 12, 16
S_COFF, S_WOFF, S_MC, S_MW = 20, 21, 22, 23
S_D = 24
S_T = 36
S_WS = 40
S_TYPE = 42
P_C, P_WU = 88, 92
V_CF, V_WF = 80, 144
V_CD, V_WD, V_CA, V_WA = 176, 184, 192, 196
V_T = 204
V_ST = 228
V_EP = 230
LDS_W = 98304

F_1, F_2S, F_2L, F_3 = 0, 1024, 2048, 3072


def acc(typ, ct, rt):
    if typ == "K":
        p = ct >> 1
        k = (rt >> 1) * 8 + (rt & 1) + 2 * (p & 1) + 4 * (p >> 1)
        return (k * 2 + (ct & 1)) * 4
    k = (rt >> 1) * 8 + ct
    return (k * 2 + (rt & 1)) * 4


def setup(S):
    t, T, l = S_T, V_T, V_L
    S(f"s_and_b32 s{t}, s2, 7")
    S(f"s_lshr_b32 s{t+1}, s2, 3")
    S(f"s_and_b32 s{t+2}, s{t+1}, 7")
    S(f"s_lshr_b32 s{t+1}, s{t+1}, 3")
    S(f"s_lshr_b32 s{S_TYPE}, s{t+1}, 1")
    S(f"s_and_b32 s{t+1}, s{t+1}, 1")
    S(f"s_lshl_b32 s{t}, s{t}, 1")
    S(f"s_add_u32 s{t}, s{t}, s{t+1}")
    S(f"s_lshl_b32 s{S_COFF}, s{t+2}, 18")
    S(f"s_lshl_b32 s{t+3}, s{S_W}, 16")
    S(f"s_add_u32 s{S_COFF}, s{S_COFF}, s{t+3}")
    S(f"s_lshl_b32 s{S_WOFF}, s{S_W}, 17")
    S(f"s_lshl_b32 s{t+3}, s{t}, 9")
    S(f"s_add_u32 s{S_WOFF}, s{S_WOFF}, s{t+3}")
    S(f"s_lshl_b32 s{S_MC}, s{S_W}, 13")
    S(f"s_add_u32 s{S_MW}, s{S_MC}, {LDS_W}")
    S(f"v_lshrrev_b32 v{T}, 3, v{l}")
    S(f"v_lshlrev_b32 v{T}, 10, v{T}")
    S(f"v_lshrrev_b32 v{T+1}, 4, v{l}")
    S(f"v_and_b32 v{T+2}, 7, v{l}")
    S(f"v_xor_b32 v{T+2}, v{T+2}, v{T+1}")
    S(f"v_lshl_add_u32 v{T}, v{T+2}, 4, v{T}")
    S(f"v_xor_b32 v{T+3}, 64, v{T}")
    for i in range(8):
        S(f"v_add_u32 v{V_CD+i}, {8192*i - 1024*(i&3)}, v{T + (3 if i & 1 else 0)}")
    S(f"v_lshrrev_b32 v{T}, 5, v{l}")
    S(f"v_and_b32 v{T+2}, 31, v{l}")
    S(f"v_lshlrev_b32 v{T+3}, 1, v{T}")
    S(f"v_xor_b32 v{T+2}, v{T+2}, v{T+3}")
    S(f"v_lshlrev_b32 v{T}, 13, v{T}")
    for i in range(8):
        x = (2 * (i & 1) + 4 * ((i >> 2) & 1)) << 1
        S(f"v_xor_b32 v{T+3}, {x}, v{T+2}")
        S(f"v_lshl_add_u32 v{T+3}, v{T+3}, 4, v{T}")
        S(f"v_add_u32 v{V_WD+i}, {16384*i - 1024*(i&3)}, v{T+3}")
    S("s_waitcnt lgkmcnt(0)")
    srd(S, SRD_C, P_C, 2048 * 512 * 2)
    S(f"s_cmp_eq_u32 s{S_TYPE}, 0")
    S(f"s_cselect_b32 s{SRD_W}, s{P_WU}, s{P_WU+2}")
    S(f"s_cselect_b32 s{SRD_W+1}, s{P_WU+1}, s{P_WU+3}")
    S(f"s_mov_b32 s{SRD_W+2}, {512*4096*2}\ns_mov_b32 s{SRD_W+3}, 0x20000")


def setup2(S):
    t, T, l = S_T, V_T, V_L
    S(f"v_and_b32 v{T}, 15, v{l}")
    S(f"v_lshrrev_b32 v{T+2}, 1, v{T}")
    S(f"v_xor_b32 v{T+2}, v{T+2}, v{T+1}")
    S(f"v_lshlrev_b32 v{T+2}, 4, v{T+2}")
    S(f"v_lshl_add_u32 v{T+2}, v{T}, 7, v{T+2}")
    S(f"s_and_b32 s{t+3}, s{S_W}, 1")
    S(f"s_lshl_b32 s{t+3}, s{t+3}, 14")
    S(f"v_add_u32 v{V_CA}, s{t+3}, v{T+2}")
    S(f"v_xor_b32 v{V_CA+1}, 64, v{V_CA}")
    S(f"v_add_u32 v{V_CA+2}, 0x10000, v{V_CA}")
    S(f"v_add_u32 v{V_CA+3}, 0x10000, v{V_CA+1}")
    S(f"v_bfe_u32 v{T}, v{l}, 2, 2")
    S(f"v_and_b32 v{T+2}, 1, v{T+1}")
    S(f"v_lshl_or_b32 v{T+2}, v{T+2}, 2, v{T}")
    S(f"v_lshl_add_u32 v{T}, v{T+1}, 3, v{T}")
    S(f"v_lshlrev_b32 v{T}, 9, v{T}")
    S(f"v_and_b32 v{T+3}, 3, v{l}")
    S(f"v_lshl_add_u32 v{T}, v{T+3}, 3, v{T}")
    S(f"s_lshr_b32 s{t+3}, s{S_W}, 1")
    S(f"s_lshl_b32 s{t+3}, s{t+3}, 8")
    S(f"s_add_u32 s{t+3}, s{t+3}, {LDS_W}")
    S(f"v_add_u32 v{T}, s{t+3}, v{T}")
    for ct in range(8):
        S(f"v_xor_b32 v{T+3}, {ct}, v{T+2}")
        S(f"v_lshl_add_u32 v{V_WA+ct}, v{T+3}, 5, v{T}")
    S(f"s_lshl_b32 s{t}, s{t}, 1")
    S(f"s_lshr_b32 s{t+3}, s{S_W}, 1")
    S(f"s_add_u32 s{t}, s{t}, s{t+3}")
    S(f"s_lshl_b32 s{S_D}, s{t}, 19")
    S(f"s_lshl_b32 s{t+2}, s{t+2}, 16")
    S(f"s_add_u32 s{S_D}, s{S_D}, s{t+2}")
    S(f"s_and_b32 s{t+3}, s{S_W}, 1")
    S(f"s_lshl_b32 s{t+3}, s{t+3}, 15")
    S(f"s_add_u32 s{S_D}, s{S_D}, s{t+3}")
    S(f"s_lshl_b32 s{t}, s{S_TYPE}, 24")
    srd(S, SRD_O, S_WS, 16 * MB, off=f"s{t}")


def type_setup(typ):
    bits = (128, 2048, 4096) if typ == "K" else (256, 1024, 2048)
    return [f"s_add_u32 s{S_D+j}, s{S_D}, {sum(b for q, b in enumerate(bits) if j >> q & 1)}" for j in range(1, 8)]


def store_addr(typ):
    T, l = V_EP, V_L
    if typ == "K":
        return [f"v_bfe_u32 v{T}, v{l}, 4, 1", f"v_lshlrev_b32 v{T}, 10, v{T}", f"v_bfe_u32 v{T+1}, v{l}, 3, 1",
                f"v_lshl_add_u32 v{T}, v{T+1}, 8, v{T}", f"v_and_b32 v{T+1}, 7, v{l}",
                f"v_lshl_add_u32 v{T}, v{T+1}, 4, v{T}", f"v_lshrrev_b32 v{T+1}, 5, v{l}",
                f"v_lshl_add_u32 v{V_ST}, v{T+1}, 9, v{T}"]
    return [f"v_lshrrev_b32 v{T}, 5, v{l}", f"v_lshlrev_b32 v{T}, 12, v{T}", f"v_and_b32 v{T+1}, 15, v{l}",
            f"v_lshl_add_u32 v{T}, v{T+1}, 4, v{T}", f"v_bfe_u32 v{T+1}, v{l}, 4, 1",
            f"v_lshl_add_u32 v{V_ST}, v{T+1}, 9, v{T}"]


def dma_c(n):
    out = []
    for i in range(8):
        if i % 4 == 0:
            out.append(f"s_add_u32 m0, s{S_MC}, {(n % 3)*32768 + (i >> 2)*4096}")
        out.append(f"buffer_load_dwordx4 v{V_CD+i}, {sr(SRD_C,4)}, s{S_COFF} offen offset:{1024*(i&3)} lds #c{n}")
    out.append(f"s_add_u32 s{S_COFF}, s{S_COFF}, 128")
    return out


def dma_w(n):
    out = []
    for i in range(8):
        if i % 4 == 0:
            out.append(f"s_add_u32 m0, s{S_MW}, {(n & 1)*32768 + (i >> 2)*4096}")
        out.append(f"buffer_load_dwordx4 v{V_WD+i}, {sr(SRD_W,4)}, s{S_WOFF} offen offset:{1024*(i&3)}{NT} lds #w{n}")
    out.append(f"s_add_u32 s{S_WOFF}, s{S_WOFF}, {64*8192}")
    return out


def rd_c(n, kk, rt):
    slot = n % 3
    va = V_CA + kk + (2 if slot == 2 else 0)
    return f"ds_read_b128 {vr(V_CF + kk*32 + rt*4, 4)}, v{va} offset:{(slot & 1)*32768 + rt*2048}"


def rd_w(n, kk, ct):
    return [f"ds_read_b64_tr_b16 {vr(V_WF + ct*4 + 2*a, 2)}, v{V_WA+ct} offset:{(n & 1)*32768 + (32*kk + 4*a)*512}"
            for a in range(2)]


def kstep(typ, n, kk, vm=None, fill=None, last=None):
    mf = []
    for ct in range(8):
        for rt in range(8):
            w, c, d = vr(V_WF + ct * 4, 4), vr(V_CF + kk * 32 + rt * 4, 4), ar(acc(typ, ct, rt), 4)
            cin = "0" if (n == 0 and kk == 0) else None
            mf.append(mfma16(d, w, c, cin) if typ == "K" else mfma16(d, c, w, cin))
    sc = Sched(mf, 2)
    fg = 0
    sc.pin(0, [] if (n == 0 and kk == 0) else [])
    if last:
        last(sc)
    else:
        nn, nkk = (n, 1) if kk == 0 else (n + 1, 0)
        if kk == 1:
            sc.pin(9, [f"@vmwait c{n+1} w{n+1} lgkm", "s_barrier"])
            fg = 10
        rw, at = [], []
        for ct in range(8):
            rw += rd_w(nn, nkk, ct)
            at += [max(8 * ct + 7, fg + 2 * ct)] * 2
        sc.stream(rw, at=at, prio=3)
        sc.stream([rd_c(nn, nkk, rt) for rt in range(8)], fg + 1, 52, prio=2)
    if vm:
        sc.stream(vm, fg, 62, prio=1)
    if fill:
        sc.stream(fill, fg if kk == 1 else 0, 62)
    head = [] if (n == 0 and kk == 0) else ["s_waitcnt lgkmcnt(2)"]
    return sc.build(head)


def epilogue_items(flavor="sc1"):
    items = []
    for k in range(32):
        T = V_EP + (k & 1) * 12
        for j in range(8):
            items.append(f"v_accvgpr_read_b32 v{T+4+j}, a{8*k+j}")
        for u in range(4):
            items.append(f"v_cvt_pk_bf16_f32 v{T+u}, v{T+4+2*u}, v{T+5+2*u}")
        if k >> 3:
            items.append(f"s_add_u32 s{S_T}, s{S_D + (k & 7)}, {(k >> 3)*8192}")
            items.append(f"buffer_store_dwordx4 {vr(T,4)}, v{V_ST}, {sr(SRD_O,4)}, s{S_T} offen {flavor} #kvst")
        else:
            items.append(f"buffer_store_dwordx4 {vr(T,4)}, v{V_ST}, {sr(SRD_O,4)}, s{S_D+k} offen {flavor} #kvst")
    return items


class P0:
    V_K, V_V, V_SH, V_A = 16, 38, 54, 62
    V_GX, V_GW, V_KF, V_WF = 208, 224, 208, 230
    V_P, V_T = 240, 248
    V_KO, V_UO, V_SO, V_XO, V_GWO, V_GO = 252, 253, 254, 255, 78, 79
    SRD_K, SRD_V, SRD_SH, SRD_X, SRD_GW, SRD_U, SRD_G = [44 + 4 * i for i in range(7)]
    S_T = 72
    ptr = 76

    def setup(self):
        S = Seg()
        p, t, T, l = self.ptr, self.S_T, self.V_T, V_L
        srd(S, self.SRD_X, p, 4 * MB)
        srd(S, self.SRD_K, p + 2, 4 * MB)
        srd(S, self.SRD_V, p + 4, 4 * MB)
        srd(S, self.SRD_SH, p + 6, 8192)
        srd(S, self.SRD_GW, p + 8, 2048)
        srd(S, self.SRD_U, S_WS, 4 * MB, off=WS_UR)
        srd(S, self.SRD_G, S_WS, 8192, off=WS_G)
        S(f"s_and_b32 s{t}, s2, 15")
        S(f"s_lshl_b32 s{t}, s{t}, 2")
        S(f"s_add_u32 s{t}, s{t}, s{S_W}")
        S(f"s_lshr_b32 s{t+1}, s2, 4")
        S(f"v_and_b32 v{T}, 3, v{l}")
        S(f"v_lshrrev_b32 v{T+1}, 2, v{l}")
        S(f"s_lshl_b32 s{t+2}, s{t}, 2")
        S(f"v_add_u32 v{T}, s{t+2}, v{T}")
        S(f"s_lshl_b32 s{t+2}, s{t+1}, 4")
        S(f"v_add_u32 v{T+1}, s{t+2}, v{T+1}")
        S(f"v_lshlrev_b32 v{T+2}, 14, v{T+1}")
        S(f"v_lshl_add_u32 v{T+2}, v{T}, 3, v{T+2}")
        S(f"v_add_u32 v{self.V_KO}, {-3*2048}, v{T+2}")
        S(f"v_lshlrev_b32 v{self.V_SO}, 5, v{T}")
        S(f"v_lshlrev_b32 v{T+2}, 4, v{T+1}")
        S(f"v_sub_u32 v{T+2}, 4080, v{T+2}")
        S(f"v_lshl_add_u32 v{self.V_UO}, v{T}, 14, v{T+2}")
        S(f"v_and_b32 v{T}, 31, v{l}")
        S(f"v_lshlrev_b32 v{self.V_GWO}, 4, v{T}")
        S(f"s_lshl_b32 s{t+2}, s2, 2")
        S(f"s_add_u32 s{t+2}, s{t+2}, s{S_W}")
        S(f"s_lshl_b32 s{t+2}, s{t+2}, 1")
        S(f"v_lshrrev_b32 v{T+1}, 5, v{l}")
        S(f"v_add_u32 v{T+1}, s{t+2}, v{T+1}")
        S(f"v_lshl_add_u32 v{self.V_XO}, v{T+1}, 11, v{self.V_GWO}")
        S(f"v_lshlrev_b32 v{T+1}, 2, v{T+1}")
        S(f"v_lshl_add_u32 v{self.V_GO}, v{T}, 20, v{T+1}")
        return [i.text for i in S]

    def loads(self):
        out = []
        T = self.V_T
        for i in range(4):
            out.append(f"buffer_load_dwordx4 {vr(self.V_GX+4*i,4)}, v{self.V_XO}, {sr(self.SRD_X,4)}, 0 offen offset:{512*i}")
            out.append(f"buffer_load_dwordx4 {vr(self.V_GW+4*i,4)}, v{self.V_GWO}, {sr(self.SRD_GW,4)}, 0 offen offset:{512*i}")
        for i in range(2):
            out.append(f"buffer_load_dwordx4 {vr(self.V_SH+4*i,4)}, v{self.V_SO}, {sr(self.SRD_SH,4)}, 0 offen offset:{16*i}")
        for i in range(11):
            tmp = T + (i & 3)
            out += [f"v_add_u32 v{tmp}, {2048*i}, v{self.V_KO}",
                    f"buffer_load_dwordx2 {vr(self.V_K+2*i,2)}, v{tmp}, {sr(self.SRD_K,4)}, 0 offen{NT}"]
            if i >= 3:
                out.append(f"buffer_load_dwordx2 {vr(self.V_V+2*(i-3),2)}, v{tmp}, {sr(self.SRD_V,4)}, 0 offen{NT}")
        return out

    def compute(self, flavor="sc1"):
        out = []
        T = self.V_T
        a = T
        out.append(f"v_mov_b32 v{a}, 0")
        out.append(f"v_mov_b32 v{a+1}, 0")
        for i in range(16):
            out.append(f"v_dot2_f32_bf16 v{a + (i & 1)}, v{self.V_GX+i}, v{self.V_GW+i}, v{a + (i & 1)}")
        out.append(["s_nop 2", f"v_add_f32 v{a}, v{a}, v{a+1}"])
        for r in (8, 4, 2, 1):
            out.append(f"v_add_f32_dpp v{a}, v{a}, v{a} row_ror:{r} row_mask:0xf bank_mask:0xf")
        out.append(f"v_mov_b32 v{a+1}, v{a}")
        out.append(f"v_permlane16_swap_b32 v{a}, v{a+1}")
        out.append(f"v_add_f32 v{a}, v{a}, v{a+1}")
        out.append(f"v_mul_f32 v{a}, 0xbfb8aa3b, v{a}")
        out.append(f"v_exp_f32 v{a}, v{a}")
        out.append(f"v_add_f32 v{a}, 1.0, v{a}")
        out.append(f"v_rcp_f32 v{a}, v{a}")
        out.append(["s_nop 0", f"buffer_store_dword v{a}, v{self.V_GO}, {sr(self.SRD_G,4)}, 0 offen {flavor}"])
        for cp in range(2):
            for c in range(2):
                sh = self.V_SH + 4 * cp + 2 * c
                w = self.V_WF + 4 * c
                out += [f"v_lshlrev_b32 v{w}, 16, v{sh}", f"v_and_b32 v{w+1}, 0xffff0000, v{sh}",
                        f"v_lshlrev_b32 v{w+2}, 16, v{sh+1}", f"v_and_b32 v{w+3}, 0xffff0000, v{sh+1}"]
            for i in range(11):
                k = self.V_K + 2 * i + cp
                out += [f"v_lshlrev_b32 v{self.V_KF+2*i}, 16, v{k}", f"v_and_b32 v{self.V_KF+2*i+1}, 0xffff0000, v{k}"]
            for rho in range(8):
                v = self.V_V + 2 * rho + cp
                out += [f"v_lshlrev_b32 v{T+2}, 16, v{v}", f"v_and_b32 v{T+3}, 0xffff0000, v{v}"]
                for j in range(4):
                    for c in range(2):
                        A = self.V_A + 8 * c + rho
                        kf = self.V_KF + 2 * (rho + 3 - j) + c
                        w = self.V_WF + 4 * c + j
                        out.append(f"v_mul_f32 v{A}, v{kf}, v{w}" if j == 0 else f"v_fmac_f32 v{A}, v{kf}, v{w}")
                for c in range(2):
                    A = self.V_A + 8 * c + rho
                    out.append(f"v_mul_f32 v{A}, v{A}, v{T+2+c}")
            for c in range(2):
                P = self.V_P + 4 * c
                A = self.V_A + 8 * c
                for e in range(4):
                    out.append(f"v_cvt_pk_bf16_f32 v{P+e}, v{A+7-2*e}, v{A+6-2*e}")
                out += [f"s_mov_b32 s{self.S_T}, {4096*(2*cp + c)}",
                        f"buffer_store_dwordx4 {vr(P,4)}, v{self.V_UO}, {sr(self.SRD_U,4)}, s{self.S_T} offen {flavor}"]
        return out
```

```python
from common import *

S_W = 3
V_L = 1

SRD_H, SRD_UR, SRD_YO, SRD_D = 16, 20, 24, 28
S_T4 = 36
S_DO = 42
S_UB = 43
V_AA, V_BA = 4, 5
V_HW = 6
V_YW, V_YR, V_YS = 7, 8, 9
V_T4 = 12
V_O = 20
V_DA = 32
V_H = 48
V_HO = 72
V_D = 74
V_ACC4 = 76
V_FR = 108
H_STRIDE = 4160
H_WAVE = 4 * H_STRIDE
U_LDS, U_WAVE = 131072, 4608
Y_LDS = 4 * H_WAVE


def p4_ptr_loads():
    return [f"s_load_dwordx4 s[32:35], s[0:1], {KA_SSMK}"]


def p4_srds():
    S = Seg()
    t = S_T4
    S(f"s_lshl_b32 s{t}, s2, 2")
    S(f"s_add_u32 s{t}, s{t}, s{S_W}")
    S(f"s_lshl_b32 s{S_DO}, s{t}, 1")
    S(f"s_lshl_b32 s{t+1}, s{t}, 12")
    srd(S, SRD_H, 32, 4096, off=f"s{t+1}")
    S(f"s_add_u32 s{t+1}, s{t+1}, {WS_UR}")
    srd(S, SRD_UR, 40, 4096, off=f"s{t+1}")
    S(f"s_lshl_b32 s{t+1}, s2, 14")
    S(f"s_add_u32 s{t+1}, s{t+1}, {WS_Y4}")
    srd(S, SRD_YO, 40, 16384, off=f"s{t+1}")
    srd(S, SRD_D, 34, 2048)
    S(f"s_mul_i32 s{S_UB}, s{S_W}, {U_WAVE}")
    S(f"s_add_u32 s{S_UB}, s{S_UB}, {U_LDS}")
    return groupify([i.text for i in S])


def p4_ur_dma(tmp):
    out = [f"v_lshlrev_b32 v{tmp}, 4, v{V_L}", f"s_mov_b32 m0, s{S_UB}", "s_nop 0"]
    for i in range(4):
        out.append(f"buffer_load_dwordx4 v{tmp}, {sr(SRD_UR,4)}, 0 offen offset:{1024*i} sc1 lds")
    return out


def p4_h_loads():
    out = [f"v_lshlrev_b32 v{V_HO}, 4, v{V_L}", f"v_add_u32 v{V_HO+1}, -8, v{V_HO}", f"v_mov_b32 v{V_D+1}, 0",
           f"buffer_load_ushort v{V_D}, v{V_D+1}, {sr(SRD_D,4)}, s{S_DO} offen"]
    for i in range(4):
        if i == 0:
            out.append(f"buffer_load_dwordx2 {vr(V_H,2)}, v{V_HO+1}, {sr(SRD_H,4)}, 0 offen{NT}")
        else:
            out.append(f"buffer_load_dwordx2 {vr(V_H+6*i,2)}, v{V_HO}, {sr(SRD_H,4)}, 0 offen offset:{1024*i - 8}{NT}")
        out.append(f"buffer_load_dwordx4 {vr(V_H+6*i+2,4)}, v{V_HO}, {sr(SRD_H,4)}, 0 offen offset:{1024*i}{NT}")
    return out


def p4_setup(S):
    T, t, l = V_T4, S_T4, V_L
    S(f"s_mul_i32 s{t}, s{S_W}, {H_WAVE}")
    S(f"v_and_b32 v{T}, 15, v{l}")
    S(f"v_lshrrev_b32 v{T+1}, 4, v{l}")
    S(f"v_add_u32 v{T+2}, 13, v{T}")
    S(f"v_and_b32 v{T+3}, 3, v{T+2}")
    S(f"v_cmp_eq_u32 vcc, 0, v{T+3}")
    S(f"v_lshrrev_b32 v{T+2}, 2, v{T+2}")
    S(f"v_mul_u32_u24 v{T+3}, {H_STRIDE}, v{T+3}")
    S(f"v_cndmask_b32 v{T+3}, v{T+3}, 8, vcc")
    S(f"v_lshl_add_u32 v{T+3}, v{T+2}, 3, v{T+3}")
    S(f"v_lshl_add_u32 v{T+3}, v{T+1}, 4, v{T+3}")
    S(f"v_add_u32 v{V_AA}, s{t}, v{T+3}")
    S(f"v_add_u32 v{V_HW}, s{t}, v{V_HO}")
    S(f"v_lshlrev_b32 v{T+2}, 5, v{T}")
    S(f"v_lshlrev_b32 v{T+3}, 4, v{T+1}")
    S(f"v_sub_u32 v{T+3}, v{T+3}, v{T+2}")
    S(f"s_add_u32 s{t+1}, s{S_UB}, 480")
    S(f"v_add_u32 v{V_BA}, s{t+1}, v{T+3}")
    S(f"v_mul_u32_u24 v{T+2}, 136, v{T}")
    S(f"v_lshl_add_u32 v{T+2}, v{T+1}, 5, v{T+2}")
    S(f"s_lshl_b32 s{t+1}, s{S_W}, 1")
    S(f"s_add_u32 s{t+1}, s{t+1}, {Y_LDS}")
    S(f"v_add_u32 v{V_YW}, s{t+1}, v{T+2}")
    S(f"v_lshrrev_b32 v{T+2}, 3, v{l}")
    S(f"v_mul_u32_u24 v{T+2}, 136, v{T+2}")
    S(f"v_and_b32 v{T+3}, 7, v{l}")
    S(f"v_lshl_add_u32 v{T+2}, v{T+3}, 4, v{T+2}")
    S(f"s_mul_i32 s{t+1}, s{S_W}, {4*1088}")
    S(f"s_add_u32 s{t+1}, s{t+1}, {Y_LDS}")
    S(f"v_add_u32 v{V_YR}, s{t+1}, v{T+2}")
    S(f"s_lshl_b32 s{t+1}, s{S_W}, 12")
    S(f"v_add_u32 v{V_YS}, s{t+1}, v{V_HO}")
    S(f"v_lshl_add_u32 v{T+2}, v{T+1}, 3, v{T}")
    S(f"v_sub_u32 v{V_D+1}, 15, v{T+2}")


def p4_prep(S):
    T, l = V_T4, V_L
    Z = T + 4
    for k in range(4):
        S(f"v_mov_b32 v{Z+k}, 0")
    S(f"v_and_b32 v{T}, 3, v{l}")
    S(f"v_mul_u32_u24 v{T}, {H_STRIDE}, v{T}")
    S(f"v_lshrrev_b32 v{T+1}, 2, v{l}")
    S(f"v_min_u32 v{T+1}, 3, v{T+1}")
    S(f"v_lshl_add_u32 v{T}, v{T+1}, 4, v{T}")
    S(f"v_add_u32 v{T}, s{S_T4}, v{T}")
    S(f"ds_write_b128 v{T}, {vr(Z,4)}")
    S(f"v_and_b32 v{T+1}, 31, v{l}")
    S(f"v_lshlrev_b32 v{T+1}, 4, v{T+1}")
    S(f"v_add_u32 v{T+1}, s{S_UB}, v{T+1}")
    S(f"ds_write_b128 v{T+1}, {vr(Z,4)} offset:4096")
    for i in range(4):
        D = V_H + 6 * i
        O = V_O + 6 * (i & 1)
        for k in range(5):
            S(f"v_alignbit_b32 v{O+k}, v{D+k+1}, v{D+k}, 16")
        off = 48 + 1024 * i
        S(f"ds_write_b128 v{V_HW}, {vr(D+2,4)} offset:{off + 16}")
        S(f"ds_write_b128 v{V_HW}, {vr(O,4)} offset:{off + H_STRIDE}")
        for c, R in ((2, D + 1), (3, O + 1)):
            for k in range(4):
                S(f"v_mov_b32 v{T+k}, v{R+k}")
            S(f"ds_write_b128 v{V_HW}, {vr(T,4)} offset:{off + c*H_STRIDE}")
    S(f"v_lshlrev_b32 v{T}, 16, v{V_D}")
    for i in range(4):
        S(f"v_cmp_eq_u32 vcc, {2*i}, v{V_D+1}")
        S(f"v_cndmask_b32 v{V_DA+i}, 0, v{V_D}, vcc")
        S(f"v_cmp_eq_u32 vcc, {2*i+1}, v{V_D+1}")
        S(f"v_cndmask_b32 v{V_DA+i}, v{V_DA+i}, v{T}, vcc")
    S("s_waitcnt lgkmcnt(0)")


def afr(rho, q):
    return V_FR + (rho & 1) * 64 + q * 4


def bfr(rho, p):
    return V_FR + (rho & 1) * 64 + 32 + p * 4


def p4_reads(rho):
    out = []
    for k in range(8):
        out.append(f"ds_read_b128 {vr(bfr(rho, k),4)}, v{V_BA} offset:{512*(7-k) + 64*rho}")
        for a in range(2):
            out.append(f"ds_read_b64 {vr(afr(rho, k) + 2*a, 2)}, v{V_AA} offset:{64*(8*k + rho) + 8*a}")
    return out


def p4_main(S, fill):
    S.add(p4_reads(0))
    for rho in range(8):
        mf = []
        for q in range(8):
            for p in range(8 - q):
                d = vr(V_ACC4 + 4 * (p + q), 4)
                mf.append(mfma16(d, vr(afr(rho, q), 4), vr(bfr(rho, p), 4), "0" if (rho == 0 and q == 0) else None))
            if rho == 0 and q == 0:
                for p in range(8):
                    mf.append(mfma16(vr(V_ACC4 + 4 * p, 4), vr(V_DA, 4), vr(bfr(0, p), 4)))
        g = [[] for _ in mf]
        if rho < 7:
            spread(g, p4_reads(rho + 1), 0, 30)
        head, items = fill.get(rho, ([], []))
        spread(g, items, 1, len(mf))
        S.add(interleave(mf, g, head))


def p4_out(S, after_bar, flavor="sc1"):
    T = V_T4
    for tt in range(8):
        a = V_ACC4 + 4 * tt
        r = T + 2 * (tt & 1)
        S(f"v_cvt_pk_bf16_f32 v{r}, v{a}, v{a+1}")
        S(f"v_cvt_pk_bf16_f32 v{r+1}, v{a+2}, v{a+3}")
        for k in range(2):
            S(f"ds_write_b16 v{V_YW}, v{r+k} offset:{2176*tt + 16*k}")
            S(f"ds_write_b16_d16_hi v{V_YW}, v{r+k} offset:{2176*tt + 16*k + 8}")
    S("s_waitcnt lgkmcnt(0)\ns_barrier")
    S.add(after_bar)
    for i in range(4):
        for a in range(2):
            S(f"ds_read_b64 {vr(V_FR + 4*i + 2*a, 2)}, v{V_YR} offset:{1088*i + 8*a}")
    for i in range(4):
        S(f"buffer_store_dwordx4 {vr(V_FR + 4*i, 4)}, v{V_YS}, {sr(SRD_YO,4)}, 0 offen offset:{1024*i} {flavor} #yst")


SRD_CX, SRD_WO, SRD_XI, SRD_Y, SRD_OUT, SRD_G = 44, 48, 52, 56, 60, 64
S_CO = 68
S_WO = 69
S_MW = 70
S_CNT = 71
S_T = 72
S_XO, S_YO, S_GO, S_RB, S_CB = 78, 79, 80, 81, 82
P_X, P_WO, P_OUT = 84, 86, 88

V_CD = 236
V_WD = 238
V_WA = 242
V_XV, V_YV, V_GV = 250, 251, 252
V_PL = 253
V_ACC = 20
V_WF = 52
V_X = 84
V_Y = 100
V_G = 116
V_A = 120
V_T = 36
V_TE = 152
A_C = 0
SLOT0 = 6

NS = 32


def acc5(ct, rt):
    return V_ACC + (ct * 2 + rt) * 4


def p5_ptr_loads():
    return [f"s_load_dwordx2 {sr(P_X,2)}, s[0:1], {KA_Q}", f"s_load_dwordx2 {sr(P_WO,2)}, s[0:1], {KA_WO}",
            f"s_load_dwordx2 {sr(P_OUT,2)}, s[0:1], {KA_OUT}"]


def rb_cb(S, rb, cb, t):
    S(f"s_and_b32 s{rb}, s2, 3")
    S(f"s_lshl_b32 s{rb}, s{rb}, 1")
    S(f"s_sub_u32 s{t}, 14, s{rb}")
    S(f"s_bitcmp1_b32 s2, 4")
    S(f"s_cselect_b32 s{rb}, s{t}, s{rb}")
    S(f"s_bfe_u32 s{t}, s2, 0x10003")
    S(f"s_add_u32 s{rb}, s{rb}, s{t}")
    S(f"s_bfe_u32 s{cb}, s2, 0x10002")
    S(f"s_lshl_b32 s{cb}, s{cb}, 3")
    S(f"s_lshr_b32 s{t}, s2, 5")
    S(f"s_add_u32 s{cb}, s{cb}, s{t}")


def p5_setup():
    S = Seg()
    T, t, l = V_T, S_T, V_L
    rb_cb(S, S_RB, S_CB, t + 2)
    S(f"s_mov_b32 s{t}, s{S_RB}\ns_mov_b32 s{t+1}, s{S_CB}")
    S(f"s_lshl_b32 s{t+2}, s{t}, 2")
    S(f"s_add_u32 s{t+2}, s{t+2}, s{S_W}")
    S(f"s_lshl_b32 s{S_CO}, s{t+2}, 18")
    S(f"s_lshl_b32 s{S_WO}, s{S_W}, 16")
    S(f"s_lshl_b32 s{t+3}, s{t+1}, 7")
    S(f"s_add_u32 s{S_WO}, s{S_WO}, s{t+3}")
    S(f"s_lshl_b32 s{S_MW}, s{S_W}, 12")
    S(f"s_lshl_b32 s{S_XO}, s{t+2}, 16")
    S(f"s_add_u32 s{S_XO}, s{S_XO}, s{t+3}")
    S(f"s_lshl_b32 s{S_YO}, s{t+1}, 18")
    S(f"s_lshl_b32 s{t+3}, s{t+2}, 8")
    S(f"s_add_u32 s{S_YO}, s{S_YO}, s{t+3}")
    S(f"s_lshl_b32 s{S_GO}, s{t+2}, 7")
    S(f"v_lshlrev_b32 v{V_CD}, 4, v{l}")
    S(f"v_add_u32 v{V_CD+1}, 0x20000, v{V_CD}")
    S(f"v_lshrrev_b32 v{T}, 3, v{l}")
    S(f"v_lshlrev_b32 v{T}, 11, v{T}")
    S(f"v_lshrrev_b32 v{T+1}, 4, v{l}")
    S(f"v_lshlrev_b32 v{T+2}, 1, v{T+1}")
    S(f"v_and_b32 v{T+3}, 7, v{l}")
    S(f"v_xor_b32 v{T+2}, v{T+2}, v{T+3}")
    S(f"v_lshl_add_u32 v{T}, v{T+2}, 4, v{T}")
    for i in range(4):
        S(f"v_add_u32 v{V_WD+i}, {16384*i - 1024*i}, v{T}")
    S(f"v_bfe_u32 v{T}, v{l}, 2, 2")
    S(f"v_and_b32 v{T+2}, 1, v{T+1}")
    S(f"v_lshrrev_b32 v{T+3}, 1, v{T}")
    S(f"v_lshl_add_u32 v{T+3}, v{T+2}, 1, v{T+3}")
    S(f"v_lshl_add_u32 v{T}, v{T+2}, 2, v{T}")
    S(f"v_lshrrev_b32 v{T+4}, 5, v{l}")
    S(f"v_lshl_add_u32 v{T}, v{T+4}, 4, v{T}")
    S(f"v_lshlrev_b32 v{T}, 7, v{T}")
    S(f"v_and_b32 v{T+5}, 3, v{l}")
    S(f"v_lshl_add_u32 v{T}, v{T+5}, 3, v{T}")
    for ct in range(4):
        S(f"v_xor_b32 v{T+5}, {ct}, v{T+3}")
        S(f"v_lshl_add_u32 v{V_WA+ct}, v{T+5}, 5, v{T}")
        S(f"v_add_u32 v{V_WA+4+ct}, 0x10000, v{V_WA+ct}")
    S(f"v_and_b32 v{T}, 15, v{l}")
    S(f"v_lshlrev_b32 v{T+5}, 5, v{T+2}")
    S(f"v_lshl_add_u32 v{T+5}, v{T+4}, 4, v{T+5}")
    S(f"v_lshl_add_u32 v{V_XV}, v{T}, 11, v{T+5}")
    S(f"v_lshlrev_b32 v{T+5}, 11, v{T+5}")
    S(f"v_lshl_add_u32 v{V_YV}, v{T}, 3, v{T+5}")
    S(f"v_lshlrev_b32 v{V_GV}, 2, v{T}")
    srd(S, SRD_CX, 40, 16 * MB, off=WS_CTX)
    srd(S, SRD_WO, P_WO, 4096 * 1024 * 2)
    srd(S, SRD_XI, P_X, 2048 * 1024 * 2)
    srd(S, SRD_Y, 40, 4 * MB, off=WS_Y4)
    srd(S, SRD_OUT, P_OUT, 2048 * 1024 * 2)
    srd(S, SRD_G, 40, 8192, off=WS_G)
    return groupify([i.text for i in S])


def ld_ctx(n, kq, rt):
    return f"buffer_load_dwordx4 {ar(A_C + (n & 3)*32 + (kq*2 + rt)*4, 4)}, v{V_CD+rt}, {sr(SRD_CX,4)}, s{S_CO} offen offset:{1024*kq} sc1"


def dma_wo(n, i):
    g = [f"s_add_u32 m0, s{S_MW}, {((n + SLOT0) & 7)*16384}"] if i == 0 else []
    return g, f"buffer_load_dwordx4 v{V_WD+i}, {sr(SRD_WO,4)}, s{S_WO} offen offset:{1024*i} lds #o{n & 7}"


ADV_C = f"s_add_u32 s{S_CO}, s{S_CO}, 4096"
ADV_W = f"s_add_u32 s{S_WO}, s{S_WO}, {128*2048}"


def wo_stage(n):
    out = []
    for i in range(4):
        pre, d = dma_wo(n, i)
        out.append(pre + (["s_nop 0"] if pre else []) + [d])
    out[-1].append(ADV_W)
    return out


def ctx_stage(n):
    return [ld_ctx(n, kq, rt) for kq in range(4) for rt in range(2)] + [ADV_C]


def rd_wo(n, kq, ct):
    slot = (n + SLOT0) & 7
    va = V_WA + ct + (4 if slot >= 4 else 0)
    return [f"ds_read_b64_tr_b16 {vr(V_WF + (kq & 1)*16 + ct*4 + 2*a, 2)}, v{va} offset:{(slot & 3)*16384 + (32*kq + 8*a)*128}"
            for a in range(2)]


def ep_loads(which):
    out = []
    for rt in range(2):
        if which == "x":
            out.append([f"s_add_u32 s{S_T}, s{S_XO}, {rt*32768}"] +
                       [f"buffer_load_dwordx4 {vr(V_X + (rt*2 + pr)*4, 4)}, v{V_XV}, {sr(SRD_XI,4)}, s{S_T} offen offset:{64*pr}"
                        for pr in range(2)])
            out.append([f"buffer_load_dword v{V_G+rt}, v{V_GV}, {sr(SRD_G,4)}, s{S_GO} offen offset:{64*rt} sc1"])
        else:
            for pr in range(2):
                for e in range(2):
                    out.append([f"s_add_u32 s{S_T}, s{S_YO}, {(8*pr + e)*16384}",
                                f"buffer_load_dwordx2 {vr(V_Y + ((rt*2 + pr)*2 + e)*2, 2)}, v{V_YV}, {sr(SRD_Y,4)}, s{S_T} offen offset:{128*rt} sc1"])
    return out


def ep_pre():
    out = []
    T = V_TE
    for rt in range(2):
        out.append(f"v_sub_f32 v{V_G+2+rt}, 1.0, v{V_G+rt}")
        for pr in range(2):
            for u in range(4):
                x = V_X + (rt * 2 + pr) * 4 + u
                y = V_Y + (rt * 2 + pr) * 4 + u
                a = V_A + (rt * 2 + pr) * 8 + 2 * u
                out += [f"v_lshlrev_b32 v{a}, 16, v{x}", f"v_lshlrev_b32 v{T}, 16, v{y}",
                        f"v_and_b32 v{a+1}, 0xffff0000, v{x}", f"v_and_b32 v{T+1}, 0xffff0000, v{y}",
                        f"v_mul_f32 v{a}, v{a}, v{T}", f"v_mul_f32 v{a+1}, v{a+1}, v{T+1}",
                        f"v_mul_f32 v{a}, v{a}, v{V_G+rt}", f"v_mul_f32 v{a+1}, v{a+1}, v{V_G+rt}"]
    return out


def stage(u, first=False, more=True, nxt=True, fill=None, bar_tags=(), after_bar=()):
    S = Seg()
    for kq in range(4):
        mf = []
        for ct in range(4):
            for rt in range(2):
                mf.append(mfma16(vr(acc5(ct, rt), 4), vr(V_WF + (kq & 1) * 16 + ct * 4, 4),
                                 ar(A_C + (u & 3) * 32 + (kq * 2 + rt) * 4, 4), "0" if (first and kq == 0) else None))
        g = [[] for _ in mf]
        head = []
        if kq < 3:
            rd = [x for ct in range(4) for x in rd_wo(u, kq + 1, ct)]
        elif nxt:
            rd = [x for ct in range(4) for x in rd_wo(u + 1, 0, ct)]
            head = [f"@vmwait o{(u + 1) & 7} " + " ".join(bar_tags), "s_barrier"] + list(after_bar)
        else:
            rd = []
        spread(g, rd, 0, 6)
        if more:
            pre, d = dma_wo(u + 4, kq)
            g[2] += pre
            g[4].append(d)
            g[6].append(ld_ctx(u, kq, 0))
            g[7].append(ld_ctx(u, kq, 1))
            if kq == 3:
                g[7] += [ADV_C, ADV_W]
        if fill and fill[kq]:
            spread(g, fill[kq], 0, 8)
        S.add(interleave(mf, g, head))
    return S


def p5_epilogue(S):
    for rt in range(2):
        for pr in range(2):
            for r in range(4):
                S(f"v_permlane16_swap_b32 v{acc5(2*pr, rt) + r}, v{acc5(2*pr+1, rt) + r}")
    for rt in range(2):
        S(f"s_add_u32 s{S_T}, s{S_XO}, {rt*32768}")
        for pr in range(2):
            a = V_A + (rt * 2 + pr) * 8
            for j in range(8):
                S(f"v_fma_f32 v{a+j}, v{acc5(2*pr + (j >> 2), rt) + (j & 3)}, v{V_G+2+rt}, v{a+j}")
            D = V_X + (rt * 2 + pr) * 4
            for u in range(4):
                S(f"v_cvt_pk_bf16_f32 v{D+u}, v{a+2*u}, v{a+2*u+1}")
            S(f"buffer_store_dwordx4 {vr(D,4)}, v{V_XV}, {sr(SRD_OUT,4)}, s{S_T} offen offset:{64*pr}")
```

```python
import sys
from common import *
import f1, f2, f3

NAME = "gated_mix__ssm_conv_h3__compressed_kv_cla__prompt_kernel"
SRD_F, SRD_DBG = 8, 12
S_W, V_L = 3, 1
V_PF = 15
SPIN = 400000
ool = []


def sig_off(v, t):
    return [f"v_lshlrev_b32 v{v}, 20, v{V_L}", f"s_lshl_b32 s{t}, s{S_W}, 26", f"v_add_u32 v{v}, s{t}, v{v}"]


def signal(F, voff, vone, t):
    return [f"v_mov_b32 v{vone}, 1", f"s_lshl_b32 s{t}, s2, 2",
            f"buffer_store_dword v{vone}, v{voff}, {sr(SRD_F,4)}, s{t} offen offset:{F} sc1"]


def poll(tag, load, vp, t):
    S = Seg()
    S(f"L_spin_{tag}:\ns_mov_b32 s{t}, {SPIN}\nL_spin_{tag}_l:\ns_sleep 1")
    S(load)
    S(f"s_waitcnt vmcnt(0)\nv_cmp_ne_u32 vcc, 1, v{vp}\ns_nop 4\ns_cbranch_vccz L_spin_{tag}_ret")
    S(f"s_sub_u32 s{t}, s{t}, 1\ns_cmp_lg_u32 s{t}, 0\ns_cbranch_scc1 L_spin_{tag}_l\ns_branch L_spin_{tag}_ret")
    ool.append(S)
    return [f"v_cmp_ne_u32 vcc, 1, v{vp}", "s_nop 4", f"s_cbranch_vccnz L_spin_{tag}", f"L_spin_{tag}_ret:"]


def touch_wq():
    return [["s_mov_b32 s4, s90", "s_mov_b32 s5, s91"], [f"s_mov_b32 s6, {8*MB}", "s_mov_b32 s7, 0x20000"],
            "s_lshr_b32 s43, s2, 3", "s_lshl_b32 s43, s43, 2", f"s_add_u32 s43, s43, s{S_W}", "s_lshl_b32 s43, s43, 16",
            "s_and_b32 s98, s2, 7", "s_lshl_b32 s98, s98, 10", "s_add_u32 s43, s43, s98",
            f"buffer_load_dword v{V_PF}, v12, s[4:7], s43 offen{NT}"]


def start(st):
    H = Seg()
    H(kernel_header(NAME))
    H(f"s_cmp_ge_u32 s2, 256\ns_cbranch_scc1 L_end")
    p0 = f1.P0
    H(f"s_load_dwordx2 {sr(f1.P_C,2)}, s[0:1], {KA_C}")
    H(f"s_load_dwordx4 {sr(f1.P_WU,4)}, s[0:1], {KA_WUK}")
    H(f"s_load_dwordx2 {sr(f1.S_WS,2)}, s[0:1], {KA_WS}")
    H(f"s_load_dwordx8 {sr(p0.ptr,8)}, s[0:1], {KA_Q}")
    H(f"s_load_dwordx2 {sr(p0.ptr+8,2)}, s[0:1], {KA_GW}")
    H(f"s_load_dwordx2 s[90:91], s[0:1], {KA_WQ}")
    H(f"s_load_dwordx2 s[96:97], s[0:1], {KA_DBG}")
    H(f"v_lshrrev_b32 v2, 6, v0\nv_and_b32 v{V_L}, 63, v0\nv_lshlrev_b32 v3, 4, v0")
    H(f"v_readfirstlane_b32 s{S_W}, v2")
    f1.setup(H)
    st(H)
    srd(H, 4, f1.S_WS, 4096, off=WS_FLAG)
    H("s_lshl_b32 s43, s2, 20\nv_add_u32 v3, s43, v3")
    H("v_mov_b32 v4, 0\nv_mov_b32 v5, 0\nv_mov_b32 v6, 0\nv_mov_b32 v7, 0")
    H("buffer_store_dwordx4 v[4:7], v3, s[4:7], 0 offen sc1")
    H.add(flat(f1.dma_w(0) + f1.dma_c(0) + f1.dma_w(1) + f1.dma_c(1)))
    H(f"s_lshr_b32 s43, s2, 3\ns_lshl_b32 s43, s43, 2\ns_add_u32 s43, s43, s{S_W}")
    H(f"v_lshlrev_b32 v8, 7, v{V_L}\nv_lshrrev_b32 v12, 3, v{V_L}\nv_and_b32 v13, 0x380, v8\nv_lshl_add_u32 v12, v12, 13, v13")
    H("s_bitcmp1_b32 s43, 0")
    H(f"s_cselect_b32 s4, s{f1.P_WU+2}, s{f1.P_WU}\ns_cselect_b32 s5, s{f1.P_WU+3}, s{f1.P_WU+1}")
    H(f"s_mov_b32 s6, {4*MB}\ns_lshr_b32 s98, s43, 1\ns_lshl_b32 s98, s98, 16\ns_and_b32 s99, s2, 7\ns_lshl_b32 s99, s99, 10\ns_add_u32 s98, s98, s99")
    H(f"buffer_load_dword v{V_PF}, v12, s[4:7], s98 offen{NT}")
    H(f"s_lshl_b32 s43, s2, 2\ns_add_u32 s43, s43, s{S_W}")
    H(f"v_lshrrev_b32 v9, 4, v{V_L}\nv_lshl_add_u32 v9, v9, 24, v8\ns_lshl_b32 s98, s43, 11")
    H(f"buffer_load_dword v{V_PF}, v9, {sr(f1.SRD_C,4)}, s98 offen")
    H(f"s_getpc_b64 s[4:5]\nL_pc:\ns_lshr_b32 s98, s2, 3\ns_lshl_b32 s98, s98, 2\ns_add_u32 s98, s98, s{S_W}\ns_lshl_b32 s98, s98, 10")
    H("v_and_b32 v9, 0x380, v8\nv_add_u32 v9, s98, v9\nv_min_u32 v9, L_code_end - L_pc - 4, v9")
    H("v_mov_b32 v11, s5\nv_add_co_u32 v10, vcc, s4, v9\nv_addc_co_u32 v11, vcc, 0, v11, vcc")
    H(f"global_load_dword v{V_PF}, v[10:11], off")
    f1.setup2(H)
    H("s_mov_b32 s98, 256\ns_mov_b32 s99, 0x20000")
    H(f"v_lshlrev_b32 v3, 16, v3\nv_mov_b32 v4, 1")
    H(f"s_cmp_lg_u32 s2, 0\ns_cselect_b32 s43, 0x10000000, 0\nv_or_b32 v3, s43, v3")
    H("@vmwait c0 w0\ns_barrier")
    if os.environ.get("DIAG") == "2":
        st(H)
    H("buffer_store_dword v4, v3, s[96:99], 0 offen sc1")
    for rt in range(8):
        H(f1.rd_c(0, 0, rt))
    for ct in range(8):
        H.add(f1.rd_w(0, 0, ct))
    H(f"s_cmp_eq_u32 s{f1.S_TYPE}, 0\ns_cbranch_scc0 L_p1_V")
    return H


FINE = os.environ.get('DIAG') == '2'


def p1(typ, st):
    B = Seg()
    n0 = st.n
    if typ == "V":
        B("L_p1_V:")
    p0 = f1.P0()
    ld = chunks(p0.loads(), 3)
    cp = chunks(groupify(p0.compute()), 4)
    su = groupify(f2.setup())
    cut = len(su) * 3 // 5
    vm = {(0, 0): f1.dma_c(2), (6, 0): f2.dma_x(0), (6, 1): f2.dma_q(0) + f2.dma_q(1), (7, 0): f2.dma_x(1)}
    for n in range(6):
        vm[(n, 1)] = f1.dma_w(n + 2)
    for n in range(1, 6):
        vm[(n, 0)] = f1.dma_c(n + 2)
    fill = {(0, 0): groupify(p0.setup()) + f1.type_setup(typ), (0, 1): ld[0], (1, 0): ld[1], (1, 1): ld[2],
            (2, 0): touch_wq(),
            (3, 0): cp[0], (3, 1): cp[1], (4, 0): cp[2], (4, 1): f2.ptr_loads() + cp[3],
            (5, 0): su[:cut], (5, 1): su[cut:] + f1.store_addr(typ)}
    for n in range(8):
        for kk in range(2):
            B.add(f1.kstep(typ, n, kk, vm.get((n, kk)), fill.get((n, kk)),
                           f2.p1_last_hook if (n, kk) == (7, 1) else None))
            if FINE and kk == 1 and n < 7:
                st(B)
    if typ == "K":
        st.n = n0
    if typ == "K":
        B("s_branch L_p2")
    return B


def p2(st):
    B = Seg()
    B("L_p2:")
    NE = 20
    ep = chunks(f1.epilogue_items(), NE)
    fill = {k: list(ep[k]) for k in range(NE)}
    S = Seg()
    srd(S, SRD_F, 40, 4096, off=WS_FLAG)
    srd(S, SRD_DBG, 38, 256)
    fill[0] = groupify([i.text for i in S]) + fill[0]
    go_ld = f"buffer_load_dword v254, off, {sr(SRD_DBG,4)}, 0 sc1"
    fill[14] = fill[14] + [go_ld]
    zero = [f"v_accvgpr_write_b32 a{f2.A_O+i}, 0" for i in range(128)]
    for k, z in enumerate(chunks(zero, 8)):
        fill[NE + 2 + k] = z
    T, t = 230, 36
    fill[20] = sig_off(255, t)
    after = {11: poll("go", go_ld, 254, t) + signal(f1.F_1, 255, 254, t) + f3.p4_ptr_loads() +
             [f"s_load_dwordx2 s[4:5], s[0:1], {KA_WO}"]}
    S = Seg()
    f3.rb_cb(S, t, t + 1, 43)
    S(f"v_and_b32 v{T}, 15, v{V_L}")
    S(f"s_lshl_b32 s{t}, s{t}, 4\nv_add_u32 v{T+1}, s{t}, v{T}")
    S(f"s_lshr_b32 s{t}, s2, 4\nv_lshl_add_u32 v{T+2}, v{T}, 4, s{t}")
    S(f"v_and_b32 v{T+3}, 7, v{V_L}\nv_bfe_u32 v{T+4}, v{V_L}, 3, 1\nv_lshlrev_b32 v{T+3}, 3, v{T+3}")
    S(f"v_lshl_add_u32 v{T+3}, v{T+4}, 7, v{T+3}")
    S(f"s_bfe_u32 s{t}, s2, 0x10004\ns_lshl_b32 s{t}, s{t}, 6\ns_and_b32 s{t+1}, s2, 7\ns_add_u32 s{t}, s{t}, s{t+1}")
    S(f"v_add_u32 v{T+3}, s{t}, v{T+3}")
    S(f"v_lshrrev_b32 v{T+4}, 4, v{V_L}")
    items = groupify([i.text for i in S])
    items.append([f"v_cmp_eq_u32 vcc, 1, v{T+4}", "s_nop 1", f"v_cndmask_b32 v{T+3}, v{T+3}, v{T+2}, vcc"])
    items.append([f"v_cmp_eq_u32 vcc, 2, v{T+4}", "s_nop 1", f"v_cndmask_b32 v{T+3}, v{T+3}, v{T+1}, vcc"])
    items.append(f"v_lshlrev_b32 v{T+3}, 2, v{T+3}")
    fill[24] = fill[24] + items
    fill[26] = fill[26] + f3.p4_srds()
    fill[27] = fill[27] + [["s_mov_b32 s6, 0x800000", "s_mov_b32 s7, 0x20000"], f"v_lshlrev_b32 v{T+5}, 7, v{V_L}",
                           [f"s_lshl_b32 s{t}, s2, 2", f"s_add_u32 s{t}, s{t}, s{S_W}", f"s_lshl_b32 s{t}, s{t}, 13",
                            f"buffer_load_dword v{T+6}, v{T+5}, s[4:7], s{t} offen"]]
    f1_ld = f"buffer_load_dword v{T+7}, v{T+3}, {sr(SRD_F,4)}, 0 offen offset:{f1.F_1} sc1"
    fill[30] = [f1_ld]
    for n in range(16):
        for kk in range(2):
            ab = after.get(n) if kk == 1 else None
            seg = f2.kstep2(n, kk, fill.get(2 * n + kk), ab)
            if n == 11 and kk == 1:
                for i in seg:
                    if i.kind == "gwait":
                        i.groups.append("kvst")
            B.add(seg)
            if FINE and kk == 1 and n in (1, 3, 5, 7, 9, 10, 14):
                st(B)
    if FINE:
        st(B)
    B.add(poll("f1", f1_ld, T + 7, t))
    return B


def p45(st):
    B = Seg()
    f3.p4_setup(B)
    f3.p4_prep(B)
    st(B)
    t, VP, VO, VS = 36, f3.V_PL, 254, 255
    S = Seg()
    S(f"s_sub_u32 s{t}, 15, s{f3.S_RB}\ns_min_u32 s{t}, s{t}, s{f3.S_RB}\ns_lshl_b32 s{t}, s{t}, 5")
    S(f"v_and_b32 v{VO}, 3, v{V_L}\nv_lshlrev_b32 v{VO}, 3, v{VO}\nv_bfe_u32 v{VP}, v{V_L}, 2, 3")
    S(f"v_add3_u32 v{VO}, v{VO}, v{VP}, s{t}\nv_lshlrev_b32 v{VO}, 2, v{VO}")
    f2_off = [i.text for i in S]
    f2_ld = f"buffer_load_dword v{VP}, v{VO}, {sr(SRD_F,4)}, 0 offen offset:{f1.F_2L} sc1"
    su = f3.p5_setup()
    fill = {0: ([], su[:len(su) // 2]), 1: ([], su[len(su) // 2:] + sig_off(VS, t)),
            2: (["@vmwait ctx0", "s_barrier"] + signal(f1.F_2L, VS, VP, t), f2_off),
            3: ([], f3.wo_stage(0)), 4: ([], f3.wo_stage(1)), 7: ([f2_ld], [])}
    f3.p4_main(B, fill)
    st(B)
    B.add(poll("f2", f2_ld, VP, t))
    st(B)
    for n in range(4):
        B.add(f3.ctx_stage(n))
    f3.p4_out(B, flat(f3.wo_stage(2) + f3.wo_stage(3)))
    B("@vmwait o0\ns_barrier")
    for ct in range(4):
        B.add(f3.rd_wo(0, 0, ct))
    st(B)
    f3_ld = f"buffer_load_dword v{VP}, v{VO}, {sr(SRD_F,4)}, 0 offen offset:{f1.F_3} sc1"
    f3_off = [f"v_and_b32 v{VO}, 15, v{V_L}", f"s_lshl_b32 s{t}, s{f3.S_CB}, 4", f"v_add_u32 v{VO}, s{t}, v{VO}",
              f"v_lshlrev_b32 v{VO}, 2, v{VO}"]
    pre = chunks(f3.ep_pre(), 20)
    for u in range(32):
        fl, tags, ab = [None] * 4, (), ()
        if u == 3:
            tags, ab = ("yst",), signal(f1.F_3, VS, VP, t)
        if u == 6:
            fl = chunks(f3.ep_loads("x"), 4)
        if u == 11:
            fl = [f3_off, [f3_ld], None, None]
        if u == 16:
            yl = chunks(f3.ep_loads("y"), 4)
            fl = [[poll("f3", f3_ld, VP, t)] + yl[0], yl[1], yl[2], yl[3]]
        if 22 <= u < 27:
            fl = pre[(u - 22) * 4:(u - 21) * 4]
        B.add(f3.stage(u, first=(u == 0), more=(u < 28), nxt=(u < 31), fill=fl, bar_tags=tags, after_bar=ab))
    st(B)
    f3.p5_epilogue(B)
    return B


def build(out):
    st = VStamps()
    H = start(st)
    K, V = p1("K", st), p1("V", st)
    J = Seg()
    P2 = p2(st)
    st(P2)
    lin, o3, traces = f2.p3("p3", st, f3.p4_ur_dma(f2.V_T + 5), f3.p4_h_loads(), f3.p5_ptr_loads())
    P45 = p45(st)
    E = Seg()
    st.dump(E)
    E("L_end:\ns_endpgm")
    Z = Seg()
    Z("L_code_end:\ns_endpgm")
    if DIAG:
        X = Seg()
        st(X)
        P2[1:1] = list(X)
    allseg = [H, K, V, P2] + lin + [P45, E] + o3 + ool + [Z]
    exp_filter([K, V, P2] + lin + [P45])
    resolve([[H, B, P2] + t + [P45, E] for B in (K, V) for t in traces], verbose="-v" in sys.argv)
    resolve([[s] for s in ool], verbose=False)
    if "-v" in sys.argv:
        for nm_, sg in (("p1K", [K]), ("p1V", [V]), ("p2", [P2]), ("p45", [P45])):
            overflow_report(nm_, sg)
        for k_, sg in enumerate(lin):
            if any(i.kind == "mfma" for i in sg):
                overflow_report(f"p3[{k_}]", [sg])
    hdr = "; @launch grid=(256,1,1) block=(256,1,1) lds=163840\n" + '.amdgcn_target "amdgcn-amd-amdhsa--gfx950"\n.text\n' + MACROS
    open(out, "w").write(hdr + text_of(allseg) + kernel_desc(NAME))


if __name__ == "__main__":
    build(sys.argv[1])
```

```python
from asmlib import *

KA_Q, KA_K, KA_V, KA_SHIFT, KA_SSMK, KA_SSMD, KA_BX, KA_C, KA_WQ, KA_WUK, KA_WUV, KA_WO, KA_GW, KA_OUT, KA_DBG, KA_WS = \
    [8 * i for i in range(16)]

MB = 1 << 20
WS_KF = 0
WS_VF = 16 * MB
WS_CTX = 32 * MB
WS_UR = 48 * MB
WS_Y4 = 52 * MB
WS_G = 56 * MB
WS_FLAG = 57 * MB
WS_WP = 96 * MB

SCALE_K = 0x3e0293ee
import struct, math
assert struct.unpack("<I", struct.pack("<f", math.log2(math.e) / math.sqrt(128.0)))[0] == SCALE_K


def vr(b, n=1):
    return f"v{b}" if n == 1 else f"v[{b}:{b+n-1}]"


def ar(b, n=1):
    return f"a{b}" if n == 1 else f"a[{b}:{b+n-1}]"


def sr(b, n=1):
    return f"s{b}" if n == 1 else f"s[{b}:{b+n-1}]"


def srd(S, d, ptr, nbytes, off=None):
    if off is None:
        S(f"s_mov_b32 s{d}, s{ptr}\ns_mov_b32 s{d+1}, s{ptr+1}")
    else:
        S(f"s_add_u32 s{d}, s{ptr}, {off}\ns_addc_u32 s{d+1}, s{ptr+1}, 0")
    S(f"s_mov_b32 s{d+2}, {nbytes}\ns_mov_b32 s{d+3}, 0x20000")


def mfma16(d, a, b, c=None):
    return f"v_mfma_f32_16x16x32_bf16 {d}, {a}, {b}, {d if c is None else c}"


def mfma32(d, a, b, c=None):
    return f"v_mfma_f32_32x32x16_bf16 {d}, {a}, {b}, {d if c is None else c}"


def kernel_header(name):
    return f".globl {name}\n.p2align 8\n.type {name},@function\n{name}:"


def kernel_desc(name, vgpr=512, accum=256, sgpr=102):
    return (f'.section .rodata,"a"\n.p2align 6\n.amdhsa_kernel {name}\n'
            f"  .amdhsa_next_free_vgpr {vgpr}\n  .amdhsa_next_free_sgpr {sgpr}\n  .amdhsa_accum_offset {accum}\n"
            "  .amdhsa_group_segment_fixed_size 0\n  .amdhsa_kernarg_size 128\n  .amdhsa_user_sgpr_count 2\n"
            "  .amdhsa_user_sgpr_kernarg_segment_ptr 1\n  .amdhsa_system_sgpr_workgroup_id_x 1\n"
            "  .amdhsa_float_denorm_mode_32 3\n"
            ".end_amdhsa_kernel\n.text\n")


import os
DIAG = bool(os.environ.get("DIAG"))
WS_DIAG = 64 * MB


class Stamps:
    def __init__(self, base, tmp, region):
        self.base, self.tmp, self.region, self.n = base, tmp, region, 0

    def __call__(self, S):
        if not DIAG:
            return
        t = self.tmp
        S(f"s_memtime s[{t}:{t+1}]\ns_memrealtime s[{t+2}:{t+3}]\ns_waitcnt lgkmcnt(0)")
        S(f"s_mov_b32 s{self.base+2*self.n}, s{t}\ns_mov_b32 s{self.base+2*self.n+1}, s{t+2}")
        self.n += 1

    def dump(self, S, wsptr, wave_sgpr):
        if not DIAG:
            return
        t = self.tmp
        S("s_waitcnt vmcnt(0)")
        self(S)
        srd(S, t, wsptr, MB, off=WS_DIAG + self.region * MB)
        S(f"s_lshl_b32 s{wsptr}, s2, 2\ns_add_u32 s{wsptr}, s{wsptr}, s{wave_sgpr}\ns_lshl_b32 s{wsptr}, s{wsptr}, 7")
        S("v_mov_b32 v2, 0")
        for k in range(2 * self.n):
            S(f"v_mov_b32 v3, s{self.base+k}")
            S(f"buffer_store_dword v3, v2, s[{t}:{t+3}], s{wsptr} offen offset:{4*k}")
            S("s_nop 1")


EXP = set(os.environ.get("EXP", "").split(","))


def exp_filter(segs):
    if not (EXP - {""}):
        return
    for s in segs:
        keep = []
        for i in s:
            if "nodma" in EXP and i.kind == "dma":
                continue
            if "nodma" in EXP and i.kind == "gwait":
                i = I("s_waitcnt lgkmcnt(0)" if i.also_lgkm else "s_nop 0")
            if "nobar" in EXP and i.op == "s_barrier":
                continue
            if "novm" in EXP and i.kind == "wait" and "vmcnt" in i.text:
                i = I(re.sub(r"vmcnt\(\d+\)", "vmcnt(63)", i.text))
            if "novm" in EXP and i.kind == "gwait":
                i = I("s_waitcnt lgkmcnt(0)" if i.also_lgkm else "s_nop 0")
            if "nost" in EXP and i.kind == "vst" and i.tag == "kvst":
                i = I("s_nop 0")
            if "plainst" in EXP and i.kind == "vst" and i.tag == "kvst":
                i = I(i.text.replace(" sc1", "") + " #kvst")
            if "novld" in EXP and i.kind == "vld" and "a[" in i.text:
                i = I("s_nop 0")
            if "noyst" in EXP and i.tag == "yst":
                i = I("s_nop 0")
            if "plainy" in EXP and i.tag == "yst":
                i = I(i.text.replace(" sc1", "") + " #yst")
            if "noxld" in EXP and i.kind == "vld" and ("s[52:55]" in i.text or "s[64:67]" in i.text):
                i = I("s_nop 0")
            if "nowo" in EXP and i.kind == "dma" and i.tag and i.tag[0] == "o":
                i = I("s_nop 0")
            if "ctxsame" in EXP and i.text.startswith("s_add_u32 s68, s68, 4096"):
                i = I("s_nop 0")
            if "wosame" in EXP and i.text.startswith("s_add_u32 s69, s69, 16384"):
                i = I("s_nop 0")
            if "nods" in EXP and i.kind == "dsr":
                continue
            if "noexp" in EXP and i.op.startswith("v_exp"):
                continue
            if "nomax" in EXP and i.op.startswith("v_max3"):
                continue
            if "noadd" in EXP and i.op == "v_add_f32":
                continue
            keep.append(i)
        s[:] = keep


HDIAG = bool(os.environ.get("HDIAG"))


def hdiag_wrap(txt, name, idx, nl):
    if not HDIAG:
        return txt
    txt = txt.replace(f"{name}:\n", f"{name}:\ns_memrealtime s[4:5]\ns_waitcnt lgkmcnt(0)\n", 1)
    tail = (f"s_waitcnt vmcnt(0) lgkmcnt(0)\ns_memrealtime s[6:7]\ns_load_dwordx2 s[8:9], s[0:1], {KA_DBG}\ns_waitcnt lgkmcnt(0)\n"
            f"s_add_u32 s8, s8, {512*(nl-1-idx)}\ns_addc_u32 s9, s9, 0\ns_mov_b32 s10, 256\ns_mov_b32 s11, 0x20000\n"
            "s_not_b32 s4, s4\nv_mov_b32 v2, s4\nv_mov_b32 v3, s6\ns_and_b32 s12, s2, 31\ns_cmp_lt_u32 s12, 2\ns_cbranch_scc0 L_hd_skip_%d_@\nv_lshlrev_b32 v4, 10, v0\ns_nop 4\n" % idx +
            f"buffer_atomic_umax v2, v4, s[8:11], 0 offen offset:{8*idx}\nbuffer_atomic_umax v3, v4, s[8:11], 0 offen offset:{8*idx+4}\n"
            f"s_waitcnt vmcnt(0)\nL_hd_skip_{idx}_@:\ns_endpgm\n")
    lines = txt.split("\n")
    out = []
    for k, l in enumerate(lines):
        if l.strip() == "s_endpgm" and not lines[k - 1].strip().endswith("_end:"):
            out.append(tail.replace("@", str(k)))
        elif l.strip() == "s_endpgm":
            out[-1:] = [tail.replace("@", str(k)), lines[k - 1], l]
        else:
            out.append(l)
    return "\n".join(out)


def groupify(items):
    out = []
    for it in items:
        t = it if isinstance(it, str) else it[0]
        if t.split()[0] in ("s_addc_u32", "s_subb_u32", "s_cselect_b32", "s_cselect_b64"):
            prev = out.pop()
            out.append((prev if isinstance(prev, list) else [prev]) + (it if isinstance(it, list) else [it]))
        else:
            out.append(it)
    return out


def flat(items):
    out = []
    for it in items:
        out += it if isinstance(it, (list, tuple)) else [it]
    return out


def chunks(items, n):
    return [items[i * len(items) // n:(i + 1) * len(items) // n] for i in range(n)]


class VStamps:
    def __init__(self):
        self.n = 0

    def __call__(self, S):
        if not DIAG:
            return
        S(f"s_memtime vcc\ns_waitcnt lgkmcnt(0)\nv_writelane_b32 v0, vcc_lo, {2*self.n}\ns_nop 0")
        S(f"s_memrealtime vcc\ns_waitcnt lgkmcnt(0)\nv_writelane_b32 v0, vcc_lo, {2*self.n+1}")
        self.n += 1

    def dump(self, S):
        if not DIAG:
            return
        S("s_waitcnt vmcnt(0)")
        self(S)
        if os.environ.get("AMP"):
            a, b = [int(x) for x in os.environ["AMP"].split(",")]
            S(f"s_nop 4\nv_readlane_b32 s8, v0, {2*a+1}\nv_readlane_b32 s9, v0, {2*b+1}\ns_nop 4")
            S("s_sub_u32 s8, s9, s8\ns_mul_i32 s8, s8, 10\ns_add_u32 s8, s8, vcc_lo")
            S("L_amp:\ns_memrealtime s[6:7]\ns_waitcnt lgkmcnt(0)\ns_sub_u32 s9, s8, s6\ns_cmp_gt_i32 s9, 0\ns_cbranch_scc1 L_amp")
            return
        srd(S, 4, 40, MB, off=WS_DIAG)
        S("s_lshl_b32 s8, s2, 2\ns_add_u32 s8, s8, s3\ns_lshl_b32 s8, s8, 8\nv_lshlrev_b32 v2, 2, v1")
        S("buffer_store_dword v0, v2, s[4:7], s8 offen")


_NTS = os.environ.get("NTS", "o")
NT_T, NT_W, NT_K, NT_Q, NT_O = [" nt" if c in _NTS else "" for c in "twkqo"]
```

```python
from common import *

S_W = 3
V_L = 1

SRD_C, SRD_W, SRD_O = 8, 12, 16
S_COFF, S_WOFF, S_MC, S_MW = 20, 21, 22, 23
S_D = 24
S_T = 36
S_WS = 40
S_TYPE = 42
P_C, P_WU = 88, 92
V_CF, V_WF = 80, 144
V_CD, V_WD, V_CA, V_WA = 176, 184, 192, 196
V_T = 204
V_ST = 228
V_EP = 230
LDS_W = 98304

ROT = 0 if 'norot' in EXP else 7
F_1, F_2S, F_2L, F_3 = 0, 1024, 2048, 3072


def acc(typ, ct, rt):
    if typ == "K":
        p = ct >> 1
        k = (rt >> 1) * 8 + (rt & 1) + 2 * (p & 1) + 4 * (p >> 1)
        return (k * 2 + (ct & 1)) * 4
    k = (rt >> 1) * 8 + ct
    return (k * 2 + (rt & 1)) * 4


def setup(S):
    t, T, l = S_T, V_T, V_L
    S(f"s_and_b32 s{t}, s2, 7")
    S(f"s_lshr_b32 s{t+1}, s2, 3")
    S(f"s_and_b32 s{t+2}, s{t+1}, 7")
    S(f"s_lshr_b32 s{t+1}, s{t+1}, 3")
    S(f"s_lshr_b32 s{S_TYPE}, s{t+1}, 1")
    S(f"s_and_b32 s{t+1}, s{t+1}, 1")
    S(f"s_lshl_b32 s{t}, s{t}, 1")
    S(f"s_add_u32 s{t}, s{t}, s{t+1}")
    S(f"s_lshl_b32 s{S_D}, s{t+2}, 18")
    S(f"s_lshl_b32 s{t+3}, s{S_W}, 16")
    S(f"s_add_u32 s{S_D}, s{S_D}, s{t+3}")
    S(f"s_lshl_b32 s{S_D+1}, s{S_W}, 17")
    S(f"s_lshl_b32 s{t+3}, s{t}, 9")
    S(f"s_add_u32 s{S_D+1}, s{S_D+1}, s{t+3}")
    S(f"s_and_b32 s{S_COFF}, s2, {ROT}")
    S(f"s_lshl_b32 s{S_WOFF}, s{S_COFF}, 19")
    S(f"s_lshl_b32 s{S_COFF}, s{S_COFF}, 7")
    S(f"s_lshl_b32 s{S_MC}, s{S_W}, 13")
    S(f"s_add_u32 s{S_MW}, s{S_MC}, {LDS_W}")
    S(f"v_lshrrev_b32 v{T}, 3, v{l}")
    S(f"v_lshlrev_b32 v{T}, 10, v{T}")
    S(f"v_lshrrev_b32 v{T+1}, 4, v{l}")
    S(f"v_and_b32 v{T+2}, 7, v{l}")
    S(f"v_xor_b32 v{T+2}, v{T+2}, v{T+1}")
    S(f"v_lshl_add_u32 v{T}, v{T+2}, 4, v{T}")
    S(f"v_xor_b32 v{T+3}, 64, v{T}")
    for i in range(8):
        S(f"v_add_u32 v{V_CD+i}, {8192*i - 1024*(i&3)}, v{T + (3 if i & 1 else 0)}")
    S(f"v_lshrrev_b32 v{T}, 5, v{l}")
    S(f"v_and_b32 v{T+2}, 31, v{l}")
    S(f"v_lshlrev_b32 v{T+3}, 1, v{T}")
    S(f"v_xor_b32 v{T+2}, v{T+2}, v{T+3}")
    S(f"v_lshlrev_b32 v{T}, 13, v{T}")
    for i in range(8):
        x = (2 * (i & 1) + 4 * ((i >> 2) & 1)) << 1
        S(f"v_xor_b32 v{T+3}, {x}, v{T+2}")
        S(f"v_lshl_add_u32 v{T+3}, v{T+3}, 4, v{T}")
        S(f"v_add_u32 v{V_WD+i}, {16384*i - 1024*(i&3)}, v{T+3}")
    S("s_waitcnt lgkmcnt(0)")
    srd(S, SRD_C, P_C, 64 * 1024, off=f"s{S_D}")
    S(f"s_cmp_eq_u32 s{S_TYPE}, 0")
    S(f"s_cselect_b32 s{SRD_W}, s{P_WU}, s{P_WU+2}")
    S(f"s_cselect_b32 s{SRD_W+1}, s{P_WU+1}, s{P_WU+3}")
    S(f"s_add_u32 s{SRD_W}, s{SRD_W}, s{S_D+1}\ns_addc_u32 s{SRD_W+1}, s{SRD_W+1}, 0")
    S(f"s_sub_u32 s{SRD_W+2}, {512*4096*2}, s{S_D+1}\ns_mov_b32 s{SRD_W+3}, 0x20000")


def setup2(S):
    t, T, l = S_T, V_T, V_L
    S(f"v_and_b32 v{T}, 15, v{l}")
    S(f"v_lshrrev_b32 v{T+2}, 1, v{T}")
    S(f"v_xor_b32 v{T+2}, v{T+2}, v{T+1}")
    S(f"v_lshlrev_b32 v{T+2}, 4, v{T+2}")
    S(f"v_lshl_add_u32 v{T+2}, v{T}, 7, v{T+2}")
    S(f"s_and_b32 s{t+3}, s{S_W}, 1")
    S(f"s_lshl_b32 s{t+3}, s{t+3}, 14")
    S(f"v_add_u32 v{V_CA}, s{t+3}, v{T+2}")
    S(f"v_xor_b32 v{V_CA+1}, 64, v{V_CA}")
    S(f"v_add_u32 v{V_CA+2}, 0x10000, v{V_CA}")
    S(f"v_add_u32 v{V_CA+3}, 0x10000, v{V_CA+1}")
    S(f"v_bfe_u32 v{T}, v{l}, 2, 2")
    S(f"v_and_b32 v{T+2}, 1, v{T+1}")
    S(f"v_lshl_or_b32 v{T+2}, v{T+2}, 2, v{T}")
    S(f"v_lshl_add_u32 v{T}, v{T+1}, 3, v{T}")
    S(f"v_lshlrev_b32 v{T}, 9, v{T}")
    S(f"v_and_b32 v{T+3}, 3, v{l}")
    S(f"v_lshl_add_u32 v{T}, v{T+3}, 3, v{T}")
    S(f"s_lshr_b32 s{t+3}, s{S_W}, 1")
    S(f"s_lshl_b32 s{t+3}, s{t+3}, 8")
    S(f"s_add_u32 s{t+3}, s{t+3}, {LDS_W}")
    S(f"v_add_u32 v{T}, s{t+3}, v{T}")
    for ct in range(8):
        S(f"v_xor_b32 v{T+3}, {ct}, v{T+2}")
        S(f"v_lshl_add_u32 v{V_WA+ct}, v{T+3}, 5, v{T}")
    S(f"s_lshl_b32 s{t}, s{t}, 1")
    S(f"s_lshr_b32 s{t+3}, s{S_W}, 1")
    S(f"s_add_u32 s{t}, s{t}, s{t+3}")
    S(f"s_lshl_b32 s{S_D}, s{t}, 19")
    S(f"s_lshl_b32 s{t+2}, s{t+2}, 16")
    S(f"s_add_u32 s{S_D}, s{S_D}, s{t+2}")
    S(f"s_and_b32 s{t+3}, s{S_W}, 1")
    S(f"s_lshl_b32 s{t+3}, s{t+3}, 15")
    S(f"s_add_u32 s{S_D}, s{S_D}, s{t+3}")
    S(f"s_lshl_b32 s{t}, s{S_TYPE}, 24")
    srd(S, SRD_O, S_WS, 16 * MB, off=f"s{t}")


def type_setup(typ):
    bits = (128, 2048, 4096) if typ == "K" else (256, 1024, 2048)
    return [f"s_add_u32 s{S_D+j}, s{S_D}, {sum(b for q, b in enumerate(bits) if j >> q & 1)}" for j in range(1, 8)]


def store_addr(typ):
    T, l = V_EP, V_L
    if typ == "K":
        return [f"v_bfe_u32 v{T}, v{l}, 4, 1", f"v_lshlrev_b32 v{T}, 10, v{T}", f"v_bfe_u32 v{T+1}, v{l}, 3, 1",
                f"v_lshl_add_u32 v{T}, v{T+1}, 8, v{T}", f"v_and_b32 v{T+1}, 7, v{l}",
                f"v_lshl_add_u32 v{T}, v{T+1}, 4, v{T}", f"v_lshrrev_b32 v{T+1}, 5, v{l}",
                f"v_lshl_add_u32 v{V_ST}, v{T+1}, 9, v{T}"]
    return [f"v_lshrrev_b32 v{T}, 5, v{l}", f"v_lshlrev_b32 v{T}, 12, v{T}", f"v_and_b32 v{T+1}, 15, v{l}",
            f"v_lshl_add_u32 v{T}, v{T+1}, 4, v{T}", f"v_bfe_u32 v{T+1}, v{l}, 4, 1",
            f"v_lshl_add_u32 v{V_ST}, v{T+1}, 9, v{T}"]


def dma_c(n):
    out = []
    for i in range(8):
        if i % 4 == 0:
            out.append(f"s_add_u32 m0, s{S_MC}, {(n % 3)*32768 + (i >> 2)*4096}")
        out.append(f"buffer_load_dwordx4 v{V_CD+i}, {sr(SRD_C,4)}, s{S_COFF} offen offset:{1024*(i&3)} lds #c{n}")
    out += [f"s_add_u32 s{S_COFF}, s{S_COFF}, 128", f"s_and_b32 s{S_COFF}, s{S_COFF}, 1023"]
    return out


def dma_w(n):
    out = []
    for i in range(8):
        if i % 4 == 0:
            out.append(f"s_add_u32 m0, s{S_MW}, {(n & 1)*32768 + (i >> 2)*4096}")
        out.append(f"buffer_load_dwordx4 v{V_WD+i}, {sr(SRD_W,4)}, s{S_WOFF} offen offset:{1024*(i&3)}{NT_W} lds #w{n}")
    out += [f"s_add_u32 s{S_WOFF}, s{S_WOFF}, {64*8192}", f"s_and_b32 s{S_WOFF}, s{S_WOFF}, {4*MB - 1}"]
    return out


def rd_c(n, kk, rt):
    slot = n % 3
    va = V_CA + kk + (2 if slot == 2 else 0)
    return f"ds_read_b128 {vr(V_CF + kk*32 + rt*4, 4)}, v{va} offset:{(slot & 1)*32768 + rt*2048}"


def rd_w(n, kk, ct):
    return [f"ds_read_b64_tr_b16 {vr(V_WF + ct*4 + 2*a, 2)}, v{V_WA+ct} offset:{(n & 1)*32768 + (32*kk + 4*a)*512}"
            for a in range(2)]


def kstep(typ, n, kk, vm=None, fill=None, last=None, bar=9, vm_pre=None):
    mf = []
    for ct in range(8):
        for rt in range(8):
            w, c, d = vr(V_WF + ct * 4, 4), vr(V_CF + kk * 32 + rt * 4, 4), ar(acc(typ, ct, rt), 4)
            cin = "0" if (n == 0 and kk == 0) else None
            mf.append(mfma16(d, w, c, cin) if typ == "K" else mfma16(d, c, w, cin))
    sc = Sched(mf, 2)
    fg = 0
    sc.pin(0, [] if (n == 0 and kk == 0) else [])
    if last:
        last(sc)
    else:
        nn, nkk = (n, 1) if kk == 0 else (n + 1, 0)
        if kk == 1:
            sc.pin(bar, [f"@vmwait c{n+1} w{n+1} lgkm", "s_barrier"])
            fg = bar + 1
            if vm_pre:
                sc.stream(vm_pre, 0, bar - 1, prio=1)
        rw, at = [], []
        for ct in range(8):
            rw += rd_w(nn, nkk, ct)
            at += [min(63, max(8 * ct + 7, fg + 2 * ct))] * 2
        sc.stream(rw, at=at, prio=3)
        sc.stream([rd_c(nn, nkk, rt) for rt in range(8)], fg + 1, max(52, fg + 10), prio=2)
    if vm:
        sc.stream(vm, fg, 62, prio=1)
    if fill:
        sc.stream(fill, fg if kk == 1 else 0, 62)
    head = [] if (n == 0 and kk == 0) else ["s_waitcnt lgkmcnt(2)"]
    return sc.build(head)


def epilogue_items(flavor="sc1"):
    items = []
    for k in range(32):
        T = V_EP + (k & 1) * 12
        for j in range(8):
            items.append(f"v_accvgpr_read_b32 v{T+4+j}, a{8*k+j}")
        for u in range(4):
            items.append(f"v_cvt_pk_bf16_f32 v{T+u}, v{T+4+2*u}, v{T+5+2*u}")
        if k >> 3:
            items.append(f"s_add_u32 s{S_T}, s{S_D + (k & 7)}, {(k >> 3)*8192}")
            items.append(f"buffer_store_dwordx4 {vr(T,4)}, v{V_ST}, {sr(SRD_O,4)}, s{S_T} offen {flavor} #kvst")
        else:
            items.append(f"buffer_store_dwordx4 {vr(T,4)}, v{V_ST}, {sr(SRD_O,4)}, s{S_D+k} offen {flavor} #kvst")
    return items


class P0:
    V_K, V_V, V_SH, V_A = 16, 38, 54, 62
    V_GX, V_GW = 230, 2
    V_KF, V_WF = 230, 2
    V_T = 252
    V_KO, V_UO, V_GO = 229, 10, 11
    V_SO, V_XO, V_GWO = 62, 63, 64
    SRD_K, SRD_V, SRD_X, SRD_SH, SRD_GW = 84, 88, 92, 96, 76
    SRD_U, SRD_G = 84, 88
    S_T = 36

    def ptr_loads(self):
        return [f"s_load_dwordx2 {sr(d,2)}, s[0:1], {ka}" for d, ka in
                ((self.SRD_K, KA_K), (self.SRD_V, KA_V), (self.SRD_X, KA_Q), (self.SRD_SH, KA_SHIFT), (self.SRD_GW, KA_GW))]

    def setup(self):
        S = Seg()
        t, T, l = self.S_T, self.V_T, V_L
        for d, n in ((self.SRD_K, 4 * MB), (self.SRD_V, 4 * MB), (self.SRD_X, 4 * MB), (self.SRD_SH, 8192), (self.SRD_GW, 2048)):
            S(f"s_mov_b32 s{d+2}, {n}\ns_mov_b32 s{d+3}, 0x20000")
        S(f"s_and_b32 s{t}, s2, 15")
        S(f"s_lshl_b32 s{t}, s{t}, 4")
        S(f"v_and_b32 v{T}, 15, v{l}")
        S(f"v_add_u32 v{T}, s{t}, v{T}")
        S(f"s_lshr_b32 s{t}, s2, 4")
        S(f"s_lshl_b32 s{t}, s{t}, 2")
        S(f"s_add_u32 s{t}, s{t}, s{S_W}")
        S(f"s_lshl_b32 s{t}, s{t}, 2")
        S(f"v_lshrrev_b32 v{T+1}, 4, v{l}")
        S(f"v_add_u32 v{T+1}, s{t}, v{T+1}")
        S(f"v_lshlrev_b32 v{T+2}, 14, v{T+1}")
        S(f"v_lshl_add_u32 v{T+2}, v{T}, 3, v{T+2}")
        S(f"v_add_u32 v{self.V_KO}, {-3*2048}, v{T+2}")
        S(f"v_lshlrev_b32 v{self.V_SO}, 5, v{T}")
        S(f"v_lshlrev_b32 v{T+2}, 4, v{T+1}")
        S(f"v_sub_u32 v{T+2}, 4080, v{T+2}")
        S(f"v_lshl_add_u32 v{self.V_UO}, v{T}, 14, v{T+2}")
        S(f"v_and_b32 v{T}, 31, v{l}")
        S(f"v_lshlrev_b32 v{self.V_GWO}, 4, v{T}")
        S(f"s_lshl_b32 s{t}, s2, 2")
        S(f"s_add_u32 s{t}, s{t}, s{S_W}")
        S(f"s_lshl_b32 s{t}, s{t}, 1")
        S(f"v_lshrrev_b32 v{T+1}, 5, v{l}")
        S(f"v_add_u32 v{T+1}, s{t}, v{T+1}")
        S(f"v_lshl_add_u32 v{self.V_XO}, v{T+1}, 11, v{self.V_GWO}")
        S(f"v_lshlrev_b32 v{T+1}, 2, v{T+1}")
        S(f"v_lshl_add_u32 v{self.V_GO}, v{T}, 20, v{T+1}")
        return [i.text for i in S]

    def gw(self, i):
        return (2, 6, 12, 246)[i]

    def loads(self):
        out = []
        T = self.V_T
        for i in range(4):
            out.append(f"buffer_load_dwordx4 {vr(self.V_GX+4*i,4)}, v{self.V_XO}, {sr(self.SRD_X,4)}, 0 offen offset:{512*i}")
            out.append(f"buffer_load_dwordx4 {vr(self.gw(i),4)}, v{self.V_GWO}, {sr(self.SRD_GW,4)}, 0 offen offset:{512*i}")
        for i in range(2):
            out.append(f"buffer_load_dwordx4 {vr(self.V_SH+4*i,4)}, v{self.V_SO}, {sr(self.SRD_SH,4)}, 0 offen offset:{16*i}")
        for i in range(11):
            tmp = T + (i & 3)
            out += [f"v_add_u32 v{tmp}, {2048*i}, v{self.V_KO}",
                    f"buffer_load_dwordx2 {vr(self.V_K+2*i,2)}, v{tmp}, {sr(self.SRD_K,4)}, 0 offen{NT_K}"]
            if i >= 3:
                out.append(f"buffer_load_dwordx2 {vr(self.V_V+2*(i-3),2)}, v{tmp}, {sr(self.SRD_V,4)}, 0 offen{NT_K}")
        return out

    def compute(self, flavor="sc1"):
        S = Seg()
        srd(S, self.SRD_U, S_WS, 4 * MB, off=WS_UR)
        srd(S, self.SRD_G, S_WS, 8192, off=WS_G)
        out = [i.text for i in S]
        T = self.V_T
        a = T
        out.append(f"v_mov_b32 v{a}, 0")
        out.append(f"v_mov_b32 v{a+1}, 0")
        for i in range(16):
            out.append(f"v_dot2_f32_bf16 v{a + (i & 1)}, v{self.V_GX+i}, v{self.gw(i >> 2) + (i & 3)}, v{a + (i & 1)}")
        out.append(["s_nop 2", f"v_add_f32 v{a}, v{a}, v{a+1}"])
        for r in (8, 4, 2, 1):
            out.append(f"v_add_f32_dpp v{a}, v{a}, v{a} row_ror:{r} row_mask:0xf bank_mask:0xf")
        out.append(f"v_mov_b32 v{a+1}, v{a}")
        out.append(f"v_permlane16_swap_b32 v{a}, v{a+1}")
        out.append(f"v_add_f32 v{a}, v{a}, v{a+1}")
        out.append(f"v_mul_f32 v{a}, 0xbfb8aa3b, v{a}")
        out.append(f"v_exp_f32 v{a}, v{a}")
        out.append(f"v_add_f32 v{a}, 1.0, v{a}")
        out.append(f"v_rcp_f32 v{a}, v{a}")
        out.append(["s_nop 0", f"buffer_store_dword v{a}, v{self.V_GO}, {sr(self.SRD_G,4)}, 0 offen {flavor}"])
        for cp in range(2):
            for c in range(2):
                sh = self.V_SH + 4 * cp + 2 * c
                w = self.V_WF + 4 * c
                out += [f"v_lshlrev_b32 v{w}, 16, v{sh}", f"v_and_b32 v{w+1}, 0xffff0000, v{sh}",
                        f"v_lshlrev_b32 v{w+2}, 16, v{sh+1}", f"v_and_b32 v{w+3}, 0xffff0000, v{sh+1}"]
            for i in range(11):
                k = self.V_K + 2 * i + cp
                out += [f"v_lshlrev_b32 v{self.V_KF+2*i}, 16, v{k}", f"v_and_b32 v{self.V_KF+2*i+1}, 0xffff0000, v{k}"]
            for rho in range(8):
                v = self.V_V + 2 * rho + cp
                out += [f"v_lshlrev_b32 v{T+2}, 16, v{v}", f"v_and_b32 v{T+3}, 0xffff0000, v{v}"]
                for j in range(4):
                    for c in range(2):
                        A = self.V_A + 8 * c + rho
                        kf = self.V_KF + 2 * (rho + 3 - j) + c
                        w = self.V_WF + 4 * c + j
                        out.append(f"v_mul_f32 v{A}, v{kf}, v{w}" if j == 0 else f"v_fmac_f32 v{A}, v{kf}, v{w}")
                for c in range(2):
                    A = self.V_A + 8 * c + rho
                    out.append(f"v_mul_f32 v{A}, v{A}, v{T+2+c}")
            for c in range(2):
                P = (12, self.V_SH)[c] if cp == 0 else (self.V_KF, self.V_KF + 4)[c]
                A = self.V_A + 8 * c
                for e in range(4):
                    out.append(f"v_cvt_pk_bf16_f32 v{P+e}, v{A+7-2*e}, v{A+6-2*e}")
                out += [f"s_mov_b32 s{self.S_T}, {4096*(2*cp + c)}",
                        f"buffer_store_dwordx4 {vr(P,4)}, v{self.V_UO}, {sr(self.SRD_U,4)}, s{self.S_T} offen {flavor}"]
        return out
```

```python
from common import *
import f1

S_W = 3
SRD_X = 44
SRD_WQ = 48
SRD_K = 52
SRD_V = 56
SRD_CTX = 60
S_XL, S_XS, S_WQO = 64, 65, 66
S_MX, S_MWQ = 67, 68
S_HEAD, S_I = 69, 70
S_KX, S_XO = 74, 75
S_KVO = 71
S_MK, S_MV = 72, 73
S_CNT = 74
S_N1 = 75
S_ND, S_NT = 76, 77
S_RESC = 78
S_THR = 79
S_TMP = 80
S_MSK = 84
S_CL, S_CS = 100, 101

V_L = 1
V_LS = [2, 4]
V_MX = [6, 7]
V_F = [8, 9]
V_KA, V_VA, V_DO = 10, 11, 12
V_Q4, V_NINF, V_CST = 13, 14, 15
V_Q = 16
V_S = 80
V_NM = 208
V_T = 240
V_WF = 16
V_XF = 48
V_XD, V_WD, V_WA, V_XA = 208, 212, 216, 224
A_O = 0
A_K = 128
A_V = 192

X_SLOT = (65536, 0, 32768)
LDS_WQ = 98304
COH = 'sc1'
THR = 0x41000000


def qreg(qt, t):
    return V_Q + 32 * qt + 4 * t


def sreg(par, kvh, qt):
    return V_S + 64 * par + 32 * kvh + 16 * qt


def oreg(qt, dt):
    return A_O + 64 * qt + 16 * dt


def acc2(ct, rt):
    return V_S + (ct * 4 + rt) * 4


def ptr_loads():
    return [f"s_load_dwordx2 s[32:33], s[0:1], {KA_Q}", f"s_load_dwordx2 s[34:35], s[0:1], {KA_WQ}",
            f"s_load_dwordx2 s[38:39], s[0:1], {KA_DBG}"]


def setup():
    S = Seg()
    T = 16
    t = S_TMP
    S(f"s_and_b32 s{t}, s2, 7")
    S(f"s_lshr_b32 s{t+1}, s2, 3")
    S(f"s_and_b32 s{S_HEAD}, s{t+1}, 3")
    S(f"s_lshl_b32 s{t}, s{t}, 2")
    S(f"s_add_u32 s{S_HEAD}, s{S_HEAD}, s{t}")
    S(f"s_lshr_b32 s{S_I}, s{t+1}, 2")
    S(f"s_lshl_b32 s{t}, s{S_W}, 16")
    S(f"s_lshl_b32 s{S_XS}, s{S_I}, 18")
    S(f"s_sub_u32 s{S_XL}, {15 << 18}, s{S_XS}")
    S(f"s_add_u32 s{S_XS}, s{S_XS}, s{t}")
    S(f"s_add_u32 s{S_XL}, s{S_XL}, s{t}")
    S(f"s_lshl_b32 s{t+1}, s{S_HEAD}, 12")
    S(f"s_lshl_b32 s{S_CL}, s{S_XL}, 2")
    S(f"s_add_u32 s{S_CL}, s{S_CL}, s{t+1}")
    S(f"s_lshl_b32 s{S_CS}, s{S_XS}, 2")
    S(f"s_add_u32 s{S_CS}, s{S_CS}, s{t+1}")
    S(f"s_lshl_b32 s{S_WQO}, s{S_W}, 17")
    S(f"s_lshl_b32 s{t+1}, s{S_HEAD}, 8")
    S(f"s_add_u32 s{S_WQO}, s{S_WQO}, s{t+1}")
    S(f"s_and_b32 s{S_KX}, s2, {f1.ROT}")
    S(f"s_lshl_b32 s{S_KX}, s{S_KX}, 8")
    S(f"s_mov_b32 s{t+2}, s{S_WQO}")
    S(f"s_lshl_b32 s{S_WQO}, s{S_KX}, 12")
    S(f"s_lshl_b32 s{S_MX}, s{S_W}, 13")
    S(f"s_lshl_b32 s{S_MWQ}, s{S_W}, 12")
    S(f"s_lshl_b32 s{S_ND}, s{S_I}, 1")
    S(f"s_sub_u32 s{S_NT}, 32, s{S_ND}")
    S(f"s_add_u32 s{S_ND}, s{S_ND}, 2")
    S(f"s_mov_b32 s{S_THR}, {THR:#x}")
    l = V_L
    S(f"v_lshrrev_b32 v{T}, 3, v{l}")
    S(f"v_lshlrev_b32 v{T}, 11, v{T}")
    S(f"v_lshrrev_b32 v{T+1}, 4, v{l}")
    S(f"v_and_b32 v{T+2}, 7, v{l}")
    S(f"v_xor_b32 v{T+2}, v{T+2}, v{T+1}")
    S(f"v_lshl_add_u32 v{T}, v{T+2}, 4, v{T}")
    S(f"v_xor_b32 v{T+3}, 64, v{T}")
    for i in range(4):
        S(f"v_add_u32 v{V_XD+i}, {16384*i - 1024*i}, v{T + (3 if i & 1 else 0)}")
    S(f"v_and_b32 v{T+2}, 15, v{l}")
    S(f"v_lshlrev_b32 v{T+3}, 1, v{T+1}")
    S(f"v_xor_b32 v{T+2}, v{T+2}, v{T+3}")
    S(f"v_lshlrev_b32 v{T}, 13, v{T+1}")
    for i in range(4):
        S(f"v_xor_b32 v{T+3}, {(i >> 1) << 3}, v{T+2}")
        S(f"v_lshl_add_u32 v{T+3}, v{T+3}, 4, v{T}")
        S(f"v_add_u32 v{V_WD+i}, {32768*i - 1024*i}, v{T+3}")
    S(f"v_and_b32 v{T}, 15, v{l}")
    S(f"v_lshrrev_b32 v{T+2}, 1, v{T}")
    S(f"v_xor_b32 v{T+2}, v{T+2}, v{T+1}")
    S(f"v_lshlrev_b32 v{T+2}, 4, v{T+2}")
    S(f"v_lshl_add_u32 v{T+2}, v{T}, 7, v{T+2}")
    S(f"v_add_u32 v{V_XA}, s{S_MX}, v{T+2}")
    S(f"v_xor_b32 v{V_XA+1}, 64, v{V_XA}")
    S(f"v_add_u32 v{V_XA+2}, 0x10000, v{V_XA}")
    S(f"v_add_u32 v{V_XA+3}, 0x10000, v{V_XA+1}")
    S(f"v_bfe_u32 v{T}, v{l}, 2, 2")
    S(f"v_and_b32 v{T+2}, 1, v{T+1}")
    S(f"v_lshl_or_b32 v{T+2}, v{T+2}, 2, v{T}")
    S(f"v_lshl_add_u32 v{T}, v{T+1}, 3, v{T}")
    S(f"v_lshlrev_b32 v{T}, 8, v{T}")
    S(f"v_and_b32 v{T+3}, 3, v{l}")
    S(f"v_lshl_add_u32 v{T}, v{T+3}, 3, v{T}")
    S(f"v_add_u32 v{T}, {LDS_WQ}, v{T}")
    for ct in range(8):
        S(f"v_xor_b32 v{T+3}, {ct}, v{T+2}")
        S(f"v_lshl_add_u32 v{V_WA+ct}, v{T+3}, 5, v{T}")
    srd(S, SRD_X, 32, 2048 * 1024 * 2)
    S(f"s_add_u32 s{SRD_WQ}, s34, s{t+2}\ns_addc_u32 s{SRD_WQ+1}, s35, 0")
    S(f"s_sub_u32 s{SRD_WQ+2}, {8*MB}, s{t+2}\ns_mov_b32 s{SRD_WQ+3}, 0x20000")
    srd(S, SRD_CTX, 40, 16 * MB, off=WS_CTX)
    S(f"s_lshl_b32 s{t}, s{S_HEAD}, 19")
    S(f"s_add_u32 s{SRD_K}, s40, s{t}\ns_addc_u32 s{SRD_K+1}, s41, 0")
    S(f"s_lshl_b32 s{SRD_K+2}, s{S_NT}, 14\ns_mov_b32 s{SRD_K+3}, 0x20000")
    S(f"s_add_u32 s{t}, s{t}, {WS_VF - 16384}")
    S(f"s_add_u32 s{SRD_V}, s40, s{t}\ns_addc_u32 s{SRD_V+1}, s41, 0")
    S(f"s_add_u32 s{SRD_V+2}, s{SRD_K+2}, 16384\ns_mov_b32 s{SRD_V+3}, 0x20000")
    return [i.text for i in S]


def setup3(T):
    S = Seg()
    t, l = S_TMP, V_L
    S(f"v_lshlrev_b32 v{T}, 4, v{l}")
    S(f"s_lshl_b32 s{t}, s{S_W}, 12")
    S(f"v_add_u32 v{V_DO}, s{t}, v{T}")
    S(f"v_add_u32 v{V_KA}, 0x8000, v{T}")
    S(f"v_add_u32 v{V_VA}, 0x10000, v{T}")
    S(f"s_add_u32 s{S_MK}, s{t}, 0x8000")
    S(f"s_add_u32 s{S_MV}, s{t}, 0x10000")
    S(f"v_and_b32 v{T}, 31, v{l}")
    S(f"v_lshrrev_b32 v{T+2}, 5, v{l}")
    S(f"v_lshlrev_b32 v{T+3}, 2, v{T+2}")
    S(f"v_sub_u32 v{V_Q4}, v{T}, v{T+3}")
    S(f"s_lshl_b32 s{t+1}, s{S_W}, 5")
    S(f"v_add_u32 v{V_Q4}, s{t+1}, v{V_Q4}")
    S(f"v_mov_b32 v{V_NINF}, 0xff800000")
    S(f"v_and_b32 v{T}, 15, v{l}")
    S(f"v_lshl_add_u32 v{T}, v{T+2}, 4, v{T}")
    S(f"v_lshlrev_b32 v{T}, 4, v{T}")
    S(f"v_bfe_u32 v{T+3}, v{l}, 4, 1")
    S(f"v_lshl_add_u32 v{V_CST}, v{T+3}, 17, v{T}")
    return [i.text for i in S]


def dma_x(n):
    out = []
    for half, so in ((0, S_XL), (1, S_XS)):
        for i in range(4):
            if i == 0:
                out.append(f"s_add_u32 s{S_XO}, s{so}, s{S_KX}")
                out.append(f"s_add_u32 m0, s{S_MX}, {X_SLOT[n % 3] + half*4096}")
            out.append(f"buffer_load_dwordx4 v{V_XD+i}, {sr(SRD_X,4)}, s{S_XO} offen offset:{1024*i} lds #x{n}")
    out += [f"s_add_u32 s{S_KX}, s{S_KX}, 128", f"s_and_b32 s{S_KX}, s{S_KX}, 2047"]
    return out


def dma_q(n):
    out = []
    for i in range(4):
        if i == 0:
            out.append(f"s_add_u32 m0, s{S_MWQ}, {LDS_WQ + (n % 3)*16384}")
        out.append(f"buffer_load_dwordx4 v{V_WD+i}, {sr(SRD_WQ,4)}, s{S_WQO} offen offset:{1024*i}{NT_Q} lds #q{n}")
    out += [f"s_add_u32 s{S_WQO}, s{S_WQO}, {64*8192}", f"s_and_b32 s{S_WQO}, s{S_WQO}, {8*MB - 1}"]
    return out


def kv_dma(which, tile, slot):
    base = slot * 16384 + (0x10000 if which == "V" else 0)
    so = (tile + (1 if which == "V" else 0)) * 16384
    srd_ = SRD_K if which == "K" else SRD_V
    out = [f"s_add_u32 m0, s{S_MWQ}, {base}", f"s_mov_b32 s{S_TMP}, {so}"]
    for i in range(4):
        out.append(f"buffer_load_dwordx4 v{V_DO}, {sr(srd_,4)}, s{S_TMP} offen offset:{1024*i} {COH} lds #{which}{tile}")
    return out


def rd_x(n, kk, rt):
    base = X_SLOT[n % 3]
    return f"ds_read_b128 {vr(V_XF + kk*16 + rt*4, 4)}, v{V_XA + kk + (2 if base == 65536 else 0)} offset:{base % 65536 + rt*2048}"


def rd_wq(n, kk, ct):
    return [f"ds_read_b64_tr_b16 {vr(V_WF + ct*4 + 2*a, 2)}, v{V_WA+ct} offset:{(n % 3)*16384 + (32*kk + 4*a)*256}"
            for a in range(2)]


def kstep2(n, kk, fill=None, after_bar=None):
    mf = []
    for ct in range(8):
        for rt in range(4):
            d = vr(acc2(ct, rt), 4)
            mf.append(mfma16(d, vr(V_WF + ct * 4, 4), vr(V_XF + kk * 16 + rt * 4, 4),
                             "0" if (n == 0 and kk == 0) else None))
    sc = Sched(mf, 2)
    last = (n == 15 and kk == 1)
    fg = 0
    if not last:
        nn, nkk = (n, 1) if kk == 0 else (n + 1, 0)
        if kk == 1:
            sc.pin(7, [f"@vmwait x{n+1} q{n+1} lgkm", "s_barrier"])
            if after_bar:
                sc.pin(8, after_bar)
            fg = 8
        m = n + 3 if kk == 1 else n + 2
        if m <= 15 and not (n == 0 and kk == 0):
            d = dma_q(m) + dma_x(m)
            if kk == 1:
                sc.stream(d[:10], 8, 31, prio=1)
            else:
                sc.stream(d[10:], 0, 31, prio=1)
        rw, at = [], []
        for ct in range(8):
            rw += rd_wq(nn, nkk, ct)
            at += [min(31, max(4 * ct + 3, fg + 2 * ct))] * 2
        sc.stream(rw, at=at, prio=3)
        sc.stream([rd_x(nn, nkk, rt) for rt in range(4)], fg + 1, 24, prio=2)
    if fill:
        sc.stream(fill, 0, 30)
    return sc.build(["s_waitcnt lgkmcnt(4)"])


def p1_last_hook(sc):
    sc.pin(9, ["@vmwait x0 q0 lgkm", "s_barrier"])
    sc.stream([rd_x(0, 0, rt) for rt in range(4)] + [x for ct in range(8) for x in rd_wq(0, 0, ct)], 10, 50, prio=2)
    sc.stream(dma_q(2) + dma_x(2), 10, 62, prio=1)


def rd_k(f, imm):
    return f"ds_read_b128 {ar(A_K + 4*f, 4)}, v{V_KA} offset:{imm + 1024*f}"


def rd_v(f, imm):
    return f"ds_read_b128 {ar(A_V + 4*f, 4)}, v{V_VA} offset:{imm + 1024*f}"


def qk_mfmas(par, qts, czero=False):
    mf = []
    for kvh in range(2):
        for t in range(8):
            for qt in qts:
                d = vr(sreg(par, kvh, qt), 16)
                c = None if t else ("0" if czero else vr(V_NM + 16 * qt, 16))
                mf.append(mfma32(d, ar(A_K + 4 * (8 * kvh + t), 4), vr(qreg(qt, t), 4), c))
    return mf


def pv_mfmas(par, qts):
    mf = []
    for t in range(4):
        for dt in range(4):
            for qt in qts:
                mf.append(mfma32(ar(oreg(qt, dt), 16), ar(A_V + 4 * (4 * t + dt), 4),
                                 vr(sreg(par, t >> 1, qt) + 8 * (t & 1), 4)))
    return mf


def exp_stream(par, pairs):
    out = []
    prev = None

    def fin(p):
        kvh, qt, u = p
        b = sreg(par, kvh, qt)
        r = b + 2 * u
        return [f"v_add_f32 v{V_LS[qt]}, v{V_LS[qt]}, v{r}",
                f"v_add_f32 v{V_LS[qt]+1}, v{V_LS[qt]+1}, v{r+1}",
                f"v_cvt_pk_bf16_f32 v{b + 8*(u >> 2) + (u & 3)}, v{r}, v{r+1}"]
    for p in pairs:
        kvh, qt, u = p
        r = sreg(par, kvh, qt) + 2 * u
        f = fin(prev) if prev else []
        out.append(f"v_exp_f32 v{r}, v{r}")
        out += f[:1]
        out.append(f"v_exp_f32 v{r+1}, v{r+1}")
        out += f[1:]
        prev = p
    if prev:
        out += fin(prev)
    return out


def all_pairs(qts):
    return [(kvh, qt, u) for kvh in range(2) for qt in qts for u in range(8)]


NA = {2: 12, 1: 6}


def max_stream(par, qts):
    chains = []
    for qt in qts:
        regs = [sreg(par, kvh, qt) + r for kvh in range(2) for r in range(16)]
        m = V_MX[qt]
        c = [f"v_max3_f32 v{m}, v{regs[0]}, v{regs[1]}, v{regs[2]}"]
        k = 3
        while k + 1 < 32:
            c.append(f"v_max3_f32 v{m}, v{m}, v{regs[k]}, v{regs[k+1]}")
            k += 2
        c.append(f"v_max_f32 v{m}, v{m}, v{regs[31]}")
        chains.append(c)
    out = []
    for x in zip(*chains):
        out += list(x)
    return out


def mask_items(par, qt, dpos, kvh):
    T = V_T + 6 + kvh
    out = [f"v_add_u32 v{T}, {-32*(2*dpos + kvh)}, v{V_Q4}"]
    for q in range(4):
        for k in range(4):
            r = 4 * q + k
            c = 16 * ((r >> 2) & 1) + 8 * (r >> 3) + (r & 3)
            out.append(f"v_cmp_gt_i32_e64 {sr(S_MSK + 2*(4*(q & 1) + k), 2)}, {c}, v{T}")
        for k in range(4):
            r = sreg(par, kvh, qt) + 4 * q + k
            out.append(f"v_cndmask_b32_e64 v{r}, v{r}, v{V_NINF}, {sr(S_MSK + 2*(4*(q & 1) + k), 2)}")
    return out


def rowmax_code(S, qt, clamp):
    T = V_T
    S(f"v_mov_b32 v{T}, v{V_MX[qt]}\nv_mov_b32 v{T+1}, v{V_MX[qt]}")
    S(f"v_permlane32_swap_b32 v{T}, v{T+1}")
    S(f"v_max_f32 v{T+2}, v{T}, v{T+1}")
    if clamp:
        S(f"v_max_f32 v{T+2}, 0, v{T+2}")


def rare_code(S, par, qts):
    T = V_T
    for qt in qts:
        rowmax_code(S, qt, True)
        S(f"v_exp_f32 v{V_F[qt]}, -v{T+2}")
        for r in range(16):
            S(f"v_sub_f32 v{V_NM+16*qt+r}, v{V_NM+16*qt+r}, v{T+2}")
        S(f"v_mul_f32 v{V_LS[qt]}, v{V_LS[qt]}, v{V_F[qt]}")
        S(f"v_mul_f32 v{V_LS[qt]+1}, v{V_LS[qt]+1}, v{V_F[qt]}")
        for kvh in range(2):
            for r in range(16):
                x = sreg(par, kvh, qt) + r
                S(f"v_sub_f32 v{x}, v{x}, v{T+2}")


def resc_code(S, qts):
    T = V_T
    S("s_nop 15")
    for qt in qts:
        for b in range(0, 64, 8):
            for k in range(8):
                S(f"v_accvgpr_read_b32 v{T+k}, a{A_O+64*qt+b+k}")
            for k in range(8):
                S(f"v_mul_f32 v{T+k}, v{T+k}, v{V_F[qt]}")
            for k in range(8):
                S(f"v_accvgpr_write_b32 a{A_O+64*qt+b+k}, v{T+k}")
    S("s_nop 1")


CAP = 6


class Body:
    def __init__(self, nm, par, qk, pv, dpos=None, tail=(), xdma=(), xfill=()):
        a, b = par, par ^ 1
        valu1 = exp_stream(a, all_pairs(pv)[NA[len(pv)]:])
        vrd = [rd_v(f, 16384 if par == 0 else 0) for f in range(16)]
        head = ["s_waitcnt lgkmcnt(0)"] + ([f"v_xor_b32 v{V_VA}, 0x8000, v{V_VA}"] if par == 1 else [])
        self.rare = None
        if not qk:
            s1 = Seg()
            s1.add(head + vrd + valu1 + ["s_waitcnt vmcnt(0) lgkmcnt(0)", "s_barrier"] + list(xdma))
            s1.add(pv_mfmas(a, pv))
            self.segs = [s1]
            return
        mf = qk_mfmas(b, qk)
        n1 = len(mf)
        sc = Sched(mf, CAP)
        sc.stream(vrd, 0, (n1 * 11) // 16, prio=1)
        sc.stream(valu1, 0, n1)
        if dpos is not None:
            sc.stream(mask_items(b, qk[-1], dpos, 0), n1 // 2 + 3, n1)
        s1 = sc.build(head)
        mf = pv_mfmas(a, pv)
        n2 = len(mf)
        pre = (mask_items(b, qk[-1], dpos, 1) if dpos is not None else [])
        mx = max_stream(b, qk)
        if pre:
            h = len(mx) // 2 - len(qk)
            mx = mx[:h] + pre + mx[h:]
        chk = [f"v_max_f32 v{V_T}, v{V_MX[0]}, v{V_MX[1]}", f"v_cmp_lt_f32 vcc, s{S_THR}, v{V_T}"] if len(qk) == 2 \
            else [f"v_cmp_lt_f32 vcc, s{S_THR}, v{V_MX[0]}"]
        krd = [rd_k(f, 16384 if par == 0 else 0) for f in range(16)]
        na = 2 + -(-(len(mx) + len(chk)) // (CAP - 1))
        nk = max(0, (16 * (na - 2)) // (n2 - 6))
        sc = Sched(mf[:na - 1], CAP)
        sc.pin(0, ["s_barrier"] +
               ([f"v_xor_b32 v{V_KA}, 0x8000, v{V_KA}", f"s_xor_b32 s{S_MV}, s{S_MV}, 0x8000"] if par == 1 else []))
        sc.stream(krd[:nk], 1, na - 1, prio=1)
        sc.stream(mx + chk, 1, na - 1)
        s2 = sc.build(["s_waitcnt vmcnt(16) lgkmcnt(0)"])
        s2.add([mf[na - 1], f"s_cbranch_vccnz L_{nm}_rare"])
        dk = [f"s_add_u32 m0, s{S_MK}, {0 if par == 0 else 16384}"]
        dk += [f"buffer_load_dwordx4 v{V_DO}, {sr(SRD_K,4)}, s{S_KVO} offen offset:{1024*i} {COH} lds" for i in range(4)]
        dk += [f"s_add_u32 m0, s{S_MV}, {16384 if par == 0 else 0}"]
        dk += [f"buffer_load_dwordx4 v{V_DO}, {sr(SRD_V,4)}, s{S_KVO} offen offset:{1024*i} {COH} lds" for i in range(4)]
        dk += [f"s_add_u32 s{S_KVO}, s{S_KVO}, 16384"] + ([f"s_xor_b32 s{S_MK}, s{S_MK}, 0x8000"] if par == 1 else [])
        dk += list(xdma)
        valu2 = exp_stream(b, all_pairs(qk)[:NA[len(qk)]])

        def rest():
            m = ["s_nop 0"] + mf[na:]
            sc = Sched(m, CAP)
            nr = len(m)
            sc.pin(0, [])
            sc.stream(krd[nk:], 0, max(1, nr - 4), prio=2)
            sc.pin(0, dk[:1])
            sc.stream(dk[1:] + list(tail[:-1]), 1, nr, prio=1)
            sc.stream(valu2, 0, nr)
            sc.stream(list(xfill), 0, nr)
            seg = sc.build()
            del seg[0]
            return seg
        s3 = rest()
        s4 = Seg()
        s4(f"L_{nm}_end:")
        s4.add(list(tail[-1:]))
        R = Seg()
        R(f"L_{nm}_rare:")
        rare_code(R, b, qk)
        R.add(rest())
        if tail:
            pass
        resc_code(R, qk)
        R(f"s_branch L_{nm}_end")
        self.rare = R
        self.segs = [s1, s2, s3, s4]

    def trace(self, rare):
        if not rare or self.rare is None:
            return list(self.segs)
        s = self.segs
        return [s[0], s[1], self.rare, s[3]]


def epilogue(S, qt, so, flavor="sc1"):
    T = V_T
    ls = V_LS[qt]
    S(f"v_add_f32 v{ls}, v{ls}, v{ls+1}")
    S(f"v_mov_b32 v{ls+1}, v{ls}")
    S(f"v_permlane32_swap_b32 v{ls}, v{ls+1}")
    S(f"v_add_f32 v{ls}, v{ls}, v{ls+1}")
    S(f"v_rcp_f32 v{ls}, v{ls}")
    S("s_nop 7")
    k = 0
    for dt in range(4):
        for t in range(2):
            D = T + 8 + 4 * (k & 1)
            k += 1
            for j in range(8):
                S(f"v_accvgpr_read_b32 v{T+j}, a{oreg(qt, dt) + 8*t + j}")
            for j in range(8):
                S(f"v_mul_f32 v{T+j}, v{T+j}, v{ls}")
            for u in range(4):
                S(f"v_cvt_pk_bf16_f32 v{D+u}, v{T+2*u}, v{T+2*u+1}")
            S(f"buffer_store_dwordx4 {vr(D,4)}, v{V_CST}, {sr(SRD_CTX,4)}, s{so} offen offset:{dt*1024 + t*512} {flavor} #ctx{qt}")


def p3_prologue(nm, extra):
    A = Seg()
    A("s_waitcnt lgkmcnt(0)\ns_barrier")
    A.add(kv_dma("K", 0, 1) + kv_dma("K", 1, 2))
    q = [f"s_mov_b32 s{S_TMP+2}, {SCALE_K:#x}", f"s_mov_b32 s{S_TMP+3}, {SCALE_K:#x}"]
    for p in range(4):
        for r in range(acc2(2 * p, 0), acc2(2 * p, 0) + 32, 2):
            q.append(f"v_pk_mul_f32 {vr(r,2)}, {vr(r,2)}, {sr(S_TMP+2,2)}")
        for qt in range(2):
            for e in range(2):
                for u in range(4):
                    a = acc2(2 * p + (u >> 1), 2 * qt + e) + 2 * (u & 1)
                    q.append(f"v_cvt_pk_bf16_f32 v{qreg(qt, 2*p+e) + u}, v{a}, v{a+1}")
        for qt in range(2):
            for u in range(4):
                q.append(f"v_permlane16_swap_b32 v{qreg(qt, 2*p) + u}, v{qreg(qt, 2*p+1) + u}")
    q += [f"v_mov_b32 v{V_NM+r}, 0" for r in range(32)]
    q += [f"v_mov_b32 v{V_LS[qt]+e}, 0" for qt in range(2) for e in range(2)]
    q.append(f"v_xor_b32 v{V_T+4}, 0x8000, v{V_KA}")
    d = kv_dma("V", 0, 1) + kv_dma("K", 2, 3) + kv_dma("V", 1, 2) + kv_dma("K", 3, 0) + kv_dma("V", 2, 3)
    for k, x in enumerate(d):
        A.add(q[k * len(q) // len(d):(k + 1) * len(q) // len(d)] + [x])
    A("@vmwait K0\ns_barrier")
    for f in range(16):
        A(f"ds_read_b128 {ar(A_K + 4*f, 4)}, v{V_T+4} offset:{16384 + 1024*f}")
    mf = qk_mfmas(0, [0, 1], czero=True)
    mx = max_stream(0, [0, 1])
    sc = Sched(mf, CAP)
    sc.pin(13, ["@vmwait K1 V0 lgkm", "s_barrier"])
    sc.stream([rd_k(f, 0) for f in range(16)], at=[max(14 + f // 2, 2 * f + 1) for f in range(16)], prio=2)
    sc.stream(list(extra), 0, 13, prio=1)
    sc.stream(kv_dma("K", 4, 1) + kv_dma("V", 3, 0) + [f"s_mov_b32 s{S_KVO}, {5*16384}"], 14, 31, prio=1)
    A.add(sc.build())
    A(f"s_cmp_eq_u32 s{S_I}, 0\ns_cbranch_scc1 L_{nm}_pmask")
    M = Seg()
    M(f"L_{nm}_pmask:\ns_nop 7")
    M.add(mask_items(0, 1, 0, 0) + mask_items(0, 1, 0, 1))
    M(f"s_branch L_{nm}_pmask_ret")
    B = Seg()
    B(f"L_{nm}_pmask_ret:")
    B.add(mx)
    T = V_T
    for qt in range(2):
        B(f"v_mov_b32 v{T+qt}, v{V_MX[qt]}")
    B("s_nop 0")
    for qt in range(2):
        B(f"v_permlane32_swap_b32 v{V_MX[qt]}, v{T+qt}")
    for qt in range(2):
        B(f"v_max_f32 v{V_MX[qt]}, v{V_MX[qt]}, v{T+qt}")
    B(f"v_max_f32 v{T}, abs(v{V_MX[0]}), abs(v{V_MX[1]})")
    B(f"v_cmp_nge_f32 vcc, s{S_THR}, v{T}\ns_nop 4\ns_cbranch_vccnz L_{nm}_pfix")
    X = Seg()
    X(f"L_{nm}_pfix:")
    for qt in range(2):
        for r in range(16):
            X(f"v_sub_f32 v{V_NM+16*qt+r}, 0, v{V_MX[qt]}")
        for kvh in range(2):
            for r in range(16):
                x = sreg(0, kvh, qt) + r
                X(f"v_sub_f32 v{x}, v{x}, v{V_MX[qt]}")
    X(f"s_branch L_{nm}_pfix_ret")
    C = Seg()
    C(f"L_{nm}_pfix_ret:")
    C.add(exp_stream(0, all_pairs([0, 1])[:NA[2]]))
    return A, B, C, M, X


def p3(nm, st, pro_extra, after_s, late_dma, before_last, sig_pack, mx_fill):
    PA, PB0, PB, PM, PX = p3_prologue(nm, pro_extra)
    st(PB)
    PB(f"s_sub_u32 s{S_CNT}, s{S_I}, 1\ns_cbranch_scc1 L_{nm}_d0m_top")
    dec = f"s_sub_u32 s{S_CNT}, s{S_CNT}, 1"
    LS = [0, 1]
    D0 = Body(nm + "_d0", 0, LS, LS, tail=[dec, f"s_cbranch_scc1 L_{nm}_d1m_top"])
    D1 = Body(nm + "_d1", 1, LS, LS, tail=[f"s_branch L_{nm}_d0_top"])
    D1m = Body(nm + "_d1m", 1, LS, LS, dpos=0)
    D0m = Body(nm + "_d0m", 0, LS, LS, dpos=1, tail=[f"s_cmp_eq_u32 s{S_I}, 7", f"s_cbranch_scc1 L_{nm}_mxm_top"])
    MX = Body(nm + "_mx", 1, [0], LS, xfill=mx_fill)
    MXm = Body(nm + "_mxm", 1, [0], LS, dpos=0, tail=[f"s_branch L_{nm}_eps"], xfill=mx_fill)
    S0 = Body(nm + "_s0", 0, [0], [0], tail=[dec, f"s_cbranch_scc1 L_{nm}_s1m_top"])
    S1 = Body(nm + "_s1", 1, [0], [0], tail=[f"s_branch L_{nm}_s0_top"], xdma=sig_pack)
    S1m = Body(nm + "_s1m", 1, [0], [0], dpos=0)
    S0m = Body(nm + "_s0m", 0, [0], [0], dpos=1, xdma=late_dma)
    LA = Body(nm + "_la", 1, [], [0], xdma=sig_pack)
    lab = lambda x, al=False: Seg()((".p2align 5\n" if al else "") + f"L_{nm}_{x}_top:")
    EP_S = Seg()
    EP_S(f"L_{nm}_eps:")
    st(EP_S)
    epilogue(EP_S, 1, S_CS)
    EP_S.add(after_s)
    st(EP_S)
    EP_S(f"s_lshl_b32 s{S_CNT}, s{S_I}, 1\ns_sub_u32 s{S_CNT}, 13, s{S_CNT}\ns_cbranch_scc1 L_{nm}_s0m_top")
    hL = Seg()
    hL.add(before_last)
    EP_L = Seg()
    st(EP_L)
    epilogue(EP_L, 0, S_CL)
    st(EP_L)
    lin = [PA, PB0, PB, lab("d0", True)] + D0.segs + D1.segs + [lab("d1m")] + D1m.segs + [lab("d0m")] + D0m.segs + \
        MX.segs + [EP_S, lab("s0", True)] + S0.segs + S1.segs + [lab("s1m")] + S1m.segs + [lab("s0m")] + S0m.segs + \
        [hL] + LA.segs + [EP_L]
    ool = [PM, PX, lab("mxm")] + MXm.segs + [b.rare for b in (D0, D1, D1m, D0m, MX, MXm, S0, S1, S1m, S0m)]
    traces = []
    for rare in (False, True):
        for nd_, ns_ in ((-1, 2), (0, 1), (1, 0), (2, -1)):
            t = [PA] + ([PM] if nd_ < 0 else []) + [PB0] + ([PX] if rare else []) + [PB]
            if nd_ >= 0:
                for _ in range(nd_):
                    t += D0.trace(rare) + D1.trace(rare)
                t += D0.trace(rare) + D1m.trace(rare)
            t += D0m.trace(rare) + (MX if ns_ >= 0 else MXm).trace(rare) + [EP_S]
            if ns_ >= 0:
                for _ in range(ns_):
                    t += S0.trace(rare) + S1.trace(rare)
                t += S0.trace(rare) + S1m.trace(rare)
            t += S0m.trace(rare) + [hL] + LA.trace(rare) + [EP_L]
            traces.append(t)
    global BODIES
    BODIES = dict(D0=D0, D1=D1, D1m=D1m, D0m=D0m, MX=MX, MXm=MXm, S0=S0, S1=S1, S1m=S1m, S0m=S0m)
    return lin, ool, traces
```

```python
from common import *

S_W = 3
V_L = 1

SRD_H, SRD_UR, SRD_YO, SRD_D = 16, 20, 24, 28
S_T4 = 36
S_DO = 42
S_UB = 43
V_AA, V_BA = 4, 5
V_HW = 6
V_YW, V_YR, V_YS = 7, 8, 9
V_T4 = 12
V_O = 20
V_DA = 32
V_H = 48
V_HO = 72
V_D = 74
V_ACC4 = 76
A_FR = 128
V_YT = 108
H_STRIDE = 4160
H_WAVE = 4 * H_STRIDE
U_LDS, U_WAVE = 132096, 4608
Y_LDS = 0
WO_LDS = 4 * H_WAVE


def p4_ptr_loads():
    return [f"s_load_dwordx4 s[32:35], s[0:1], {KA_SSMK}"]


def p4_srds():
    S = Seg()
    t = S_T4
    S(f"s_lshl_b32 s{t}, s2, 2")
    S(f"s_add_u32 s{t}, s{t}, s{S_W}")
    S(f"s_lshl_b32 s{S_DO}, s{t}, 1")
    S(f"s_lshl_b32 s{t+1}, s{t}, 12")
    srd(S, SRD_H, 32, 4096, off=f"s{t+1}")
    S(f"s_add_u32 s{t+1}, s{t+1}, {WS_UR}")
    srd(S, SRD_UR, 40, 4096, off=f"s{t+1}")
    S(f"s_lshl_b32 s{t+1}, s2, 14")
    S(f"s_add_u32 s{t+1}, s{t+1}, {WS_Y4}")
    srd(S, SRD_YO, 40, 16384, off=f"s{t+1}")
    srd(S, SRD_D, 34, 2048)
    S(f"s_mul_i32 s{S_UB}, s{S_W}, {U_WAVE}")
    S(f"s_add_u32 s{S_UB}, s{S_UB}, {U_LDS}")
    return groupify([i.text for i in S])


def p4_ur_dma(tmp):
    out = [f"v_lshlrev_b32 v{tmp}, 4, v{V_L}", f"s_mov_b32 m0, s{S_UB}", "s_nop 0"]
    for i in range(4):
        out.append(f"buffer_load_dwordx4 v{tmp}, {sr(SRD_UR,4)}, 0 offen offset:{1024*i} sc1 lds")
    return out


def p4_h_loads():
    out = [f"v_lshlrev_b32 v{V_HO}, 4, v{V_L}", f"v_add_u32 v{V_HO+1}, -8, v{V_HO}", f"v_mov_b32 v{V_D+1}, 0",
           f"buffer_load_ushort v{V_D}, v{V_D+1}, {sr(SRD_D,4)}, s{S_DO} offen"]
    for i in range(4):
        if i == 0:
            out.append(f"buffer_load_dwordx2 {vr(V_H,2)}, v{V_HO+1}, {sr(SRD_H,4)}, 0 offen{NT_K}")
        else:
            out.append(f"buffer_load_dwordx2 {vr(V_H+6*i,2)}, v{V_HO}, {sr(SRD_H,4)}, 0 offen offset:{1024*i - 8}{NT_K}")
        out.append(f"buffer_load_dwordx4 {vr(V_H+6*i+2,4)}, v{V_HO}, {sr(SRD_H,4)}, 0 offen offset:{1024*i}{NT_K}")
    return out


def p4_setup(S):
    T, t, l = V_T4, S_T4, V_L
    S(f"s_mul_i32 s{t}, s{S_W}, {H_WAVE}")
    S(f"v_and_b32 v{T}, 15, v{l}")
    S(f"v_lshrrev_b32 v{T+1}, 4, v{l}")
    S(f"v_add_u32 v{T+2}, 13, v{T}")
    S(f"v_and_b32 v{T+3}, 3, v{T+2}")
    S(f"v_cmp_eq_u32 vcc, 0, v{T+3}")
    S(f"v_lshrrev_b32 v{T+2}, 2, v{T+2}")
    S(f"v_mul_u32_u24 v{T+3}, {H_STRIDE}, v{T+3}")
    S(f"v_cndmask_b32 v{T+3}, v{T+3}, 8, vcc")
    S(f"v_lshl_add_u32 v{T+3}, v{T+2}, 3, v{T+3}")
    S(f"v_lshl_add_u32 v{T+3}, v{T+1}, 4, v{T+3}")
    S(f"v_add_u32 v{V_AA}, s{t}, v{T+3}")
    S(f"v_add_u32 v{V_HW}, s{t}, v{V_HO}")
    S(f"v_lshlrev_b32 v{T+2}, 5, v{T}")
    S(f"v_lshlrev_b32 v{T+3}, 4, v{T+1}")
    S(f"v_sub_u32 v{T+3}, v{T+3}, v{T+2}")
    S(f"s_add_u32 s{t+1}, s{S_UB}, 480")
    S(f"v_add_u32 v{V_BA}, s{t+1}, v{T+3}")
    S(f"v_mul_u32_u24 v{T+2}, 136, v{T}")
    S(f"v_lshl_add_u32 v{T+2}, v{T+1}, 5, v{T+2}")
    S(f"s_lshl_b32 s{t+1}, s{S_W}, 1")
    S(f"s_add_u32 s{t+1}, s{t+1}, {Y_LDS}")
    S(f"v_add_u32 v{V_YW}, s{t+1}, v{T+2}")
    S(f"v_lshrrev_b32 v{T+2}, 3, v{l}")
    S(f"v_mul_u32_u24 v{T+2}, 136, v{T+2}")
    S(f"v_and_b32 v{T+3}, 7, v{l}")
    S(f"v_lshl_add_u32 v{T+2}, v{T+3}, 4, v{T+2}")
    S(f"s_mul_i32 s{t+1}, s{S_W}, {4*1088}")
    S(f"s_add_u32 s{t+1}, s{t+1}, {Y_LDS}")
    S(f"v_add_u32 v{V_YR}, s{t+1}, v{T+2}")
    S(f"s_lshl_b32 s{t+1}, s{S_W}, 12")
    S(f"v_add_u32 v{V_YS}, s{t+1}, v{V_HO}")
    S(f"v_lshl_add_u32 v{T+2}, v{T+1}, 3, v{T}")
    S(f"v_sub_u32 v{V_D+1}, 15, v{T+2}")


def p4_prep(S):
    T, l = V_T4, V_L
    Z = T + 4
    for k in range(4):
        S(f"v_mov_b32 v{Z+k}, 0")
    S(f"v_and_b32 v{T}, 3, v{l}")
    S(f"v_mul_u32_u24 v{T}, {H_STRIDE}, v{T}")
    S(f"v_lshrrev_b32 v{T+1}, 2, v{l}")
    S(f"v_min_u32 v{T+1}, 3, v{T+1}")
    S(f"v_lshl_add_u32 v{T}, v{T+1}, 4, v{T}")
    S(f"v_add_u32 v{T}, s{S_T4}, v{T}")
    S(f"ds_write_b128 v{T}, {vr(Z,4)}")
    S(f"v_and_b32 v{T+1}, 31, v{l}")
    S(f"v_lshlrev_b32 v{T+1}, 4, v{T+1}")
    S(f"v_add_u32 v{T+1}, s{S_UB}, v{T+1}")
    S(f"ds_write_b128 v{T+1}, {vr(Z,4)} offset:4096")
    for i in range(4):
        D = V_H + 6 * i
        O = V_O + 6 * (i & 1)
        for k in range(5):
            S(f"v_alignbit_b32 v{O+k}, v{D+k+1}, v{D+k}, 16")
        off = 48 + 1024 * i
        S(f"ds_write_b128 v{V_HW}, {vr(D+2,4)} offset:{off + 16}")
        S(f"ds_write_b128 v{V_HW}, {vr(O,4)} offset:{off + H_STRIDE}")
        for c, R in ((2, D + 1), (3, O + 1)):
            for k in range(4):
                S(f"v_mov_b32 v{T+k}, v{R+k}")
            S(f"ds_write_b128 v{V_HW}, {vr(T,4)} offset:{off + c*H_STRIDE}")
    S(f"v_lshlrev_b32 v{T}, 16, v{V_D}")
    for i in range(4):
        S(f"v_cmp_eq_u32 vcc, {2*i}, v{V_D+1}")
        S(f"v_cndmask_b32 v{V_DA+i}, 0, v{V_D}, vcc")
        S(f"v_cmp_eq_u32 vcc, {2*i+1}, v{V_D+1}")
        S(f"v_cndmask_b32 v{V_DA+i}, v{V_DA+i}, v{T}, vcc")
    S("s_waitcnt lgkmcnt(0)")


def afr(rho, q):
    return A_FR + (rho & 1) * 64 + q * 4


def bfr(rho, p):
    return A_FR + (rho & 1) * 64 + 32 + p * 4


def p4_reads(rho):
    out = []
    for k in range(8):
        out.append(f"ds_read_b128 {ar(bfr(rho, k),4)}, v{V_BA} offset:{512*(7-k) + 64*rho}")
        for a in range(2):
            out.append(f"ds_read_b64 {ar(afr(rho, k) + 2*a, 2)}, v{V_AA} offset:{64*(8*k + rho) + 8*a}")
    return out


def p4_mfmas(rho):
    mf = []
    for q in range(8):
        for p in range(8 - q):
            d = vr(V_ACC4 + 4 * (p + q), 4)
            mf.append(mfma16(d, ar(afr(rho, q), 4), ar(bfr(rho, p), 4), "0" if (rho == 0 and q == 0) else None))
        if rho == 0 and q == 0:
            for p in range(8):
                mf.append(mfma16(vr(V_ACC4 + 4 * p, 4), vr(V_DA, 4), ar(bfr(0, p), 4)))
    return mf


def p4_rho(rho, head=(), vm=(), fill=()):
    mf = p4_mfmas(rho)
    sc = Sched(mf, 2)
    if rho < 7:
        sc.stream(p4_reads(rho + 1), 0, 30, prio=2)
    sc.stream(list(vm), 0, len(mf) - 1, prio=1)
    sc.stream(list(fill), 0, len(mf) - 1)
    return sc.build(head)


def p4_y_write():
    out = []
    T = V_T4
    for tt in range(8):
        a = V_ACC4 + 4 * tt
        r = T + 2 * (tt & 1)
        out += [f"v_cvt_pk_bf16_f32 v{r}, v{a}, v{a+1}", f"v_cvt_pk_bf16_f32 v{r+1}, v{a+2}, v{a+3}"]
        for k in range(2):
            out += [f"ds_write_b16 v{V_YW}, v{r+k} offset:{2176*tt + 16*k}",
                    f"ds_write_b16_d16_hi v{V_YW}, v{r+k} offset:{2176*tt + 16*k + 8}"]
    return out


def p4_y_read():
    return [f"ds_read_b64 {vr(V_YT + 4*i + 2*a, 2)}, v{V_YR} offset:{1088*i + 8*a}" for i in range(4) for a in range(2)]


def p4_y_store(flavor="sc1"):
    return [f"buffer_store_dwordx4 {vr(V_YT + 4*i, 4)}, v{V_YS}, {sr(SRD_YO,4)}, 0 offen offset:{1024*i} {flavor} #yst"
            for i in range(4)]


SRD_CX, SRD_WO, SRD_XI, SRD_Y, SRD_OUT, SRD_G = 44, 48, 52, 56, 60, 64
S_CO = 68
S_WO = 69
S_MW = 70
S_CNT = 71
S_T = 72
S_XO, S_YO, S_GO, S_RB, S_CB = 78, 79, 80, 81, 82
P_X, P_WO, P_OUT = 84, 86, 88

V_CD = 236
V_WD = 238
V_WA = 242
V_XV, V_YV, V_GV = 250, 251, 252
V_PL = 253
V_ACC = 124
V_WF = 156
V_X = 192
V_Y = 208
V_G = 224
V_A = 36
V_T = 36
V_TE = 228
A_C = 0

NS = 32


def acc5(ct, rt):
    return V_ACC + (ct * 2 + rt) * 4


def p5_ptr_loads():
    return [f"s_load_dwordx2 {sr(P_X,2)}, s[0:1], {KA_Q}",
            f"s_load_dwordx2 {sr(P_OUT,2)}, s[0:1], {KA_OUT}"]


def rb_cb(S, rb, cb, t):
    S(f"s_and_b32 s{rb}, s2, 3")
    S(f"s_lshl_b32 s{rb}, s{rb}, 1")
    S(f"s_sub_u32 s{t}, 14, s{rb}")
    S(f"s_bitcmp1_b32 s2, 4")
    S(f"s_cselect_b32 s{rb}, s{t}, s{rb}")
    S(f"s_bfe_u32 s{t}, s2, 0x10003")
    S(f"s_add_u32 s{rb}, s{rb}, s{t}")
    S(f"s_bfe_u32 s{cb}, s2, 0x10002")
    S(f"s_lshl_b32 s{cb}, s{cb}, 3")
    S(f"s_lshr_b32 s{t}, s2, 5")
    S(f"s_add_u32 s{cb}, s{cb}, s{t}")


def p5_setup():
    S = Seg()
    T, t, l = V_T, S_T, V_L
    rb_cb(S, S_RB, S_CB, t + 2)
    S(f"s_mov_b32 s{t}, s{S_RB}\ns_mov_b32 s{t+1}, s{S_CB}")
    S(f"s_lshl_b32 s{t+2}, s{t}, 2")
    S(f"s_add_u32 s{t+2}, s{t+2}, s{S_W}")
    S(f"s_lshl_b32 s{S_CO}, s{t+2}, 18")
    S(f"s_lshl_b32 s{S_WO}, s{t+1}, 19")
    S(f"s_lshl_b32 s{t+3}, s{t+1}, 7")
    S(f"s_lshl_b32 s{S_MW}, s{S_W}, 12")
    S(f"s_lshl_b32 s{S_XO}, s{t+2}, 16")
    S(f"s_add_u32 s{S_XO}, s{S_XO}, s{t+3}")
    S(f"s_lshl_b32 s{S_YO}, s{t+1}, 18")
    S(f"s_lshl_b32 s{t+3}, s{t+2}, 8")
    S(f"s_add_u32 s{S_YO}, s{S_YO}, s{t+3}")
    S(f"s_lshl_b32 s{S_GO}, s{t+2}, 7")
    S(f"v_lshlrev_b32 v{V_CD}, 4, v{l}")
    S(f"v_add_u32 v{V_CD+1}, 0x20000, v{V_CD}")
    S(f"v_add_u32 v{V_WD}, s{S_MW}, v{V_CD}")
    S(f"v_add_u32 v{V_WA}, {WO_LDS}, v{V_CD}")
    S(f"v_bfe_u32 v{T+2}, v{l}, 4, 1")
    S(f"v_lshrrev_b32 v{T+4}, 5, v{l}")
    S(f"v_and_b32 v{T}, 15, v{l}")
    S(f"v_lshlrev_b32 v{T+5}, 5, v{T+2}")
    S(f"v_lshl_add_u32 v{T+5}, v{T+4}, 4, v{T+5}")
    S(f"v_lshl_add_u32 v{V_XV}, v{T}, 11, v{T+5}")
    S(f"v_lshlrev_b32 v{T+5}, 11, v{T+5}")
    S(f"v_lshl_add_u32 v{V_YV}, v{T}, 3, v{T+5}")
    S(f"v_lshlrev_b32 v{V_GV}, 2, v{T}")
    srd(S, SRD_CX, 40, 16 * MB, off=WS_CTX)
    srd(S, SRD_WO, 40, 8 * MB, off=WS_WP)
    srd(S, SRD_XI, P_X, 2048 * 1024 * 2)
    srd(S, SRD_Y, 40, 4 * MB, off=WS_Y4)
    srd(S, SRD_OUT, P_OUT, 2048 * 1024 * 2)
    srd(S, SRD_G, 40, 8192, off=WS_G)
    return groupify([i.text for i in S])


CXF = os.environ.get("CXF", "_sc1").replace("_", " ")


def ld_ctx(n, kq, rt):
    return f"buffer_load_dwordx4 {ar(A_C + (n & 3)*32 + (kq*2 + rt)*4, 4)}, v{V_CD+rt}, {sr(SRD_CX,4)}, s{S_CO} offen offset:{1024*kq}{CXF}"


WOF = os.environ.get("WOF", "").replace("_", " ")
ADV_C = f"s_add_u32 s{S_CO}, s{S_CO}, 4096"
ADV_W = f"s_add_u32 s{S_WO}, s{S_WO}, 16384"


def dma_wo(n, i):
    out = [f"s_add_u32 m0, s{S_MW}, {WO_LDS + (n & 3)*16384}"] if i == 0 else []
    out.append(f"buffer_load_dwordx4 v{V_WD}, {sr(SRD_WO,4)}, s{S_WO} offen offset:{1024*i} sc1 lds #o{n}")
    return out + ([ADV_W] if i == 3 else [])


def wo_stage(n):
    return [x for i in range(4) for x in dma_wo(n, i)]


def ctx_stage(n):
    return [ld_ctx(n, kq, rt) for kq in range(4) for rt in range(2)] + [ADV_C]


def rd_wo(n, kq, ct):
    return [f"ds_read_b128 {vr(V_WF + (kq & 1)*16 + ct*4, 4)}, v{V_WA} offset:{(n & 3)*16384 + kq*4096 + ct*1024}"]


PK_LDS = 131072


def pack_srd():
    return ["s_lshr_b32 s36, s2, 3", "s_lshl_b32 s36, s36, 18", "s_and_b32 s37, s2, 7", "s_lshl_b32 s37, s37, 8",
            "s_add_u32 s36, s36, s37", f"s_lshl_b32 s37, s{S_W}, 16", "s_add_u32 s36, s36, s37",
            ["s_add_u32 s32, s32, s36", "s_addc_u32 s33, s33, 0"], "s_mov_b32 s34, 65536", "s_mov_b32 s35, 0x20000"]


def pack_dma(T):
    out = [f"v_lshrrev_b32 v{T}, 4, v{V_L}", f"v_and_b32 v{T+1}, 15, v{V_L}", f"v_lshlrev_b32 v{T+2}, 1, v{T}",
           f"v_xor_b32 v{T+1}, v{T+1}, v{T+2}", f"v_lshlrev_b32 v{T}, 11, v{T}",
           f"v_lshl_add_u32 v{T}, v{T+1}, 4, v{T}", f"v_xor_b32 v{T+1}, 128, v{T}",
           f"s_lshl_b32 s36, s{S_W}, 13"]
    for i in range(8):
        if i % 4 == 0:
            out.append(f"s_add_u32 m0, s36, {PK_LDS + (i >> 2)*4096}")
        out += [f"s_mov_b32 s37, {8192*i - 1024*(i & 3)}",
                f"buffer_load_dwordx4 v{T + (i & 1)}, s[32:35], s37 offen offset:{1024*(i & 3)}{NT_O} lds"]
    return out


def pack_store(T, regs, vdo):
    l = V_L
    out = [f"v_bfe_u32 v{T}, v{l}, 2, 2", f"v_bfe_u32 v{T+1}, v{l}, 4, 1", f"v_lshl_add_u32 v{T}, v{T+1}, 2, v{T}",
           f"v_lshrrev_b32 v{T+1}, 5, v{l}", f"v_lshl_add_u32 v{T+1}, v{T+1}, 4, v{T}", f"v_lshlrev_b32 v{T+1}, 8, v{T+1}",
           f"v_and_b32 v{T+2}, 3, v{l}", f"v_lshl_add_u32 v{T+1}, v{T+2}, 3, v{T+1}",
           f"s_lshl_b32 s36, s{S_W}, 13", f"s_add_u32 s36, s36, {PK_LDS}", f"v_add_u32 v{T+1}, s36, v{T+1}"]
    for j in range(8):
        out += [f"v_xor_b32 v{T+2}, {j}, v{T}", f"v_lshl_add_u32 v{T+2}, v{T+2}, 5, v{T+1}"]
        out += [f"ds_read_b64_tr_b16 {vr(regs[j] + 2*a, 2)}, v{T+2} offset:{2048*a}" for a in range(2)]
    S = Seg()
    srd(S, 32, 40, 8 * MB, off=WS_WP)
    out += [i.text for i in S]
    out += ["s_and_b32 s36, s2, 7", "s_lshl_b32 s36, s36, 20", "s_lshr_b32 s37, s2, 3", "s_lshl_b32 s37, s37, 14",
            "s_add_u32 s36, s36, s37", "s_add_u32 s37, s36, 0x80000"]
    for j in range(8):
        out.append(f"buffer_store_dwordx4 {vr(regs[j],4)}, v{vdo}, s[32:35], s{36 + (j >> 2)} offen offset:{1024*(j & 3)} sc1")
    return out


def ep_loads(which):
    out = []
    for rt in range(2):
        if which == "x":
            out.append([f"s_add_u32 s{S_T}, s{S_XO}, {rt*32768}"] +
                       [f"buffer_load_dwordx4 {vr(V_X + (rt*2 + pr)*4, 4)}, v{V_XV}, {sr(SRD_XI,4)}, s{S_T} offen offset:{64*pr}"
                        for pr in range(2)])
            out.append([f"buffer_load_dword v{V_G+rt}, v{V_GV}, {sr(SRD_G,4)}, s{S_GO} offen offset:{64*rt} sc1"])
        else:
            for pr in range(2):
                for e in range(2):
                    out.append([f"s_add_u32 s{S_T}, s{S_YO}, {(8*pr + e)*16384}",
                                f"buffer_load_dwordx2 {vr(V_Y + ((rt*2 + pr)*2 + e)*2, 2)}, v{V_YV}, {sr(SRD_Y,4)}, s{S_T} offen offset:{128*rt} sc1"])
    return out


def early_x_loads(srd_x, T):
    S = Seg()
    l = V_L
    rb_cb(S, 36, 37, 32)
    S(f"s_lshl_b32 s36, s36, 2\ns_add_u32 s36, s36, s{S_W}")
    S(f"s_lshl_b32 s37, s37, 7\ns_lshl_b32 s32, s36, 16\ns_add_u32 s37, s37, s32\ns_lshl_b32 s36, s36, 7")
    S(f"v_and_b32 v{T}, 15, v{l}\nv_bfe_u32 v{T+1}, v{l}, 4, 1\nv_lshlrev_b32 v{T+1}, 5, v{T+1}")
    S(f"v_lshrrev_b32 v{T+2}, 5, v{l}\nv_lshl_add_u32 v{T+1}, v{T+2}, 4, v{T+1}")
    S(f"v_lshl_add_u32 v{T+1}, v{T}, 11, v{T+1}\nv_lshlrev_b32 v{T}, 2, v{T}")
    srd(S, 32, 40, 8192, off=WS_G)
    for rt in range(2):
        for pr in range(2):
            S(f"buffer_load_dwordx4 {vr(V_X + (rt*2 + pr)*4, 4)}, v{T+1}, {sr(srd_x,4)}, s37 offen offset:{64*pr}")
        S(f"buffer_load_dword v{V_G+rt}, v{T}, s[32:35], s36 offen offset:{64*rt} sc1")
        if rt == 0:
            S("s_add_u32 s37, s37, 32768")
    return [i.text for i in S]


def ep_pre():
    out = []
    T = V_TE
    for rt in range(2):
        out.append(f"v_sub_f32 v{V_G+2+rt}, 1.0, v{V_G+rt}")
        for pr in range(2):
            for u in range(4):
                x = V_X + (rt * 2 + pr) * 4 + u
                y = V_Y + (rt * 2 + pr) * 4 + u
                a = V_A + (rt * 2 + pr) * 8 + 2 * u
                out += [f"v_lshlrev_b32 v{a}, 16, v{x}", f"v_lshlrev_b32 v{T}, 16, v{y}",
                        f"v_and_b32 v{a+1}, 0xffff0000, v{x}", f"v_and_b32 v{T+1}, 0xffff0000, v{y}",
                        f"v_mul_f32 v{a}, v{a}, v{T}", f"v_mul_f32 v{a+1}, v{a+1}, v{T+1}",
                        f"v_mul_f32 v{a}, v{a}, v{V_G+rt}", f"v_mul_f32 v{a+1}, v{a+1}, v{V_G+rt}"]
    return out


def stage(u, fill=None, bar_tags=(), after_bar=(), conv=None):
    S = Seg()
    for kq in range(4):
        own = []
        for ct in range(4):
            for rt in range(2):
                own.append(mfma16(vr(acc5(ct, rt), 4), vr(V_WF + (kq & 1) * 16 + ct * 4, 4),
                                  ar(A_C + (u & 3) * 32 + (kq * 2 + rt) * 4, 4), "0" if (u == 0 and kq == 0) else None))
        cm, cr = conv[kq] if conv else ([], [])
        mf, pos = [], []
        for k, m in enumerate(own):
            mf.append(m)
            pos.append(len(mf) - 1)
            mf += cm[k * len(cm) // 8:(k + 1) * len(cm) // 8]
        sc = Sched(mf, 2)
        head = []
        if kq < 3:
            rd = [x for ct in range(4) for x in rd_wo(u, kq + 1, ct)]
        elif u < 31:
            rd = [x for ct in range(4) for x in rd_wo(u + 1, 0, ct)]
            head = [f"@vmwait o{u + 1} " + " ".join(bar_tags) + " lgkm", "s_barrier"] + list(after_bar)
        else:
            rd = []
        sc.stream(rd, 0, max(1, len(mf) - 3), prio=3)
        sc.stream(cr, 0, len(mf), prio=2)
        n, i = (u + 3, kq + 1) if kq < 3 else (u + 4, 0)
        if n < 32:
            sc.stream(dma_wo(n, i), 1, len(mf) - 2, prio=1)
        if u + 4 < 32:
            sc.stream([ld_ctx(u, kq, 0), ld_ctx(u, kq, 1)] + ([ADV_C] if kq == 3 else []),
                      at=[pos[6], pos[7], pos[7]], prio=4)
        if fill and fill[kq]:
            sc.stream(fill[kq], 0, len(mf))
        S.add(sc.build(head))
    return S


def p5_epilogue(S):
    for rt in range(2):
        for pr in range(2):
            for r in range(4):
                S(f"v_permlane16_swap_b32 v{acc5(2*pr, rt) + r}, v{acc5(2*pr+1, rt) + r}")
    for rt in range(2):
        S(f"s_add_u32 s{S_T}, s{S_XO}, {rt*32768}")
        for pr in range(2):
            a = V_A + (rt * 2 + pr) * 8
            for j in range(8):
                S(f"v_fma_f32 v{a+j}, v{acc5(2*pr + (j >> 2), rt) + (j & 3)}, v{V_G+2+rt}, v{a+j}")
            D = V_X + (rt * 2 + pr) * 4
            for u in range(4):
                S(f"v_cvt_pk_bf16_f32 v{D+u}, v{a+2*u}, v{a+2*u+1}")
            S(f"buffer_store_dwordx4 {vr(D,4)}, v{V_XV}, {sr(SRD_OUT,4)}, s{S_T} offen offset:{64*pr}")
```

```python
import sys
from common import *
import f1, f2, f3

NAME = "gated_mix__ssm_conv_h3__compressed_kv_cla__prompt_kernel"
SRD_F, SRD_DBG = 8, 12
S_W, V_L = 3, 1
V_PF = 79
SPIN = 400000
ool = []


def sig_off(v, t):
    return [f"v_lshlrev_b32 v{v}, 20, v{V_L}", f"s_lshl_b32 s{t}, s{S_W}, 26", f"v_add_u32 v{v}, s{t}, v{v}"]


def signal(F, voff, vone, t):
    return [f"v_mov_b32 v{vone}, 1", f"s_lshl_b32 s{t}, s2, 2",
            f"buffer_store_dword v{vone}, v{voff}, {sr(SRD_F,4)}, s{t} offen offset:{F} sc1"]


def poll(tag, load, vp, t):
    S = Seg()
    S(f"L_spin_{tag}:\ns_mov_b32 s{t}, {SPIN}\nL_spin_{tag}_l:\ns_sleep 1")
    S(load)
    S(f"s_waitcnt vmcnt(0)\nv_cmp_ne_u32 vcc, 1, v{vp}\ns_nop 4\ns_cbranch_vccz L_spin_{tag}_ret")
    S(f"s_sub_u32 s{t}, s{t}, 1\ns_cmp_lg_u32 s{t}, 0\ns_cbranch_scc1 L_spin_{tag}_l\ns_branch L_spin_{tag}_ret")
    ool.append(S)
    return [f"v_cmp_ne_u32 vcc, 1, v{vp}", "s_nop 4", f"s_cbranch_vccnz L_spin_{tag}", f"L_spin_{tag}_ret:"]


def touch_wq():
    return [["s_mov_b32 s4, s34", "s_mov_b32 s5, s35"], [f"s_mov_b32 s6, {8*MB}", "s_mov_b32 s7, 0x20000"],
            "s_lshr_b32 s43, s2, 3", "s_lshl_b32 s43, s43, 2", f"s_add_u32 s43, s43, s{S_W}", "s_lshl_b32 s43, s43, 16",
            "s_and_b32 s37, s2, 7", "s_lshl_b32 s37, s37, 10", "s_add_u32 s43, s43, s37",
            f"buffer_load_dword v{V_PF}, v78, s[4:7], s43 offen{NT_Q}"]


def touches(typ):
    H = Seg()
    H(f"s_lshr_b32 s43, s2, 3\ns_lshl_b32 s43, s43, 2\ns_add_u32 s43, s43, s{S_W}")
    H(f"v_lshlrev_b32 v8, 7, v{V_L}\nv_lshrrev_b32 v78, 3, v{V_L}\nv_and_b32 v13, 0x380, v8\nv_lshl_add_u32 v78, v78, 13, v13")
    H("s_bitcmp1_b32 s43, 0")
    H(f"s_cselect_b32 s4, s{f1.P_WU+2}, s{f1.P_WU}\ns_cselect_b32 s5, s{f1.P_WU+3}, s{f1.P_WU+1}")
    H(f"s_mov_b32 s6, {4*MB}\ns_mov_b32 s7, 0x20000\ns_lshr_b32 s98, s43, 1\ns_lshl_b32 s98, s98, 16\ns_and_b32 s99, s2, 7\ns_lshl_b32 s99, s99, 10\ns_add_u32 s98, s98, s99")
    H(f"buffer_load_dword v{V_PF}, v78, s[4:7], s98 offen{NT_T}")
    H(f"s_getpc_b64 s[4:5]\nL_pc{typ}:\ns_lshr_b32 s98, s2, 3\ns_lshl_b32 s98, s98, 2\ns_add_u32 s98, s98, s{S_W}\ns_lshl_b32 s98, s98, 10")
    H(f"v_and_b32 v9, 0x380, v8\nv_add_u32 v9, s98, v9\nv_min_u32 v9, L_code_end - L_pc{typ} - 4, v9")
    H("v_mov_b32 v11, s5\nv_add_co_u32 v10, vcc, s4, v9\nv_addc_co_u32 v11, vcc, 0, v11, vcc")
    H(f"global_load_dword v{V_PF}, v[10:11], off")
    out, items = [], groupify([i.text for i in H])
    for x in items:
        if isinstance(x, str) and (x.endswith(":") or x.startswith("v_addc_co")):
            out[-1] = flat([out[-1]]) + (["s_nop 1"] if x.startswith("v_addc") else []) + [x]
        else:
            out.append(x)
    return out


def start(st):
    H = Seg()
    H(kernel_header(NAME))
    if DIAG:
        H("s_memtime s[98:99]\ns_memrealtime s[100:101]")
    H(f"s_cmp_ge_u32 s2, 256\ns_cbranch_scc1 L_end")
    H(f"s_load_dwordx2 {sr(f1.P_C,2)}, s[0:1], {KA_C}")
    H(f"s_load_dwordx4 {sr(f1.P_WU,4)}, s[0:1], {KA_WUK}")
    H(f"s_load_dwordx2 {sr(f1.S_WS,2)}, s[0:1], {KA_WS}")
    H(f"s_load_dwordx2 s[96:97], s[0:1], {KA_DBG}")
    H.add(f2.ptr_loads()[:2])
    H(f"v_lshrrev_b32 v2, 6, v0\nv_and_b32 v{V_L}, 63, v0\nv_lshlrev_b32 v3, 4, v0")
    H(f"v_readfirstlane_b32 s{S_W}, v2")
    f1.setup(H)
    if DIAG:
        H("v_writelane_b32 v0, s98, 60\nv_writelane_b32 v0, s100, 61")
    st(H)
    srd(H, 4, f1.S_WS, 4096, off=WS_FLAG)
    H("s_lshl_b32 s43, s2, 20\nv_add_u32 v3, s43, v3")
    H("v_mov_b32 v4, 0\nv_mov_b32 v5, 0\nv_mov_b32 v6, 0\nv_mov_b32 v7, 0")
    H("buffer_store_dwordx4 v[4:7], v3, s[4:7], 0 offen sc1")
    H.add(f1.dma_w(0) + f1.dma_c(0))
    f1.setup2(H)
    H("s_mov_b32 s98, 256\ns_mov_b32 s99, 0x20000")
    H(f"v_lshlrev_b32 v3, 16, v3\nv_mov_b32 v4, 1")
    H(f"s_cmp_lg_u32 s2, 0\ns_cselect_b32 s43, 0x10000000, 0\nv_or_b32 v3, s43, v3")
    H("@vmwait c0 w0\ns_barrier")
    if os.environ.get("DIAG") == "2":
        st(H)
    H("buffer_store_dword v4, v3, s[96:99], 0 offen sc1")
    for rt in range(8):
        H(f1.rd_c(0, 0, rt))
    for ct in range(8):
        H.add(f1.rd_w(0, 0, ct))
    H(f"s_cmp_eq_u32 s{f1.S_TYPE}, 0\ns_cbranch_scc0 L_p1_V")
    return H


FINE = os.environ.get('DIAG') == '2'


def p1(typ, st):
    B = Seg()
    n0 = st.n
    if typ == "V":
        B("L_p1_V:")
    p0 = f1.P0()
    ld = chunks(p0.loads(), 2)
    cp = chunks(groupify(p0.compute()), 4)
    if "nop0" in EXP:
        ld, cp = [[]] * 2, [[]] * 4
    su = chunks(groupify(f2.setup()), 2)
    vm = {(0, 0): f1.dma_w(1) + f1.dma_c(1), (6, 0): f2.dma_x(0), (6, 1): f2.dma_q(0) + f2.dma_q(1), (7, 0): f2.dma_x(1)}
    for n in range(6):
        vm[(n, 1)] = f1.dma_w(n + 2)
    for n in range(1, 6):
        vm[(n, 0)] = f1.dma_c(n + 2)
    fill = {(0, 0): f1.type_setup(typ), (1, 0): touches(typ) + su[0], (1, 1): su[1] + f2.ptr_loads()[2:],
            (2, 0): touch_wq() + p0.ptr_loads(), (2, 1): p0.setup(), (3, 0): ld[0], (4, 0): ld[1],
            (7, 0): cp[3] + f1.store_addr(typ)}
    fill[(5, 1)], fill[(6, 0)], fill[(6, 1)] = cp[:3]
    for n in range(8):
        for kk in range(2):
            B.add(f1.kstep(typ, n, kk, vm.get((n, kk)), fill.get((n, kk)),
                           f2.p1_last_hook if (n, kk) == (7, 1) else None,
                           **(dict(bar=int(os.environ.get('BAR0', '44')), vm_pre=f1.dma_c(2)) if (n, kk) == (0, 1) else {})))
            if FINE and kk == 1 and n < 7:
                st(B)
    if typ == "K":
        st.n = n0
    if typ == "K":
        B("s_branch L_p2")
    return B


PACK_EARLY = os.environ.get('PACKE', '1') == '1'


def p2(st):
    B = Seg()
    B("L_p2:")
    NE = 20
    ep = chunks(f1.epilogue_items(), NE)
    fill = {k: list(ep[k]) for k in range(NE)}
    S = Seg()
    srd(S, SRD_F, 40, 4096, off=WS_FLAG)
    srd(S, SRD_DBG, 38, 256)
    fill[0] = groupify([i.text for i in S]) + fill[0]
    go_ld = f"buffer_load_dword v254, off, {sr(SRD_DBG,4)}, 0 sc1"
    fill[14] = fill[14] + [go_ld]
    zero = [f"v_accvgpr_write_b32 a{f2.A_O+i}, 0" for i in range(128)]
    for k, z in enumerate(chunks(zero, 8)):
        fill[NE + 2 + k] = z
    T, t = 230, 36
    fill[20] = sig_off(255, t)
    fill[21] = f2.setup3(T)
    after = {11: poll("go", go_ld, 254, t) + signal(f1.F_1, 255, 254, t) + f3.p4_ptr_loads(),
             13: [f"s_load_dwordx2 s[32:33], s[0:1], {KA_WO}"]}
    S = Seg()
    f3.rb_cb(S, t, t + 1, 43)
    S(f"v_and_b32 v{T}, 15, v{V_L}")
    S(f"s_lshl_b32 s{t}, s{t}, 4\nv_add_u32 v{T+1}, s{t}, v{T}")
    S(f"s_lshr_b32 s{t}, s2, 4\nv_lshl_add_u32 v{T+2}, v{T}, 4, s{t}")
    S(f"v_and_b32 v{T+3}, 7, v{V_L}\nv_bfe_u32 v{T+4}, v{V_L}, 3, 1\nv_lshlrev_b32 v{T+3}, 3, v{T+3}")
    S(f"v_lshl_add_u32 v{T+3}, v{T+4}, 7, v{T+3}")
    S(f"s_bfe_u32 s{t}, s2, 0x10004\ns_lshl_b32 s{t}, s{t}, 6\ns_and_b32 s{t+1}, s2, 7\ns_add_u32 s{t}, s{t}, s{t+1}")
    S(f"v_add_u32 v{T+3}, s{t}, v{T+3}")
    S(f"v_lshrrev_b32 v{T+4}, 4, v{V_L}")
    items = groupify([i.text for i in S])
    items.append([f"v_cmp_eq_u32 vcc, 1, v{T+4}", "s_nop 1", f"v_cndmask_b32 v{T+3}, v{T+3}, v{T+2}, vcc"])
    items.append([f"v_cmp_eq_u32 vcc, 2, v{T+4}", "s_nop 1", f"v_cndmask_b32 v{T+3}, v{T+3}, v{T+1}, vcc"])
    items.append(f"v_lshlrev_b32 v{T+3}, 2, v{T+3}")
    fill[24] = fill[24] + items
    fill[26] = fill[26] + f3.p4_srds()
    f1_ld = f"buffer_load_dword v{T+7}, v{T+3}, {sr(SRD_F,4)}, 0 offen offset:{f1.F_1} sc1"
    pk = f3.pack_dma(T + 8) if PACK_EARLY else []
    fill[30] = [f1_ld] + f3.pack_srd() + pk[:14]
    fill[31] = pk[14:]
    for n in range(16):
        for kk in range(2):
            ab = after.get(n) if kk == 1 else None
            seg = f2.kstep2(n, kk, fill.get(2 * n + kk), ab)
            if n == 11 and kk == 1:
                for i in seg:
                    if i.kind == "gwait":
                        i.groups.append("kvst")
            B.add(seg)
            if FINE and kk == 1 and n in (1, 3, 5, 7, 9, 10, 14):
                st(B)
    if FINE:
        st(B)
    B.add(poll("f1", f1_ld, T + 7, t))
    return B


NPRE = int(os.environ.get('NPRE', '3'))


def p45(st):
    B = Seg()
    f3.p4_setup(B)
    f3.p4_prep(B)
    st(B)
    t, VP, VO, VS = 36, f3.V_PL, 254, 255
    S = Seg()
    S(f"s_sub_u32 s{t}, 15, s{f3.S_RB}\ns_min_u32 s{t}, s{t}, s{f3.S_RB}\ns_lshl_b32 s{t}, s{t}, 5")
    S(f"v_and_b32 v{VO}, 3, v{V_L}\nv_lshlrev_b32 v{VO}, 3, v{VO}\nv_bfe_u32 v{VP}, v{V_L}, 2, 3")
    S(f"v_add3_u32 v{VO}, v{VO}, v{VP}, s{t}")
    S(f"s_lshr_b32 s{t}, s{f3.S_CB}, 1\nv_and_b32 v{VP}, 31, v{V_L}\nv_lshl_add_u32 v{VP}, v{VP}, 3, s{t}")
    S(f"v_add_u32 v{VO}, {(f1.F_2L - f1.F_2S) // 4}, v{VO}")
    f2_off = [i.text for i in S] + [[f"v_cmp_lt_u32 vcc, 31, v{V_L}", "s_nop 1", f"v_cndmask_b32 v{VO}, v{VO}, v{VP}, vcc"],
                                    f"v_lshlrev_b32 v{VO}, 2, v{VO}"]
    f2_ld = f"buffer_load_dword v{VP}, v{VO}, {sr(SRD_F,4)}, 0 offen offset:{f1.F_2S} sc1"
    su = f3.p5_setup()
    B.add(f3.p4_reads(0))
    B.add(f3.p4_rho(0, fill=su + sig_off(VS, t)))
    B.add(f3.p4_rho(1, head=["@vmwait ctx0", "s_barrier"] + signal(f1.F_2L, VS, VP, t),
                    fill=f2_off))
    for rho in range(2, NPRE):
        B.add(f3.p4_rho(rho))
    B(f2_ld)
    st(B)
    B.add(poll("f2", f2_ld, VP, t))
    st(B)
    B.add(f3.p4_rho(NPRE, head=f3.wo_stage(0) + f3.ctx_stage(0),
                    vm=f3.wo_stage(1) + f3.ctx_stage(1) + f3.wo_stage(2) + f3.ctx_stage(2) + f3.dma_wo(3, 0) + f3.ctx_stage(3)))
    B("@vmwait o0\ns_barrier")
    for ct in range(4):
        B.add(f3.rd_wo(0, 0, ct))
    st(B)
    f3_ld = f"buffer_load_dword v{VP}, v{VO}, {sr(SRD_F,4)}, 0 offen offset:{f1.F_3} sc1"
    f3_off = [f"v_and_b32 v{VO}, 15, v{V_L}", f"s_lshl_b32 s{t}, s{f3.S_CB}, 4", f"v_add_u32 v{VO}, s{t}, v{VO}",
              f"v_lshlrev_b32 v{VO}, 2, v{VO}"]
    conv = []
    for rho in range(NPRE + 1, 8):
        cm = chunks(f3.p4_mfmas(rho), 6)
        cr = chunks(f3.p4_reads(rho + 1) if rho < 7 else [], 5) + [[]]
        conv += list(zip(cm, cr))
    pre = chunks(f3.ep_pre(), 24)
    yw = chunks(f3.p4_y_write(), 11)
    xl = f3.ep_loads("x")
    yl = f3.ep_loads("y")
    for u in range(32):
        fl, tags, ab, cv = [None] * 4, (), (), None
        if 4 * u < len(conv):
            cv = (conv[4 * u:4 * u + 4] + [([], [])] * 4)[:4]
        if u in (6, 7):
            fl = yw[4 * (u - 6):4 * (u - 5)]
        if u == 8:
            fl = yw[8:11] + [f3.p4_y_read()]
        if u == 9:
            fl = [[x] for x in f3.p4_y_store()]
        if u == 13:
            tags, ab = ("yst",), signal(f1.F_3, VS, VP, t)
        if u == 15:
            fl = [None, None, f3_off, [f3_ld]]
        if u == 20:
            fl = [[poll("f3", f3_ld, VP, t)] + flat(yl[:1])] + [flat([x]) for x in yl[1:4]]
        if u == 21:
            fl = [flat([x]) for x in yl[4:8]]
        if 26 <= u < 32:
            fl = pre[(u - 26) * 4:(u - 25) * 4]
        B.add(f3.stage(u, fill=fl, bar_tags=tags, after_bar=ab, conv=cv))
        if os.environ.get("DIAG") == "3" and u % 3 == 2:
            st(B)
    st(B)
    f3.p5_epilogue(B)
    return B


def build(out):
    st = VStamps()
    H = start(st)
    K, V = p1("K", st), p1("V", st)
    J = Seg()
    P2 = p2(st)
    st(P2)
    lin, o3, traces = f2.p3(
        "p3", st, [] if PACK_EARLY else f3.pack_dma(f2.V_T + 5),
        f3.early_x_loads(f2.SRD_X, f2.V_T) + sig_off(76, 36) + signal(f1.F_2S, 76, 77, 37)[:2],
        f3.p4_ur_dma(f2.V_T + 5), f3.p5_ptr_loads(), signal(f1.F_2S, 76, 77, 37)[2:],
        groupify(f3.pack_store(f2.V_T + 8, [96, 100, 104, 108, 128, 132, 136, 140], f2.V_DO)) + f3.p4_h_loads())
    P45 = p45(st)
    E = Seg()
    st.dump(E)
    E("L_end:\ns_endpgm")
    Z = Seg()
    Z("L_code_end:\ns_endpgm")
    if DIAG:
        X = Seg()
        st(X)
        P2[1:1] = list(X)
    allseg = [H, K, V, P2] + lin + [P45, E] + o3 + ool + [Z]
    exp_filter([K, V, P2] + lin + o3 + [P45])
    resolve([[H, B, P2] + t + [P45, E] for B in (K, V) for t in traces], verbose="-v" in sys.argv)
    resolve([[s] for s in ool], verbose=False)
    if "-v" in sys.argv:
        for nm_, sg in (("p1K", [K]), ("p1V", [V]), ("p2", [P2]), ("p45", [P45])):
            overflow_report(nm_, sg)
        for k_, b_ in f2.BODIES.items():
            overflow_report(k_, b_.segs + b_.segs[:1])
    hdr = "; @launch grid=(256,1,1) block=(256,1,1) lds=163840\n" + '.amdgcn_target "amdgcn-amd-amdhsa--gfx950"\n.text\n' + MACROS
    open(out, "w").write(hdr + text_of(allseg) + kernel_desc(NAME))


if __name__ == "__main__":
    build(sys.argv[1])
```

```python
from asmlib import *

KA_Q, KA_K, KA_V, KA_SHIFT, KA_SSMK, KA_SSMD, KA_BX, KA_C, KA_WQ, KA_WUK, KA_WUV, KA_WO, KA_GW, KA_OUT, KA_DBG, KA_WS = \
    [8 * i for i in range(16)]

MB = 1 << 20
WS_KF = 0
WS_VF = 16 * MB
WS_CTX = 32 * MB
WS_UR = 48 * MB
WS_Y4 = 52 * MB
WS_G = 56 * MB
WS_FLAG = 57 * MB
WS_WP = 96 * MB
WS_XB = 104 * MB

SCALE_K = 0x3e0293ee
import struct, math
assert struct.unpack("<I", struct.pack("<f", math.log2(math.e) / math.sqrt(128.0)))[0] == SCALE_K


def vr(b, n=1):
    return f"v{b}" if n == 1 else f"v[{b}:{b+n-1}]"


def ar(b, n=1):
    return f"a{b}" if n == 1 else f"a[{b}:{b+n-1}]"


def sr(b, n=1):
    return f"s{b}" if n == 1 else f"s[{b}:{b+n-1}]"


def srd(S, d, ptr, nbytes, off=None):
    if off is None:
        S(f"s_mov_b32 s{d}, s{ptr}\ns_mov_b32 s{d+1}, s{ptr+1}")
    else:
        S(f"s_add_u32 s{d}, s{ptr}, {off}\ns_addc_u32 s{d+1}, s{ptr+1}, 0")
    S(f"s_mov_b32 s{d+2}, {nbytes}\ns_mov_b32 s{d+3}, 0x20000")


def mfma16(d, a, b, c=None):
    return f"v_mfma_f32_16x16x32_bf16 {d}, {a}, {b}, {d if c is None else c}"


def mfma32(d, a, b, c=None):
    return f"v_mfma_f32_32x32x16_bf16 {d}, {a}, {b}, {d if c is None else c}"


def kernel_header(name):
    return f".globl {name}\n.p2align 8\n.type {name},@function\n{name}:"


def kernel_desc(name, vgpr=512, accum=256, sgpr=102):
    return (f'.section .rodata,"a"\n.p2align 6\n.amdhsa_kernel {name}\n'
            f"  .amdhsa_next_free_vgpr {vgpr}\n  .amdhsa_next_free_sgpr {sgpr}\n  .amdhsa_accum_offset {accum}\n"
            "  .amdhsa_group_segment_fixed_size 0\n  .amdhsa_kernarg_size 128\n  .amdhsa_user_sgpr_count 2\n"
            "  .amdhsa_user_sgpr_kernarg_segment_ptr 1\n  .amdhsa_system_sgpr_workgroup_id_x 1\n"
            "  .amdhsa_float_denorm_mode_32 3\n"
            ".end_amdhsa_kernel\n.text\n")


import os
DIAG = bool(os.environ.get("DIAG"))
WS_DIAG = 64 * MB


class Stamps:
    def __init__(self, base, tmp, region):
        self.base, self.tmp, self.region, self.n = base, tmp, region, 0

    def __call__(self, S):
        if not DIAG:
            return
        t = self.tmp
        S(f"s_memtime s[{t}:{t+1}]\ns_memrealtime s[{t+2}:{t+3}]\ns_waitcnt lgkmcnt(0)")
        S(f"s_mov_b32 s{self.base+2*self.n}, s{t}\ns_mov_b32 s{self.base+2*self.n+1}, s{t+2}")
        self.n += 1

    def dump(self, S, wsptr, wave_sgpr):
        if not DIAG:
            return
        t = self.tmp
        S("s_waitcnt vmcnt(0)")
        self(S)
        srd(S, t, wsptr, MB, off=WS_DIAG + self.region * MB)
        S(f"s_lshl_b32 s{wsptr}, s2, 2\ns_add_u32 s{wsptr}, s{wsptr}, s{wave_sgpr}\ns_lshl_b32 s{wsptr}, s{wsptr}, 7")
        S("v_mov_b32 v2, 0")
        for k in range(2 * self.n):
            S(f"v_mov_b32 v3, s{self.base+k}")
            S(f"buffer_store_dword v3, v2, s[{t}:{t+3}], s{wsptr} offen offset:{4*k}")
            S("s_nop 1")


EXP = set(os.environ.get("EXP", "").split(","))


def exp_filter(segs):
    if not (EXP - {""}):
        return
    for s in segs:
        keep = []
        for i in s:
            if "nodma" in EXP and i.kind == "dma":
                continue
            if "nodma" in EXP and i.kind == "gwait":
                i = I("s_waitcnt lgkmcnt(0)" if i.also_lgkm else "s_nop 0")
            if "nobar" in EXP and i.op == "s_barrier":
                continue
            if "novm" in EXP and i.kind == "wait" and "vmcnt" in i.text:
                i = I(re.sub(r"vmcnt\(\d+\)", "vmcnt(63)", i.text))
            if "novm" in EXP and i.kind == "gwait":
                i = I("s_waitcnt lgkmcnt(0)" if i.also_lgkm else "s_nop 0")
            if "nost" in EXP and i.kind == "vst" and i.tag == "kvst":
                i = I("s_nop 0")
            if "plainst" in EXP and i.kind == "vst" and i.tag == "kvst":
                i = I(i.text.replace(" sc1", "") + " #kvst")
            if "novld" in EXP and i.kind == "vld" and "a[" in i.text:
                i = I("s_nop 0")
            if "noyst" in EXP and i.tag == "yst":
                i = I("s_nop 0")
            if "plainy" in EXP and i.tag == "yst":
                i = I(i.text.replace(" sc1", "") + " #yst")
            if "noxld" in EXP and i.kind == "vld" and ("s[52:55]" in i.text or "s[64:67]" in i.text):
                i = I("s_nop 0")
            if "nokvdma" in EXP and i.kind == "dma" and "s71 " in i.text:
                i = I("s_nop 0")
            if "nobar3" in EXP and i.op == "s_barrier" and keep and keep[-1].kind == "mfma" and keep[-1].passes == 8:
                continue
            if "nowo" in EXP and i.kind == "dma" and i.tag and i.tag[0] == "o":
                i = I("s_nop 0")
            if "ctxsame" in EXP and i.text.startswith("s_add_u32 s68, s68, 4096"):
                i = I("s_nop 0")
            if "wosame" in EXP and i.text.startswith("s_add_u32 s69, s69, 16384"):
                i = I("s_nop 0")
            if "nods" in EXP and i.kind == "dsr":
                continue
            if "noexp" in EXP and i.op.startswith("v_exp"):
                continue
            if "nomax" in EXP and i.op.startswith("v_max3"):
                continue
            if "noadd" in EXP and i.op == "v_add_f32":
                continue
            keep.append(i)
        s[:] = keep


HDIAG = bool(os.environ.get("HDIAG"))


def hdiag_wrap(txt, name, idx, nl):
    if not HDIAG:
        return txt
    txt = txt.replace(f"{name}:\n", f"{name}:\ns_memrealtime s[4:5]\ns_waitcnt lgkmcnt(0)\n", 1)
    tail = (f"s_waitcnt vmcnt(0) lgkmcnt(0)\ns_memrealtime s[6:7]\ns_load_dwordx2 s[8:9], s[0:1], {KA_DBG}\ns_waitcnt lgkmcnt(0)\n"
            f"s_add_u32 s8, s8, {512*(nl-1-idx)}\ns_addc_u32 s9, s9, 0\ns_mov_b32 s10, 256\ns_mov_b32 s11, 0x20000\n"
            "s_not_b32 s4, s4\nv_mov_b32 v2, s4\nv_mov_b32 v3, s6\ns_and_b32 s12, s2, 31\ns_cmp_lt_u32 s12, 2\ns_cbranch_scc0 L_hd_skip_%d_@\nv_lshlrev_b32 v4, 10, v0\ns_nop 4\n" % idx +
            f"buffer_atomic_umax v2, v4, s[8:11], 0 offen offset:{8*idx}\nbuffer_atomic_umax v3, v4, s[8:11], 0 offen offset:{8*idx+4}\n"
            f"s_waitcnt vmcnt(0)\nL_hd_skip_{idx}_@:\ns_endpgm\n")
    lines = txt.split("\n")
    out = []
    for k, l in enumerate(lines):
        if l.strip() == "s_endpgm" and not lines[k - 1].strip().endswith("_end:"):
            out.append(tail.replace("@", str(k)))
        elif l.strip() == "s_endpgm":
            out[-1:] = [tail.replace("@", str(k)), lines[k - 1], l]
        else:
            out.append(l)
    return "\n".join(out)


def groupify(items):
    out = []
    for it in items:
        t = it if isinstance(it, str) else it[0]
        if t.split()[0] in ("s_addc_u32", "s_subb_u32", "s_cselect_b32", "s_cselect_b64"):
            prev = out.pop()
            out.append((prev if isinstance(prev, list) else [prev]) + (it if isinstance(it, list) else [it]))
        else:
            out.append(it)
    return out


def flat(items):
    out = []
    for it in items:
        out += it if isinstance(it, (list, tuple)) else [it]
    return out


def chunks(items, n):
    return [items[i * len(items) // n:(i + 1) * len(items) // n] for i in range(n)]


class VStamps:
    def __init__(self):
        self.n = 0

    def __call__(self, S):
        if not DIAG:
            return
        S(f"s_memtime vcc\ns_waitcnt lgkmcnt(0)\nv_writelane_b32 v0, vcc_lo, {2*self.n}\ns_nop 0")
        S(f"s_memrealtime vcc\ns_waitcnt lgkmcnt(0)\nv_writelane_b32 v0, vcc_lo, {2*self.n+1}")
        self.n += 1

    def dump(self, S):
        if not DIAG:
            return
        S("s_waitcnt vmcnt(0)")
        self(S)
        if os.environ.get("AMP"):
            a, b = [int(x) for x in os.environ["AMP"].split(",")]
            S(f"s_nop 4\nv_readlane_b32 s8, v0, {2*a+1}\nv_readlane_b32 s9, v0, {2*b+1}\ns_nop 4")
            S("s_sub_u32 s8, s9, s8\ns_mul_i32 s8, s8, 10\ns_add_u32 s8, s8, vcc_lo")
            S("L_amp:\ns_memrealtime s[6:7]\ns_waitcnt lgkmcnt(0)\ns_sub_u32 s9, s8, s6\ns_cmp_gt_i32 s9, 0\ns_cbranch_scc1 L_amp")
            return
        srd(S, 4, 40, MB, off=WS_DIAG)
        S("s_lshl_b32 s8, s2, 2\ns_add_u32 s8, s8, s3\ns_lshl_b32 s8, s8, 8\nv_lshlrev_b32 v2, 2, v1")
        S("buffer_store_dword v0, v2, s[4:7], s8 offen")


_NTS = os.environ.get("NTS", "")
NT_T, NT_W, NT_K, NT_Q, NT_O = [" nt" if c in _NTS else "" for c in "twkqo"]

ORD = os.environ.get("ORD", "1234")
```

```python
from common import *
import f1

S_W = 3
SRD_X = 44
SRD_WQ = 48
SRD_K = 52
SRD_V = 56
SRD_CTX = 60
S_XL, S_XS, S_WQO = 64, 65, 66
S_MX, S_MWQ = 67, 68
S_HEAD, S_I = 69, 70
S_KX, S_XO = 74, 75
S_KVO = 71
S_MK, S_MV = 72, 73
S_CNT = 74
S_N1 = 75
S_ND, S_NT = 76, 77
S_RESC = 78
S_THR = 79
S_TMP = 80
S_MSK = 84
S_CL, S_CS = 100, 101

V_L = 1
V_LS = [2, 4]
V_MX = [6, 7]
V_F = [8, 9]
V_KA, V_VA, V_DO = 10, 11, 12
V_Q4, V_NINF, V_CST = 13, 14, 15
V_Q = 16
V_S = 80
V_NM = 208
V_T = 240
V_WF = 16
V_XF = 48
V_XD, V_WD, V_WA, V_XA = 208, 212, 216, 224
A_O = 0
A_K = 128
A_V = 192

X_SLOT = (65536, 0, 32768)
LDS_WQ = 98304
COH = 'sc1'
THR = 0x41000000


def qreg(qt, t):
    return V_Q + 32 * qt + 4 * t


def sreg(par, kvh, qt):
    return V_S + 64 * par + 32 * kvh + 16 * qt


def oreg(qt, dt):
    return A_O + 64 * qt + 16 * dt


def acc2(ct, rt):
    return V_S + (ct * 4 + rt) * 4


def ptr_loads():
    return [f"s_load_dwordx2 s[32:33], s[0:1], {KA_Q}", f"s_load_dwordx2 s[34:35], s[0:1], {KA_WQ}",
            f"s_load_dwordx2 s[38:39], s[0:1], {KA_DBG}"]


def setup():
    S = Seg()
    T = 66
    t = S_TMP
    S(f"s_and_b32 s{t}, s2, 7")
    S(f"s_lshr_b32 s{t+1}, s2, 3")
    S(f"s_and_b32 s{S_HEAD}, s{t+1}, 3")
    S(f"s_lshl_b32 s{t}, s{t}, 2")
    S(f"s_add_u32 s{S_HEAD}, s{S_HEAD}, s{t}")
    S(f"s_lshr_b32 s{S_I}, s{t+1}, 2")
    S(f"s_lshl_b32 s{t}, s{S_W}, 16")
    S(f"s_lshl_b32 s{S_XS}, s{S_I}, 18")
    S(f"s_sub_u32 s{S_XL}, {15 << 18}, s{S_XS}")
    S(f"s_add_u32 s{S_XS}, s{S_XS}, s{t}")
    S(f"s_add_u32 s{S_XL}, s{S_XL}, s{t}")
    S(f"s_lshl_b32 s{t+1}, s{S_HEAD}, 12")
    S(f"s_lshl_b32 s{S_CL}, s{S_XL}, 2")
    S(f"s_add_u32 s{S_CL}, s{S_CL}, s{t+1}")
    S(f"s_lshl_b32 s{S_CS}, s{S_XS}, 2")
    S(f"s_add_u32 s{S_CS}, s{S_CS}, s{t+1}")
    S(f"s_lshl_b32 s{S_WQO}, s{S_W}, 17")
    S(f"s_lshl_b32 s{t+1}, s{S_HEAD}, 8")
    S(f"s_add_u32 s{S_WQO}, s{S_WQO}, s{t+1}")
    S(f"s_and_b32 s{S_KX}, s2, {f1.ROT}")
    S(f"s_lshl_b32 s{S_KX}, s{S_KX}, 8")
    S(f"s_mov_b32 s{t+2}, s{S_WQO}")
    S(f"s_lshl_b32 s{S_WQO}, s{S_KX}, 12")
    S(f"s_lshl_b32 s{S_MX}, s{S_W}, 13")
    S(f"s_lshl_b32 s{S_MWQ}, s{S_W}, 12")
    S(f"s_lshl_b32 s{S_ND}, s{S_I}, 1")
    S(f"s_sub_u32 s{S_NT}, 32, s{S_ND}")
    S(f"s_add_u32 s{S_ND}, s{S_ND}, 2")
    S(f"s_mov_b32 s{S_THR}, {THR:#x}")
    l = V_L
    S(f"v_lshrrev_b32 v{T}, 3, v{l}")
    S(f"v_lshlrev_b32 v{T}, 11, v{T}")
    S(f"v_lshrrev_b32 v{T+1}, 4, v{l}")
    S(f"v_and_b32 v{T+2}, 7, v{l}")
    S(f"v_xor_b32 v{T+2}, v{T+2}, v{T+1}")
    S(f"v_lshl_add_u32 v{T}, v{T+2}, 4, v{T}")
    S(f"v_xor_b32 v{T+3}, 64, v{T}")
    for i in range(4):
        S(f"v_add_u32 v{V_XD+i}, {16384*i - 1024*i}, v{T + (3 if i & 1 else 0)}")
    S(f"v_and_b32 v{T+2}, 15, v{l}")
    S(f"v_lshlrev_b32 v{T+3}, 1, v{T+1}")
    S(f"v_xor_b32 v{T+2}, v{T+2}, v{T+3}")
    S(f"v_lshlrev_b32 v{T}, 13, v{T+1}")
    for i in range(4):
        S(f"v_xor_b32 v{T+3}, {(i >> 1) << 3}, v{T+2}")
        S(f"v_lshl_add_u32 v{T+3}, v{T+3}, 4, v{T}")
        S(f"v_add_u32 v{V_WD+i}, {32768*i - 1024*i}, v{T+3}")
    S(f"v_and_b32 v{T}, 15, v{l}")
    S(f"v_lshrrev_b32 v{T+2}, 1, v{T}")
    S(f"v_xor_b32 v{T+2}, v{T+2}, v{T+1}")
    S(f"v_lshlrev_b32 v{T+2}, 4, v{T+2}")
    S(f"v_lshl_add_u32 v{T+2}, v{T}, 7, v{T+2}")
    S(f"v_add_u32 v{V_XA}, s{S_MX}, v{T+2}")
    S(f"v_xor_b32 v{V_XA+1}, 64, v{V_XA}")
    S(f"v_add_u32 v{V_XA+2}, 0x10000, v{V_XA}")
    S(f"v_add_u32 v{V_XA+3}, 0x10000, v{V_XA+1}")
    S(f"v_bfe_u32 v{T}, v{l}, 2, 2")
    S(f"v_and_b32 v{T+2}, 1, v{T+1}")
    S(f"v_lshl_or_b32 v{T+2}, v{T+2}, 2, v{T}")
    S(f"v_lshl_add_u32 v{T}, v{T+1}, 3, v{T}")
    S(f"v_lshlrev_b32 v{T}, 8, v{T}")
    S(f"v_and_b32 v{T+3}, 3, v{l}")
    S(f"v_lshl_add_u32 v{T}, v{T+3}, 3, v{T}")
    S(f"v_add_u32 v{T}, {LDS_WQ}, v{T}")
    for ct in range(8):
        S(f"v_xor_b32 v{T+3}, {ct}, v{T+2}")
        S(f"v_lshl_add_u32 v{V_WA+ct}, v{T+3}, 5, v{T}")
    srd(S, SRD_X, 32, 2048 * 1024 * 2)
    S(f"s_add_u32 s{SRD_WQ}, s34, s{t+2}\ns_addc_u32 s{SRD_WQ+1}, s35, 0")
    S(f"s_sub_u32 s{SRD_WQ+2}, {8*MB}, s{t+2}\ns_mov_b32 s{SRD_WQ+3}, 0x20000")
    srd(S, SRD_CTX, 40, 16 * MB, off=WS_CTX)
    S(f"s_lshl_b32 s{t}, s{S_HEAD}, 19")
    S(f"s_add_u32 s{SRD_K}, s40, s{t}\ns_addc_u32 s{SRD_K+1}, s41, 0")
    S(f"s_lshl_b32 s{SRD_K+2}, s{S_NT}, 14\ns_mov_b32 s{SRD_K+3}, 0x20000")
    S(f"s_add_u32 s{t}, s{t}, {WS_VF - 16384}")
    S(f"s_add_u32 s{SRD_V}, s40, s{t}\ns_addc_u32 s{SRD_V+1}, s41, 0")
    S(f"s_add_u32 s{SRD_V+2}, s{SRD_K+2}, 16384\ns_mov_b32 s{SRD_V+3}, 0x20000")
    return [i.text for i in S]


def setup3(T):
    S = Seg()
    t, l = S_TMP, V_L
    S(f"v_lshlrev_b32 v{T}, 4, v{l}")
    S(f"s_lshl_b32 s{t}, s{S_W}, 12")
    S(f"v_add_u32 v{V_DO}, s{t}, v{T}")
    S(f"v_add_u32 v{V_KA}, 0x8000, v{T}")
    S(f"v_add_u32 v{V_VA}, 0x10000, v{T}")
    S(f"s_add_u32 s{S_MK}, s{t}, 0x8000")
    S(f"s_add_u32 s{S_MV}, s{t}, 0x10000")
    S(f"v_and_b32 v{T}, 31, v{l}")
    S(f"v_lshrrev_b32 v{T+2}, 5, v{l}")
    S(f"v_lshlrev_b32 v{T+3}, 2, v{T+2}")
    S(f"v_sub_u32 v{V_Q4}, v{T}, v{T+3}")
    S(f"s_lshl_b32 s{t+1}, s{S_W}, 5")
    S(f"v_add_u32 v{V_Q4}, s{t+1}, v{V_Q4}")
    S(f"v_mov_b32 v{V_NINF}, 0xff800000")
    S(f"v_and_b32 v{T}, 15, v{l}")
    S(f"v_lshl_add_u32 v{T}, v{T+2}, 4, v{T}")
    S(f"v_lshlrev_b32 v{T}, 4, v{T}")
    S(f"v_bfe_u32 v{T+3}, v{l}, 4, 1")
    S(f"v_lshl_add_u32 v{V_CST}, v{T+3}, 17, v{T}")
    return [i.text for i in S]


def dma_x(n):
    out = []
    for half, so in ((0, S_XL), (1, S_XS)):
        for i in range(4):
            if i == 0:
                out.append(f"s_add_u32 s{S_XO}, s{so}, s{S_KX}")
                out.append(f"s_add_u32 m0, s{S_MX}, {X_SLOT[n % 3] + half*4096}")
            out.append(f"buffer_load_dwordx4 v{V_XD+i}, {sr(SRD_X,4)}, s{S_XO} offen offset:{1024*i} lds #x{n}")
    out += [f"s_add_u32 s{S_KX}, s{S_KX}, 128", f"s_and_b32 s{S_KX}, s{S_KX}, 2047"]
    return out


def dma_q(n):
    out = []
    for i in range(4):
        if i == 0:
            out.append(f"s_add_u32 m0, s{S_MWQ}, {LDS_WQ + (n % 3)*16384}")
        out.append(f"buffer_load_dwordx4 v{V_WD+i}, {sr(SRD_WQ,4)}, s{S_WQO} offen offset:{1024*i}{NT_Q} lds #q{n}")
    out += [f"s_add_u32 s{S_WQO}, s{S_WQO}, {64*8192}", f"s_and_b32 s{S_WQO}, s{S_WQO}, {8*MB - 1}"]
    return out


def kv_dma(which, tile, slot):
    base = slot * 16384 + (0x10000 if which == "V" else 0)
    so = (tile + (1 if which == "V" else 0)) * 16384
    srd_ = SRD_K if which == "K" else SRD_V
    out = [f"s_add_u32 m0, s{S_MWQ}, {base}", f"s_mov_b32 s{S_TMP}, {so}"]
    for i in range(4):
        out.append(f"buffer_load_dwordx4 v{V_DO}, {sr(srd_,4)}, s{S_TMP} offen offset:{1024*i} {COH} lds #{which}{tile}")
    return out


def rd_x(n, kk, rt):
    base = X_SLOT[n % 3]
    return f"ds_read_b128 {vr(V_XF + kk*16 + rt*4, 4)}, v{V_XA + kk + (2 if base == 65536 else 0)} offset:{base % 65536 + rt*2048}"


def rd_wq(n, kk, ct):
    return [f"ds_read_b64_tr_b16 {vr(V_WF + ct*4 + 2*a, 2)}, v{V_WA+ct} offset:{(n % 3)*16384 + (32*kk + 4*a)*256}"
            for a in range(2)]


def kstep2(n, kk, fill=None, after_bar=None):
    mf = []
    for ct in range(8):
        for rt in range(4):
            d = vr(acc2(ct, rt), 4)
            mf.append(mfma16(d, vr(V_WF + ct * 4, 4), vr(V_XF + kk * 16 + rt * 4, 4),
                             "0" if (n == 0 and kk == 0) else None))
    sc = Sched(mf, 2)
    last = (n == 15 and kk == 1)
    fg = 0
    if not last:
        nn, nkk = (n, 1) if kk == 0 else (n + 1, 0)
        if kk == 1:
            sc.pin(7, [f"@vmwait x{n+1} q{n+1} lgkm", "s_barrier"])
            if after_bar:
                sc.pin(8, after_bar)
            fg = 8
        m = n + 3 if kk == 1 else n + 2
        if m <= 15 and not (n == 0 and kk == 0):
            d = dma_q(m) + dma_x(m)
            if kk == 1:
                sc.stream(d[:10], 8, 31, prio=1)
            else:
                sc.stream(d[10:], 0, 31, prio=1)
        rw, at = [], []
        for ct in range(8):
            rw += rd_wq(nn, nkk, ct)
            at += [min(31, max(4 * ct + 3, fg + 2 * ct))] * 2
        sc.stream(rw, at=at, prio=3)
        sc.stream([rd_x(nn, nkk, rt) for rt in range(4)], fg + 1, 24, prio=2)
    if fill:
        sc.stream(fill, 0, 30)
    return sc.build(["s_waitcnt lgkmcnt(4)"])


def p1_last_hook(sc):
    sc.pin(9, ["@vmwait x0 q0 lgkm", "s_barrier"])
    sc.stream([rd_x(0, 0, rt) for rt in range(4)] + [x for ct in range(8) for x in rd_wq(0, 0, ct)], 10, 50, prio=2)
    sc.stream(dma_q(2) + dma_x(2), 10, 62, prio=1)


def rd_k(f, imm):
    return f"ds_read_b128 {ar(A_K + 4*f, 4)}, v{V_KA} offset:{imm + 1024*f}"


def rd_v(f, imm):
    return f"ds_read_b128 {ar(A_V + 4*f, 4)}, v{V_VA} offset:{imm + 1024*f}"


def qk_mfmas(par, qts, czero=False):
    mf = []
    for kvh in range(2):
        for t in range(8):
            for qt in qts:
                d = vr(sreg(par, kvh, qt), 16)
                c = None if t else ("0" if czero else vr(V_NM + 16 * qt, 16))
                mf.append(mfma32(d, ar(A_K + 4 * (8 * kvh + t), 4), vr(qreg(qt, t), 4), c))
    return mf


def pv_mfmas(par, qts):
    mf = []
    for t in range(4):
        for dt in range(4):
            for qt in qts:
                mf.append(mfma32(ar(oreg(qt, dt), 16), ar(A_V + 4 * (4 * t + dt), 4),
                                 vr(sreg(par, t >> 1, qt) + 8 * (t & 1), 4)))
    return mf


def exp_stream(par, pairs):
    out = []
    prev = None

    def fin(p):
        kvh, qt, u = p
        b = sreg(par, kvh, qt)
        r = b + 2 * u
        return [f"v_add_f32 v{V_LS[qt]}, v{V_LS[qt]}, v{r}",
                f"v_add_f32 v{V_LS[qt]+1}, v{V_LS[qt]+1}, v{r+1}",
                f"v_cvt_pk_bf16_f32 v{b + 8*(u >> 2) + (u & 3)}, v{r}, v{r+1}"]
    for p in pairs:
        kvh, qt, u = p
        r = sreg(par, kvh, qt) + 2 * u
        f = fin(prev) if prev else []
        out.append(f"v_exp_f32 v{r}, v{r}")
        out += f[:1]
        out.append(f"v_exp_f32 v{r+1}, v{r+1}")
        out += f[1:]
        prev = p
    if prev:
        out += fin(prev)
    return out


def all_pairs(qts):
    return [(kvh, qt, u) for kvh in range(2) for qt in qts for u in range(8)]


NA = {2: int(os.environ.get("NA2", "12")), 1: int(os.environ.get("NA1", "6"))}


def max_stream(par, qts):
    chains = []
    for qt in qts:
        regs = [sreg(par, kvh, qt) + r for kvh in range(2) for r in range(16)]
        m = V_MX[qt]
        c = [f"v_max3_f32 v{m}, v{regs[0]}, v{regs[1]}, v{regs[2]}"]
        k = 3
        while k + 1 < 32:
            c.append(f"v_max3_f32 v{m}, v{m}, v{regs[k]}, v{regs[k+1]}")
            k += 2
        c.append(f"v_max_f32 v{m}, v{m}, v{regs[31]}")
        chains.append(c)
    out = []
    for x in zip(*chains):
        out += list(x)
    return out


def mask_items(par, qt, dpos, kvh):
    T = V_T + 6 + kvh
    out = [f"v_add_u32 v{T}, {-32*(2*dpos + kvh)}, v{V_Q4}"]
    for q in range(4):
        for k in range(4):
            r = 4 * q + k
            c = 16 * ((r >> 2) & 1) + 8 * (r >> 3) + (r & 3)
            out.append(f"v_cmp_gt_i32_e64 {sr(S_MSK + 2*(4*(q & 1) + k), 2)}, {c}, v{T}")
        for k in range(4):
            r = sreg(par, kvh, qt) + 4 * q + k
            out.append(f"v_cndmask_b32_e64 v{r}, v{r}, v{V_NINF}, {sr(S_MSK + 2*(4*(q & 1) + k), 2)}")
    return out


def rowmax_code(S, qt, clamp):
    T = V_T
    S(f"v_mov_b32 v{T}, v{V_MX[qt]}\nv_mov_b32 v{T+1}, v{V_MX[qt]}")
    S(f"v_permlane32_swap_b32 v{T}, v{T+1}")
    S(f"v_max_f32 v{T+2}, v{T}, v{T+1}")
    if clamp:
        S(f"v_max_f32 v{T+2}, 0, v{T+2}")


def rare_code(S, par, qts):
    T = V_T
    for qt in qts:
        rowmax_code(S, qt, True)
        S(f"v_exp_f32 v{V_F[qt]}, -v{T+2}")
        for r in range(16):
            S(f"v_sub_f32 v{V_NM+16*qt+r}, v{V_NM+16*qt+r}, v{T+2}")
        S(f"v_mul_f32 v{V_LS[qt]}, v{V_LS[qt]}, v{V_F[qt]}")
        S(f"v_mul_f32 v{V_LS[qt]+1}, v{V_LS[qt]+1}, v{V_F[qt]}")
        for kvh in range(2):
            for r in range(16):
                x = sreg(par, kvh, qt) + r
                S(f"v_sub_f32 v{x}, v{x}, v{T+2}")


def resc_code(S, qts):
    T = V_T
    S("s_nop 15")
    for qt in qts:
        for b in range(0, 64, 8):
            for k in range(8):
                S(f"v_accvgpr_read_b32 v{T+k}, a{A_O+64*qt+b+k}")
            for k in range(8):
                S(f"v_mul_f32 v{T+k}, v{T+k}, v{V_F[qt]}")
            for k in range(8):
                S(f"v_accvgpr_write_b32 a{A_O+64*qt+b+k}, v{T+k}")
    S("s_nop 1")


CAP = 6


class Body:
    def __init__(self, nm, par, qk, pv, dpos=None, tail=(), xdma=(), xfill=()):
        a, b = par, par ^ 1
        valu1 = exp_stream(a, all_pairs(pv)[NA[len(pv)]:])
        vrd = [rd_v(f, 16384 if par == 0 else 0) for f in range(16)]
        head = ["s_waitcnt lgkmcnt(0)"] + ([f"v_xor_b32 v{V_VA}, 0x8000, v{V_VA}"] if par == 1 else [])
        self.rare = None
        if not qk:
            s1 = Seg()
            s1.add(head + vrd + valu1 + ["s_waitcnt vmcnt(0) lgkmcnt(0)", "s_barrier"] + list(xdma))
            sc = Sched(pv_mfmas(a, pv), CAP)
            sc.stream(list(xfill), 0, 14)
            s1.add(sc.build())
            self.segs = [s1]
            return
        mf = qk_mfmas(b, qk)
        n1 = len(mf)
        sc = Sched(mf, CAP)
        sc.stream(vrd, 0, (n1 * 11) // 16, prio=2)
        dv = [f"buffer_load_dwordx4 v{V_DO}, {sr(SRD_V,4)}, s{S_KVO} offen offset:{1024*i} {COH} lds" for i in range(4)]
        dv += [f"s_add_u32 s{S_KVO}, s{S_KVO}, 16384"] + ([f"s_xor_b32 s{S_MV}, s{S_MV}, 0x8000"] if par == 1 else [])
        sc.pin(0, [f"s_add_u32 m0, s{S_MV}, {0 if par == 0 else 16384}"])
        sc.stream(dv, 1, n1, prio=1)
        sc.stream(valu1, 0, n1)
        if dpos is not None:
            sc.stream(mask_items(b, qk[-1], dpos, 0), n1 // 2 + 3, n1)
        s1 = sc.build(head)
        mf = pv_mfmas(a, pv)
        n2 = len(mf)
        pre = (mask_items(b, qk[-1], dpos, 1) if dpos is not None else [])
        mx = max_stream(b, qk)
        if pre:
            h = len(mx) // 2 - len(qk)
            mx = mx[:h] + pre + mx[h:]
        chk = [f"v_max_f32 v{V_T}, v{V_MX[0]}, v{V_MX[1]}", f"v_cmp_lt_f32 vcc, s{S_THR}, v{V_T}"] if len(qk) == 2 \
            else [f"v_cmp_lt_f32 vcc, s{S_THR}, v{V_MX[0]}"]
        krd = [rd_k(f, 16384 if par == 0 else 0) for f in range(16)]
        na = 2 + -(-(len(mx) + len(chk)) // (CAP - 1))
        nk = max(0, (16 * (na - 2)) // (n2 - 6))
        sc = Sched(mf[:na - 1], CAP)
        sc.pin(0, ["s_barrier"] +
               ([f"v_xor_b32 v{V_KA}, 0x8000, v{V_KA}"] if par == 1 else []))
        sc.stream(krd[:nk], 1, na - 1, prio=1)
        sc.stream(mx + chk, 1, na - 1)
        s2 = sc.build(["s_waitcnt vmcnt(16) lgkmcnt(0)"])
        s2.add([mf[na - 1], f"s_cbranch_vccnz L_{nm}_rare"])
        dk = [f"s_add_u32 m0, s{S_MK}, {0 if par == 0 else 16384}"]
        dk += [f"buffer_load_dwordx4 v{V_DO}, {sr(SRD_K,4)}, s{S_KVO} offen offset:{1024*i} {COH} lds" for i in range(4)]
        dk += [f"s_xor_b32 s{S_MK}, s{S_MK}, 0x8000"] if par == 1 else []
        dk += list(xdma)
        valu2 = exp_stream(b, all_pairs(qk)[:NA[len(qk)]])

        def rest():
            m = ["s_nop 0"] + mf[na:]
            sc = Sched(m, CAP)
            nr = len(m)
            sc.pin(0, [])
            sc.stream(krd[nk:], 0, max(1, nr - 4), prio=2)
            sc.pin(0, dk[:1])
            sc.stream(dk[1:] + list(tail[:-1]), 1, nr, prio=1)
            sc.stream(valu2, 0, nr)
            sc.stream(list(xfill), 0, nr)
            seg = sc.build()
            del seg[0]
            return seg
        s3 = rest()
        s4 = Seg()
        s4(f"L_{nm}_end:")
        s4.add(list(tail[-1:]))
        R = Seg()
        R(f"L_{nm}_rare:")
        rare_code(R, b, qk)
        R.add(rest())
        if tail:
            pass
        resc_code(R, qk)
        R(f"s_branch L_{nm}_end")
        self.rare = R
        self.segs = [s1, s2, s3, s4]

    def trace(self, rare):
        if not rare or self.rare is None:
            return list(self.segs)
        s = self.segs
        return [s[0], s[1], self.rare, s[3]]


def epilogue(S, qt, so, flavor="sc1"):
    T = V_T
    ls = V_LS[qt]
    S(f"v_add_f32 v{ls}, v{ls}, v{ls+1}")
    S(f"v_mov_b32 v{ls+1}, v{ls}")
    S(f"v_permlane32_swap_b32 v{ls}, v{ls+1}")
    S(f"v_add_f32 v{ls}, v{ls}, v{ls+1}")
    S(f"v_rcp_f32 v{ls}, v{ls}")
    S("s_nop 7")
    k = 0
    for dt in range(4):
        for t in range(2):
            D = T + 8 + 4 * (k & 1)
            k += 1
            for j in range(8):
                S(f"v_accvgpr_read_b32 v{T+j}, a{oreg(qt, dt) + 8*t + j}")
            for j in range(8):
                S(f"v_mul_f32 v{T+j}, v{T+j}, v{ls}")
            for u in range(4):
                S(f"v_cvt_pk_bf16_f32 v{D+u}, v{T+2*u}, v{T+2*u+1}")
            S(f"buffer_store_dwordx4 {vr(D,4)}, v{V_CST}, {sr(SRD_CTX,4)}, s{so} offen offset:{dt*1024 + t*512} {flavor} #ctx{qt}")


def p3_prologue(nm, extra):
    A = Seg()
    A("s_waitcnt lgkmcnt(0)\ns_barrier")
    A.add(kv_dma("K", 0, 1) + kv_dma("K", 1, 2))
    q = [f"s_mov_b32 s{S_TMP+2}, {SCALE_K:#x}", f"s_mov_b32 s{S_TMP+3}, {SCALE_K:#x}"]
    for p in range(4):
        for r in range(acc2(2 * p, 0), acc2(2 * p, 0) + 32, 2):
            q.append(f"v_pk_mul_f32 {vr(r,2)}, {vr(r,2)}, {sr(S_TMP+2,2)}")
        for qt in range(2):
            for e in range(2):
                for u in range(4):
                    a = acc2(2 * p + (u >> 1), 2 * qt + e) + 2 * (u & 1)
                    q.append(f"v_cvt_pk_bf16_f32 v{qreg(qt, 2*p+e) + u}, v{a}, v{a+1}")
        for qt in range(2):
            for u in range(4):
                q.append(f"v_permlane16_swap_b32 v{qreg(qt, 2*p) + u}, v{qreg(qt, 2*p+1) + u}")
    q += [f"v_mov_b32 v{V_NM+r}, 0" for r in range(32)]
    q += [f"v_mov_b32 v{V_LS[qt]+e}, 0" for qt in range(2) for e in range(2)]
    q.append(f"v_xor_b32 v{V_T+4}, 0x8000, v{V_KA}")
    d = kv_dma("V", 0, 1) + kv_dma("K", 2, 3) + kv_dma("V", 1, 2)
    for k, x in enumerate(d):
        A.add(q[k * len(q) // len(d):(k + 1) * len(q) // len(d)] + [x])
    A("@vmwait K0\ns_barrier")
    for f in range(16):
        A(f"ds_read_b128 {ar(A_K + 4*f, 4)}, v{V_T+4} offset:{16384 + 1024*f}")
    mf = qk_mfmas(0, [0, 1], czero=True)
    mx = max_stream(0, [0, 1])
    sc = Sched(mf, CAP)
    sc.pin(13, ["@vmwait K1 V0 lgkm", "s_barrier"])
    sc.stream([rd_k(f, 0) for f in range(16)], at=[max(14 + f // 2, 2 * f + 1) for f in range(16)], prio=2)
    sc.stream(kv_dma("K", 3, 0) + kv_dma("V", 2, 3), 0, 12, prio=1)
    sc.stream(kv_dma("K", 4, 1) + [f"s_mov_b32 s{S_KVO}, {4*16384}"] + list(extra), 14, 31, prio=1)
    A.add(sc.build())
    A(f"s_cmp_eq_u32 s{S_I}, 0\ns_cbranch_scc1 L_{nm}_pmask")
    M = Seg()
    M(f"L_{nm}_pmask:\ns_nop 7")
    M.add(mask_items(0, 1, 0, 0) + mask_items(0, 1, 0, 1))
    M(f"s_branch L_{nm}_pmask_ret")
    B = Seg()
    B(f"L_{nm}_pmask_ret:")
    B.add(mx)
    T = V_T
    for qt in range(2):
        B(f"v_mov_b32 v{T+qt}, v{V_MX[qt]}")
    B("s_nop 0")
    for qt in range(2):
        B(f"v_permlane32_swap_b32 v{V_MX[qt]}, v{T+qt}")
    for qt in range(2):
        B(f"v_max_f32 v{V_MX[qt]}, v{V_MX[qt]}, v{T+qt}")
    B(f"v_max_f32 v{T}, abs(v{V_MX[0]}), abs(v{V_MX[1]})")
    B(f"v_cmp_nge_f32 vcc, s{S_THR}, v{T}\ns_nop 4\ns_cbranch_vccnz L_{nm}_pfix")
    X = Seg()
    X(f"L_{nm}_pfix:")
    for qt in range(2):
        for r in range(16):
            X(f"v_sub_f32 v{V_NM+16*qt+r}, 0, v{V_MX[qt]}")
        for kvh in range(2):
            for r in range(16):
                x = sreg(0, kvh, qt) + r
                X(f"v_sub_f32 v{x}, v{x}, v{V_MX[qt]}")
    X(f"s_branch L_{nm}_pfix_ret")
    C = Seg()
    C(f"L_{nm}_pfix_ret:")
    C.add(exp_stream(0, all_pairs([0, 1])[:NA[2]]))
    return A, B, C, M, X


def p3(nm, st, pro_extra, after_s, late_dma, before_last, sig_pack, mx_fill, la_fill):
    PA, PB0, PB, PM, PX = p3_prologue(nm, pro_extra)
    st(PB)
    PB(f"s_sub_u32 s{S_CNT}, s{S_I}, 1\ns_cbranch_scc1 L_{nm}_d0m_top")
    dec = f"s_sub_u32 s{S_CNT}, s{S_CNT}, 1"
    LS = [0, 1]
    D0 = Body(nm + "_d0", 0, LS, LS, tail=[dec, f"s_cbranch_scc1 L_{nm}_d1m_top"])
    D1 = Body(nm + "_d1", 1, LS, LS, tail=[f"s_branch L_{nm}_d0_top"])
    D1m = Body(nm + "_d1m", 1, LS, LS, dpos=0)
    D0m = Body(nm + "_d0m", 0, LS, LS, dpos=1, tail=[f"s_cmp_eq_u32 s{S_I}, 7", f"s_cbranch_scc1 L_{nm}_mxm_top"])
    MX = Body(nm + "_mx", 1, [0], LS, xfill=mx_fill)
    MXm = Body(nm + "_mxm", 1, [0], LS, dpos=0, tail=[f"s_branch L_{nm}_eps"], xfill=mx_fill)
    S0 = Body(nm + "_s0", 0, [0], [0], tail=[dec, f"s_cbranch_scc1 L_{nm}_s1m_top"])
    S1 = Body(nm + "_s1", 1, [0], [0], tail=[f"s_branch L_{nm}_s0_top"], xdma=sig_pack)
    S1m = Body(nm + "_s1m", 1, [0], [0], dpos=0)
    S0m = Body(nm + "_s0m", 0, [0], [0], dpos=1, xdma=late_dma)
    LA = Body(nm + "_la", 1, [], [0], xdma=sig_pack, xfill=la_fill)
    lab = lambda x, al=False: Seg()((".p2align 5\n" if al else "") + f"L_{nm}_{x}_top:")
    EP_S = Seg()
    EP_S(f"L_{nm}_eps:")
    st(EP_S)
    epilogue(EP_S, 1, S_CS)
    EP_S.add(after_s)
    st(EP_S)
    EP_S(f"s_lshl_b32 s{S_CNT}, s{S_I}, 1\ns_sub_u32 s{S_CNT}, 13, s{S_CNT}\ns_cbranch_scc1 L_{nm}_s0m_top")
    hL = Seg()
    hL.add(before_last)
    EP_L = Seg()
    st(EP_L)
    epilogue(EP_L, 0, S_CL)
    st(EP_L)
    lin = [PA, PB0, PB, lab("d0", True)] + D0.segs + D1.segs + [lab("d1m")] + D1m.segs + [lab("d0m")] + D0m.segs + \
        MX.segs + [EP_S, lab("s0", True)] + S0.segs + S1.segs + [lab("s1m")] + S1m.segs + [lab("s0m")] + S0m.segs + \
        [hL] + LA.segs + [EP_L]
    ool = [PM, PX, lab("mxm")] + MXm.segs + [b.rare for b in (D0, D1, D1m, D0m, MX, MXm, S0, S1, S1m, S0m)]
    traces = []
    for rare in (False, True):
        for nd_, ns_ in ((-1, 2), (0, 1), (1, 0), (2, -1)):
            t = [PA] + ([PM] if nd_ < 0 else []) + [PB0] + ([PX] if rare else []) + [PB]
            if nd_ >= 0:
                for _ in range(nd_):
                    t += D0.trace(rare) + D1.trace(rare)
                t += D0.trace(rare) + D1m.trace(rare)
            t += D0m.trace(rare) + (MX if ns_ >= 0 else MXm).trace(rare) + [EP_S]
            if ns_ >= 0:
                for _ in range(ns_):
                    t += S0.trace(rare) + S1.trace(rare)
                t += S0.trace(rare) + S1m.trace(rare)
            t += S0m.trace(rare) + [hL] + LA.trace(rare) + [EP_L]
            traces.append(t)
    global BODIES
    BODIES = dict(D0=D0, D1=D1, D1m=D1m, D0m=D0m, MX=MX, MXm=MXm, S0=S0, S1=S1, S1m=S1m, S0m=S0m)
    return lin, ool, traces
```

```python
from common import *

S_W = 3
V_L = 1

SRD_H, SRD_UR, SRD_YO, SRD_D = 16, 20, 24, 28
S_T4 = 36
S_DO = 42
S_UB = 43
V_AA, V_BA = 4, 5
V_HW = 6
V_YW, V_YR, V_YS = 7, 8, 9
V_T4 = 16
V_O = 24
V_DA = 44
V_H = 48
V_HO = 72
V_D = 74
V_ACC4 = 76
A_FR = 128
V_YT = 108
H_STRIDE = 4160
H_WAVE = 4 * H_STRIDE
U_LDS, U_WAVE = 132096, 4608
Y_LDS = 49152
WO_LDS = 4 * H_WAVE


def p4_ptr_loads():
    return [f"s_load_dwordx4 s[32:35], s[0:1], {KA_SSMK}"]


def p4_srds():
    S = Seg()
    t = S_T4
    S(f"s_lshl_b32 s{t}, s2, 2")
    S(f"s_add_u32 s{t}, s{t}, s{S_W}")
    S(f"s_lshl_b32 s{S_DO}, s{t}, 1")
    S(f"s_lshl_b32 s{t+1}, s{t}, 12")
    srd(S, SRD_H, 32, 4096, off=f"s{t+1}")
    S(f"s_add_u32 s{t+1}, s{t+1}, {WS_UR}")
    srd(S, SRD_UR, 40, 4096, off=f"s{t+1}")
    S(f"s_lshl_b32 s{t+1}, s2, 14")
    S(f"s_add_u32 s{t+1}, s{t+1}, {WS_Y4}")
    srd(S, SRD_YO, 40, 16384, off=f"s{t+1}")
    srd(S, SRD_D, 34, 2048)
    S(f"s_mul_i32 s{S_UB}, s{S_W}, {U_WAVE}")
    S(f"s_add_u32 s{S_UB}, s{S_UB}, {U_LDS}")
    return groupify([i.text for i in S])


def p4_ur_dma(tmp):
    out = [f"v_lshlrev_b32 v{tmp}, 4, v{V_L}", f"s_mov_b32 m0, s{S_UB}", "s_nop 0"]
    for i in range(4):
        out.append(f"buffer_load_dwordx4 v{tmp}, {sr(SRD_UR,4)}, 0 offen offset:{1024*i} sc1 lds")
    return out


def p4_h_loads():
    out = [f"v_lshlrev_b32 v{V_HO}, 4, v{V_L}", f"v_add_u32 v{V_HO+1}, -8, v{V_HO}", f"v_mov_b32 v{V_D+1}, 0",
           f"buffer_load_ushort v{V_D}, v{V_D+1}, {sr(SRD_D,4)}, s{S_DO} offen"]
    for i in range(4):
        if i == 0:
            out.append(f"buffer_load_dwordx2 {vr(V_H,2)}, v{V_HO+1}, {sr(SRD_H,4)}, 0 offen{NT_K}")
        else:
            out.append(f"buffer_load_dwordx2 {vr(V_H+6*i,2)}, v{V_HO}, {sr(SRD_H,4)}, 0 offen offset:{1024*i - 8}{NT_K}")
        out.append(f"buffer_load_dwordx4 {vr(V_H+6*i+2,4)}, v{V_HO}, {sr(SRD_H,4)}, 0 offen offset:{1024*i}{NT_K}")
    return out


def p4_setup(S):
    T, t, l = V_T4, S_T4, V_L
    S(f"s_mul_i32 s{t}, s{S_W}, {H_WAVE}")
    S(f"v_and_b32 v{T}, 15, v{l}")
    S(f"v_lshrrev_b32 v{T+1}, 4, v{l}")
    S(f"v_add_u32 v{T+2}, 13, v{T}")
    S(f"v_and_b32 v{T+3}, 3, v{T+2}")
    S(f"v_cmp_eq_u32 vcc, 0, v{T+3}")
    S(f"v_lshrrev_b32 v{T+2}, 2, v{T+2}")
    S(f"v_mul_u32_u24 v{T+3}, {H_STRIDE}, v{T+3}")
    S(f"v_cndmask_b32 v{T+3}, v{T+3}, 8, vcc")
    S(f"v_lshl_add_u32 v{T+3}, v{T+2}, 3, v{T+3}")
    S(f"v_lshl_add_u32 v{T+3}, v{T+1}, 4, v{T+3}")
    S(f"v_add_u32 v{V_AA}, s{t}, v{T+3}")
    S(f"v_add_u32 v{V_HW}, s{t}, v{V_HO}")
    S(f"v_lshlrev_b32 v{T+2}, 5, v{T}")
    S(f"v_lshlrev_b32 v{T+3}, 4, v{T+1}")
    S(f"v_sub_u32 v{T+3}, v{T+3}, v{T+2}")
    S(f"s_add_u32 s{t+1}, s{S_UB}, 480")
    S(f"v_add_u32 v{V_BA}, s{t+1}, v{T+3}")
    S(f"v_mul_u32_u24 v{T+2}, 136, v{T}")
    S(f"v_lshl_add_u32 v{T+2}, v{T+1}, 5, v{T+2}")
    S(f"s_lshl_b32 s{t+1}, s{S_W}, 1")
    S(f"s_add_u32 s{t+1}, s{t+1}, {Y_LDS}")
    S(f"v_add_u32 v{V_YW}, s{t+1}, v{T+2}")
    S(f"v_lshrrev_b32 v{T+2}, 3, v{l}")
    S(f"v_mul_u32_u24 v{T+2}, 136, v{T+2}")
    S(f"v_and_b32 v{T+3}, 7, v{l}")
    S(f"v_lshl_add_u32 v{T+2}, v{T+3}, 4, v{T+2}")
    S(f"s_mul_i32 s{t+1}, s{S_W}, {4*1088}")
    S(f"s_add_u32 s{t+1}, s{t+1}, {Y_LDS}")
    S(f"v_add_u32 v{V_YR}, s{t+1}, v{T+2}")
    S(f"s_lshl_b32 s{t+1}, s{S_W}, 12")
    S(f"v_add_u32 v{V_YS}, s{t+1}, v{V_HO}")
    S(f"v_lshl_add_u32 v{T+2}, v{T+1}, 3, v{T}")
    S(f"v_sub_u32 v{V_D+1}, 15, v{T+2}")


def p4_prep(S):
    T, l = V_T4, V_L
    Z = T + 4
    for k in range(4):
        S(f"v_mov_b32 v{Z+k}, 0")
    S(f"v_and_b32 v{T}, 3, v{l}")
    S(f"v_mul_u32_u24 v{T}, {H_STRIDE}, v{T}")
    S(f"v_lshrrev_b32 v{T+1}, 2, v{l}")
    S(f"v_min_u32 v{T+1}, 3, v{T+1}")
    S(f"v_lshl_add_u32 v{T}, v{T+1}, 4, v{T}")
    S(f"v_add_u32 v{T}, s{S_T4}, v{T}")
    S(f"ds_write_b128 v{T}, {vr(Z,4)}")
    S(f"v_and_b32 v{T+1}, 31, v{l}")
    S(f"v_lshlrev_b32 v{T+1}, 4, v{T+1}")
    S(f"v_add_u32 v{T+1}, s{S_UB}, v{T+1}")
    S(f"ds_write_b128 v{T+1}, {vr(Z,4)} offset:4096")
    for i in range(4):
        D = V_H + 6 * i
        O = V_O + 6 * (i & 1)
        for k in range(5):
            S(f"v_alignbit_b32 v{O+k}, v{D+k+1}, v{D+k}, 16")
        off = 48 + 1024 * i
        S(f"ds_write_b128 v{V_HW}, {vr(D+2,4)} offset:{off + 16}")
        S(f"ds_write_b128 v{V_HW}, {vr(O,4)} offset:{off + H_STRIDE}")
        for c, R in ((2, D + 1), (3, O + 1)):
            for k in range(4):
                S(f"v_mov_b32 v{T+k}, v{R+k}")
            S(f"ds_write_b128 v{V_HW}, {vr(T,4)} offset:{off + c*H_STRIDE}")
    S(f"v_lshlrev_b32 v{T}, 16, v{V_D}")
    for i in range(4):
        S(f"v_cmp_eq_u32 vcc, {2*i}, v{V_D+1}")
        S(f"v_cndmask_b32 v{V_DA+i}, 0, v{V_D}, vcc")
        S(f"v_cmp_eq_u32 vcc, {2*i+1}, v{V_D+1}")
        S(f"v_cndmask_b32 v{V_DA+i}, v{V_DA+i}, v{T}, vcc")


def p4_prep_items():
    S = Seg()
    p4_setup(S)
    p4_prep(S)
    out = []
    for x in [i.text for i in S]:
        if x.startswith("v_cndmask") and out[-1].startswith("v_cmp"):
            out[-1] = [out[-1], "s_nop 1", x]
        else:
            out.append(x)
    return out


def afr(rho, q):
    return A_FR + (rho & 1) * 64 + q * 4


def bfr(rho, p):
    return A_FR + (rho & 1) * 64 + 32 + p * 4


def p4_reads(rho):
    out = []
    for k in range(8):
        out.append(f"ds_read_b128 {ar(bfr(rho, k),4)}, v{V_BA} offset:{512*(7-k) + 64*rho}")
        for a in range(2):
            out.append(f"ds_read_b64 {ar(afr(rho, k) + 2*a, 2)}, v{V_AA} offset:{64*(8*k + rho) + 8*a}")
    return out


def p4_mfmas(rho):
    mf = []
    for q in range(8):
        for p in range(8 - q):
            d = vr(V_ACC4 + 4 * (p + q), 4)
            mf.append(mfma16(d, ar(afr(rho, q), 4), ar(bfr(rho, p), 4), "0" if (rho == 0 and q == 0) else None))
        if rho == 0 and q == 0:
            for p in range(8):
                mf.append(mfma16(vr(V_ACC4 + 4 * p, 4), vr(V_DA, 4), ar(bfr(0, p), 4)))
    return mf


def p4_rho(rho, head=(), vm=(), fill=()):
    mf = p4_mfmas(rho)
    sc = Sched(mf, 2)
    if rho < 7:
        sc.stream(p4_reads(rho + 1), 0, 30, prio=2)
    sc.stream(list(vm), 0, len(mf) - 1, prio=1)
    sc.stream(list(fill), 0, len(mf) - 1)
    return sc.build(head)


def p4_y_write():
    out = []
    T = V_T4
    for tt in range(8):
        a = V_ACC4 + 4 * tt
        r = T + 2 * (tt & 1)
        out += [f"v_cvt_pk_bf16_f32 v{r}, v{a}, v{a+1}", f"v_cvt_pk_bf16_f32 v{r+1}, v{a+2}, v{a+3}"]
        for k in range(2):
            out += [f"ds_write_b16 v{V_YW}, v{r+k} offset:{2176*tt + 16*k}",
                    f"ds_write_b16_d16_hi v{V_YW}, v{r+k} offset:{2176*tt + 16*k + 8}"]
    return out


def p4_y_read():
    return [f"ds_read_b64 {vr(V_YT + 4*i + 2*a, 2)}, v{V_YR} offset:{1088*i + 8*a}" for i in range(4) for a in range(2)]


def p4_y_store(flavor="sc1"):
    return [f"buffer_store_dwordx4 {vr(V_YT + 4*i, 4)}, v{V_YS}, {sr(SRD_YO,4)}, 0 offen offset:{1024*i} {flavor} #yst"
            for i in range(4)]


SRD_CX, SRD_WO, SRD_XB, SRD_Y, SRD_OUT = 44, 48, 52, 56, 60
S_CO = 68
S_WO = 69
S_MW = 70
S_CNT = 71
S_T = 72
S_XO, S_YO, S_KH, S_RB, S_CB = 78, 79, 80, 81, 82
P_X, P_WO, P_OUT = 84, 86, 88

V_CD = 236
V_WD = 238
V_WA = 242
V_XV, V_YV, V_GV = 250, 251, 252
V_PL = 253
V_ACC = 124
A_WF = 128
V_RX = 76
V_X = 192
V_Y = 208
V_G = 224
V_A = 36
V_T = 36
V_TE = 228
A_C = 0
RING = 7

NS = 32


def acc5(ct, rt):
    return V_ACC + (ct * 2 + rt) * 4


def p5_ptr_loads():
    return [f"s_load_dwordx2 {sr(P_OUT,2)}, s[0:1], {KA_OUT}"]


def rb_cb(S, rb, cb, t):
    S(f"s_and_b32 s{rb}, s2, 3")
    S(f"s_lshl_b32 s{rb}, s{rb}, 1")
    S(f"s_sub_u32 s{t}, 14, s{rb}")
    S(f"s_bitcmp1_b32 s2, 4")
    S(f"s_cselect_b32 s{rb}, s{t}, s{rb}")
    S(f"s_bfe_u32 s{t}, s2, 0x10003")
    S(f"s_add_u32 s{rb}, s{rb}, s{t}")
    S(f"s_bfe_u32 s{cb}, s2, 0x10002")
    S(f"s_lshr_b32 s{t}, s2, 5")
    S(f"s_lshl_b32 s{t}, s{t}, 1")
    S(f"s_add_u32 s{cb}, s{cb}, s{t}")


def p5_setup():
    S = Seg()
    T, t, l = V_T, S_T, V_L
    rb_cb(S, S_RB, S_CB, t + 2)
    S(f"s_mov_b32 s{t}, s{S_RB}\ns_mov_b32 s{t+1}, s{S_CB}")
    S(f"s_lshl_b32 s{t+2}, s{t}, 2")
    S(f"s_add_u32 s{t+2}, s{t+2}, s{S_W}")
    S(f"s_lshl_b32 s{S_CO}, s{t+2}, 18")
    S(f"s_and_b32 s{S_KH}, s{t+1}, 1")
    S(f"s_lshl_b32 s{t+3}, s{S_KH}, 16")
    S(f"s_add_u32 s{S_CO}, s{S_CO}, s{t+3}")
    S(f"s_lshl_b32 s{S_WO}, s{t+1}, 19")
    S(f"s_lshl_b32 s{t+3}, s{t+1}, 7")
    S(f"s_lshl_b32 s{S_MW}, s{S_W}, 12")
    S(f"s_lshl_b32 s{S_XO}, s{t+2}, 16")
    S(f"s_add_u32 s{S_XO}, s{S_XO}, s{t+3}")
    S(f"s_lshl_b32 s{S_YO}, s{t+1}, 18")
    S(f"s_lshl_b32 s{t+3}, s{t+2}, 8")
    S(f"s_add_u32 s{S_YO}, s{S_YO}, s{t+3}")
    S(f"v_lshlrev_b32 v{V_CD}, 4, v{l}")
    S(f"v_add_u32 v{V_CD+1}, 0x20000, v{V_CD}")
    S(f"v_add_u32 v{V_WD}, s{S_MW}, v{V_CD}")
    S(f"s_lshl_b32 s{t+3}, s{S_KH}, 12")
    S(f"v_add_u32 v{V_WA+2}, s{t+3}, v{V_CD}")
    S(f"v_xor_b32 v{V_WA+3}, 0x1000, v{V_WA+2}")
    S(f"v_add_u32 v{V_WA}, {WO_LDS}, v{V_WA+2}")
    S(f"v_add_u32 v{V_WA+1}, {WO_LDS}, v{V_WA+3}")
    S(f"v_bfe_u32 v{T+2}, v{l}, 4, 1")
    S(f"v_lshrrev_b32 v{T+4}, 5, v{l}")
    S(f"v_and_b32 v{T}, 15, v{l}")
    S(f"v_lshlrev_b32 v{T+5}, 5, v{T+2}")
    S(f"v_lshl_add_u32 v{T+5}, v{T+4}, 4, v{T+5}")
    S(f"v_lshl_add_u32 v{V_XV}, v{T}, 11, v{T+5}")
    S(f"v_lshlrev_b32 v{T+5}, 11, v{T+5}")
    S(f"v_lshl_add_u32 v{V_YV}, v{T}, 3, v{T+5}")
    srd(S, SRD_CX, 40, 16 * MB, off=WS_CTX)
    srd(S, SRD_WO, 40, 8 * MB, off=WS_WP)
    srd(S, SRD_XB, 40, 4 * MB, off=WS_XB)
    srd(S, SRD_Y, 40, 4 * MB, off=WS_Y4)
    srd(S, SRD_OUT, P_OUT, 2048 * 1024 * 2)
    return groupify([i.text for i in S])


def ld_ctx(n, kq, rt):
    return f"buffer_load_dwordx4 {ar(A_C + (n % RING)*16 + (kq*2 + rt)*4, 4)}, v{V_CD+rt}, {sr(SRD_CX,4)}, s{S_CO} offen offset:{1024*kq} sc1"


ADV_C = f"s_add_u32 s{S_CO}, s{S_CO}, 2048"
ADV_W = f"s_add_u32 s{S_WO}, s{S_WO}, 16384"


def wo_slot(n):
    k = n % RING
    return (WO_LDS + k * 16384, 0, k * 16384) if k < 4 else ((k - 4) * 16384, 2, (k - 4) * 16384)


def wo_stage(n):
    return [f"s_add_u32 m0, s{S_MW}, {wo_slot(n)[0]}"] + \
        [f"buffer_load_dwordx4 v{V_WD}, {sr(SRD_WO,4)}, s{S_WO} offen offset:{1024*i} sc1 lds #o{n}" for i in range(4)] + [ADV_W]


def ctx_stage(n):
    return [ld_ctx(n, kq, rt) for kq in range(2) for rt in range(2)] + [ADV_C]


def rd_wo(n, kq, ct):
    _, reg, off = wo_slot(n)
    return f"ds_read_b128 {ar(A_WF + kq*32 + ct*4, 4)}, v{V_WA + reg + (ct >> 2)} offset:{off + kq*8192 + (ct & 3)*1024}"


PK_LDS = 131072


def pack_srd():
    return ["s_lshr_b32 s36, s2, 3", "s_lshl_b32 s36, s36, 18", "s_and_b32 s37, s2, 7", "s_lshl_b32 s37, s37, 8",
            "s_add_u32 s36, s36, s37", f"s_lshl_b32 s37, s{S_W}, 16", "s_add_u32 s36, s36, s37",
            ["s_add_u32 s32, s32, s36", "s_addc_u32 s33, s33, 0"], "s_mov_b32 s34, 65536", "s_mov_b32 s35, 0x20000"]


def pack_dma(T):
    out = [f"v_lshrrev_b32 v{T}, 4, v{V_L}", f"v_and_b32 v{T+1}, 15, v{V_L}", f"v_lshlrev_b32 v{T+2}, 1, v{T}",
           f"v_xor_b32 v{T+1}, v{T+1}, v{T+2}", f"v_lshlrev_b32 v{T}, 11, v{T}",
           f"v_lshl_add_u32 v{T}, v{T+1}, 4, v{T}", f"v_xor_b32 v{T+1}, 128, v{T}",
           f"s_lshl_b32 s36, s{S_W}, 13"]
    for i in range(8):
        if i % 4 == 0:
            out.append(f"s_add_u32 m0, s36, {PK_LDS + (i >> 2)*4096}")
        out += [f"s_mov_b32 s37, {8192*i - 1024*(i & 3)}",
                f"buffer_load_dwordx4 v{T + (i & 1)}, s[32:35], s37 offen offset:{1024*(i & 3)}{NT_O} lds"]
    return out


def pack_store(T, regs, vdo):
    l = V_L
    out = [f"v_bfe_u32 v{T}, v{l}, 2, 2", f"v_bfe_u32 v{T+1}, v{l}, 4, 1", f"v_lshl_add_u32 v{T}, v{T+1}, 2, v{T}",
           f"v_lshrrev_b32 v{T+1}, 5, v{l}", f"v_lshl_add_u32 v{T+1}, v{T+1}, 4, v{T}", f"v_lshlrev_b32 v{T+1}, 8, v{T+1}",
           f"v_and_b32 v{T+2}, 3, v{l}", f"v_lshl_add_u32 v{T+1}, v{T+2}, 3, v{T+1}",
           f"s_lshl_b32 s36, s{S_W}, 13", f"s_add_u32 s36, s36, {PK_LDS}", f"v_add_u32 v{T+1}, s36, v{T+1}"]
    for j in range(8):
        out += [f"v_xor_b32 v{T+2}, {j}, v{T}", f"v_lshl_add_u32 v{T+2}, v{T+2}, 5, v{T+1}"]
        out += [f"ds_read_b64_tr_b16 {vr(regs[j] + 2*a, 2)}, v{T+2} offset:{2048*a}" for a in range(2)]
    S = Seg()
    srd(S, 32, 40, 8 * MB, off=WS_WP)
    out += [i.text for i in S]
    out += ["s_and_b32 s36, s2, 7", "s_lshl_b32 s36, s36, 20", "s_lshr_b32 s37, s2, 3", "s_lshl_b32 s37, s37, 15",
            "s_add_u32 s36, s36, s37", f"s_lshl_b32 s37, s{S_W}, 12", "s_add_u32 s36, s36, s37", "s_add_u32 s37, s36, 4096"]
    for j in range(8):
        out.append(f"buffer_store_dwordx4 {vr(regs[j],4)}, v{vdo}, s[32:35], s{36 + (j >> 2)} offen offset:{1024*(j & 3)} sc1")
    return out


def y_loads():
    out = []
    for rt in range(2):
        for pr in range(2):
            for e in range(2):
                out.append([f"s_add_u32 s{S_T}, s{S_YO}, {(8*pr + e)*16384}",
                            f"buffer_load_dwordx2 {vr(V_Y + ((rt*2 + pr)*2 + e)*2, 2)}, v{V_YV}, {sr(SRD_Y,4)}, s{S_T} offen offset:{128*rt} sc1"])
    return out


def early_x_loads(srd_x, T):
    S = Seg()
    l = V_L
    rb_cb(S, 36, 37, 32)
    S(f"s_lshl_b32 s36, s36, 2\ns_add_u32 s36, s36, s{S_W}")
    S(f"s_lshl_b32 s37, s37, 7\ns_lshl_b32 s32, s36, 16\ns_add_u32 s37, s37, s32\ns_lshl_b32 s36, s36, 7")
    S(f"v_and_b32 v{T}, 15, v{l}\nv_bfe_u32 v{T+1}, v{l}, 4, 1\nv_lshlrev_b32 v{T+1}, 5, v{T+1}")
    S(f"v_lshrrev_b32 v{T+2}, 5, v{l}\nv_lshl_add_u32 v{T+1}, v{T+2}, 4, v{T+1}")
    S(f"v_lshl_add_u32 v{T+1}, v{T}, 11, v{T+1}\nv_lshlrev_b32 v{T}, 2, v{T}")
    srd(S, 32, 40, 8192, off=WS_G)
    for rt in range(2):
        for pr in range(2):
            S(f"buffer_load_dwordx4 {vr(V_X + (rt*2 + pr)*4, 4)}, v{T+1}, {sr(srd_x,4)}, s37 offen offset:{64*pr}")
        S(f"buffer_load_dword v{V_G+rt}, v{T}, s[32:35], s36 offen offset:{64*rt} sc1")
        if rt == 0:
            S("s_add_u32 s37, s37, 32768")
    return [i.text for i in S]


def ep_pre():
    out = []
    T = V_TE
    for rt in range(2):
        out.append(f"v_sub_f32 v{V_G+2+rt}, 1.0, v{V_G+rt}")
        for pr in range(2):
            for u in range(4):
                x = V_X + (rt * 2 + pr) * 4 + u
                y = V_Y + (rt * 2 + pr) * 4 + u
                a = V_A + (rt * 2 + pr) * 8 + 2 * u
                out += [f"v_lshlrev_b32 v{a}, 16, v{x}", f"v_lshlrev_b32 v{T}, 16, v{y}",
                        f"v_and_b32 v{a+1}, 0xffff0000, v{x}", f"v_and_b32 v{T+1}, 0xffff0000, v{y}",
                        f"v_mul_f32 v{a}, v{a}, v{T}", f"v_mul_f32 v{a+1}, v{a+1}, v{T+1}",
                        f"v_mul_f32 v{a}, v{a}, v{V_G+rt}", f"v_mul_f32 v{a+1}, v{a+1}, v{V_G+rt}"]
    return out


def stage(u, fill=None, bar_tags=(), after_bar=(), head0=()):
    S = Seg()
    for kq in range(2):
        cts = list(range(8)) if (u, kq) != (31, 1) else [4, 5, 6, 7, 0, 1, 2, 3]
        mf = [mfma16(vr(acc5(ct, rt), 4), ar(A_WF + kq * 32 + ct * 4, 4),
                     ar(A_C + (u % RING) * 16 + (kq * 2 + rt) * 4, 4), "0" if (u == 0 and kq == 0) else None)
              for ct in cts for rt in range(2)]
        sc = Sched(mf, 2)
        head = list(head0) if kq == 0 else []
        rd = []
        if kq == 0:
            rd = [rd_wo(u, 1, ct) for ct in range(8)]
        elif u < 31:
            rd = [rd_wo(u + 1, 0, ct) for ct in range(8)]
            head = [f"@vmwait o{u + 1} " + " ".join(bar_tags) + " lgkm", "s_barrier"] + list(after_bar)
        sc.stream(rd, 0, 12, prio=3)
        if u + RING - 1 < 32:
            w = wo_stage(u + RING - 1)
            sc.stream(w[:3] if kq == 0 else w[3:], 1, 14, prio=1)
        if u + RING < 32:
            sc.stream([ld_ctx(u, kq, 0), ld_ctx(u, kq, 1)] + ([ADV_C] if kq == 1 else []), at=[14, 15, 15], prio=4)
        if fill and fill[kq]:
            sc.stream(fill[kq], 0, 16)
        S.add(sc.build(head))
    return S


def xb_prefill(T, vdo):
    S = Seg()
    srd(S, 32, 40, 4 * MB, off=WS_XB)
    S("s_lshl_b32 s36, s2, 14")
    for k in range(4):
        S(f"v_mov_b32 v{T+k}, -1")
    for k in range(4):
        S(f"buffer_store_dwordx4 {vr(T,4)}, v{vdo}, s[32:35], s36 offen offset:{1024*k} sc1")
    return groupify([i.text for i in S])


def xb_send():
    out = [f"s_xor_b32 s{S_T}, s2, 4", f"s_lshl_b32 s{S_T}, s{S_T}, 14"]
    for k in range(4):
        a = V_ACC + 32 + 8 * k
        out += [f"v_cvt_pk_bf16_f32 v{a+u}, v{a+2*u}, v{a+2*u+1}" for u in range(4)]
        out.append(f"buffer_store_dwordx4 {vr(a,4)}, v{V_WD}, {sr(SRD_XB,4)}, s{S_T} offen offset:{1024*k} sc1")
    return out


def xb_recv(spin):
    out = [f"s_lshl_b32 s{S_T}, s2, 14", f"s_mov_b32 s{S_T+1}, {spin}", "L_xb:"]
    out += [f"buffer_load_dwordx4 {vr(V_RX + 4*k,4)}, v{V_WD}, {sr(SRD_XB,4)}, s{S_T} offen offset:{1024*k} sc1" for k in range(4)]
    T = V_TE
    out += [f"s_sub_u32 s{S_T+1}, s{S_T+1}, 1", "s_cbranch_scc1 L_xb_done", "s_waitcnt vmcnt(3)",
            f"v_max3_u32 v{T}, v{V_RX}, v{V_RX+1}, v{V_RX+2}"]
    for k in range(3, 15, 2):
        out.append(f"v_max3_u32 v{T}, v{T}, v{V_RX+k}, v{V_RX+k+1}")
    out += [f"v_max_u32 v{T}, v{T}, v{V_RX+15}", f"v_cmp_eq_u32 vcc, -1, v{T}", "s_nop 4", "s_cbranch_vccnz L_xb", "L_xb_done:",
            "s_waitcnt vmcnt(0)"]
    return out


def p5_epilogue(S):
    for r in range(16):
        S(f"v_lshlrev_b32 v{V_RX+16}, 16, v{V_RX+r}\nv_and_b32 v{V_RX+17}, 0xffff0000, v{V_RX+r}")
        S(f"v_add_f32 v{V_ACC+2*r}, v{V_ACC+2*r}, v{V_RX+16}\nv_add_f32 v{V_ACC+2*r+1}, v{V_ACC+2*r+1}, v{V_RX+17}")
    for rt in range(2):
        for pr in range(2):
            for r in range(4):
                S(f"v_permlane16_swap_b32 v{acc5(2*pr, rt) + r}, v{acc5(2*pr+1, rt) + r}")
    for rt in range(2):
        S(f"s_add_u32 s{S_T}, s{S_XO}, {rt*32768}")
        for pr in range(2):
            a = V_A + (rt * 2 + pr) * 8
            for j in range(8):
                S(f"v_fma_f32 v{a+j}, v{acc5(2*pr + (j >> 2), rt) + (j & 3)}, v{V_G+2+rt}, v{a+j}")
            D = V_X + (rt * 2 + pr) * 4
            for u in range(4):
                S(f"v_cvt_pk_bf16_f32 v{D+u}, v{a+2*u}, v{a+2*u+1}")
            S(f"buffer_store_dwordx4 {vr(D,4)}, v{V_XV}, {sr(SRD_OUT,4)}, s{S_T} offen offset:{64*pr}" + os.environ.get("OUTF", "").replace("_", " "))
```

```python
import sys
from common import *
import f1, f2, f3

NAME = "gated_mix__ssm_conv_h3__compressed_kv_cla__prompt_kernel"
SRD_F, SRD_DBG = 8, 12
S_W, V_L = 3, 1
V_PF = 79
SPIN = 400000
ool = []


def sig_off(v, t):
    return [f"v_lshlrev_b32 v{v}, 20, v{V_L}", f"s_lshl_b32 s{t}, s{S_W}, 26", f"v_add_u32 v{v}, s{t}, v{v}"]


def signal(F, voff, vone, t, val=1):
    return [f"v_mov_b32 v{vone}, {val}", f"s_lshl_b32 s{t}, s2, 2",
            f"buffer_store_dword v{vone}, v{voff}, {sr(SRD_F,4)}, s{t} offen offset:{F} sc1"]


def poll(tag, load, vp, t, val=1):
    S = Seg()
    S(f"L_spin_{tag}:\ns_mov_b32 s{t}, {SPIN}\nL_spin_{tag}_l:\ns_sleep 1")
    S(load)
    S(f"s_waitcnt vmcnt(0)\nv_cmp_gt_u32 vcc, {val}, v{vp}\ns_nop 4\ns_cbranch_vccz L_spin_{tag}_ret")
    S(f"s_sub_u32 s{t}, s{t}, 1\ns_cmp_lg_u32 s{t}, 0\ns_cbranch_scc1 L_spin_{tag}_l\ns_branch L_spin_{tag}_ret")
    ool.append(S)
    return [f"v_cmp_gt_u32 vcc, {val}, v{vp}", "s_nop 4", f"s_cbranch_vccnz L_spin_{tag}", f"L_spin_{tag}_ret:"]


TOUCH = os.environ.get('TOUCH', '0') == '1'


def touch_wq():
    return [["s_mov_b32 s4, s34", "s_mov_b32 s5, s35"], [f"s_mov_b32 s6, {8*MB}", "s_mov_b32 s7, 0x20000"],
            "s_lshr_b32 s43, s2, 3", "s_lshl_b32 s43, s43, 2", f"s_add_u32 s43, s43, s{S_W}", "s_lshl_b32 s43, s43, 16",
            "s_and_b32 s37, s2, 7", "s_lshl_b32 s37, s37, 10", "s_add_u32 s43, s43, s37",
            f"buffer_load_dword v{V_PF}, v78, s[4:7], s43 offen{NT_Q}"]


def touches(typ):
    H = Seg()
    H(f"s_lshr_b32 s43, s2, 3\ns_lshl_b32 s43, s43, 2\ns_add_u32 s43, s43, s{S_W}")
    H(f"v_lshlrev_b32 v8, 7, v{V_L}\nv_lshrrev_b32 v78, 3, v{V_L}\nv_and_b32 v13, 0x380, v8\nv_lshl_add_u32 v78, v78, 13, v13")
    H("s_bitcmp1_b32 s43, 0")
    H(f"s_cselect_b32 s4, s{f1.P_WU+2}, s{f1.P_WU}\ns_cselect_b32 s5, s{f1.P_WU+3}, s{f1.P_WU+1}")
    H(f"s_mov_b32 s6, {4*MB}\ns_mov_b32 s7, 0x20000\ns_lshr_b32 s98, s43, 1\ns_lshl_b32 s98, s98, 16\ns_and_b32 s99, s2, 7\ns_lshl_b32 s99, s99, 10\ns_add_u32 s98, s98, s99")
    if TOUCH:
        H(f"buffer_load_dword v{V_PF}, v78, s[4:7], s98 offen{NT_T}")
    else:
        H[:] = [I(f"v_lshlrev_b32 v8, 7, v{V_L}")]
    H(f"s_getpc_b64 s[4:5]\nL_pc{typ}:\ns_lshr_b32 s98, s2, 3\ns_lshl_b32 s98, s98, 2\ns_add_u32 s98, s98, s{S_W}\ns_lshl_b32 s98, s98, 10")
    H(f"v_and_b32 v9, 0x380, v8\nv_add_u32 v9, s98, v9\nv_min_u32 v9, L_code_end - L_pc{typ} - 4, v9")
    H("v_mov_b32 v11, s5\nv_add_co_u32 v10, vcc, s4, v9\nv_addc_co_u32 v11, vcc, 0, v11, vcc")
    H(f"global_load_dword v{V_PF}, v[10:11], off")
    out, items = [], groupify([i.text for i in H])
    for x in items:
        if isinstance(x, str) and (x.endswith(":") or x.startswith("v_addc_co")):
            out[-1] = flat([out[-1]]) + (["s_nop 1"] if x.startswith("v_addc") else []) + [x]
        else:
            out.append(x)
    return out


def start(st):
    H = Seg()
    H(kernel_header(NAME))
    if DIAG:
        H("s_memtime s[98:99]\ns_memrealtime s[100:101]")
    H(f"s_cmp_ge_u32 s2, 256\ns_cbranch_scc1 L_end")
    H(f"s_load_dwordx2 {sr(f1.P_C,2)}, s[0:1], {KA_C}")
    H(f"s_load_dwordx4 {sr(f1.P_WU,4)}, s[0:1], {KA_WUK}")
    H(f"s_load_dwordx2 {sr(f1.S_WS,2)}, s[0:1], {KA_WS}")
    H(f"s_load_dwordx2 s[96:97], s[0:1], {KA_DBG}")
    H.add(f2.ptr_loads()[:2])
    H(f"v_lshrrev_b32 v2, 6, v0\nv_and_b32 v{V_L}, 63, v0\nv_lshlrev_b32 v3, 4, v0")
    H(f"v_readfirstlane_b32 s{S_W}, v2")
    f1.setup(H)
    if DIAG:
        H("v_writelane_b32 v0, s98, 60\nv_writelane_b32 v0, s100, 61")
    st(H)
    srd(H, 4, f1.S_WS, 4096, off=WS_FLAG)
    H("s_lshl_b32 s43, s2, 20\nv_add_u32 v3, s43, v3")
    H("v_mov_b32 v4, 0\nv_mov_b32 v5, 0\nv_mov_b32 v6, 0\nv_mov_b32 v7, 0")
    H("buffer_store_dwordx4 v[4:7], v3, s[4:7], 0 offen sc1")
    H.add(f1.dma_w(0) + f1.dma_c(0))
    f1.setup2(H)
    H("s_mov_b32 s98, 256\ns_mov_b32 s99, 0x20000")
    H(f"v_lshlrev_b32 v3, 16, v3\nv_mov_b32 v4, 1")
    H(f"s_cmp_lg_u32 s2, 0\ns_cselect_b32 s43, 0x10000000, 0\nv_or_b32 v3, s43, v3")
    H("@vmwait c0 w0\ns_barrier")
    if os.environ.get("DIAG") == "2":
        st(H)
    H("buffer_store_dword v4, v3, s[96:99], 0 offen sc1")
    for rt in range(8):
        H(f1.rd_c(0, 0, rt))
    for ct in range(8):
        H.add(f1.rd_w(0, 0, ct))
    H(f"s_cmp_eq_u32 s{f1.S_TYPE}, 0\ns_cbranch_scc0 L_p1_V")
    return H


FINE = os.environ.get('DIAG') == '2'


def p1(typ, st):
    B = Seg()
    n0 = st.n
    if typ == "V":
        B("L_p1_V:")
    p0 = f1.P0()
    ld = chunks(p0.loads(), 2)
    cp = chunks(groupify(p0.compute()), 4)
    if "nop0" in EXP:
        ld, cp = [[]] * 2, [[]] * 4
    su = chunks(groupify(f2.setup()), 2)
    vm = {(0, 0): f1.dma_w(1) + f1.dma_c(1), (6, 0): f2.dma_x(0), (6, 1): f2.dma_q(0) + f2.dma_q(1), (7, 0): f2.dma_x(1)}
    for n in range(6):
        vm[(n, 1)] = f1.dma_w(n + 2)
    for n in range(1, 6):
        vm[(n, 0)] = f1.dma_c(n + 2)
    fill = {(0, 0): f1.type_setup(typ), (1, 0): touches(typ) + su[0], (1, 1): su[1] + f2.ptr_loads()[2:],
            (2, 0): (touch_wq() if TOUCH else []) + p0.ptr_loads(), (2, 1): p0.setup(), (3, 0): ld[0], (4, 0): ld[1],
            (7, 0): cp[3] + f1.store_addr(typ)}
    fill[(5, 1)], fill[(6, 0)], fill[(6, 1)] = cp[:3]
    for n in range(8):
        for kk in range(2):
            B.add(f1.kstep(typ, n, kk, vm.get((n, kk)), fill.get((n, kk)),
                           f2.p1_last_hook if (n, kk) == (7, 1) else None,
                           **(dict(bar=int(os.environ.get('BAR0', '44')), vm_pre=f1.dma_c(2)) if (n, kk) == (0, 1) else {})))
            if FINE and kk == 1 and n < 7:
                st(B)
    if typ == "K":
        st.n = n0
    if typ == "K":
        B("s_branch L_p2")
    return B


PACK_EARLY = os.environ.get('PACKE', '1') == '1'


def p2(st):
    B = Seg()
    B("L_p2:")
    NE = 20
    ep = chunks(f1.epilogue_items(), NE)
    fill = {k: list(ep[k]) for k in range(NE)}
    S = Seg()
    srd(S, SRD_F, 40, 4096, off=WS_FLAG)
    srd(S, SRD_DBG, 38, 256)
    fill[0] = groupify([i.text for i in S]) + fill[0]
    go_ld = f"buffer_load_dword v254, off, {sr(SRD_DBG,4)}, 0 sc1"
    fill[14] = fill[14] + [go_ld]
    zero = [f"v_accvgpr_write_b32 a{f2.A_O+i}, 0" for i in range(128)]
    for k, z in enumerate(chunks(zero, 8)):
        fill[NE + 2 + k] = z
    T, t = 230, 36
    fill[20] = sig_off(255, t)
    fill[21] = f2.setup3(T)
    after = {11: poll("go", go_ld, 254, t) + signal(f1.F_1, 255, 254, t) + f3.p4_ptr_loads(),
             13: [f"s_load_dwordx2 s[32:33], s[0:1], {KA_WO}"]}
    S = Seg()
    f3.rb_cb(S, t, t + 1, 43)
    S(f"v_and_b32 v{T}, 15, v{V_L}")
    S(f"s_lshl_b32 s{t}, s{t}, 4\nv_add_u32 v{T+1}, s{t}, v{T}")
    S(f"s_lshr_b32 s{t}, s2, 4\nv_lshl_add_u32 v{T+2}, v{T}, 4, s{t}")
    S(f"v_and_b32 v{T+3}, 7, v{V_L}\nv_bfe_u32 v{T+4}, v{V_L}, 3, 1\nv_lshlrev_b32 v{T+3}, 3, v{T+3}")
    S(f"v_lshl_add_u32 v{T+3}, v{T+4}, 7, v{T+3}")
    S(f"s_bfe_u32 s{t}, s2, 0x10004\ns_lshl_b32 s{t}, s{t}, 6\ns_and_b32 s{t+1}, s2, 7\ns_add_u32 s{t}, s{t}, s{t+1}")
    S(f"v_add_u32 v{T+3}, s{t}, v{T+3}")
    S(f"v_lshrrev_b32 v{T+4}, 4, v{V_L}")
    items = groupify([i.text for i in S])
    items.append([f"v_cmp_eq_u32 vcc, 1, v{T+4}", "s_nop 1", f"v_cndmask_b32 v{T+3}, v{T+3}, v{T+2}, vcc"])
    items.append([f"v_cmp_eq_u32 vcc, 2, v{T+4}", "s_nop 1", f"v_cndmask_b32 v{T+3}, v{T+3}, v{T+1}, vcc"])
    items.append(f"v_lshlrev_b32 v{T+3}, 2, v{T+3}")
    fill[24] = fill[24] + items
    fill[26] = fill[26] + f3.p4_srds()
    f1_ld = f"buffer_load_dword v{T+7}, v{T+3}, {sr(SRD_F,4)}, 0 offen offset:{f1.F_1} sc1"
    pk = f3.pack_dma(T + 8) if PACK_EARLY else []
    fill[30] = [f1_ld] + f3.pack_srd() + pk[:14]
    fill[31] = pk[14:]
    for n in range(16):
        for kk in range(2):
            ab = after.get(n) if kk == 1 else None
            seg = f2.kstep2(n, kk, fill.get(2 * n + kk), ab)
            if n == 11 and kk == 1:
                for i in seg:
                    if i.kind == "gwait":
                        i.groups.append("kvst")
            B.add(seg)
            if FINE and kk == 1 and n in (1, 3, 5, 7, 9, 10, 14):
                st(B)
    if FINE:
        st(B)
    B.add(poll("f1", f1_ld, T + 7, t))
    return B


NPRE = 7


def p45(st):
    B = Seg()
    t, VP, VO, VS = 36, f3.V_PL, 254, 255
    S = Seg()
    S(f"s_sub_u32 s{t}, 15, s{f3.S_RB}\ns_min_u32 s{t}, s{t}, s{f3.S_RB}\ns_lshl_b32 s{t}, s{t}, 5")
    S(f"s_lshl_b32 s{t+1}, s{f3.S_KH}, 2\ns_add_u32 s{t}, s{t}, s{t+1}\ns_add_u32 s{t}, s{t}, {(f1.F_2L - f1.F_2S) // 4}")
    S(f"v_and_b32 v{VO}, 3, v{V_L}\nv_lshlrev_b32 v{VO}, 3, v{VO}\nv_bfe_u32 v{VP}, v{V_L}, 2, 2")
    S(f"v_add3_u32 v{VO}, v{VO}, v{VP}, s{t}")
    S(f"s_lshr_b32 s{t}, s{f3.S_CB}, 1\ns_lshl_b32 s{t+1}, s{f3.S_KH}, 7\ns_add_u32 s{t}, s{t}, s{t+1}")
    S(f"v_and_b32 v{VP}, 15, v{V_L}\nv_lshl_add_u32 v{VP}, v{VP}, 3, s{t}")
    S(f"s_xor_b32 s{t}, s2, 4\nv_mov_b32 v{f3.V_TE}, s{t}")
    f2_off = [i.text for i in S] + [[f"v_cmp_lt_u32 vcc, 15, v{V_L}", "s_nop 1", f"v_cndmask_b32 v{VO}, v{VO}, v{f3.V_TE}, vcc"], [f"v_cmp_lt_u32 vcc, 31, v{V_L}", "s_nop 1", f"v_cndmask_b32 v{VO}, v{VO}, v{VP}, vcc"],
                                    f"v_lshlrev_b32 v{VO}, 2, v{VO}"]
    f2_ld = f"buffer_load_dword v{VP}, v{VO}, {sr(SRD_F,4)}, 0 offen offset:{f1.F_2S} sc1"
    su = f3.p5_setup()
    B("s_waitcnt lgkmcnt(0)")
    B.add(f3.p4_reads(0) + sig_off(VS, t))
    SIG = int(os.environ.get("SIGAT", "1"))
    fl = {0: su[:len(su) // 2], 1: su[len(su) // 2:], 2: f2_off}
    for rho in range(NPRE):
        B.add(f3.p4_rho(rho, head=(["@vmwait ctx0", "s_barrier"] + signal(f1.F_2L, VS, VP, t)) if rho == SIG else [],
                        fill=fl.get(rho, [])))
    B(f2_ld)
    st(B)
    B.add(poll("f2", f2_ld, VP, t))
    st(B)
    B.add(f3.p4_rho(7, head=f3.wo_stage(0) + f3.ctx_stage(0),
                    vm=flat([f3.wo_stage(n) + f3.ctx_stage(n) for n in range(1, 4)] + [f3.ctx_stage(n) for n in range(4, 7)])))
    B("@vmwait o0 lgkm\ns_barrier")
    for ct in range(8):
        B(f3.rd_wo(0, 0, ct))
    st(B)
    f3_ld = f"buffer_load_dword v{VP}, v{VO}, {sr(SRD_F,4)}, 0 offen offset:{f1.F_3} sc1"
    f3_off = [f"v_and_b32 v{VO}, 15, v{V_L}", f"s_lshl_b32 s{t}, s{f3.S_CB}, 4", f"v_add_u32 v{VO}, s{t}, v{VO}",
              f"v_lshlrev_b32 v{VO}, 2, v{VO}"]
    pre = chunks(f3.ep_pre(), 10)
    yw = chunks(f3.p4_y_write(), 5) + [f3.p4_y_read()]
    yl = f3.y_loads()
    for u in range(32):
        fl, tags, ab = [None] * 2, (), ()
        if u < 3:
            fl = yw[2 * u:2 * u + 2]
        if u == 3:
            fl = chunks(f3.p4_y_store(), 2)
        if u == 10:
            tags, ab = ("yst",), signal(f1.F_3, VS, VP, t)
        if u == 12:
            fl = [f3_off, [f3_ld]]
        if 19 <= u < 23:
            fl = [flat([x]) for x in yl[2 * (u - 19):2 * (u - 18)]]
            if u == 19:
                fl[0] = [poll("f3", f3_ld, VP, t)] + fl[0]
        if u >= 27:
            fl = pre[2 * (u - 27):2 * (u - 26)]
        B.add(f3.stage(u, fill=fl, bar_tags=tags, after_bar=ab,
                       head0=f3.wo_stage(4) + f3.wo_stage(5) if u == 0 else ()))
        if os.environ.get("DIAG") == "3" and u % 3 == 2:
            st(B)
    st(B)
    B.add(f3.xb_send())
    B.add(f3.xb_recv(SPIN))
    st(B)
    f3.p5_epilogue(B)
    return B


def build(out):
    st = VStamps()
    H = start(st)
    K, V = p1("K", st), p1("V", st)
    J = Seg()
    P2 = p2(st)
    st(P2)
    lin, o3, traces = f2.p3(
        "p3", st, [] if PACK_EARLY else f3.pack_dma(f2.V_T + 5),
        f3.early_x_loads(f2.SRD_X, f2.V_T) + sig_off(76, 36) + signal(f1.F_2S, 76, 77, 37)[:2],
        f3.p4_ur_dma(f2.V_T + 5), f3.p5_ptr_loads(), signal(f1.F_2S, 76, 77, 37)[2:],
        groupify(f3.pack_store(f2.V_T + 8, [96, 100, 104, 108, 128, 132, 136, 140], f2.V_DO)) +
        f3.xb_prefill(f2.V_T + 12, f2.V_DO) + f3.p4_h_loads(),
        f3.p4_prep_items())
    P45 = p45(st)
    E = Seg()
    st.dump(E)
    E("L_end:\ns_endpgm")
    Z = Seg()
    Z("L_code_end:\ns_endpgm")
    if DIAG:
        X = Seg()
        st(X)
        P2[1:1] = list(X)
    allseg = [H, K, V, P2] + lin + [P45, E] + o3 + ool + [Z]
    exp_filter([K, V, P2] + lin + o3 + [P45])
    resolve([[H, B, P2] + t + [P45, E] for B in (K, V) for t in traces], verbose="-v" in sys.argv)
    resolve([[s] for s in ool], verbose=False)
    if "-v" in sys.argv:
        for nm_, sg in (("p1K", [K]), ("p1V", [V]), ("p2", [P2]), ("p45", [P45])):
            overflow_report(nm_, sg)
        for k_, b_ in f2.BODIES.items():
            overflow_report(k_, b_.segs + b_.segs[:1])
    hdr = "; @launch grid=(256,1,1) block=(256,1,1) lds=163840\n" + '.amdgcn_target "amdgcn-amd-amdhsa--gfx950"\n.text\n' + MACROS
    open(out, "w").write(hdr + text_of(allseg) + kernel_desc(NAME))


if __name__ == "__main__":
    build(sys.argv[1])
```

```python
import sys
from common import *
import f1, f2, f3

NAME = "gated_mix__ssm_conv_h3__compressed_kv_cla__prompt_kernel"
SRD_F, SRD_DBG = 8, 12
S_W, V_L = 3, 1
V_PF = 79
SPIN = 400000
ool = []


def sig_off(v, t):
    return [f"v_lshlrev_b32 v{v}, 20, v{V_L}", f"s_lshl_b32 s{t}, s{S_W}, 26", f"v_add_u32 v{v}, s{t}, v{v}"]


def signal(F, voff, vone, t, val=1):
    return [f"v_mov_b32 v{vone}, {val}", f"s_lshl_b32 s{t}, s2, 2",
            f"buffer_store_dword v{vone}, v{voff}, {sr(SRD_F,4)}, s{t} offen offset:{F} sc1"]


def poll(tag, load, vp, t, val=1):
    S = Seg()
    S(f"L_spin_{tag}:\ns_mov_b32 s{t}, {SPIN}\nL_spin_{tag}_l:\ns_sleep 1")
    S(load)
    S(f"s_waitcnt vmcnt(0)\nv_cmp_gt_u32 vcc, {val}, v{vp}\ns_nop 4\ns_cbranch_vccz L_spin_{tag}_ret")
    S(f"s_sub_u32 s{t}, s{t}, 1\ns_cmp_lg_u32 s{t}, 0\ns_cbranch_scc1 L_spin_{tag}_l\ns_branch L_spin_{tag}_ret")
    ool.append(S)
    return [f"v_cmp_gt_u32 vcc, {val}, v{vp}", "s_nop 4", f"s_cbranch_vccnz L_spin_{tag}", f"L_spin_{tag}_ret:"]


def touch_wq_setup():
    return [["s_mov_b32 s4, s34", "s_mov_b32 s5, s35"], [f"s_mov_b32 s6, {8*MB}", "s_mov_b32 s7, 0x20000"],
            "s_lshr_b32 s43, s2, 3", "s_lshl_b32 s43, s43, 2", f"s_add_u32 s43, s43, s{S_W}", "s_lshl_b32 s43, s43, 16",
            "s_and_b32 s37, s2, 7", "s_lshl_b32 s37, s37, 10", "s_add_u32 s43, s43, s37",
            f"v_lshrrev_b32 v78, 3, v{V_L}", f"v_and_b32 v79, 7, v{V_L}", "v_lshlrev_b32 v79, %d, v79" % (27 if "tlbtouch" in EXP else 7),
            "v_lshl_add_u32 v78, v78, 13, v79", "v_add_u32 v78, s43, v78"]


def touch_wq(k, n):
    if n == 1:
        return [f"buffer_load_dword v{V_PF}, v78, s[4:7], 0 offen{NT_Q}"]
    return [f"s_and_b32 s37, s{S_W}, {n-1}", [f"s_cmp_eq_u32 s37, {k}", "s_cselect_b32 s37, 0, 0x40000000"],
            "v_add_u32 v77, s37, v78", f"buffer_load_dword v{V_PF}, v77, s[4:7], 0 offen{NT_Q}"]


def touches(typ):
    H = Seg()
    H(f"v_lshlrev_b32 v8, 7, v{V_L}")
    H(f"s_getpc_b64 s[4:5]\nL_pc{typ}:\ns_lshr_b32 s98, s2, 3\ns_lshl_b32 s98, s98, 2\ns_add_u32 s98, s98, s{S_W}\ns_lshl_b32 s98, s98, 10")
    H(f"v_and_b32 v9, 0x380, v8\nv_add_u32 v9, s98, v9\nv_min_u32 v9, L_code_end - L_pc{typ} - 4, v9")
    H("v_mov_b32 v11, s5\nv_add_co_u32 v10, vcc, s4, v9\nv_addc_co_u32 v11, vcc, 0, v11, vcc")
    H(f"global_load_dword v{V_PF}, v[10:11], off")
    out, items = [], groupify([i.text for i in H])
    for x in items:
        if isinstance(x, str) and (x.endswith(":") or x.startswith("v_addc_co")):
            out[-1] = flat([out[-1]]) + (["s_nop 1"] if x.startswith("v_addc") else []) + [x]
        else:
            out.append(x)
    return out


def start(st):
    H = Seg()
    H(kernel_header(NAME))
    if DIAG:
        H("s_memtime s[98:99]\ns_memrealtime s[100:101]")
    H(f"s_cmp_ge_u32 s2, 256\ns_cbranch_scc1 L_end")
    H(f"s_load_dwordx2 {sr(f1.P_C,2)}, s[0:1], {KA_C}")
    H(f"s_load_dwordx4 {sr(f1.P_WU,4)}, s[0:1], {KA_WUK}")
    H(f"s_load_dwordx2 {sr(f1.S_WS,2)}, s[0:1], {KA_WS}")
    H(f"s_load_dwordx2 s[96:97], s[0:1], {KA_DBG}")
    H.add(f2.ptr_loads()[:2])
    H(f"v_lshrrev_b32 v2, 6, v0\nv_and_b32 v{V_L}, 63, v0\nv_lshlrev_b32 v3, 4, v0")
    H(f"v_readfirstlane_b32 s{S_W}, v2")
    f1.setup(H)
    if DIAG:
        H("v_writelane_b32 v0, s98, 60\nv_writelane_b32 v0, s100, 61")
    st(H)
    srd(H, 4, f1.S_WS, 4096, off=WS_FLAG)
    H("s_lshl_b32 s43, s2, 20\nv_add_u32 v3, s43, v3")
    H("v_mov_b32 v4, 0\nv_mov_b32 v5, 0\nv_mov_b32 v6, 0\nv_mov_b32 v7, 0")
    H("buffer_store_dwordx4 v[4:7], v3, s[4:7], 0 offen sc1")
    H.add(f1.dma_w(0) + f1.dma_c(0))
    f1.setup2(H)
    H("s_mov_b32 s98, 256\ns_mov_b32 s99, 0x20000")
    H(f"v_lshlrev_b32 v3, 16, v3\nv_mov_b32 v4, 1")
    H(f"s_cmp_lg_u32 s2, 0\ns_cselect_b32 s43, 0x10000000, 0\nv_or_b32 v3, s43, v3")
    H("@vmwait c0 w0\ns_barrier")
    if os.environ.get("DIAG") == "2":
        st(H)
    H("buffer_store_dword v4, v3, s[96:99], 0 offen sc1")
    for rt in range(8):
        H(f1.rd_c(0, 0, rt))
    for ct in range(8):
        H.add(f1.rd_w(0, 0, ct))
    H(f"s_cmp_eq_u32 s{f1.S_TYPE}, 0\ns_cbranch_scc0 L_p1_V")
    return H


FINE = os.environ.get('DIAG') == '2'


def p1(typ, st):
    B = Seg()
    n0 = st.n
    if typ == "V":
        B("L_p1_V:")
    p0 = f1.P0()
    NL = int(os.environ.get("NL", "3"))
    ld = chunks(p0.loads(), NL)
    cp = chunks(groupify(p0.compute()), 4)
    if "nop0" in EXP:
        ld, cp = [[]] * NL, [[]] * 4
    su = chunks(groupify(f2.setup()), 2)
    vm = {(0, 0): f1.dma_w(1) + f1.dma_c(1), (6, 0): f2.dma_x(0), (6, 1): f2.dma_q(0) + f2.dma_q(1), (7, 0): f2.dma_x(1)}
    for n in range(6):
        vm[(n, 1)] = f1.dma_w(n + 2)
    for n in range(1, 6):
        vm[(n, 0)] = f1.dma_c(n + 2)
    fill = {(0, 0): f1.type_setup(typ) + touches(typ), (0, 1): p0.ptr_loads(), (1, 0): touch_wq_setup(),
            (1, 1): p0.setup(), (2, 0): [], (2, 1): su[0], (3, 0): [], (3, 1): su[1] + f2.ptr_loads()[2:], (4, 0): [],
            (5, 0): [], (7, 0): cp[3] + f1.store_addr(typ)}
    for k in range(NL):
        fill[(5 - NL + k, 0)] += ld[k]
    NT_ = int(os.environ.get("NTW", "1"))
    T0 = int(os.environ.get("TW0", "5"))
    TWK = int(os.environ.get("TWK", "1"))
    fill[(5, 1)], fill[(6, 0)], fill[(6, 1)] = cp[:3]
    fill[(T0, TWK)] = touch_wq(0, 1) + fill.get((T0, TWK), [])
    for n in range(8):
        for kk in range(2):
            B.add(f1.kstep(typ, n, kk, vm.get((n, kk)), fill.get((n, kk)),
                           f2.p1_last_hook if (n, kk) == (7, 1) else None,
                           **(dict(bar=int(os.environ.get('BAR0', '44')), vm_pre=f1.dma_c(2)) if (n, kk) == (0, 1) else {})))
            if FINE and kk == 1 and n < 7:
                st(B)
    if typ == "K":
        st.n = n0
    if typ == "K":
        B("s_branch L_p2")
    return B


PACK_EARLY = os.environ.get('PACKE', '1') == '1'


def p2(st):
    B = Seg()
    B("L_p2:")
    NE = 20
    ep = chunks(f1.epilogue_items(), NE)
    fill = {k: list(ep[k]) for k in range(NE)}
    S = Seg()
    srd(S, SRD_F, 40, 4096, off=WS_FLAG)
    srd(S, SRD_DBG, 38, 256)
    fill[0] = groupify([i.text for i in S]) + fill[0]
    go_ld = f"buffer_load_dword v254, off, {sr(SRD_DBG,4)}, 0 sc1"
    fill[14] = fill[14] + [go_ld]
    zero = [f"v_accvgpr_write_b32 a{f2.A_O+i}, 0" for i in range(128)]
    for k, z in enumerate(chunks(zero, 8)):
        fill[NE + 2 + k] = z
    T, t = 230, 36
    fill[20] = sig_off(255, t)
    fill[21] = f2.setup3(T)
    after = {11: poll("go", go_ld, 254, t) + signal(f1.F_1, 255, 254, t) + f3.p4_ptr_loads(),
             13: [f"s_load_dwordx2 s[32:33], s[0:1], {KA_WO}"]}
    S = Seg()
    f3.rb_cb(S, t, t + 1, 43)
    S(f"v_and_b32 v{T}, 15, v{V_L}")
    S(f"s_lshl_b32 s{t}, s{t}, 4\nv_add_u32 v{T+1}, s{t}, v{T}")
    S(f"s_lshr_b32 s{t}, s2, 4\nv_lshl_add_u32 v{T+2}, v{T}, 4, s{t}")
    S(f"v_and_b32 v{T+3}, 7, v{V_L}\nv_bfe_u32 v{T+4}, v{V_L}, 3, 1\nv_lshlrev_b32 v{T+3}, 3, v{T+3}")
    S(f"v_lshl_add_u32 v{T+3}, v{T+4}, 7, v{T+3}")
    S(f"s_bfe_u32 s{t}, s2, 0x10004\ns_lshl_b32 s{t}, s{t}, 6\ns_and_b32 s{t+1}, s2, 7\ns_add_u32 s{t}, s{t}, s{t+1}")
    S(f"v_add_u32 v{T+3}, s{t}, v{T+3}")
    S(f"v_lshrrev_b32 v{T+4}, 4, v{V_L}")
    items = groupify([i.text for i in S])
    items.append([f"v_cmp_eq_u32 vcc, 1, v{T+4}", "s_nop 1", f"v_cndmask_b32 v{T+3}, v{T+3}, v{T+2}, vcc"])
    items.append([f"v_cmp_eq_u32 vcc, 2, v{T+4}", "s_nop 1", f"v_cndmask_b32 v{T+3}, v{T+3}, v{T+1}, vcc"])
    items.append(f"v_lshlrev_b32 v{T+3}, 2, v{T+3}")
    fill[24] = fill[24] + items
    fill[26] = fill[26] + f3.p4_srds()
    f1_ld = f"buffer_load_dword v{T+7}, v{T+3}, {sr(SRD_F,4)}, 0 offen offset:{f1.F_1} sc1"
    pk = f3.pack_dma(T + 8) if PACK_EARLY else []
    fill[30] = [f1_ld] + f3.pack_srd() + pk[:14]
    fill[31] = pk[14:]
    for n in range(16):
        for kk in range(2):
            ab = after.get(n) if kk == 1 else None
            seg = f2.kstep2(n, kk, fill.get(2 * n + kk), ab)
            if n == 11 and kk == 1:
                for i in seg:
                    if i.kind == "gwait":
                        i.groups.append("kvst")
            B.add(seg)
            if FINE and kk == 1 and n in (1, 3, 5, 7, 9, 10, 14):
                st(B)
    if FINE:
        st(B)
    B.add(poll("f1", f1_ld, T + 7, t))
    return B


NPRE = 7


def p45(st):
    B = Seg()
    t, VP, VO, VS = 36, f3.V_PL, 254, 255
    S = Seg()
    S(f"s_sub_u32 s{t}, 15, s{f3.S_RB}\ns_min_u32 s{t}, s{t}, s{f3.S_RB}\ns_lshl_b32 s{t}, s{t}, 5")
    S(f"s_lshl_b32 s{t+1}, s{f3.S_KH}, 2\ns_add_u32 s{t}, s{t}, s{t+1}\ns_add_u32 s{t}, s{t}, {(f1.F_2L - f1.F_2S) // 4}")
    S(f"v_and_b32 v{VO}, 3, v{V_L}\nv_lshlrev_b32 v{VO}, 3, v{VO}\nv_bfe_u32 v{VP}, v{V_L}, 2, 2")
    S(f"v_add3_u32 v{VO}, v{VO}, v{VP}, s{t}")
    S(f"s_lshr_b32 s{t}, s{f3.S_CB}, 1\ns_lshl_b32 s{t+1}, s{f3.S_KH}, 7\ns_add_u32 s{t}, s{t}, s{t+1}")
    S(f"v_and_b32 v{VP}, 15, v{V_L}\nv_lshl_add_u32 v{VP}, v{VP}, 3, s{t}")
    S(f"s_xor_b32 s{t}, s2, 4\nv_mov_b32 v{f3.V_TE}, s{t}")
    f2_off = [i.text for i in S] + [[f"v_cmp_lt_u32 vcc, 15, v{V_L}", "s_nop 1", f"v_cndmask_b32 v{VO}, v{VO}, v{f3.V_TE}, vcc"], [f"v_cmp_lt_u32 vcc, 31, v{V_L}", "s_nop 1", f"v_cndmask_b32 v{VO}, v{VO}, v{VP}, vcc"],
                                    f"v_lshlrev_b32 v{VO}, 2, v{VO}"]
    f2_ld = f"buffer_load_dword v{VP}, v{VO}, {sr(SRD_F,4)}, 0 offen offset:{f1.F_2S} sc1"
    su = f3.p5_setup()
    B("s_waitcnt lgkmcnt(0)")
    B.add(f3.p4_reads(0) + sig_off(VS, t))
    SIG = int(os.environ.get("SIGAT", "1"))
    fl = {0: su[:len(su) // 2], 1: su[len(su) // 2:], 2: f2_off}
    for rho in range(NPRE):
        B.add(f3.p4_rho(rho, head=(["@vmwait ctx0", "s_barrier"] + signal(f1.F_2L, VS, VP, t)) if rho == SIG else [],
                        fill=fl.get(rho, [])))
    B(f2_ld)
    st(B)
    B.add(poll("f2", f2_ld, VP, t))
    st(B)
    B.add(f3.p4_rho(7, head=f3.wo_stage(0) + f3.ctx_stage(0),
                    vm=flat([f3.wo_stage(n) + f3.ctx_stage(n) for n in range(1, 4)] + [f3.ctx_stage(n) for n in range(4, 7)])))
    B("@vmwait o0 lgkm\ns_barrier")
    for ct in range(8):
        B(f3.rd_wo(0, 0, ct))
    st(B)
    f3_ld = f"buffer_load_dword v{VP}, v{VO}, {sr(SRD_F,4)}, 0 offen offset:{f1.F_3} sc1"
    f3_off = [f"v_and_b32 v{VO}, 15, v{V_L}", f"s_lshl_b32 s{t}, s{f3.S_CB}, 4", f"v_add_u32 v{VO}, s{t}, v{VO}",
              f"v_lshlrev_b32 v{VO}, 2, v{VO}"]
    pre = chunks(f3.ep_pre(), 10)
    yw = chunks(f3.p4_y_write(), 5) + [f3.p4_y_read()]
    yl = f3.y_loads()
    for u in range(32):
        fl, tags, ab = [None] * 2, (), ()
        if u < 3:
            fl = yw[2 * u:2 * u + 2]
        if u == 3:
            fl = chunks(f3.p4_y_store(), 2)
        if u == 10:
            tags, ab = ("yst",), signal(f1.F_3, VS, VP, t)
        if u == 12:
            fl = [f3_off, [f3_ld]]
        if 19 <= u < 23:
            fl = [flat([x]) for x in yl[2 * (u - 19):2 * (u - 18)]]
            if u == 19:
                fl[0] = [poll("f3", f3_ld, VP, t)] + fl[0]
        if u >= 27:
            fl = pre[2 * (u - 27):2 * (u - 26)]
        B.add(f3.stage(u, fill=fl, bar_tags=tags, after_bar=ab,
                       head0=f3.wo_stage(4) + f3.wo_stage(5) if u == 0 else ()))
        if os.environ.get("DIAG") == "3" and u % 3 == 2:
            st(B)
    st(B)
    B.add(f3.xb_send())
    B.add(f3.xb_recv(SPIN))
    st(B)
    f3.p5_epilogue(B)
    return B


def build(out):
    st = VStamps()
    H = start(st)
    K, V = p1("K", st), p1("V", st)
    J = Seg()
    P2 = p2(st)
    st(P2)
    lin, o3, traces = f2.p3(
        "p3", st, [] if PACK_EARLY else f3.pack_dma(f2.V_T + 5),
        f3.early_x_loads(f2.SRD_X, f2.V_T) + sig_off(76, 36) + signal(f1.F_2S, 76, 77, 37)[:2],
        f3.p4_ur_dma(f2.V_T + 5), f3.p5_ptr_loads(), signal(f1.F_2S, 76, 77, 37)[2:],
        groupify(f3.pack_store(f2.V_T + 8, [96, 100, 104, 108, 128, 132, 136, 140], f2.V_DO)) +
        f3.xb_prefill(f2.V_T + 12, f2.V_DO) + f3.p4_h_loads(),
        f3.p4_prep_items())
    P45 = p45(st)
    E = Seg()
    st.dump(E)
    E("L_end:\ns_endpgm")
    Z = Seg()
    Z("L_code_end:\ns_endpgm")
    if DIAG:
        X = Seg()
        st(X)
        P2[1:1] = list(X)
    allseg = [H, K, V, P2] + lin + [P45, E] + o3 + ool + [Z]
    exp_filter([K, V, P2] + lin + o3 + [P45])
    resolve([[H, B, P2] + t + [P45, E] for B in (K, V) for t in traces], verbose="-v" in sys.argv)
    resolve([[s] for s in ool], verbose=False)
    if "-v" in sys.argv:
        for nm_, sg in (("p1K", [K]), ("p1V", [V]), ("p2", [P2]), ("p45", [P45])):
            overflow_report(nm_, sg)
        for k_, b_ in f2.BODIES.items():
            overflow_report(k_, b_.segs + b_.segs[:1])
    hdr = "; @launch grid=(256,1,1) block=(256,1,1) lds=163840\n" + '.amdgcn_target "amdgcn-amd-amdhsa--gfx950"\n.text\n' + MACROS
    open(out, "w").write(hdr + text_of(allseg) + kernel_desc(NAME))


if __name__ == "__main__":
    build(sys.argv[1])
```

```python
from common import *

S_W = 3
V_L = 1

SRD_C, SRD_W, SRD_O = 8, 12, 16
S_COFF, S_WOFF, S_MC, S_MW = 20, 21, 22, 23
S_D = 24
S_T = 36
S_WS = 40
S_TYPE = 42
P_C, P_WU = 88, 92
V_CF, V_WF = 80, 144
V_CD, V_WD, V_CA, V_WA = 176, 184, 192, 196
V_T = 204
V_ST = 228
V_EP = 230
LDS_W = 98304

ROT = 0 if 'norot' in EXP else 7
F_1, F_2S, F_2L, F_3 = 0, 1024, 2048, 3072


def acc(typ, ct, rt):
    if typ == "K":
        p = ct >> 1
        k = (rt >> 1) * 8 + (rt & 1) + 2 * (p & 1) + 4 * (p >> 1)
        return (k * 2 + (ct & 1)) * 4
    k = (rt >> 1) * 8 + ct
    return (k * 2 + (rt & 1)) * 4


def setup(S):
    t, T, l = S_T, V_T, V_L
    S(f"s_and_b32 s{t}, s2, 7")
    S(f"s_lshr_b32 s{t+1}, s2, 3")
    S(f"s_and_b32 s{t+2}, s{t+1}, 7")
    S(f"s_lshr_b32 s{t+1}, s{t+1}, 3")
    S(f"s_lshr_b32 s{S_TYPE}, s{t+1}, 1")
    S(f"s_and_b32 s{t+1}, s{t+1}, 1")
    S(f"s_lshl_b32 s{t}, s{t}, 1")
    S(f"s_add_u32 s{t}, s{t}, s{t+1}")
    S(f"s_lshl_b32 s{S_D}, s{t+2}, 18")
    S(f"s_lshl_b32 s{t+3}, s{S_W}, 16")
    S(f"s_add_u32 s{S_D}, s{S_D}, s{t+3}")
    S(f"s_lshl_b32 s{S_D+1}, s{S_W}, 17")
    S(f"s_lshl_b32 s{t+3}, s{t}, 9")
    S(f"s_add_u32 s{S_D+1}, s{S_D+1}, s{t+3}")
    S(f"s_and_b32 s{S_COFF}, s2, {ROT}")
    S(f"s_lshl_b32 s{S_WOFF}, s{S_COFF}, 19")
    S(f"s_lshl_b32 s{S_COFF}, s{S_COFF}, 7")
    S(f"s_lshl_b32 s{S_MC}, s{S_W}, 13")
    S(f"s_add_u32 s{S_MW}, s{S_MC}, {LDS_W}")
    S(f"v_lshrrev_b32 v{T}, 3, v{l}")
    S(f"v_lshlrev_b32 v{T}, 10, v{T}")
    S(f"v_lshrrev_b32 v{T+1}, 4, v{l}")
    S(f"v_and_b32 v{T+2}, 7, v{l}")
    S(f"v_xor_b32 v{T+2}, v{T+2}, v{T+1}")
    S(f"v_lshl_add_u32 v{T}, v{T+2}, 4, v{T}")
    S(f"v_xor_b32 v{T+3}, 64, v{T}")
    for i in range(8):
        S(f"v_add_u32 v{V_CD+i}, {8192*i - 1024*(i&3)}, v{T + (3 if i & 1 else 0)}")
    S(f"v_lshrrev_b32 v{T}, 5, v{l}")
    S(f"v_and_b32 v{T+2}, 31, v{l}")
    S(f"v_lshlrev_b32 v{T+3}, 1, v{T}")
    S(f"v_xor_b32 v{T+2}, v{T+2}, v{T+3}")
    S(f"v_lshlrev_b32 v{T}, 13, v{T}")
    for i in range(8):
        x = (2 * (i & 1) + 4 * ((i >> 2) & 1)) << 1
        S(f"v_xor_b32 v{T+3}, {x}, v{T+2}")
        S(f"v_lshl_add_u32 v{T+3}, v{T+3}, 4, v{T}")
        S(f"v_add_u32 v{V_WD+i}, {16384*i - 1024*(i&3)}, v{T+3}")
    S("s_waitcnt lgkmcnt(0)")
    srd(S, SRD_C, P_C, 64 * 1024, off=f"s{S_D}")
    S(f"s_cmp_eq_u32 s{S_TYPE}, 0")
    S(f"s_cselect_b32 s{SRD_W}, s{P_WU}, s{P_WU+2}")
    S(f"s_cselect_b32 s{SRD_W+1}, s{P_WU+1}, s{P_WU+3}")
    S(f"s_add_u32 s{SRD_W}, s{SRD_W}, s{S_D+1}\ns_addc_u32 s{SRD_W+1}, s{SRD_W+1}, 0")
    S(f"s_sub_u32 s{SRD_W+2}, {512*4096*2}, s{S_D+1}\ns_mov_b32 s{SRD_W+3}, 0x20000")


def setup2(S):
    t, T, l = S_T, V_T, V_L
    S(f"v_and_b32 v{T}, 15, v{l}")
    S(f"v_lshrrev_b32 v{T+2}, 1, v{T}")
    S(f"v_xor_b32 v{T+2}, v{T+2}, v{T+1}")
    S(f"v_lshlrev_b32 v{T+2}, 4, v{T+2}")
    S(f"v_lshl_add_u32 v{T+2}, v{T}, 7, v{T+2}")
    S(f"s_and_b32 s{t+3}, s{S_W}, 1")
    S(f"s_lshl_b32 s{t+3}, s{t+3}, 14")
    S(f"v_add_u32 v{V_CA}, s{t+3}, v{T+2}")
    S(f"v_xor_b32 v{V_CA+1}, 64, v{V_CA}")
    S(f"v_add_u32 v{V_CA+2}, 0x10000, v{V_CA}")
    S(f"v_add_u32 v{V_CA+3}, 0x10000, v{V_CA+1}")
    S(f"v_bfe_u32 v{T}, v{l}, 2, 2")
    S(f"v_and_b32 v{T+2}, 1, v{T+1}")
    S(f"v_lshl_or_b32 v{T+2}, v{T+2}, 2, v{T}")
    S(f"v_lshl_add_u32 v{T}, v{T+1}, 3, v{T}")
    S(f"v_lshlrev_b32 v{T}, 9, v{T}")
    S(f"v_and_b32 v{T+3}, 3, v{l}")
    S(f"v_lshl_add_u32 v{T}, v{T+3}, 3, v{T}")
    S(f"s_lshr_b32 s{t+3}, s{S_W}, 1")
    S(f"s_lshl_b32 s{t+3}, s{t+3}, 8")
    S(f"s_add_u32 s{t+3}, s{t+3}, {LDS_W}")
    S(f"v_add_u32 v{T}, s{t+3}, v{T}")
    for ct in range(8):
        S(f"v_xor_b32 v{T+3}, {ct}, v{T+2}")
        S(f"v_lshl_add_u32 v{V_WA+ct}, v{T+3}, 5, v{T}")
    S(f"s_lshl_b32 s{t}, s{t}, 1")
    S(f"s_lshr_b32 s{t+3}, s{S_W}, 1")
    S(f"s_add_u32 s{t}, s{t}, s{t+3}")
    S(f"s_lshl_b32 s{S_D}, s{t}, 19")
    S(f"s_lshl_b32 s{t+2}, s{t+2}, 16")
    S(f"s_add_u32 s{S_D}, s{S_D}, s{t+2}")
    S(f"s_and_b32 s{t+3}, s{S_W}, 1")
    S(f"s_lshl_b32 s{t+3}, s{t+3}, 15")
    S(f"s_add_u32 s{S_D}, s{S_D}, s{t+3}")
    S(f"s_lshl_b32 s{t}, s{S_TYPE}, 24")
    srd(S, SRD_O, S_WS, 16 * MB, off=f"s{t}")


def type_setup(typ):
    bits = (128, 2048, 4096) if typ == "K" else (256, 1024, 2048)
    return [f"s_add_u32 s{S_D+j}, s{S_D}, {sum(b for q, b in enumerate(bits) if j >> q & 1)}" for j in range(1, 8)]


def store_addr(typ):
    T, l = V_EP, V_L
    if typ == "K":
        return [f"v_bfe_u32 v{T}, v{l}, 4, 1", f"v_lshlrev_b32 v{T}, 10, v{T}", f"v_bfe_u32 v{T+1}, v{l}, 3, 1",
                f"v_lshl_add_u32 v{T}, v{T+1}, 8, v{T}", f"v_and_b32 v{T+1}, 7, v{l}",
                f"v_lshl_add_u32 v{T}, v{T+1}, 4, v{T}", f"v_lshrrev_b32 v{T+1}, 5, v{l}",
                f"v_lshl_add_u32 v{V_ST}, v{T+1}, 9, v{T}"]
    return [f"v_lshrrev_b32 v{T}, 5, v{l}", f"v_lshlrev_b32 v{T}, 12, v{T}", f"v_and_b32 v{T+1}, 15, v{l}",
            f"v_lshl_add_u32 v{T}, v{T+1}, 4, v{T}", f"v_bfe_u32 v{T+1}, v{l}, 4, 1",
            f"v_lshl_add_u32 v{V_ST}, v{T+1}, 9, v{T}"]


def dma_c(n):
    out = []
    for i in range(8):
        if i % 4 == 0:
            out.append(f"s_add_u32 m0, s{S_MC}, {(n % 3)*32768 + (i >> 2)*4096}")
        out.append(f"buffer_load_dwordx4 v{V_CD+i}, {sr(SRD_C,4)}, s{S_COFF} offen offset:{1024*(i&3)} lds #c{n}")
    out += [f"s_add_u32 s{S_COFF}, s{S_COFF}, 128", f"s_and_b32 s{S_COFF}, s{S_COFF}, 1023"]
    return out


def dma_w(n):
    out = []
    for i in range(8):
        if i % 4 == 0:
            out.append(f"s_add_u32 m0, s{S_MW}, {(n & 1)*32768 + (i >> 2)*4096}")
        out.append(f"buffer_load_dwordx4 v{V_WD+i}, {sr(SRD_W,4)}, s{S_WOFF} offen offset:{1024*(i&3)}{NT_W} lds #w{n}")
    out += [f"s_add_u32 s{S_WOFF}, s{S_WOFF}, {64*8192}", f"s_and_b32 s{S_WOFF}, s{S_WOFF}, {4*MB - 1}"]
    return out


def rd_c(n, kk, rt):
    slot = n % 3
    va = V_CA + kk + (2 if slot == 2 else 0)
    return f"ds_read_b128 {vr(V_CF + kk*32 + rt*4, 4)}, v{va} offset:{(slot & 1)*32768 + rt*2048}"


def rd_w(n, kk, ct):
    return [f"ds_read_b64_tr_b16 {vr(V_WF + ct*4 + 2*a, 2)}, v{V_WA+ct} offset:{(n & 1)*32768 + (32*kk + 4*a)*512}"
            for a in range(2)]


def kstep(typ, n, kk, vm=None, fill=None, last=None, bar=9, vm_pre=None):
    mf = []
    for ct in range(8):
        for rt in range(8):
            w, c, d = vr(V_WF + ct * 4, 4), vr(V_CF + kk * 32 + rt * 4, 4), ar(acc(typ, ct, rt), 4)
            cin = "0" if (n == 0 and kk == 0) else None
            mf.append(mfma16(d, w, c, cin) if typ == "K" else mfma16(d, c, w, cin))
    sc = Sched(mf, 2)
    fg = 0
    sc.pin(0, [] if (n == 0 and kk == 0) else [])
    if last:
        last(sc)
    else:
        nn, nkk = (n, 1) if kk == 0 else (n + 1, 0)
        if kk == 1:
            sc.pin(bar, [f"@vmwait c{n+1} w{n+1} lgkm", "s_barrier"])
            fg = bar + 1
            if vm_pre:
                sc.stream(vm_pre, 0, bar - 1, prio=1)
        rw, at = [], []
        for ct in range(8):
            rw += rd_w(nn, nkk, ct)
            at += [min(63, max(8 * ct + 7, fg + 2 * ct))] * 2
        sc.stream(rw, at=at, prio=3)
        sc.stream([rd_c(nn, nkk, rt) for rt in range(8)], fg + 1, max(52, fg + 10), prio=2)
    if vm:
        sc.stream(vm, fg, 62, prio=1)
    if fill:
        sc.stream(fill, fg if kk == 1 else 0, 62)
    head = [] if (n == 0 and kk == 0) else ["s_waitcnt lgkmcnt(2)"]
    return sc.build(head)


def epilogue_items(flavor="sc1"):
    items = []
    for k in range(32):
        T = V_EP + (k & 1) * 12
        for j in range(8):
            items.append(f"v_accvgpr_read_b32 v{T+4+j}, a{8*k+j}")
        for u in range(4):
            items.append(f"v_cvt_pk_bf16_f32 v{T+u}, v{T+4+2*u}, v{T+5+2*u}")
        if k >> 3:
            items.append(f"s_add_u32 s{S_T}, s{S_D + (k & 7)}, {(k >> 3)*8192}")
            items.append(f"buffer_store_dwordx4 {vr(T,4)}, v{V_ST}, {sr(SRD_O,4)}, s{S_T} offen {flavor} #kvst")
        else:
            items.append(f"buffer_store_dwordx4 {vr(T,4)}, v{V_ST}, {sr(SRD_O,4)}, s{S_D+k} offen {flavor} #kvst")
    return items


class P0:
    V_K, V_V, V_SH, V_A = 16, 38, 54, 62
    V_GX, V_GW = 230, 2
    V_KF, V_WF = 230, 2
    V_T = 252
    V_KO, V_UO, V_GO = 229, 10, 11
    V_SO, V_XO, V_GWO = 62, 63, 64
    SRD_K, SRD_V, SRD_X, SRD_SH, SRD_GW = 84, 88, 92, 96, 76
    SRD_U, SRD_G = 84, 88
    S_T = 36

    def ptr_loads(self):
        return [f"s_load_dwordx2 {sr(d,2)}, s[0:1], {ka}" for d, ka in
                ((self.SRD_K, KA_K), (self.SRD_V, KA_V), (self.SRD_X, KA_Q), (self.SRD_SH, KA_SHIFT), (self.SRD_GW, KA_GW))]

    def setup(self):
        S = Seg()
        t, T, l = self.S_T, self.V_T, V_L
        for d, n in ((self.SRD_K, 4 * MB), (self.SRD_V, 4 * MB), (self.SRD_X, 4 * MB), (self.SRD_SH, 8192), (self.SRD_GW, 2048)):
            S(f"s_mov_b32 s{d+2}, {n}\ns_mov_b32 s{d+3}, 0x20000")
        S(f"s_and_b32 s{t}, s2, 15")
        S(f"s_lshl_b32 s{t}, s{t}, 1")
        S(f"s_lshr_b32 s{t+1}, s{S_W}, 1")
        S(f"s_add_u32 s{t}, s{t}, s{t+1}")
        S(f"s_lshl_b32 s{t}, s{t}, 3")
        S(f"v_and_b32 v{T}, 7, v{l}")
        S(f"v_add_u32 v{T}, s{t}, v{T}")
        S(f"s_lshr_b32 s{t}, s2, 4")
        S(f"s_lshl_b32 s{t}, s{t}, 1")
        S(f"s_and_b32 s{t+1}, s{S_W}, 1")
        S(f"s_add_u32 s{t}, s{t}, s{t+1}")
        S(f"s_lshl_b32 s{t}, s{t}, 3")
        S(f"v_lshrrev_b32 v{T+1}, 3, v{l}")
        S(f"v_add_u32 v{T+1}, s{t}, v{T+1}")
        S(f"v_lshlrev_b32 v{T+2}, 14, v{T+1}")
        S(f"v_lshl_add_u32 v{T+2}, v{T}, 3, v{T+2}")
        S(f"v_add_u32 v{self.V_KO}, {-3*2048}, v{T+2}")
        S(f"v_lshlrev_b32 v{self.V_SO}, 5, v{T}")
        S(f"v_lshlrev_b32 v{T+2}, 4, v{T+1}")
        S(f"v_sub_u32 v{T+2}, 4080, v{T+2}")
        S(f"v_lshl_add_u32 v{self.V_UO}, v{T}, 14, v{T+2}")
        S(f"v_and_b32 v{T}, 31, v{l}")
        S(f"v_lshlrev_b32 v{self.V_GWO}, 4, v{T}")
        S(f"s_lshl_b32 s{t}, s2, 2")
        S(f"s_add_u32 s{t}, s{t}, s{S_W}")
        S(f"s_lshl_b32 s{t}, s{t}, 1")
        S(f"v_lshrrev_b32 v{T+1}, 5, v{l}")
        S(f"v_add_u32 v{T+1}, s{t}, v{T+1}")
        S(f"v_lshl_add_u32 v{self.V_XO}, v{T+1}, 11, v{self.V_GWO}")
        S(f"v_lshlrev_b32 v{T+1}, 2, v{T+1}")
        S(f"v_lshl_add_u32 v{self.V_GO}, v{T}, 20, v{T+1}")
        return [i.text for i in S]

    def gw(self, i):
        return (2, 6, 12, 246)[i]

    def loads(self):
        out = []
        T = self.V_T
        for i in range(4):
            out.append(f"buffer_load_dwordx4 {vr(self.V_GX+4*i,4)}, v{self.V_XO}, {sr(self.SRD_X,4)}, 0 offen offset:{512*i}")
            out.append(f"buffer_load_dwordx4 {vr(self.gw(i),4)}, v{self.V_GWO}, {sr(self.SRD_GW,4)}, 0 offen offset:{512*i}")
        for i in range(2):
            out.append(f"buffer_load_dwordx4 {vr(self.V_SH+4*i,4)}, v{self.V_SO}, {sr(self.SRD_SH,4)}, 0 offen offset:{16*i}")
        for i in range(11):
            tmp = T + (i & 3)
            out += [f"v_add_u32 v{tmp}, {2048*i}, v{self.V_KO}",
                    f"buffer_load_dwordx2 {vr(self.V_K+2*i,2)}, v{tmp}, {sr(self.SRD_K,4)}, 0 offen{NT_K}"]
            if i >= 3:
                out.append(f"buffer_load_dwordx2 {vr(self.V_V+2*(i-3),2)}, v{tmp}, {sr(self.SRD_V,4)}, 0 offen{NT_K}")
        return out

    def compute(self, flavor="sc1"):
        S = Seg()
        srd(S, self.SRD_U, S_WS, 4 * MB, off=WS_UR)
        srd(S, self.SRD_G, S_WS, 8192, off=WS_G)
        out = [i.text for i in S]
        T = self.V_T
        a = T
        out.append(f"v_mov_b32 v{a}, 0")
        out.append(f"v_mov_b32 v{a+1}, 0")
        for i in range(16):
            out.append(f"v_dot2_f32_bf16 v{a + (i & 1)}, v{self.V_GX+i}, v{self.gw(i >> 2) + (i & 3)}, v{a + (i & 1)}")
        out.append(["s_nop 2", f"v_add_f32 v{a}, v{a}, v{a+1}"])
        for r in (8, 4, 2, 1):
            out.append(f"v_add_f32_dpp v{a}, v{a}, v{a} row_ror:{r} row_mask:0xf bank_mask:0xf")
        out.append(f"v_mov_b32 v{a+1}, v{a}")
        out.append(f"v_permlane16_swap_b32 v{a}, v{a+1}")
        out.append(f"v_add_f32 v{a}, v{a}, v{a+1}")
        out.append(f"v_mul_f32 v{a}, 0xbfb8aa3b, v{a}")
        out.append(f"v_exp_f32 v{a}, v{a}")
        out.append(f"v_add_f32 v{a}, 1.0, v{a}")
        out.append(f"v_rcp_f32 v{a}, v{a}")
        out.append(["s_nop 0", f"buffer_store_dword v{a}, v{self.V_GO}, {sr(self.SRD_G,4)}, 0 offen {flavor}"])
        for cp in range(2):
            for c in range(2):
                sh = self.V_SH + 4 * cp + 2 * c
                w = self.V_WF + 4 * c
                out += [f"v_lshlrev_b32 v{w}, 16, v{sh}", f"v_and_b32 v{w+1}, 0xffff0000, v{sh}",
                        f"v_lshlrev_b32 v{w+2}, 16, v{sh+1}", f"v_and_b32 v{w+3}, 0xffff0000, v{sh+1}"]
            for i in range(11):
                k = self.V_K + 2 * i + cp
                out += [f"v_lshlrev_b32 v{self.V_KF+2*i}, 16, v{k}", f"v_and_b32 v{self.V_KF+2*i+1}, 0xffff0000, v{k}"]
            for rho in range(8):
                v = self.V_V + 2 * rho + cp
                out += [f"v_lshlrev_b32 v{T+2}, 16, v{v}", f"v_and_b32 v{T+3}, 0xffff0000, v{v}"]
                for j in range(4):
                    for c in range(2):
                        A = self.V_A + 8 * c + rho
                        kf = self.V_KF + 2 * (rho + 3 - j) + c
                        w = self.V_WF + 4 * c + j
                        out.append(f"v_mul_f32 v{A}, v{kf}, v{w}" if j == 0 else f"v_fmac_f32 v{A}, v{kf}, v{w}")
                for c in range(2):
                    A = self.V_A + 8 * c + rho
                    out.append(f"v_mul_f32 v{A}, v{A}, v{T+2+c}")
            for c in range(2):
                P = (12, self.V_SH)[c] if cp == 0 else (self.V_KF, self.V_KF + 4)[c]
                A = self.V_A + 8 * c
                for e in range(4):
                    out.append(f"v_cvt_pk_bf16_f32 v{P+e}, v{A+7-2*e}, v{A+6-2*e}")
                out += [f"s_mov_b32 s{self.S_T}, {4096*(2*cp + c)}",
                        f"buffer_store_dwordx4 {vr(P,4)}, v{self.V_UO}, {sr(self.SRD_U,4)}, s{self.S_T} offen {flavor}"]
        return out
```

```python
from common import *

S_W = 3
V_L = 1

SRD_H, SRD_UR, SRD_YO, SRD_D = 16, 20, 24, 28
S_T4 = 36
S_DO = 42
S_UB = 43
V_AA, V_BA = 4, 5
V_HW = 6
V_YW, V_YR, V_YS = 7, 8, 9
V_T4 = 16
V_O = 24
V_DA = 44
V_H = 48
V_HO = 72
V_D = 74
V_ACC4 = 76
A_FR = 128
V_YT = 108
H_STRIDE = 4160
H_WAVE = 4 * H_STRIDE
U_LDS, U_WAVE = 132096, 4608
Y_LDS = 49152
WO_LDS = 4 * H_WAVE


def p4_ptr_loads():
    return [f"s_load_dwordx4 s[32:35], s[0:1], {KA_SSMK}"]


def p4_srds():
    S = Seg()
    t = S_T4
    S(f"s_lshl_b32 s{t}, s2, 2")
    S(f"s_add_u32 s{t}, s{t}, s{S_W}")
    S(f"s_lshl_b32 s{S_DO}, s{t}, 1")
    S(f"s_lshl_b32 s{t+1}, s{t}, 12")
    srd(S, SRD_H, 32, 4096, off=f"s{t+1}")
    S(f"s_add_u32 s{t+1}, s{t+1}, {WS_UR}")
    srd(S, SRD_UR, 40, 4096, off=f"s{t+1}")
    S(f"s_lshl_b32 s{t+1}, s2, 14")
    S(f"s_add_u32 s{t+1}, s{t+1}, {WS_Y4}")
    srd(S, SRD_YO, 40, 16384, off=f"s{t+1}")
    srd(S, SRD_D, 34, 2048)
    S(f"s_mul_i32 s{S_UB}, s{S_W}, {U_WAVE}")
    S(f"s_add_u32 s{S_UB}, s{S_UB}, {U_LDS}")
    return groupify([i.text for i in S])


def p4_ur_dma(tmp):
    out = [f"v_lshlrev_b32 v{tmp}, 4, v{V_L}", f"s_mov_b32 m0, s{S_UB}", "s_nop 0"]
    for i in range(4):
        out.append(f"buffer_load_dwordx4 v{tmp}, {sr(SRD_UR,4)}, 0 offen offset:{1024*i} sc1 lds")
    return out


def p4_h_loads():
    out = [f"v_lshlrev_b32 v{V_HO}, 4, v{V_L}", f"v_add_u32 v{V_HO+1}, -8, v{V_HO}", f"v_mov_b32 v{V_D+1}, 0",
           f"buffer_load_ushort v{V_D}, v{V_D+1}, {sr(SRD_D,4)}, s{S_DO} offen"]
    for i in range(4):
        if i == 0:
            out.append(f"buffer_load_dwordx2 {vr(V_H,2)}, v{V_HO+1}, {sr(SRD_H,4)}, 0 offen{NT_K}")
        else:
            out.append(f"buffer_load_dwordx2 {vr(V_H+6*i,2)}, v{V_HO}, {sr(SRD_H,4)}, 0 offen offset:{1024*i - 8}{NT_K}")
        out.append(f"buffer_load_dwordx4 {vr(V_H+6*i+2,4)}, v{V_HO}, {sr(SRD_H,4)}, 0 offen offset:{1024*i}{NT_K}")
    return out


def p4_setup(S):
    T, t, l = V_T4, S_T4, V_L
    S(f"s_mul_i32 s{t}, s{S_W}, {H_WAVE}")
    S(f"v_and_b32 v{T}, 15, v{l}")
    S(f"v_lshrrev_b32 v{T+1}, 4, v{l}")
    S(f"v_add_u32 v{T+2}, 13, v{T}")
    S(f"v_and_b32 v{T+3}, 3, v{T+2}")
    S(f"v_cmp_eq_u32 vcc, 0, v{T+3}")
    S(f"v_lshrrev_b32 v{T+2}, 2, v{T+2}")
    S(f"v_mul_u32_u24 v{T+3}, {H_STRIDE}, v{T+3}")
    S(f"v_cndmask_b32 v{T+3}, v{T+3}, 8, vcc")
    S(f"v_lshl_add_u32 v{T+3}, v{T+2}, 3, v{T+3}")
    S(f"v_lshl_add_u32 v{T+3}, v{T+1}, 4, v{T+3}")
    S(f"v_add_u32 v{V_AA}, s{t}, v{T+3}")
    S(f"v_add_u32 v{V_HW}, s{t}, v{V_HO}")
    S(f"v_lshlrev_b32 v{T+2}, 5, v{T}")
    S(f"v_lshlrev_b32 v{T+3}, 4, v{T+1}")
    S(f"v_sub_u32 v{T+3}, v{T+3}, v{T+2}")
    S(f"s_add_u32 s{t+1}, s{S_UB}, 480")
    S(f"v_add_u32 v{V_BA}, s{t+1}, v{T+3}")
    S(f"v_mul_u32_u24 v{T+2}, 136, v{T}")
    S(f"v_lshl_add_u32 v{T+2}, v{T+1}, 5, v{T+2}")
    S(f"s_lshl_b32 s{t+1}, s{S_W}, 1")
    S(f"s_add_u32 s{t+1}, s{t+1}, {Y_LDS}")
    S(f"v_add_u32 v{V_YW}, s{t+1}, v{T+2}")
    S(f"v_lshrrev_b32 v{T+2}, 3, v{l}")
    S(f"v_mul_u32_u24 v{T+2}, 136, v{T+2}")
    S(f"v_and_b32 v{T+3}, 7, v{l}")
    S(f"v_lshl_add_u32 v{T+2}, v{T+3}, 4, v{T+2}")
    S(f"s_mul_i32 s{t+1}, s{S_W}, {4*1088}")
    S(f"s_add_u32 s{t+1}, s{t+1}, {Y_LDS}")
    S(f"v_add_u32 v{V_YR}, s{t+1}, v{T+2}")
    S(f"s_lshl_b32 s{t+1}, s{S_W}, 12")
    S(f"v_add_u32 v{V_YS}, s{t+1}, v{V_HO}")
    S(f"v_lshl_add_u32 v{T+2}, v{T+1}, 3, v{T}")
    S(f"v_sub_u32 v{V_D+1}, 15, v{T+2}")


def p4_prep(S):
    T, l = V_T4, V_L
    Z = T + 4
    for k in range(4):
        S(f"v_mov_b32 v{Z+k}, 0")
    S(f"v_and_b32 v{T}, 3, v{l}")
    S(f"v_mul_u32_u24 v{T}, {H_STRIDE}, v{T}")
    S(f"v_lshrrev_b32 v{T+1}, 2, v{l}")
    S(f"v_min_u32 v{T+1}, 3, v{T+1}")
    S(f"v_lshl_add_u32 v{T}, v{T+1}, 4, v{T}")
    S(f"v_add_u32 v{T}, s{S_T4}, v{T}")
    S(f"ds_write_b128 v{T}, {vr(Z,4)}")
    S(f"v_and_b32 v{T+1}, 31, v{l}")
    S(f"v_lshlrev_b32 v{T+1}, 4, v{T+1}")
    S(f"v_add_u32 v{T+1}, s{S_UB}, v{T+1}")
    S(f"ds_write_b128 v{T+1}, {vr(Z,4)} offset:4096")
    for i in range(4):
        D = V_H + 6 * i
        O = V_O + 6 * (i & 1)
        for k in range(5):
            S(f"v_alignbit_b32 v{O+k}, v{D+k+1}, v{D+k}, 16")
        off = 48 + 1024 * i
        S(f"ds_write_b128 v{V_HW}, {vr(D+2,4)} offset:{off + 16}")
        S(f"ds_write_b128 v{V_HW}, {vr(O,4)} offset:{off + H_STRIDE}")
        for c, R in ((2, D + 1), (3, O + 1)):
            for k in range(4):
                S(f"v_mov_b32 v{T+k}, v{R+k}")
            S(f"ds_write_b128 v{V_HW}, {vr(T,4)} offset:{off + c*H_STRIDE}")
    S(f"v_lshlrev_b32 v{T}, 16, v{V_D}")
    for i in range(4):
        S(f"v_cmp_eq_u32 vcc, {2*i}, v{V_D+1}")
        S(f"v_cndmask_b32 v{V_DA+i}, 0, v{V_D}, vcc")
        S(f"v_cmp_eq_u32 vcc, {2*i+1}, v{V_D+1}")
        S(f"v_cndmask_b32 v{V_DA+i}, v{V_DA+i}, v{T}, vcc")


def p4_prep_items():
    S = Seg()
    p4_setup(S)
    p4_prep(S)
    out = []
    for x in [i.text for i in S]:
        if x.startswith("v_cndmask") and out[-1].startswith("v_cmp"):
            out[-1] = [out[-1], "s_nop 1", x]
        else:
            out.append(x)
    return out


def afr(rho, q):
    return A_FR + (rho & 1) * 64 + q * 4


def bfr(rho, p):
    return A_FR + (rho & 1) * 64 + 32 + p * 4


def p4_reads(rho):
    out = []
    for k in range(8):
        out.append(f"ds_read_b128 {ar(bfr(rho, k),4)}, v{V_BA} offset:{512*(7-k) + 64*rho}")
        for a in range(2):
            out.append(f"ds_read_b64 {ar(afr(rho, k) + 2*a, 2)}, v{V_AA} offset:{64*(8*k + rho) + 8*a}")
    return out


def p4_mfmas(rho):
    mf = []
    for q in range(8):
        for p in range(8 - q):
            d = vr(V_ACC4 + 4 * (p + q), 4)
            mf.append(mfma16(d, ar(afr(rho, q), 4), ar(bfr(rho, p), 4), "0" if (rho == 0 and q == 0) else None))
        if rho == 0 and q == 0:
            for p in range(8):
                mf.append(mfma16(vr(V_ACC4 + 4 * p, 4), vr(V_DA, 4), ar(bfr(0, p), 4)))
    return mf


def p4_rho(rho, head=(), vm=(), fill=()):
    mf = p4_mfmas(rho)
    sc = Sched(mf, 2)
    if rho < 7:
        sc.stream(p4_reads(rho + 1), 0, 30, prio=2)
    sc.stream(list(vm), 0, len(mf) - 1, prio=1)
    sc.stream(list(fill), 0, len(mf) - 1)
    return sc.build(head)


def p4_y_write():
    out = []
    T = V_T4
    for tt in range(8):
        a = V_ACC4 + 4 * tt
        r = T + 2 * (tt & 1)
        out += [f"v_cvt_pk_bf16_f32 v{r}, v{a}, v{a+1}", f"v_cvt_pk_bf16_f32 v{r+1}, v{a+2}, v{a+3}"]
        for k in range(2):
            out += [f"ds_write_b16 v{V_YW}, v{r+k} offset:{2176*tt + 16*k}",
                    f"ds_write_b16_d16_hi v{V_YW}, v{r+k} offset:{2176*tt + 16*k + 8}"]
    return out


def p4_y_read():
    return [f"ds_read_b64 {vr(V_YT + 4*i + 2*a, 2)}, v{V_YR} offset:{1088*i + 8*a}" for i in range(4) for a in range(2)]


def p4_y_store(flavor="sc1"):
    return [f"buffer_store_dwordx4 {vr(V_YT + 4*i, 4)}, v{V_YS}, {sr(SRD_YO,4)}, 0 offen offset:{1024*i} {flavor} #yst"
            for i in range(4)]


SRD_CX, SRD_WO, SRD_XB, SRD_Y, SRD_OUT = 44, 48, 52, 56, 60
S_CO = 68
S_WO = 69
S_MW = 70
S_CNT = 71
S_T = 72
S_XO, S_YO, S_KH, S_RB, S_CB = 78, 79, 80, 81, 82
P_X, P_WO, P_OUT = 84, 86, 88

V_CD = 236
V_WD = 238
V_WA = 242
V_XV, V_YV, V_GV = 250, 251, 252
V_PL = 253
V_ACC = 124
A_WF = 128
V_RX = 76
V_X = 192
V_Y = 208
V_G = 224
V_A = 36
V_T = 36
V_TE = 228
A_C = 0
RING = int(os.environ.get('RING', '4'))

NS = 32


def acc5(ct, rt):
    return V_ACC + (ct * 2 + rt) * 4


def p5_ptr_loads():
    return [f"s_load_dwordx2 {sr(P_OUT,2)}, s[0:1], {KA_OUT}"]


def rb_cb(S, rb, cb, t):
    S(f"s_and_b32 s{rb}, s2, 3")
    S(f"s_lshl_b32 s{rb}, s{rb}, 1")
    S(f"s_sub_u32 s{t}, 14, s{rb}")
    S(f"s_bitcmp1_b32 s2, 4")
    S(f"s_cselect_b32 s{rb}, s{t}, s{rb}")
    S(f"s_bfe_u32 s{t}, s2, 0x10003")
    S(f"s_add_u32 s{rb}, s{rb}, s{t}")
    S(f"s_bfe_u32 s{cb}, s2, 0x10002")
    S(f"s_lshr_b32 s{t}, s2, 5")
    S(f"s_lshl_b32 s{t}, s{t}, 1")
    S(f"s_add_u32 s{cb}, s{cb}, s{t}")


def p5_setup():
    S = Seg()
    T, t, l = V_T, S_T, V_L
    rb_cb(S, S_RB, S_CB, t + 2)
    S(f"s_mov_b32 s{t}, s{S_RB}\ns_mov_b32 s{t+1}, s{S_CB}")
    S(f"s_lshl_b32 s{t+2}, s{t}, 2")
    S(f"s_add_u32 s{t+2}, s{t+2}, s{S_W}")
    S(f"s_lshl_b32 s{S_CO}, s{t+2}, 18")
    S(f"s_and_b32 s{S_KH}, s{t+1}, 1")
    S(f"s_lshl_b32 s{t+3}, s{S_KH}, 16")
    S(f"s_add_u32 s{S_CO}, s{S_CO}, s{t+3}")
    S(f"s_lshl_b32 s{S_WO}, s{t+1}, 19")
    S(f"s_lshl_b32 s{t+3}, s{t+1}, 7")
    S(f"s_lshl_b32 s{S_MW}, s{S_W}, 12")
    S(f"s_lshl_b32 s{S_XO}, s{t+2}, 16")
    S(f"s_add_u32 s{S_XO}, s{S_XO}, s{t+3}")
    S(f"s_lshl_b32 s{S_YO}, s{t+1}, 18")
    S(f"s_lshl_b32 s{t+3}, s{t+2}, 8")
    S(f"s_add_u32 s{S_YO}, s{S_YO}, s{t+3}")
    S(f"v_lshlrev_b32 v{V_CD}, 4, v{l}")
    S(f"v_add_u32 v{V_CD+1}, 0x20000, v{V_CD}")
    S(f"v_add_u32 v{V_WD}, s{S_MW}, v{V_CD}")
    S(f"s_lshl_b32 s{t+3}, s{S_KH}, 12")
    S(f"v_add_u32 v{V_WA+2}, s{t+3}, v{V_CD}")
    S(f"v_xor_b32 v{V_WA+3}, 0x1000, v{V_WA+2}")
    S(f"v_add_u32 v{V_WA}, {WO_LDS}, v{V_WA+2}")
    S(f"v_add_u32 v{V_WA+1}, {WO_LDS}, v{V_WA+3}")
    S(f"v_bfe_u32 v{T+2}, v{l}, 4, 1")
    S(f"v_lshrrev_b32 v{T+4}, 5, v{l}")
    S(f"v_and_b32 v{T}, 15, v{l}")
    S(f"v_lshlrev_b32 v{T+5}, 5, v{T+2}")
    S(f"v_lshl_add_u32 v{T+5}, v{T+4}, 4, v{T+5}")
    S(f"v_lshl_add_u32 v{V_XV}, v{T}, 11, v{T+5}")
    S(f"v_lshlrev_b32 v{T+5}, 11, v{T+5}")
    S(f"v_lshl_add_u32 v{V_YV}, v{T}, 3, v{T+5}")
    srd(S, SRD_CX, 40, 16 * MB, off=WS_CTX)
    srd(S, SRD_WO, 40, 8 * MB, off=WS_WP)
    srd(S, SRD_XB, 40, 4 * MB, off=WS_XB)
    srd(S, SRD_Y, 40, 4 * MB, off=WS_Y4)
    srd(S, SRD_OUT, P_OUT, 2048 * 1024 * 2)
    return groupify([i.text for i in S])


def ld_ctx(n, kq, rt):
    return f"buffer_load_dwordx4 {ar(A_C + (n % RING)*16 + (kq*2 + rt)*4, 4)}, v{V_CD+rt}, {sr(SRD_CX,4)}, s{S_CO} offen offset:{1024*kq} sc1"


ADV_C = f"s_add_u32 s{S_CO}, s{S_CO}, 2048"
ADV_W = f"s_add_u32 s{S_WO}, s{S_WO}, 16384"


def wo_slot(n):
    k = n % RING
    return (WO_LDS + k * 16384, 0, k * 16384) if k < 4 else ((k - 4) * 16384, 2, (k - 4) * 16384)


def wo_stage(n):
    return [f"s_add_u32 m0, s{S_MW}, {wo_slot(n)[0]}"] + \
        [f"buffer_load_dwordx4 v{V_WD}, {sr(SRD_WO,4)}, s{S_WO} offen offset:{1024*i} sc1 lds #o{n}" for i in range(4)] + [ADV_W]


def ctx_stage(n):
    return [ld_ctx(n, kq, rt) for kq in range(2) for rt in range(2)] + [ADV_C]


def rd_wo(n, kq, ct):
    _, reg, off = wo_slot(n)
    return f"ds_read_b128 {ar(A_WF + kq*32 + ct*4, 4)}, v{V_WA + reg + (ct >> 2)} offset:{off + kq*8192 + (ct & 3)*1024}"


PK_LDS = 131072


def pack_srd():
    return ["s_lshr_b32 s36, s2, 3", "s_lshl_b32 s36, s36, 18", "s_and_b32 s37, s2, 7", "s_lshl_b32 s37, s37, 8",
            "s_add_u32 s36, s36, s37", f"s_lshl_b32 s37, s{S_W}, 16", "s_add_u32 s36, s36, s37",
            ["s_add_u32 s32, s32, s36", "s_addc_u32 s33, s33, 0"], "s_mov_b32 s34, 65536", "s_mov_b32 s35, 0x20000"]


def pack_dma(T):
    out = [f"v_lshrrev_b32 v{T}, 4, v{V_L}", f"v_and_b32 v{T+1}, 15, v{V_L}", f"v_lshlrev_b32 v{T+2}, 1, v{T}",
           f"v_xor_b32 v{T+1}, v{T+1}, v{T+2}", f"v_lshlrev_b32 v{T}, 11, v{T}",
           f"v_lshl_add_u32 v{T}, v{T+1}, 4, v{T}", f"v_xor_b32 v{T+1}, 128, v{T}",
           f"s_lshl_b32 s36, s{S_W}, 13"]
    for i in range(8):
        if i % 4 == 0:
            out.append(f"s_add_u32 m0, s36, {PK_LDS + (i >> 2)*4096}")
        out += [f"s_mov_b32 s37, {8192*i - 1024*(i & 3)}",
                f"buffer_load_dwordx4 v{T + (i & 1)}, s[32:35], s37 offen offset:{1024*(i & 3)}{NT_O} lds #pack"]
    return out


def pack_store(T, regs, vdo):
    l = V_L
    out = [f"v_bfe_u32 v{T}, v{l}, 2, 2", f"v_bfe_u32 v{T+1}, v{l}, 4, 1", f"v_lshl_add_u32 v{T}, v{T+1}, 2, v{T}",
           f"v_lshrrev_b32 v{T+1}, 5, v{l}", f"v_lshl_add_u32 v{T+1}, v{T+1}, 4, v{T}", f"v_lshlrev_b32 v{T+1}, 8, v{T+1}",
           f"v_and_b32 v{T+2}, 3, v{l}", f"v_lshl_add_u32 v{T+1}, v{T+2}, 3, v{T+1}",
           f"s_lshl_b32 s36, s{S_W}, 13", f"s_add_u32 s36, s36, {PK_LDS}", f"v_add_u32 v{T+1}, s36, v{T+1}",
           "@vmwait pack"]
    for j in range(8):
        out += [f"v_xor_b32 v{T+2}, {j}, v{T}", f"v_lshl_add_u32 v{T+2}, v{T+2}, 5, v{T+1}"]
        out += [f"ds_read_b64_tr_b16 {vr(regs[j] + 2*a, 2)}, v{T+2} offset:{2048*a}" for a in range(2)]
    S = Seg()
    srd(S, 32, 40, 8 * MB, off=WS_WP)
    out += [i.text for i in S]
    out += ["s_and_b32 s36, s2, 7", "s_lshl_b32 s36, s36, 20", "s_lshr_b32 s37, s2, 3", "s_lshl_b32 s37, s37, 15",
            "s_add_u32 s36, s36, s37", f"s_lshl_b32 s37, s{S_W}, 12", "s_add_u32 s36, s36, s37", "s_add_u32 s37, s36, 4096"]
    for j in range(8):
        out.append(f"buffer_store_dwordx4 {vr(regs[j],4)}, v{vdo}, s[32:35], s{36 + (j >> 2)} offen offset:{1024*(j & 3)} sc1")
    return out


def y_loads():
    out = []
    for rt in range(2):
        for pr in range(2):
            for e in range(2):
                out.append([f"s_add_u32 s{S_T}, s{S_YO}, {(8*pr + e)*16384}",
                            f"buffer_load_dwordx2 {vr(V_Y + ((rt*2 + pr)*2 + e)*2, 2)}, v{V_YV}, {sr(SRD_Y,4)}, s{S_T} offen offset:{128*rt} sc1"])
    return out


def early_x_loads(srd_x, T):
    S = Seg()
    l = V_L
    rb_cb(S, 36, 37, 32)
    S(f"s_lshl_b32 s36, s36, 2\ns_add_u32 s36, s36, s{S_W}")
    S(f"s_lshl_b32 s37, s37, 7\ns_lshl_b32 s32, s36, 16\ns_add_u32 s37, s37, s32\ns_lshl_b32 s36, s36, 7")
    S(f"v_and_b32 v{T}, 15, v{l}\nv_bfe_u32 v{T+1}, v{l}, 4, 1\nv_lshlrev_b32 v{T+1}, 5, v{T+1}")
    S(f"v_lshrrev_b32 v{T+2}, 5, v{l}\nv_lshl_add_u32 v{T+1}, v{T+2}, 4, v{T+1}")
    S(f"v_lshl_add_u32 v{T+1}, v{T}, 11, v{T+1}\nv_lshlrev_b32 v{T}, 2, v{T}")
    srd(S, 32, 40, 8192, off=WS_G)
    for rt in range(2):
        for pr in range(2):
            S(f"buffer_load_dwordx4 {vr(V_X + (rt*2 + pr)*4, 4)}, v{T+1}, {sr(srd_x,4)}, s37 offen offset:{64*pr}")
        S(f"buffer_load_dword v{V_G+rt}, v{T}, s[32:35], s36 offen offset:{64*rt} sc1")
        if rt == 0:
            S("s_add_u32 s37, s37, 32768")
    return [i.text for i in S]


def ep_pre():
    out = []
    T = V_TE
    for rt in range(2):
        out.append(f"v_sub_f32 v{V_G+2+rt}, 1.0, v{V_G+rt}")
        for pr in range(2):
            for u in range(4):
                x = V_X + (rt * 2 + pr) * 4 + u
                y = V_Y + (rt * 2 + pr) * 4 + u
                a = V_A + (rt * 2 + pr) * 8 + 2 * u
                out += [f"v_lshlrev_b32 v{a}, 16, v{x}", f"v_lshlrev_b32 v{T}, 16, v{y}",
                        f"v_and_b32 v{a+1}, 0xffff0000, v{x}", f"v_and_b32 v{T+1}, 0xffff0000, v{y}",
                        f"v_mul_f32 v{a}, v{a}, v{T}", f"v_mul_f32 v{a+1}, v{a+1}, v{T+1}",
                        f"v_mul_f32 v{a}, v{a}, v{V_G+rt}", f"v_mul_f32 v{a+1}, v{a+1}, v{V_G+rt}"]
    return out


def stage(u, fill=None, bar_tags=(), after_bar=(), head0=()):
    S = Seg()
    for kq in range(2):
        cts = list(range(8)) if (u, kq) != (31, 1) else [4, 5, 6, 7, 0, 1, 2, 3]
        mf = [mfma16(vr(acc5(ct, rt), 4), ar(A_WF + kq * 32 + ct * 4, 4),
                     ar(A_C + (u % RING) * 16 + (kq * 2 + rt) * 4, 4), "0" if (u == 0 and kq == 0) else None)
              for ct in cts for rt in range(2)]
        sc = Sched(mf, 2)
        head = []
        rd = []
        if kq == 0:
            rd = [rd_wo(u, 1, ct) for ct in range(8)]
        elif u < 31:
            rd = [rd_wo(u + 1, 0, ct) for ct in range(8)]
            head = [f"@vmwait o{u + 1} " + " ".join(bar_tags) + " lgkm", "s_barrier"] + list(after_bar)
        sc.stream(rd, 0, 12, prio=3)
        w = wo_stage(u + RING - 1) if u + RING - 1 < 32 else []
        w = w[:3] if kq == 0 else w[3:]
        c = [ld_ctx(u, kq, 0), ld_ctx(u, kq, 1)] + ([ADV_C] if kq == 1 else []) if u + RING < 32 else []
        if head0 and kq == 0:
            x = list(head0) + w
            sc.stream(x + c, at=[(k * 14) // len(x) for k in range(len(x))] + [14, 15], prio=4)
        else:
            sc.stream(w, 1, 14, prio=1)
            sc.stream(c, at=[14, 15, 15], prio=4)
        if fill and fill[kq]:
            sc.stream(fill[kq], 0, 16)
        S.add(sc.build(head))
    return S


def xb_prefill(T, vdo):
    S = Seg()
    srd(S, 32, 40, 4 * MB, off=WS_XB)
    S("s_lshl_b32 s36, s2, 14")
    for k in range(4):
        S(f"v_mov_b32 v{T+k}, -1")
    for k in range(4):
        S(f"buffer_store_dwordx4 {vr(T,4)}, v{vdo}, s[32:35], s36 offen offset:{1024*k} sc1")
    return groupify([i.text for i in S])


def xb_send():
    out = [f"s_xor_b32 s{S_T}, s2, 4", f"s_lshl_b32 s{S_T}, s{S_T}, 14"]
    for k in range(4):
        a = V_ACC + 32 + 8 * k
        out += [f"v_cvt_pk_bf16_f32 v{a+u}, v{a+2*u}, v{a+2*u+1}" for u in range(4)]
        out.append(f"buffer_store_dwordx4 {vr(a,4)}, v{V_WD}, {sr(SRD_XB,4)}, s{S_T} offen offset:{1024*k} sc1")
    return out


def xb_recv(spin):
    out = [f"s_lshl_b32 s{S_T}, s2, 14", f"s_mov_b32 s{S_T+1}, {spin}", "L_xb:"]
    out += [f"buffer_load_dwordx4 {vr(V_RX + 4*k,4)}, v{V_WD}, {sr(SRD_XB,4)}, s{S_T} offen offset:{1024*k} sc1" for k in range(4)]
    T = V_TE
    out += [f"s_sub_u32 s{S_T+1}, s{S_T+1}, 1", "s_cbranch_scc1 L_xb_done", "s_waitcnt vmcnt(3)",
            f"v_max3_u32 v{T}, v{V_RX}, v{V_RX+1}, v{V_RX+2}"]
    for k in range(3, 15, 2):
        out.append(f"v_max3_u32 v{T}, v{T}, v{V_RX+k}, v{V_RX+k+1}")
    out += [f"v_max_u32 v{T}, v{T}, v{V_RX+15}", f"v_cmp_eq_u32 vcc, -1, v{T}", "s_nop 4", "s_cbranch_vccnz L_xb", "L_xb_done:",
            "s_waitcnt vmcnt(0)"]
    return out


def p5_epilogue(S):
    for r in range(16):
        S(f"v_lshlrev_b32 v{V_RX+16}, 16, v{V_RX+r}\nv_and_b32 v{V_RX+17}, 0xffff0000, v{V_RX+r}")
        S(f"v_add_f32 v{V_ACC+2*r}, v{V_ACC+2*r}, v{V_RX+16}\nv_add_f32 v{V_ACC+2*r+1}, v{V_ACC+2*r+1}, v{V_RX+17}")
    for rt in range(2):
        for pr in range(2):
            for r in range(4):
                S(f"v_permlane16_swap_b32 v{acc5(2*pr, rt) + r}, v{acc5(2*pr+1, rt) + r}")
    for rt in range(2):
        S(f"s_add_u32 s{S_T}, s{S_XO}, {rt*32768}")
        for pr in range(2):
            a = V_A + (rt * 2 + pr) * 8
            for j in range(8):
                S(f"v_fma_f32 v{a+j}, v{acc5(2*pr + (j >> 2), rt) + (j & 3)}, v{V_G+2+rt}, v{a+j}")
            D = V_X + (rt * 2 + pr) * 4
            for u in range(4):
                S(f"v_cvt_pk_bf16_f32 v{D+u}, v{a+2*u}, v{a+2*u+1}")
            S(f"buffer_store_dwordx4 {vr(D,4)}, v{V_XV}, {sr(SRD_OUT,4)}, s{S_T} offen offset:{64*pr}" + os.environ.get("OUTF", "").replace("_", " "))
```

```python
import sys
from common import *
import f1, f2, f3

NAME = "gated_mix__ssm_conv_h3__compressed_kv_cla__prompt_kernel"
SRD_F, SRD_DBG = 8, 12
S_W, V_L = 3, 1
V_PF = 79
SPIN = 400000
ool = []


def sig_off(v, t):
    return [f"v_lshlrev_b32 v{v}, 20, v{V_L}", f"s_lshl_b32 s{t}, s{S_W}, 26", f"v_add_u32 v{v}, s{t}, v{v}"]


def signal(F, voff, vone, t, val=1):
    return [f"v_mov_b32 v{vone}, {val}", f"s_lshl_b32 s{t}, s2, 2",
            f"buffer_store_dword v{vone}, v{voff}, {sr(SRD_F,4)}, s{t} offen offset:{F} sc1"]


def poll(tag, load, vp, t, val=1):
    S = Seg()
    S(f"L_spin_{tag}:\ns_mov_b32 s{t}, {SPIN}\nL_spin_{tag}_l:\ns_sleep 1")
    S(load)
    S(f"s_waitcnt vmcnt(0)\nv_cmp_gt_u32 vcc, {val}, v{vp}\ns_nop 4\ns_cbranch_vccz L_spin_{tag}_ret")
    S(f"s_sub_u32 s{t}, s{t}, 1\ns_cmp_lg_u32 s{t}, 0\ns_cbranch_scc1 L_spin_{tag}_l\ns_branch L_spin_{tag}_ret")
    ool.append(S)
    return [f"v_cmp_gt_u32 vcc, {val}, v{vp}", "s_nop 4", f"s_cbranch_vccnz L_spin_{tag}", f"L_spin_{tag}_ret:"]


def touch_wq_setup():
    return [["s_mov_b32 s4, s34", "s_mov_b32 s5, s35"], [f"s_mov_b32 s6, {8*MB}", "s_mov_b32 s7, 0x20000"],
            "s_lshr_b32 s43, s2, 3", "s_lshl_b32 s43, s43, 2", f"s_add_u32 s43, s43, s{S_W}", "s_lshl_b32 s43, s43, 16",
            "s_and_b32 s37, s2, 7", "s_lshl_b32 s37, s37, 10", "s_add_u32 s43, s43, s37",
            f"v_lshrrev_b32 v78, 3, v{V_L}", f"v_and_b32 v79, 7, v{V_L}", "v_lshlrev_b32 v79, %d, v79" % (27 if "tlbtouch" in EXP else 7),
            "v_lshl_add_u32 v78, v78, 13, v79", "v_add_u32 v78, s43, v78"]


def touch_wq(k, n):
    if n == 1:
        return [f"buffer_load_dword v{V_PF}, v78, s[4:7], 0 offen{NT_Q}"]
    return [f"s_and_b32 s37, s{S_W}, {n-1}", [f"s_cmp_eq_u32 s37, {k}", "s_cselect_b32 s37, 0, 0x40000000"],
            "v_add_u32 v77, s37, v78", f"buffer_load_dword v{V_PF}, v77, s[4:7], 0 offen{NT_Q}"]


def touches(typ):
    H = Seg()
    H(f"v_lshlrev_b32 v8, 7, v{V_L}")
    H(f"s_getpc_b64 s[4:5]\nL_pc{typ}:\ns_lshr_b32 s98, s2, 3\ns_lshl_b32 s98, s98, 2\ns_add_u32 s98, s98, s{S_W}\ns_lshl_b32 s98, s98, 10")
    H(f"v_and_b32 v9, 0x380, v8\nv_add_u32 v9, s98, v9\nv_min_u32 v9, L_code_end - L_pc{typ} - 4, v9")
    H("v_mov_b32 v11, s5\nv_add_co_u32 v10, vcc, s4, v9\nv_addc_co_u32 v11, vcc, 0, v11, vcc")
    H(f"global_load_dword v{V_PF}, v[10:11], off")
    out, items = [], groupify([i.text for i in H])
    for x in items:
        if isinstance(x, str) and (x.endswith(":") or x.startswith("v_addc_co")):
            out[-1] = flat([out[-1]]) + (["s_nop 1"] if x.startswith("v_addc") else []) + [x]
        else:
            out.append(x)
    return out


def start(st):
    H = Seg()
    H(kernel_header(NAME))
    if DIAG:
        H("s_memtime s[98:99]\ns_memrealtime s[100:101]")
    H(f"s_cmp_ge_u32 s2, 256\ns_cbranch_scc1 L_end")
    H(f"s_load_dwordx2 {sr(f1.P_C,2)}, s[0:1], {KA_C}")
    H(f"s_load_dwordx4 {sr(f1.P_WU,4)}, s[0:1], {KA_WUK}")
    H(f"s_load_dwordx2 {sr(f1.S_WS,2)}, s[0:1], {KA_WS}")
    H(f"s_load_dwordx2 s[96:97], s[0:1], {KA_DBG}")
    H.add(f2.ptr_loads()[:2])
    H(f"v_lshrrev_b32 v2, 6, v0\nv_and_b32 v{V_L}, 63, v0\nv_lshlrev_b32 v3, 4, v0")
    H(f"v_readfirstlane_b32 s{S_W}, v2")
    f1.setup(H)
    if DIAG:
        H("v_writelane_b32 v0, s98, 60\nv_writelane_b32 v0, s100, 61")
    st(H)
    srd(H, 4, f1.S_WS, 4096, off=WS_FLAG)
    H("s_lshl_b32 s43, s2, 20\nv_add_u32 v3, s43, v3")
    H("v_mov_b32 v4, 0\nv_mov_b32 v5, 0\nv_mov_b32 v6, 0\nv_mov_b32 v7, 0")
    H("buffer_store_dwordx4 v[4:7], v3, s[4:7], 0 offen sc1")
    H.add(f1.dma_w(0) + f1.dma_c(0))
    f1.setup2(H)
    H("s_mov_b32 s98, 256\ns_mov_b32 s99, 0x20000")
    H(f"v_lshlrev_b32 v3, 16, v3\nv_mov_b32 v4, 1")
    H(f"s_cmp_lg_u32 s2, 0\ns_cselect_b32 s43, 0x10000000, 0\nv_or_b32 v3, s43, v3")
    H("@vmwait c0 w0\ns_barrier")
    if os.environ.get("DIAG") == "2":
        st(H)
    H("buffer_store_dword v4, v3, s[96:99], 0 offen sc1")
    for rt in range(8):
        H(f1.rd_c(0, 0, rt))
    for ct in range(8):
        H.add(f1.rd_w(0, 0, ct))
    H(f"s_cmp_eq_u32 s{f1.S_TYPE}, 0\ns_cbranch_scc0 L_p1_V")
    return H


FINE = os.environ.get('DIAG') == '2'


def p1(typ, st):
    B = Seg()
    n0 = st.n
    if typ == "V":
        B("L_p1_V:")
    p0 = f1.P0()
    NL = int(os.environ.get("NL", "3"))
    ld = chunks(p0.loads(), NL)
    cp = chunks(groupify(p0.compute()), 4)
    if "nop0" in EXP:
        ld, cp = [[]] * NL, [[]] * 4
    su = chunks(groupify(f2.setup()), 2)
    vm = {(0, 0): f1.dma_w(1) + f1.dma_c(1), (6, 0): f2.dma_x(0), (6, 1): f2.dma_q(0) + f2.dma_q(1), (7, 0): f2.dma_x(1)}
    for n in range(6):
        vm[(n, 1)] = f1.dma_w(n + 2)
    for n in range(1, 6):
        vm[(n, 0)] = f1.dma_c(n + 2)
    fill = {(0, 0): f1.type_setup(typ) + touches(typ), (0, 1): p0.ptr_loads(), (1, 0): touch_wq_setup(),
            (1, 1): p0.setup(), (2, 0): [], (2, 1): su[0], (3, 0): [], (3, 1): su[1] + f2.ptr_loads()[2:], (4, 0): [],
            (5, 0): [], (7, 0): cp[3] + f1.store_addr(typ)}
    for k in range(NL):
        fill[(5 - NL + k, 0)] += ld[k]
    NT_ = int(os.environ.get("NTW", "1"))
    T0 = int(os.environ.get("TW0", "5"))
    TWK = int(os.environ.get("TWK", "1"))
    fill[(5, 1)], fill[(6, 0)], fill[(6, 1)] = cp[:3]
    fill[(T0, TWK)] = touch_wq(0, 1) + fill.get((T0, TWK), [])
    for n in range(8):
        for kk in range(2):
            B.add(f1.kstep(typ, n, kk, vm.get((n, kk)), fill.get((n, kk)),
                           f2.p1_last_hook if (n, kk) == (7, 1) else None,
                           **(dict(bar=int(os.environ.get('BAR0', '44')), vm_pre=f1.dma_c(2)) if (n, kk) == (0, 1) else {})))
            if FINE and kk == 1 and n < 7:
                st(B)
    if typ == "K":
        st.n = n0
    if typ == "K":
        B("s_branch L_p2")
    return B


PACK_EARLY = os.environ.get('PACKE', '0') == '1'


def p2(st):
    B = Seg()
    B("L_p2:")
    NE = 20
    ep = chunks(f1.epilogue_items(), NE)
    fill = {k: list(ep[k]) for k in range(NE)}
    S = Seg()
    srd(S, SRD_F, 40, 4096, off=WS_FLAG)
    srd(S, SRD_DBG, 38, 256)
    fill[0] = groupify([i.text for i in S]) + fill[0]
    go_ld = f"buffer_load_dword v254, off, {sr(SRD_DBG,4)}, 0 sc1"
    fill[14] = fill[14] + [go_ld]
    zero = [f"v_accvgpr_write_b32 a{f2.A_O+i}, 0" for i in range(128)]
    for k, z in enumerate(chunks(zero, 8)):
        fill[NE + 2 + k] = z
    T, t = 230, 36
    fill[20] = sig_off(255, t)
    fill[21] = f2.setup3(T)
    after = {11: poll("go", go_ld, 254, t) + signal(f1.F_1, 255, 254, t) + f3.p4_ptr_loads(),
             13: [f"s_load_dwordx2 s[32:33], s[0:1], {KA_WO}"]}
    S = Seg()
    f3.rb_cb(S, t, t + 1, 43)
    S(f"v_and_b32 v{T}, 15, v{V_L}")
    S(f"s_lshl_b32 s{t}, s{t}, 4\nv_add_u32 v{T+1}, s{t}, v{T}")
    S(f"s_lshr_b32 s{t}, s2, 4\nv_lshl_add_u32 v{T+2}, v{T}, 4, s{t}")
    S(f"v_and_b32 v{T+3}, 7, v{V_L}\nv_bfe_u32 v{T+4}, v{V_L}, 3, 1\nv_lshlrev_b32 v{T+3}, 3, v{T+3}")
    S(f"v_lshl_add_u32 v{T+3}, v{T+4}, 7, v{T+3}")
    S(f"s_bfe_u32 s{t}, s2, 0x10004\ns_lshl_b32 s{t}, s{t}, 6\ns_and_b32 s{t+1}, s2, 7\ns_add_u32 s{t}, s{t}, s{t+1}")
    S(f"v_add_u32 v{T+3}, s{t}, v{T+3}")
    S(f"v_lshrrev_b32 v{T+4}, 4, v{V_L}")
    items = groupify([i.text for i in S])
    items.append([f"v_cmp_eq_u32 vcc, 1, v{T+4}", "s_nop 1", f"v_cndmask_b32 v{T+3}, v{T+3}, v{T+2}, vcc"])
    items.append([f"v_cmp_eq_u32 vcc, 2, v{T+4}", "s_nop 1", f"v_cndmask_b32 v{T+3}, v{T+3}, v{T+1}, vcc"])
    items.append(f"v_lshlrev_b32 v{T+3}, 2, v{T+3}")
    fill[24] = fill[24] + items
    fill[26] = fill[26] + f3.p4_srds()
    f1_ld = f"buffer_load_dword v{T+7}, v{T+3}, {sr(SRD_F,4)}, 0 offen offset:{f1.F_1} sc1"
    pk = f3.pack_dma(T + 8) if PACK_EARLY else []
    fill[30] = [f1_ld] + f3.pack_srd() + pk[:14]
    fill[31] = pk[14:]
    for n in range(16):
        for kk in range(2):
            ab = after.get(n) if kk == 1 else None
            seg = f2.kstep2(n, kk, fill.get(2 * n + kk), ab)
            if n == 11 and kk == 1:
                for i in seg:
                    if i.kind == "gwait":
                        i.groups.append("kvst")
            B.add(seg)
            if FINE and kk == 1 and n in (1, 3, 5, 7, 9, 10, 14):
                st(B)
    if FINE:
        st(B)
    B.add(poll("f1", f1_ld, T + 7, t))
    return B


NPRE = 7


def p45(st):
    B = Seg()
    t, VP, VO, VS = 36, f3.V_PL, 254, 255
    S = Seg()
    S(f"s_sub_u32 s{t}, 15, s{f3.S_RB}\ns_min_u32 s{t}, s{t}, s{f3.S_RB}\ns_lshl_b32 s{t}, s{t}, 5")
    S(f"s_lshl_b32 s{t+1}, s{f3.S_KH}, 2\ns_add_u32 s{t}, s{t}, s{t+1}\ns_add_u32 s{t}, s{t}, {(f1.F_2L - f1.F_2S) // 4}")
    S(f"v_and_b32 v{VO}, 3, v{V_L}\nv_lshlrev_b32 v{VO}, 3, v{VO}\nv_bfe_u32 v{VP}, v{V_L}, 2, 2")
    S(f"v_add3_u32 v{VO}, v{VO}, v{VP}, s{t}")
    S(f"s_lshr_b32 s{t}, s{f3.S_CB}, 1\ns_lshl_b32 s{t+1}, s{f3.S_KH}, 7\ns_add_u32 s{t}, s{t}, s{t+1}")
    S(f"v_and_b32 v{VP}, 15, v{V_L}\nv_lshl_add_u32 v{VP}, v{VP}, 3, s{t}")
    S(f"s_xor_b32 s{t}, s2, 4\nv_mov_b32 v{f3.V_TE}, s{t}")
    f2_off = [i.text for i in S] + [[f"v_cmp_lt_u32 vcc, 15, v{V_L}", "s_nop 1", f"v_cndmask_b32 v{VO}, v{VO}, v{f3.V_TE}, vcc"], [f"v_cmp_lt_u32 vcc, 31, v{V_L}", "s_nop 1", f"v_cndmask_b32 v{VO}, v{VO}, v{VP}, vcc"],
                                    f"v_lshlrev_b32 v{VO}, 2, v{VO}"]
    f2_ld = f"buffer_load_dword v{VP}, v{VO}, {sr(SRD_F,4)}, 0 offen offset:{f1.F_2S} sc1"
    su = f3.p5_setup()
    B("s_waitcnt lgkmcnt(0)")
    B.add(f3.p4_reads(0) + sig_off(VS, t))
    SIG = int(os.environ.get("SIGAT", "1"))
    fl = {0: su[:len(su) // 2], 1: su[len(su) // 2:], 2: f2_off}
    for rho in range(NPRE):
        B.add(f3.p4_rho(rho, head=(["@vmwait ctx0", "s_barrier"] + signal(f1.F_2L, VS, VP, t)) if rho == SIG else [],
                        fill=fl.get(rho, [])))
    B(f2_ld)
    st(B)
    B.add(poll("f2", f2_ld, VP, t))
    st(B)
    R, PRE = f3.RING, int(os.environ.get("PRE", "2"))
    ramp = []
    for n in range(R):
        if n < R - 1:
            ramp.append(("w", n, f3.wo_stage(n)))
        ramp.append(("c", n, f3.ctx_stage(n)))
    early = [x for x in ramp if x[1] < PRE and not (x[0] == "w" and x[1] >= 4)]
    late = [x for x in ramp if x not in early]
    B.add(f3.p4_rho(7, head=early[0][2] + early[1][2], vm=flat([x[2] for x in early[2:]])))
    B("@vmwait o0 lgkm\ns_barrier")
    for ct in range(8):
        B(f3.rd_wo(0, 0, ct))
    st(B)
    f3_ld = f"buffer_load_dword v{VP}, v{VO}, {sr(SRD_F,4)}, 0 offen offset:{f1.F_3} sc1"
    f3_off = [f"v_and_b32 v{VO}, 15, v{V_L}", f"s_lshl_b32 s{t}, s{f3.S_CB}, 4", f"v_add_u32 v{VO}, s{t}, v{VO}",
              f"v_lshlrev_b32 v{VO}, 2, v{VO}"]
    yw = chunks(f3.p4_y_write(), 5) + [f3.p4_y_read()]
    yl = f3.y_loads()
    for u in range(32):
        fl, tags, ab = [None] * 2, (), ()
        if u < 3:
            fl = yw[2 * u:2 * u + 2]
        if u == 3:
            fl = chunks(f3.p4_y_store(), 2)
        if u == 10:
            tags, ab = ("yst",), signal(f1.F_3, VS, VP, t)
        if u == 18:
            fl = [f3_off, [f3_ld]]
        if 25 <= u < 29:
            fl = [flat([x]) for x in yl[2 * (u - 25):2 * (u - 24)]]
            if u == 25:
                fl[0] = [poll("f3", f3_ld, VP, t)] + fl[0]
        B.add(f3.stage(u, fill=fl, bar_tags=tags, after_bar=ab,
                       head0=flat([x[2] for x in late]) if u == 0 else ()))
        if os.environ.get("DIAG") == "3" and u % 3 == 2:
            st(B)
    st(B)
    B.add(f3.xb_send())
    B.add(f3.ep_pre())
    B.add(f3.xb_recv(SPIN))
    st(B)
    f3.p5_epilogue(B)
    return B


def build(out):
    st = VStamps()
    H = start(st)
    K, V = p1("K", st), p1("V", st)
    J = Seg()
    P2 = p2(st)
    st(P2)
    lin, o3, traces = f2.p3(
        "p3", st, [] if PACK_EARLY else f3.pack_dma(f2.V_T + 5),
        f3.early_x_loads(f2.SRD_X, f2.V_T) + sig_off(76, 36) + signal(f1.F_2S, 76, 77, 37)[:2],
        f3.p4_ur_dma(f2.V_T + 5), f3.p5_ptr_loads(), signal(f1.F_2S, 76, 77, 37)[2:],
        groupify(f3.pack_store(f2.V_T + 8, [96, 100, 104, 108, 128, 132, 136, 140], f2.V_DO)) +
        f3.xb_prefill(f2.V_T + 12, f2.V_DO) + f3.p4_h_loads(),
        f3.p4_prep_items())
    P45 = p45(st)
    E = Seg()
    st.dump(E)
    E("L_end:\ns_endpgm")
    Z = Seg()
    Z("L_code_end:\ns_endpgm")
    if DIAG:
        X = Seg()
        st(X)
        P2[1:1] = list(X)
    allseg = [H, K, V, P2] + lin + [P45, E] + o3 + ool + [Z]
    exp_filter([K, V, P2] + lin + o3 + [P45])
    resolve([[H, B, P2] + t + [P45, E] for B in (K, V) for t in traces], verbose="-v" in sys.argv)
    resolve([[s] for s in ool], verbose=False)
    if "-v" in sys.argv:
        for nm_, sg in (("p1K", [K]), ("p1V", [V]), ("p2", [P2]), ("p45", [P45])):
            overflow_report(nm_, sg)
        for k_, b_ in f2.BODIES.items():
            overflow_report(k_, b_.segs + b_.segs[:1])
    hdr = "; @launch grid=(256,1,1) block=(256,1,1) lds=163840\n" + '.amdgcn_target "amdgcn-amd-amdhsa--gfx950"\n.text\n' + MACROS
    open(out, "w").write(hdr + text_of(allseg) + kernel_desc(NAME))


if __name__ == "__main__":
    build(sys.argv[1])
```

```python
import os
import re

REG_RE = re.compile(r"^(-|abs\()?([vas])(?:\[(\d+):(\d+)\]|(\d+))\)?$")


def parse_reg(tok):
    tok = tok.strip()
    if tok in ("vcc", "exec", "m0", "scc"):
        return [tok]
    if tok in ("vcc_lo", "vcc_hi"):
        return ["vcc"]
    if tok in ("exec_lo", "exec_hi"):
        return ["exec"]
    m = REG_RE.match(tok)
    if not m:
        return []
    k = m.group(2)
    if m.group(3) is not None:
        return [f"{k}{i}" for i in range(int(m.group(3)), int(m.group(4)) + 1)]
    return [f"{k}{m.group(5)}"]


TRANS = ("v_exp_f32", "v_log_f32", "v_rcp_f32", "v_rsq_f32", "v_sqrt_f32", "v_sin_f32", "v_cos_f32")


class I:
    def __init__(self, text, tag=None):
        text = text.strip()
        if "#" in text and not text.startswith("."):
            text, tag = [x.strip() for x in text.split("#", 1)]
        self.text = text
        self.tag = tag
        if text.startswith("@vmwait"):
            p = text.split()[1:]
            self.also_lgkm = "lgkm" in p
            self.groups = [x for x in p if x != "lgkm"]
            self.gn = None
            self.pre_lgkm = self.pre_vm = None
            self.pre_nop = 0
            self.is_label = self.is_dir = False
            self.op, self.reads, self.writes, self.kind = "@vmwait", [], [], "gwait"
            return
        self.pre_lgkm = None
        self.pre_vm = None
        self.pre_nop = 0
        t = self.text.split(";")[0].strip()
        self.is_label = t.endswith(":")
        self.is_dir = t.startswith(".") or t == ""
        self.op = ""
        self.reads, self.writes = [], []
        self.kind = "none"
        if self.is_label or self.is_dir:
            return
        parts = t.split(None, 1)
        self.op = op = parts[0]
        rest = parts[1] if len(parts) > 1 else ""
        ops = [x.strip() for x in rest.split(",")] if rest else []
        mods = []
        if ops:
            last = ops[-1].split()
            ops[-1] = last[0]
            mods = last[1:]
        self.ops, self.mods = ops, mods
        R = lambda i: parse_reg(ops[i]) if i < len(ops) else []
        allr = lambda a: [r for i in range(a, len(ops)) for r in R(i)]
        if op.startswith("v_mfma"):
            self.kind = "mfma"
            self.writes = R(0)
            self.srcA, self.srcB, self.srcC = R(1), R(2), R(3)
            self.reads = self.srcA + self.srcB + self.srcC
            self.passes = 8 if "32x32" in op else 4
        elif op.startswith("ds_read"):
            self.kind = "dsr"
            self.writes = R(0)
            self.reads = R(1)
        elif op.startswith("ds_write"):
            self.kind = "dsw"
            self.reads = allr(0)
        elif op.startswith("ds_bpermute") or op.startswith("ds_swizzle"):
            self.kind = "dsr"
            self.writes = R(0)
            self.reads = allr(1)
        elif op.startswith("buffer_load") or op.startswith("global_load"):
            if "lds" in mods:
                self.kind = "dma"
                self.reads = allr(0) + ["m0"]
            else:
                self.kind = "vld"
                self.writes = R(0)
                self.reads = allr(1)
        elif op.startswith("buffer_store") or op.startswith("global_store"):
            self.kind = "vst"
            self.reads = allr(0)
            self.wide = op.endswith("x4") or op.endswith("x3")
            self.data = R(0) if op.startswith("buffer") else R(1)
        elif op.startswith("buffer_atomic") or op.startswith("global_atomic"):
            self.kind = "vst"
            self.reads = allr(0)
            self.wide = False
            self.data = []
            if "sc0" in mods:
                self.kind = "vld"
                self.writes = R(0)
        elif op.startswith("buffer_wbl2") or op.startswith("buffer_inv"):
            self.kind = "vst"
            self.wide = False
            self.data = []
        elif op.startswith("v_"):
            self.kind = "valu"
            self.writes = R(0)
            self.reads = allr(1)
            if op.startswith("v_cmp"):
                pass
            elif op.startswith("v_fmac") or op.startswith("v_dot2c") or op.startswith("v_writelane"):
                self.reads += R(0)
            elif op.startswith("v_permlane") and "swap" in op:
                self.reads = R(0) + R(1)
                self.writes = R(0) + R(1)
            elif op.startswith("v_cndmask") and len(ops) == 3:
                self.reads += ["vcc"]
            elif op.startswith("v_add_co") or op.startswith("v_addc_co") or op.startswith("v_sub_co"):
                self.writes = R(0) + R(1)
                self.reads = allr(2)
            if any(m.startswith("row_") or m.startswith("quad_perm") or m.startswith("wave_") for m in mods):
                self.dpp = True
                self.reads += R(0)
            self.trans = op.replace("_e32", "").replace("_e64", "") in TRANS
        elif op == "s_waitcnt":
            self.kind = "wait"
        elif op == "s_nop":
            self.kind = "nop"
            self.n = int(ops[0], 0) + 1
        elif op.startswith("s_load") or op.startswith("s_mem"):
            self.kind = "smem"
            self.writes = R(0)
            self.reads = allr(1)
        elif op.startswith("s_cmp") or op.startswith("s_bitcmp"):
            self.kind = "salu"
            self.reads = allr(0)
        elif op.startswith("s_cbranch") or op in ("s_branch", "s_barrier", "s_endpgm", "s_setprio", "s_sleep",
                                                   "s_setpc_b64"):
            self.kind = "ctl"
            if "vcc" in op:
                self.reads = ["vcc"]
        elif op.startswith("s_"):
            self.kind = "salu"
            self.writes = R(0)
            self.reads = allr(1)
        else:
            raise ValueError("unknown op " + text)

    def emit(self):
        out = []
        if self.kind == "gwait":
            w = []
            if self.gn is not None:
                w.append(f"vmcnt({self.gn})")
            if self.also_lgkm:
                w.append("lgkmcnt(0)")
            return ["s_waitcnt " + " ".join(w)] if w else ["s_nop 0"]
        w = []
        if self.pre_vm is not None:
            w.append(f"vmcnt({self.pre_vm})")
        if self.pre_lgkm is not None:
            w.append(f"lgkmcnt({self.pre_lgkm})")
        if w:
            out.append("s_waitcnt " + " ".join(w))
        n = self.pre_nop
        while n > 0:
            k = min(n, 16)
            out.append(f"s_nop {k-1}")
            n -= k
        out.append(self.text if (self.is_label or self.is_dir) else "  " + self.text)
        return out


class Seg(list):
    def __call__(self, text, tag=None):
        for line in text.split("\n"):
            line = line.strip()
            if line:
                self.append(I(line, tag))
        return self

    def add(self, items):
        for x in items:
            if isinstance(x, str):
                self(x)
            else:
                self.append(x)
        return self


def mk(items):
    s = Seg()
    s.add(items)
    return list(s)


def interleave(mf, gaps, head=()):
    s = Seg()
    s.add(head)
    for m, g in zip(mf, gaps):
        s.add([m])
        s.add(g)
    return s


def spread(gaps, items, lo, hi):
    n = len(items)
    if n == 0:
        return
    span = hi - lo
    for k, it in enumerate(items):
        g = lo + (k * span) // n
        if isinstance(it, (list, tuple)):
            gaps[g].extend(it)
        else:
            gaps[g].append(it)


WAIT_RE = re.compile(r"(vmcnt|lgkmcnt)\((\d+)\)")


def lg_after(lg, n):
    if n == 0:
        return []
    keep, k = [], 0
    for e in reversed(lg):
        if "$smem" in e:
            keep.append(e)
        elif k < n:
            keep.append(e)
            k += 1
    return keep[::-1]


def _walk_waits(trace, fix):
    lg, vm = [], []
    seen_tags = set()
    changes = 0
    for ins in trace:
        if ins.is_label or ins.is_dir:
            continue
        if ins.pre_lgkm is not None:
            lg = lg_after(lg, ins.pre_lgkm)
        if ins.pre_vm is not None:
            vm = vm[len(vm) - ins.pre_vm:] if ins.pre_vm < len(vm) else vm
            if ins.pre_vm == 0:
                vm = []
        if ins.kind == "wait":
            for c, n in WAIT_RE.findall(ins.text):
                n = int(n)
                if c == "lgkmcnt":
                    lg = lg_after(lg, n)
                else:
                    vm = vm[len(vm) - n:] if 0 < n < len(vm) else ([] if n == 0 else vm)
            continue
        if ins.kind == "gwait":
            last = -1
            for k, e in enumerate(vm):
                if e & {"#" + g for g in ins.groups}:
                    last = k
            for g in ins.groups:
                assert g in seen_tags or os.environ.get("EXP"), f"vmwait on unknown group {g}"
            if last >= 0:
                n = min(63, len(vm) - 1 - last)
                if ins.gn is None or n < ins.gn:
                    if not fix:
                        raise RuntimeError("group wait too loose")
                    ins.gn = n
                    changes += 1
            if ins.gn is not None and ins.gn < len(vm):
                vm = vm[len(vm) - ins.gn:] if ins.gn else []
            if ins.also_lgkm:
                lg = []
            continue
        touched = set(ins.reads) | set(ins.writes)
        for name, q in (("lg", lg), ("vm", vm)):
            last = -1
            for k, e in enumerate(q):
                if e & touched:
                    if (name == "lg" and ins.kind == "dsr" or name == "vm" and ins.kind == "vld") and \
                            not (e & set(ins.reads)):
                        continue
                    last = k
            if last >= 0:
                n = len(q) - 1 - last
                if name == "lg":
                    n = 0 if "$smem" in q[last] else sum(1 for e in q[last + 1:] if "$smem" not in e)
                changes += 1
                if not fix:
                    raise RuntimeError(f"missing wait before {ins.text}")
                if name == "lg":
                    n = min(n, 15)
                    ins.pre_lgkm = n if ins.pre_lgkm is None else min(ins.pre_lgkm, n)
                    lg = lg_after(lg, n)
                else:
                    n = min(n, 63)
                    ins.pre_vm = n if ins.pre_vm is None else min(ins.pre_vm, n)
                    vm = vm[len(vm) - n:] if n else []
        if ins.kind == "dsr":
            lg.append(set(ins.writes))
        elif ins.kind == "dsw":
            lg.append(set())
        elif ins.kind == "smem":
            lg.append(set(ins.writes) | {"$smem"})
        elif ins.kind in ("vld", "dma", "vst"):
            e = set(ins.writes)
            if ins.tag:
                e.add("#" + ins.tag)
                seen_tags.add(ins.tag)
            vm.append(e)
    return changes


def _need(prod, cons):
    need = 0
    pw, cr, cw = set(prod.writes), set(cons.reads), set(cons.writes)
    if prod.kind == "valu":
        vw = {r for r in pw if r[0] in "va" and r != "vcc"}
        sw = pw - vw
        if cons.kind == "mfma" and vw & cr:
            need = max(need, 2)
        if cons.kind == "valu":
            if getattr(prod, "trans", False) and not getattr(cons, "trans", False) and vw & cr:
                need = max(need, 1)
            if (cons.op.startswith("v_readfirstlane") or cons.op.startswith("v_readlane")) and vw & cr:
                need = max(need, 1)
            if cons.op.startswith("v_permlane") and vw & cr:
                need = max(need, 2)
            if getattr(cons, "dpp", False) and vw & cr:
                need = max(need, 2)
            if sw & cr:
                need = max(need, 2)
                if cons.op.startswith("v_readlane") or cons.op.startswith("v_writelane"):
                    need = max(need, 4)
        if cons.kind in ("vld", "vst", "dma") and sw & cr:
            need = max(need, 5)
        if cons.kind in ("salu",) and sw & cr:
            need = max(need, 1)
    elif prod.kind == "mfma":
        p8 = prod.passes == 8
        if cons.kind == "mfma":
            if pw & (set(cons.srcA) | set(cons.srcB)):
                need = max(need, 12 if p8 else 8)
            if pw & set(cons.srcC):
                if not (prod.writes == cons.srcC and prod.passes == cons.passes):
                    need = max(need, 10 if p8 else 6)
            elif pw & cw:
                need = max(need, 10 if p8 else 6)
        elif cons.kind in ("valu", "vld", "vst", "dma", "dsr", "dsw"):
            if pw & (cr | cw):
                need = max(need, 12 if p8 else 8)
            if cons.kind == "valu" and set(prod.srcC) & cw:
                need = max(need, 7 if p8 else 3)
    elif prod.kind == "salu":
        if "m0" in pw and cons.kind == "dma":
            need = max(need, 1)
    elif prod.kind == "vst":
        if getattr(prod, "wide", False) and cons.kind in ("valu", "mfma", "dsr", "vld") and set(prod.data) & cw:
            need = max(need, 2)
    return need


def _walk_hazards(trace, fix, log):
    hist = []
    pos = 0
    changes = 0
    for ins in trace:
        if ins.is_label or ins.is_dir:
            continue
        extra = ins.pre_nop + (1 if (ins.pre_lgkm is not None or ins.pre_vm is not None) else 0)
        p = pos + extra
        short = 0
        for prod, ppos in hist[-24:]:
            n = _need(prod, ins)
            if n and p - ppos < n:
                short = max(short, n - (p - ppos))
                if log is not None:
                    log.append(f"pad {n-(p-ppos)} : {prod.text}  ->  {ins.text}")
        if short:
            changes += 1
            if not fix:
                raise RuntimeError("hazard before " + ins.text)
            ins.pre_nop += short
            p += short
        pos = p + (ins.n if ins.kind == "nop" else 1)
        hist.append((ins, pos))
    return changes


def resolve(traces, verbose=True):
    flat = [[i for seg in t for i in seg] for t in traces]
    for _ in range(20):
        if sum(_walk_waits(t, True) for t in flat) == 0:
            break
    log = []
    for _ in range(20):
        if sum(_walk_hazards(t, True, log) for t in flat) == 0:
            break
    for t in flat:
        _walk_waits(t, False)
        _walk_hazards(t, False, None)
    if verbose and log:
        seen = []
        for l in log:
            if l not in seen:
                seen.append(l)
        for l in seen[:40]:
            print(";   " + l)


MACROS = """.macro MA d,x,a,y,b
v_mfma_f32_16x16x32_bf16 a[\\d:\\d+3], \\x[\\a:\\a+3], \\y[\\b:\\b+3], a[\\d:\\d+3]
.endm
.macro MV d,x,a,y,b
v_mfma_f32_16x16x32_bf16 v[\\d:\\d+3], \\x[\\a:\\a+3], \\y[\\b:\\b+3], v[\\d:\\d+3]
.endm
.macro TR d,a,o
ds_read_b64_tr_b16 v[\\d:\\d+1], v\\a offset:\\o
.endm
"""
_M16 = re.compile(r"^v_mfma_f32_16x16x32_bf16 ([av])\[(\d+):\d+\], ([av])\[(\d+):\d+\], ([av])\[(\d+):\d+\], ([av])\[(\d+):\d+\]$")
_TR = re.compile(r"^ds_read_b64_tr_b16 v\[(\d+):\d+\], v(\d+) offset:(\d+)$")


def squeeze(line):
    line = line.strip()
    m = _M16.match(line)
    if m and m.group(1) == m.group(7) and m.group(2) == m.group(8):
        return f"M{m.group(1).upper()} {m.group(2)},{m.group(3)},{m.group(4)},{m.group(5)},{m.group(6)}"
    m = _TR.match(line)
    if m:
        return f"TR {m.group(1)},{m.group(2)},{m.group(3)}"
    return line


def text_of(segs):
    out = []
    for s in segs:
        for i in s:
            out += [squeeze(x) for x in i.emit()]
    return "\n".join(out) + "\n"


def cost_of(x):
    if isinstance(x, (list, tuple)):
        return sum(cost_of(y) for y in x)
    t = x.text if isinstance(x, I) else x
    t = t.strip()
    if t.endswith(":") or t.startswith("@mask") or t.startswith("@rare"):
        return 0
    op = t.split()[0]
    if op == "s_nop":
        return int(t.split()[1]) + 1
    return 2 if op in TRANS else 1


class Sched:
    def __init__(self, mf, cap):
        self.mf, self.cap = mf, cap
        self.fixed = [[] for _ in mf]
        self.streams = []

    def pin(self, g, items):
        self.fixed[g] += list(items)

    def stream(self, items, lo=0, hi=None, at=None, prio=0):
        n = len(items)
        if not n:
            return
        hi = len(self.mf) if hi is None else hi
        soft = at is None
        if at is None:
            tot = sum(cost_of(x) for x in items) or 1
            at, acc = [], 0
            for x in items:
                at.append(lo + (acc * (hi - lo)) // tot)
                acc += cost_of(x)
        self.streams.append([list(items), list(at), prio, 0, lo if soft else None])

    def _pack2(self, g, room):
        def head(s, k=0):
            i = s[3] + k
            if i >= len(s[0]):
                return None
            due = s[1][i]
            if due > g and not (s[4] is not None and g >= s[4] and due <= g + self.early):
                return None
            return cost_of(s[0][i]), (g - due) + 0.1 * s[2]
        opts = []
        for a, s in enumerate(self.streams):
            h = head(s)
            if not h or h[0] > room:
                continue
            opts.append((h[0], h[1], h[1], [a]))
            for b, t in enumerate(self.streams):
                h2 = head(t, 1 if a == b else 0)
                if h2 and h[0] + h2[0] <= room and b >= a:
                    opts.append((h[0] + h2[0], max(h[1], h2[1]), h[1] + h2[1], [a, b]))
        opts = [o for o in opts if o[1] >= 0]
        if not opts:
            return []
        urgent = [o for o in opts if o[1] >= self.late]
        if urgent:
            top = max(o[1] for o in urgent)
            opts = [o for o in urgent if o[1] == top]
        return max(opts, key=lambda o: (o[0], o[1], o[2]))[3]

    early, late = 4, 5

    def build(self, head=()):
        n = len(self.mf)
        gaps = []
        for g in range(n):
            cur = list(self.fixed[g])
            used = cost_of(cur)
            if self.cap == 2 and g < n - 1 and used < 2 and getattr(self, "pack", False):
                for a in self._pack2(g, 2 - used):
                    s = self.streams[a]
                    x = s[0][s[3]]
                    s[3] += 1
                    cur += list(x) if isinstance(x, (list, tuple)) else [x]
                if cost_of(cur) > used or not any(s[3] < len(s[0]) and s[1][s[3]] <= g for s in self.streams):
                    gaps.append(cur)
                    continue
            while True:
                cand = [s for s in self.streams if s[3] < len(s[0]) and s[1][s[3]] <= g]
                if g < n - 1:
                    cand = [s for s in cand if used + cost_of(s[0][s[3]]) <= self.cap or
                            (used == 0 and cost_of(s[0][s[3]]) > self.cap)]
                else:
                    cand = [s for s in self.streams if s[3] < len(s[0])]
                if not cand:
                    break
                s = max(cand, key=lambda s: (s[2], g - s[1][s[3]]))
                x = s[0][s[3]]
                s[3] += 1
                cur += list(x) if isinstance(x, (list, tuple)) else [x]
                used += cost_of(x)
            gaps.append(cur)
        self.gaps = gaps
        return interleave(self.mf, gaps, head)


def overflow_report(name, segs):
    over = cur = nm = 0
    cap = None
    for s in segs:
        for i in s:
            extra = (1 if (i.pre_lgkm is not None or i.pre_vm is not None) else 0) + i.pre_nop
            if i.kind == "mfma":
                cur += extra
                if cap is not None:
                    over += max(0, cur - cap)
                cap, cur = (6 if i.passes == 8 else 2), 0
                nm += 1
            elif not (i.is_label or i.is_dir):
                cur += extra + (i.n if i.kind == "nop" else 2 if getattr(i, "trans", False) else 1)
    print(f"; {name}: {nm} mfma, overflow ~{4*over} cycles")
```

```python
from common import *

S_W = 3
V_L = 1

SRD_C, SRD_W, SRD_O = 8, 12, 16
S_COFF, S_WOFF, S_MC, S_MW = 20, 21, 22, 23
S_D = 24
S_T = 36
S_WS = 40
S_TYPE = 42
P_C, P_WU, P_DBG = 44, 48, 52
V_CF, V_WF = 80, 144
V_CD, V_WD, V_CA, V_WA = 176, 184, 192, 196
V_T = 204
V_ST = 228
V_EP = 230
LDS_W = 98304

ROT = 0 if 'norot' in EXP else 7
F_1, F_2S, F_3, F_2L = 0, 1024, 2048, 4096


def acc(typ, ct, rt):
    if typ == "K":
        return ((rt * 4 + (ct >> 1)) * 2 + (ct & 1)) * 4
    return (((rt >> 1) * 8 + ct) * 2 + (rt & 1)) * 4


def setup(S):
    t, T, l = S_T, V_T, V_L
    S(f"s_and_b32 s{t}, s2, 7")
    S(f"s_lshr_b32 s{t+1}, s2, 3")
    S(f"s_and_b32 s{t+2}, s{t+1}, 7")
    S(f"s_lshr_b32 s{t+1}, s{t+1}, 3")
    S(f"s_lshr_b32 s{S_TYPE}, s{t+1}, 1")
    S(f"s_and_b32 s{t+1}, s{t+1}, 1")
    S(f"s_lshl_b32 s{t}, s{t}, 1")
    S(f"s_add_u32 s{t}, s{t}, s{t+1}")
    S(f"s_lshl_b32 s{S_D}, s{t+2}, 18")
    S(f"s_lshl_b32 s{t+3}, s{S_W}, 16")
    S(f"s_add_u32 s{S_D}, s{S_D}, s{t+3}")
    S(f"s_lshl_b32 s{S_D+1}, s{S_W}, 17")
    S(f"s_lshl_b32 s{t+3}, s{t}, 9")
    S(f"s_add_u32 s{S_D+1}, s{S_D+1}, s{t+3}")
    S(f"s_and_b32 s{S_COFF}, s2, {ROT}")
    S(f"s_lshl_b32 s{S_WOFF}, s{S_COFF}, 19")
    S(f"s_lshl_b32 s{S_COFF}, s{S_COFF}, 7")
    S(f"s_lshl_b32 s{S_MC}, s{S_W}, 13")
    S(f"s_add_u32 s{S_MW}, s{S_MC}, {LDS_W}")
    S(f"v_lshrrev_b32 v{T}, 3, v{l}")
    S(f"v_lshlrev_b32 v{T}, 10, v{T}")
    S(f"v_lshrrev_b32 v{T+1}, 4, v{l}")
    S(f"v_and_b32 v{T+2}, 7, v{l}")
    S(f"v_xor_b32 v{T+2}, v{T+2}, v{T+1}")
    S(f"v_lshl_add_u32 v{T}, v{T+2}, 4, v{T}")
    S(f"v_xor_b32 v{T+3}, 64, v{T}")
    for i in range(8):
        S(f"v_add_u32 v{V_CD+i}, {8192*i - 1024*(i&3)}, v{T + (3 if i & 1 else 0)}")
    S(f"v_lshrrev_b32 v{T}, 5, v{l}")
    S(f"v_and_b32 v{T+2}, 31, v{l}")
    S(f"v_lshlrev_b32 v{T+3}, 1, v{T}")
    S(f"v_xor_b32 v{T+2}, v{T+2}, v{T+3}")
    S(f"v_lshlrev_b32 v{T}, 13, v{T}")
    for i in range(8):
        x = (2 * (i & 1) + 4 * ((i >> 2) & 1)) << 1
        S(f"v_xor_b32 v{T+3}, {x}, v{T+2}")
        S(f"v_lshl_add_u32 v{T+3}, v{T+3}, 4, v{T}")
        S(f"v_add_u32 v{V_WD+i}, {16384*i - 1024*(i&3)}, v{T+3}")
    S("s_waitcnt lgkmcnt(0)")
    srd(S, SRD_C, P_C, 64 * 1024, off=f"s{S_D}")
    S(f"s_cmp_eq_u32 s{S_TYPE}, 0")
    S(f"s_cselect_b32 s{SRD_W}, s{P_WU}, s{P_WU+2}")
    S(f"s_cselect_b32 s{SRD_W+1}, s{P_WU+1}, s{P_WU+3}")
    S(f"s_add_u32 s{SRD_W}, s{SRD_W}, s{S_D+1}\ns_addc_u32 s{SRD_W+1}, s{SRD_W+1}, 0")
    S(f"s_sub_u32 s{SRD_W+2}, {512*4096*2}, s{S_D+1}\ns_mov_b32 s{SRD_W+3}, 0x20000")


def setup2(S):
    t, T, l = S_T, V_T, V_L
    S(f"v_and_b32 v{T}, 15, v{l}")
    S(f"v_lshrrev_b32 v{T+2}, 1, v{T}")
    S(f"v_xor_b32 v{T+2}, v{T+2}, v{T+1}")
    S(f"v_lshlrev_b32 v{T+2}, 4, v{T+2}")
    S(f"v_lshl_add_u32 v{T+2}, v{T}, 7, v{T+2}")
    S(f"s_and_b32 s{t+3}, s{S_W}, 1")
    S(f"s_lshl_b32 s{t+3}, s{t+3}, 14")
    S(f"v_add_u32 v{V_CA}, s{t+3}, v{T+2}")
    S(f"v_xor_b32 v{V_CA+1}, 64, v{V_CA}")
    S(f"v_add_u32 v{V_CA+2}, 0x10000, v{V_CA}")
    S(f"v_add_u32 v{V_CA+3}, 0x10000, v{V_CA+1}")
    S(f"v_bfe_u32 v{T}, v{l}, 2, 2")
    S(f"v_and_b32 v{T+2}, 1, v{T+1}")
    S(f"v_lshl_or_b32 v{T+2}, v{T+2}, 2, v{T}")
    S(f"v_lshl_add_u32 v{T}, v{T+1}, 3, v{T}")
    S(f"v_lshlrev_b32 v{T}, 9, v{T}")
    S(f"v_and_b32 v{T+3}, 3, v{l}")
    S(f"v_lshl_add_u32 v{T}, v{T+3}, 3, v{T}")
    S(f"s_lshr_b32 s{t+3}, s{S_W}, 1")
    S(f"s_lshl_b32 s{t+3}, s{t+3}, 8")
    S(f"s_add_u32 s{t+3}, s{t+3}, {LDS_W}")
    S(f"v_add_u32 v{T}, s{t+3}, v{T}")
    for ct in range(8):
        S(f"v_xor_b32 v{T+3}, {ct}, v{T+2}")
        S(f"v_lshl_add_u32 v{V_WA+ct}, v{T+3}, 5, v{T}")
    S(f"s_lshl_b32 s{t}, s{t}, 1")
    S(f"s_lshr_b32 s{t+3}, s{S_W}, 1")
    S(f"s_add_u32 s{t}, s{t}, s{t+3}")
    S(f"s_lshl_b32 s{S_D}, s{t}, 19")
    S(f"s_lshl_b32 s{t+2}, s{t+2}, 16")
    S(f"s_add_u32 s{S_D}, s{S_D}, s{t+2}")
    S(f"s_and_b32 s{t+3}, s{S_W}, 1")
    S(f"s_lshl_b32 s{t+3}, s{t+3}, 15")
    S(f"s_add_u32 s{S_D}, s{S_D}, s{t+3}")
    S(f"s_lshl_b32 s{t}, s{S_TYPE}, 24")
    srd(S, SRD_O, S_WS, 16 * MB, off=f"s{t}")


def dma_c(n):
    out = []
    for i in range(8):
        if i % 4 == 0:
            out.append(f"s_add_u32 m0, s{S_MC}, {(n % 3)*32768 + (i >> 2)*4096}")
        out.append(f"buffer_load_dwordx4 v{V_CD+i}, {sr(SRD_C,4)}, s{S_COFF} offen offset:{1024*(i&3)} lds #c{n}")
    out += [f"s_add_u32 s{S_COFF}, s{S_COFF}, 128", f"s_and_b32 s{S_COFF}, s{S_COFF}, 1023"]
    return out


def dma_w(n):
    out = []
    for i in range(8):
        if i % 4 == 0:
            out.append(f"s_add_u32 m0, s{S_MW}, {(n & 1)*32768 + (i >> 2)*4096}")
        out.append(f"buffer_load_dwordx4 v{V_WD+i}, {sr(SRD_W,4)}, s{S_WOFF} offen offset:{1024*(i&3)}{NT_W} lds #w{n}")
    out += [f"s_add_u32 s{S_WOFF}, s{S_WOFF}, {64*8192}", f"s_and_b32 s{S_WOFF}, s{S_WOFF}, {4*MB - 1}"]
    return out


def rd_c(n, kk, rt):
    slot = n % 3
    va = V_CA + kk + (2 if slot == 2 else 0)
    return f"ds_read_b128 {vr(V_CF + kk*32 + rt*4, 4)}, v{va} offset:{(slot & 1)*32768 + rt*2048}"


def rd_w(n, kk, ct):
    return [f"ds_read_b64_tr_b16 {vr(V_WF + ct*4 + 2*a, 2)}, v{V_WA+ct} offset:{(n & 1)*32768 + (32*kk + 4*a)*512}"
            for a in range(2)]


def kstep(typ, n, kk, vm=None, fill=None, last=None, bar=9, vm_pre=None, block=()):
    mf = []
    for ct in range(8):
        for rt in range(8):
            w, c, d = vr(V_WF + ct * 4, 4), vr(V_CF + kk * 32 + rt * 4, 4), ar(acc(typ, ct, rt), 4)
            cin = "0" if (n == 0 and kk == 0) else None
            mf.append(mfma16(d, w, c, cin) if typ == "K" else mfma16(d, c, w, cin))
    sc = Sched(mf, 2)
    fg = 0
    sc.pin(0, [] if (n == 0 and kk == 0) else [])
    if last:
        last(sc)
    else:
        nn, nkk = (n, 1) if kk == 0 else (n + 1, 0)
        if kk == 1:
            sc.pin(bar, list(block) + [f"@vmwait c{n+1} w{n+1} lgkm", "s_barrier"])
            fg = bar + 1
            if vm_pre:
                sc.stream(vm_pre, 0, bar - 1, prio=1)
        rw, at = [], []
        for ct in range(8):
            rw += rd_w(nn, nkk, ct)
            at += [min(63, max(8 * ct + 7, fg + 2 * ct))] * 2
        sc.stream(rw, at=at, prio=3)
        sc.stream([rd_c(nn, nkk, rt) for rt in range(8)], fg + 1, max(52, fg + 10), prio=2)
    if vm:
        sc.stream(vm, fg, 62, prio=1)
    if fill:
        sc.stream(fill, fg if kk == 1 else 0, 62)
    head = [] if (n == 0 and kk == 0) else ["s_waitcnt lgkmcnt(2)"]
    return sc.build(head)


def epilogue_items(flavor="sc1"):
    items = []
    for k in range(32):
        T = V_EP + (k & 1) * 12
        for j in range(8):
            items.append(f"v_accvgpr_read_b32 v{T+4+j}, a{8*k+j}")
        for u in range(4):
            items.append(f"v_cvt_pk_bf16_f32 v{T+u}, v{T+4+2*u}, v{T+5+2*u}")
        if k % 4 == 0 and k:
            items.append(f"s_add_u32 s{S_D}, s{S_D}, 4096")
        items.append(f"buffer_store_dwordx4 {vr(T,4)}, v{V_ST}, {sr(SRD_O,4)}, s{S_D} offen offset:{1024*(k & 3)} {flavor} #kvst")
    return items


class P0:
    V_K, V_V, V_SH, V_A = 16, 38, 54, 62
    V_GX, V_GW = 230, 2
    V_KF, V_WF = 230, 2
    V_T = 252
    V_KO, V_UO, V_GO = 229, 10, 11
    V_SO, V_XO, V_GWO = 62, 63, 64
    SRD_K, SRD_V, SRD_X, SRD_SH, SRD_GW = 84, 88, 92, 96, 76
    SRD_U, SRD_G = 84, 88
    S_T = 36

    def ptr_loads(self):
        return [f"s_load_dwordx2 {sr(d,2)}, s[0:1], {ka}" for d, ka in
                ((self.SRD_K, KA_K), (self.SRD_V, KA_V), (self.SRD_X, KA_Q), (self.SRD_SH, KA_SHIFT), (self.SRD_GW, KA_GW))]

    def setup(self):
        S = Seg()
        t, T, l = self.S_T, self.V_T, V_L
        for d, n in ((self.SRD_K, 4 * MB), (self.SRD_V, 4 * MB), (self.SRD_X, 4 * MB), (self.SRD_SH, 8192), (self.SRD_GW, 2048)):
            S(f"s_mov_b32 s{d+2}, {n}\ns_mov_b32 s{d+3}, 0x20000")
        S(f"s_and_b32 s{t}, s2, 15")
        S(f"s_lshl_b32 s{t}, s{t}, 1")
        S(f"s_lshr_b32 s{t+1}, s{S_W}, 1")
        S(f"s_add_u32 s{t}, s{t}, s{t+1}")
        S(f"s_lshl_b32 s{t}, s{t}, 3")
        S(f"v_and_b32 v{T}, 7, v{l}")
        S(f"v_add_u32 v{T}, s{t}, v{T}")
        S(f"s_lshr_b32 s{t}, s2, 4")
        S(f"s_lshl_b32 s{t}, s{t}, 1")
        S(f"s_and_b32 s{t+1}, s{S_W}, 1")
        S(f"s_add_u32 s{t}, s{t}, s{t+1}")
        S(f"s_lshl_b32 s{t}, s{t}, 3")
        S(f"v_lshrrev_b32 v{T+1}, 3, v{l}")
        S(f"v_add_u32 v{T+1}, s{t}, v{T+1}")
        S(f"v_lshlrev_b32 v{T+2}, 14, v{T+1}")
        S(f"v_lshl_add_u32 v{T+2}, v{T}, 3, v{T+2}")
        S(f"v_add_u32 v{self.V_KO}, {-3*2048}, v{T+2}")
        S(f"v_lshlrev_b32 v{self.V_SO}, 5, v{T}")
        S(f"v_lshlrev_b32 v{T+2}, 4, v{T+1}")
        S(f"v_sub_u32 v{T+2}, 4080, v{T+2}")
        S(f"v_lshl_add_u32 v{self.V_UO}, v{T}, 14, v{T+2}")
        S(f"v_and_b32 v{T}, 31, v{l}")
        S(f"v_lshlrev_b32 v{self.V_GWO}, 4, v{T}")
        S(f"s_lshl_b32 s{t}, s2, 2")
        S(f"s_add_u32 s{t}, s{t}, s{S_W}")
        S(f"s_lshl_b32 s{t}, s{t}, 1")
        S(f"v_lshrrev_b32 v{T+1}, 5, v{l}")
        S(f"v_add_u32 v{T+1}, s{t}, v{T+1}")
        S(f"v_lshl_add_u32 v{self.V_XO}, v{T+1}, 11, v{self.V_GWO}")
        S(f"v_lshlrev_b32 v{T+1}, 2, v{T+1}")
        S(f"v_lshl_add_u32 v{self.V_GO}, v{T}, 20, v{T+1}")
        return [i.text for i in S]

    def gw(self, i):
        return (2, 6, 12, 246)[i]

    def loads(self):
        out = []
        T = self.V_T
        for i in range(4):
            out.append(f"buffer_load_dwordx4 {vr(self.V_GX+4*i,4)}, v{self.V_XO}, {sr(self.SRD_X,4)}, 0 offen offset:{512*i}")
            out.append(f"buffer_load_dwordx4 {vr(self.gw(i),4)}, v{self.V_GWO}, {sr(self.SRD_GW,4)}, 0 offen offset:{512*i}")
        for i in range(2):
            out.append(f"buffer_load_dwordx4 {vr(self.V_SH+4*i,4)}, v{self.V_SO}, {sr(self.SRD_SH,4)}, 0 offen offset:{16*i}")
        for i in range(11):
            tmp = T + (i & 3)
            out += [f"v_add_u32 v{tmp}, {2048*i}, v{self.V_KO}",
                    f"buffer_load_dwordx2 {vr(self.V_K+2*i,2)}, v{tmp}, {sr(self.SRD_K,4)}, 0 offen{NT_K}"]
            if i >= 3:
                out.append(f"buffer_load_dwordx2 {vr(self.V_V+2*(i-3),2)}, v{tmp}, {sr(self.SRD_V,4)}, 0 offen{NT_K}")
        return out

    def compute(self, flavor="sc1"):
        S = Seg()
        srd(S, self.SRD_U, S_WS, 4 * MB, off=WS_UR)
        srd(S, self.SRD_G, S_WS, 8192, off=WS_G)
        out = [i.text for i in S]
        T = self.V_T
        a = T
        out.append(f"v_mov_b32 v{a}, 0")
        out.append(f"v_mov_b32 v{a+1}, 0")
        for i in range(16):
            out.append(f"v_dot2_f32_bf16 v{a + (i & 1)}, v{self.V_GX+i}, v{self.gw(i >> 2) + (i & 3)}, v{a + (i & 1)}")
        out.append(["s_nop 2", f"v_add_f32 v{a}, v{a}, v{a+1}"])
        for r in (8, 4, 2, 1):
            out.append(f"v_add_f32_dpp v{a}, v{a}, v{a} row_ror:{r} row_mask:0xf bank_mask:0xf")
        out.append(f"v_mov_b32 v{a+1}, v{a}")
        out.append(f"v_permlane16_swap_b32 v{a}, v{a+1}")
        out.append(f"v_add_f32 v{a}, v{a}, v{a+1}")
        out.append(f"v_mul_f32 v{a}, 0xbfb8aa3b, v{a}")
        out.append(f"v_exp_f32 v{a}, v{a}")
        out.append(f"v_add_f32 v{a}, 1.0, v{a}")
        out.append(f"v_rcp_f32 v{a}, v{a}")
        out.append(["s_nop 0", f"buffer_store_dword v{a}, v{self.V_GO}, {sr(self.SRD_G,4)}, 0 offen {flavor}"])
        for cp in range(2):
            for c in range(2):
                sh = self.V_SH + 4 * cp + 2 * c
                w = self.V_WF + 4 * c
                out += [f"v_lshlrev_b32 v{w}, 16, v{sh}", f"v_and_b32 v{w+1}, 0xffff0000, v{sh}",
                        f"v_lshlrev_b32 v{w+2}, 16, v{sh+1}", f"v_and_b32 v{w+3}, 0xffff0000, v{sh+1}"]
            for i in range(11):
                k = self.V_K + 2 * i + cp
                out += [f"v_lshlrev_b32 v{self.V_KF+2*i}, 16, v{k}", f"v_and_b32 v{self.V_KF+2*i+1}, 0xffff0000, v{k}"]
            for rho in range(8):
                v = self.V_V + 2 * rho + cp
                out += [f"v_lshlrev_b32 v{T+2}, 16, v{v}", f"v_and_b32 v{T+3}, 0xffff0000, v{v}"]
                for j in range(4):
                    for c in range(2):
                        A = self.V_A + 8 * c + rho
                        kf = self.V_KF + 2 * (rho + 3 - j) + c
                        w = self.V_WF + 4 * c + j
                        out.append(f"v_mul_f32 v{A}, v{kf}, v{w}" if j == 0 else f"v_fmac_f32 v{A}, v{kf}, v{w}")
                for c in range(2):
                    A = self.V_A + 8 * c + rho
                    out.append(f"v_mul_f32 v{A}, v{A}, v{T+2+c}")
            for c in range(2):
                P = (12, self.V_SH)[c] if cp == 0 else (self.V_KF, self.V_KF + 4)[c]
                A = self.V_A + 8 * c
                for e in range(4):
                    out.append(f"v_cvt_pk_bf16_f32 v{P+e}, v{A+7-2*e}, v{A+6-2*e}")
                out += [f"s_mov_b32 s{self.S_T}, {4096*(2*cp + c)}",
                        f"buffer_store_dwordx4 {vr(P,4)}, v{self.V_UO}, {sr(self.SRD_U,4)}, s{self.S_T} offen {flavor}"]
        return out
```

```python
from common import *
import f1

S_W = 3
SRD_X = 44
SRD_WQ = 48
SRD_K = 52
SRD_V = 56
SRD_CTX = 60
S_XL, S_XS, S_WQO = 64, 65, 66
S_MX, S_MWQ = 67, 68
S_HEAD, S_I = 69, 70
S_KX, S_XO = 74, 75
S_KVO = 71
S_MK, S_MV = 72, 73
S_CNT = 74
S_NT = 77
S_BAD = 78
S_TMP = 80
S_MSK = 84
S_CL, S_CS = 100, 101
S_C7 = 76

V_L = 1
V_LS = 2
V_KA, V_VA, V_DO = 10, 11, 12
V_Q4, V_NINF, V_CST = (13, 239), 14, 15
V_Q = 16
V_S = 80
V_T = 240
V_ONE, V_LM = 160, 164
V_WF = 16
V_XF = 48
V_XD, V_WD, V_WA, V_XA = 208, 212, 216, 224
A_O = 0
A_K = 128
A_V = 192

X_SLOT = (65536, 0, 32768)
LDS_WQ = 98304
COH = 'sc1'
VOTE_LDS = 163824
M84 = os.environ.get('M84', '1') == '1'


def qreg(qt, p):
    return V_Q + 16 * qt + 4 * p


def sreg(par, u, qt):
    return V_S + 64 * par + 32 * u + 8 * qt


def oreg(qt, dt):
    return A_O + 32 * qt + 4 * dt


def acc2(ct, rt):
    return V_S + (ct * 4 + rt) * 4


def ptr_loads():
    return [f"s_load_dwordx2 s[32:33], s[0:1], {KA_Q}", f"s_load_dwordx2 s[34:35], s[0:1], {KA_WQ}",
            f"s_load_dwordx2 s[38:39], s[0:1], {KA_DBG}"]


def setup():
    S = Seg()
    T = 66
    t = S_TMP
    if M84:
        S(f"s_bfe_u32 s{t}, s2, 0x20001")
        S(f"s_bfe_u32 s{S_HEAD}, s2, 0x30003")
        S(f"s_lshl_b32 s{t}, s{t}, 3")
        S(f"s_add_u32 s{S_HEAD}, s{S_HEAD}, s{t}")
        S(f"s_lshr_b32 s{t}, s2, 6")
        S(f"s_xor_b32 s{t+1}, s{t}, s2")
        S(f"s_and_b32 s{t+1}, s{t+1}, 1")
        S(f"s_lshl_b32 s{S_I}, s{t}, 1")
        S(f"s_add_u32 s{S_I}, s{S_I}, s{t+1}")
    else:
        S(f"s_and_b32 s{t}, s2, 7")
        S(f"s_lshr_b32 s{t+1}, s2, 3")
        S(f"s_and_b32 s{S_HEAD}, s{t+1}, 3")
        S(f"s_lshl_b32 s{t}, s{t}, 2")
        S(f"s_add_u32 s{S_HEAD}, s{S_HEAD}, s{t}")
        S(f"s_lshr_b32 s{S_I}, s{t+1}, 2")
    S(f"s_lshl_b32 s{t}, s{S_W}, 1")
    S(f"s_sub_u32 s{t}, 7, s{t}")
    S(f"s_lshl_b32 s{S_C7}, s{t}, 17")
    S(f"s_lshl_b32 s{t}, s{S_W}, 15")
    S(f"s_lshl_b32 s{S_XS}, s{S_I}, 18")
    S(f"s_sub_u32 s{S_XL}, {15 << 18}, s{S_XS}")
    S(f"s_add_u32 s{S_XS}, s{S_XS}, s{t}")
    S(f"s_add_u32 s{S_XL}, s{S_XL}, s{t}")
    S(f"s_lshl_b32 s{t+1}, s{S_HEAD}, 12")
    S(f"s_lshl_b32 s{S_CL}, s{S_XL}, 2")
    S(f"s_add_u32 s{S_CL}, s{S_CL}, s{t+1}")
    S(f"s_lshl_b32 s{S_CS}, s{S_XS}, 2")
    S(f"s_add_u32 s{S_CS}, s{S_CS}, s{t+1}")
    S(f"s_lshl_b32 s{S_WQO}, s{S_W}, 17")
    S(f"s_lshl_b32 s{t+1}, s{S_HEAD}, 8")
    S(f"s_add_u32 s{S_WQO}, s{S_WQO}, s{t+1}")
    S(f"s_and_b32 s{S_KX}, s2, {f1.ROT}")
    S(f"s_lshl_b32 s{S_KX}, s{S_KX}, 8")
    S(f"s_mov_b32 s{t+2}, s{S_WQO}")
    S(f"s_lshl_b32 s{S_WQO}, s{S_KX}, 12")
    S(f"s_lshl_b32 s{S_MX}, s{S_W}, 13")
    S(f"s_lshl_b32 s{S_MWQ}, s{S_W}, 12")
    S(f"s_lshl_b32 s{S_NT}, s{S_I}, 1")
    S(f"s_sub_u32 s{S_NT}, 32, s{S_NT}")
    l = V_L
    S(f"v_lshrrev_b32 v{T}, 3, v{l}")
    S(f"v_lshlrev_b32 v{T}, 11, v{T}")
    S(f"v_lshrrev_b32 v{T+1}, 4, v{l}")
    S(f"v_and_b32 v{T+2}, 7, v{l}")
    S(f"v_xor_b32 v{T+2}, v{T+2}, v{T+1}")
    S(f"v_lshl_add_u32 v{T}, v{T+2}, 4, v{T}")
    S(f"v_xor_b32 v{T+3}, 64, v{T}")
    S(f"s_lshr_b32 s{t+3}, s{S_C7}, 2")
    for i in range(4):
        S(f"v_add_u32 v{V_XD+i}, {16384*(i & 1) - 1024*i}, v{T + (3 if i & 1 else 0)}")
        if i >= 2:
            S(f"v_add_u32 v{V_XD+i}, s{t+3}, v{V_XD+i}")
    S(f"v_and_b32 v{T+2}, 15, v{l}")
    S(f"v_lshlrev_b32 v{T+3}, 1, v{T+1}")
    S(f"v_xor_b32 v{T+2}, v{T+2}, v{T+3}")
    S(f"v_lshlrev_b32 v{T}, 13, v{T+1}")
    for i in range(4):
        S(f"v_xor_b32 v{T+3}, {(i >> 1) << 3}, v{T+2}")
        S(f"v_lshl_add_u32 v{T+3}, v{T+3}, 4, v{T}")
        S(f"v_add_u32 v{V_WD+i}, {32768*i - 1024*i}, v{T+3}")
    S(f"v_and_b32 v{T}, 15, v{l}")
    S(f"v_lshrrev_b32 v{T+2}, 1, v{T}")
    S(f"v_xor_b32 v{T+2}, v{T+2}, v{T+1}")
    S(f"v_lshlrev_b32 v{T+2}, 4, v{T+2}")
    S(f"v_lshl_add_u32 v{T+2}, v{T}, 7, v{T+2}")
    S(f"v_add_u32 v{V_XA}, s{S_MX}, v{T+2}")
    S(f"v_xor_b32 v{V_XA+1}, 64, v{V_XA}")
    S(f"v_add_u32 v{V_XA+2}, 0x10000, v{V_XA}")
    S(f"v_add_u32 v{V_XA+3}, 0x10000, v{V_XA+1}")
    S(f"v_bfe_u32 v{T}, v{l}, 2, 2")
    S(f"v_and_b32 v{T+2}, 1, v{T+1}")
    S(f"v_lshl_or_b32 v{T+2}, v{T+2}, 2, v{T}")
    S(f"v_lshl_add_u32 v{T}, v{T+1}, 3, v{T}")
    S(f"v_lshlrev_b32 v{T}, 8, v{T}")
    S(f"v_and_b32 v{T+3}, 3, v{l}")
    S(f"v_lshl_add_u32 v{T}, v{T+3}, 3, v{T}")
    S(f"v_add_u32 v{T}, {LDS_WQ}, v{T}")
    for ct in range(8):
        S(f"v_xor_b32 v{T+3}, {ct}, v{T+2}")
        S(f"v_lshl_add_u32 v{V_WA+ct}, v{T+3}, 5, v{T}")
    srd(S, SRD_X, 32, 2048 * 1024 * 2)
    S(f"s_add_u32 s{SRD_WQ}, s34, s{t+2}\ns_addc_u32 s{SRD_WQ+1}, s35, 0")
    S(f"s_sub_u32 s{SRD_WQ+2}, {8*MB}, s{t+2}\ns_mov_b32 s{SRD_WQ+3}, 0x20000")
    srd(S, SRD_CTX, 40, 16 * MB, off=WS_CTX)
    S(f"s_lshl_b32 s{t}, s{S_HEAD}, 19")
    S(f"s_add_u32 s{SRD_K}, s40, s{t}\ns_addc_u32 s{SRD_K+1}, s41, 0")
    S(f"s_lshl_b32 s{SRD_K+2}, s{S_NT}, 14\ns_mov_b32 s{SRD_K+3}, 0x20000")
    S(f"s_add_u32 s{t}, s{t}, {WS_VF - 16384}")
    S(f"s_add_u32 s{SRD_V}, s40, s{t}\ns_addc_u32 s{SRD_V+1}, s41, 0")
    S(f"s_add_u32 s{SRD_V+2}, s{SRD_K+2}, 16384\ns_mov_b32 s{SRD_V+3}, 0x20000")
    return [i.text for i in S]


def setup3(T):
    S = Seg()
    t, l = S_TMP, V_L
    S(f"v_lshlrev_b32 v{T}, 4, v{l}")
    S(f"s_lshl_b32 s{t}, s{S_W}, 12")
    S(f"v_add_u32 v{V_DO}, s{t}, v{T}")
    S(f"v_add_u32 v{V_KA}, 0x8000, v{T}")
    S(f"v_add_u32 v{V_VA}, 0x10000, v{T}")
    S(f"s_add_u32 s{S_MK}, s{t}, 0x8000")
    S(f"s_add_u32 s{S_MV}, s{t}, 0x10000")
    S(f"v_mov_b32 v{V_CST}, v{T}")
    S(f"v_and_b32 v{T}, 15, v{l}")
    S(f"v_lshrrev_b32 v{T+2}, 4, v{l}")
    S(f"v_lshlrev_b32 v{T+2}, 2, v{T+2}")
    S(f"v_sub_u32 v{T}, v{T}, v{T+2}")
    S(f"s_lshl_b32 s{t+1}, s{S_W}, 4")
    S(f"v_add_u32 v{V_Q4[0]}, s{t+1}, v{T}")
    S(f"s_sub_u32 s{t+1}, 112, s{t+1}")
    S(f"v_add_u32 v{V_Q4[1]}, s{t+1}, v{T}")
    S(f"v_mov_b32 v{V_NINF}, 0xff800000")
    return [i.text for i in S]


def dma_x(n):
    out = []
    for half, so in ((0, S_XL), (1, S_XS)):
        for i in range(4):
            if i == 0:
                out.append(f"s_add_u32 s{S_XO}, s{so}, s{S_KX}")
                out.append(f"s_add_u32 m0, s{S_MX}, {X_SLOT[n % 3] + half*4096}")
            out.append(f"buffer_load_dwordx4 v{V_XD+i}, {sr(SRD_X,4)}, s{S_XO} offen offset:{1024*i} lds #x{n}")
    out += [f"s_add_u32 s{S_KX}, s{S_KX}, 128", f"s_and_b32 s{S_KX}, s{S_KX}, 2047"]
    return out


def dma_q(n):
    out = []
    for i in range(4):
        if i == 0:
            out.append(f"s_add_u32 m0, s{S_MWQ}, {LDS_WQ + (n % 3)*16384}")
        out.append(f"buffer_load_dwordx4 v{V_WD+i}, {sr(SRD_WQ,4)}, s{S_WQO} offen offset:{1024*i}{NT_Q} lds #q{n}")
    out += [f"s_add_u32 s{S_WQO}, s{S_WQO}, {64*8192}", f"s_and_b32 s{S_WQO}, s{S_WQO}, {8*MB - 1}"]
    return out


def kv_dma(which, tile, slot):
    base = slot * 16384 + (0x10000 if which == "V" else 0)
    so = (tile + (1 if which == "V" else 0)) * 16384
    srd_ = SRD_K if which == "K" else SRD_V
    out = [f"s_add_u32 m0, s{S_MWQ}, {base}", f"s_mov_b32 s{S_TMP}, {so}"]
    for i in range(4):
        out.append(f"buffer_load_dwordx4 v{V_DO}, {sr(srd_,4)}, s{S_TMP} offen offset:{1024*i} {COH} lds #{which}{tile}")
    return out


def rd_x(n, kk, rt):
    base = X_SLOT[n % 3]
    return f"ds_read_b128 {vr(V_XF + kk*16 + rt*4, 4)}, v{V_XA + kk + (2 if base == 65536 else 0)} offset:{base % 65536 + rt*2048}"


def rd_wq(n, kk, ct):
    return [f"ds_read_b64_tr_b16 {vr(V_WF + ct*4 + 2*a, 2)}, v{V_WA+ct} offset:{(n % 3)*16384 + (32*kk + 4*a)*256}"
            for a in range(2)]


def kstep2(n, kk, fill=None, after_bar=None):
    mf = []
    for ct in range(8):
        for rt in range(4):
            d = vr(acc2(ct, rt), 4)
            mf.append(mfma16(d, vr(V_WF + ct * 4, 4), vr(V_XF + kk * 16 + rt * 4, 4),
                             "0" if (n == 0 and kk == 0) else None))
    sc = Sched(mf, 2)
    last = (n == 15 and kk == 1)
    fg = 0
    if not last:
        nn, nkk = (n, 1) if kk == 0 else (n + 1, 0)
        if kk == 1:
            sc.pin(7, [f"@vmwait x{n+1} q{n+1} lgkm", "s_barrier"])
            if after_bar:
                sc.pin(8, after_bar)
            fg = 8
        m = n + 3 if kk == 1 else n + 2
        if m <= 15 and not (n == 0 and kk == 0):
            d = dma_q(m) + dma_x(m)
            if kk == 1:
                sc.stream(d[:10], 8, 31, prio=1)
            else:
                sc.stream(d[10:], 0, 31, prio=1)
        rw, at = [], []
        for ct in range(8):
            rw += rd_wq(nn, nkk, ct)
            at += [min(31, max(4 * ct + 3, fg + 2 * ct))] * 2
        sc.stream(rw, at=at, prio=3)
        sc.stream([rd_x(nn, nkk, rt) for rt in range(4)], fg + 1, 24, prio=2)
    if fill:
        sc.stream(fill, 0, 30)
    return sc.build(["s_waitcnt lgkmcnt(4)"])


def p1_last_hook(sc):
    sc.pin(9, ["@vmwait x0 q0 lgkm", "s_barrier"])
    sc.stream([rd_x(0, 0, rt) for rt in range(4)] + [x for ct in range(8) for x in rd_wq(0, 0, ct)], 10, 50, prio=2)
    sc.stream(dma_q(2) + dma_x(2), 10, 62, prio=1)


TL, TS, TLS = [0, 1], [2, 3], [0, 1, 2, 3]
CAP = 2
EARLY_L0 = os.environ.get('EL0', '0') == '1'
LATE, RSP = int(os.environ.get('LATE', '1')), int(os.environ.get('RSP', '12'))
MSUM = os.environ.get('MSUM', '1') == '1'


def rd_k(f, imm):
    return f"ds_read_b128 {ar(A_K + 4*f, 4)}, v{V_KA} offset:{imm + 1024*f}"


def rd_v(f, imm):
    return f"ds_read_b128 {ar(A_V + 4*f, 4)}, v{V_VA} offset:{imm + 1024*f}"


def qk_mfmas(par, qts):
    return [mfma16(vr(sreg(par, kt >> 1, qt) + 4 * (kt & 1), 4), ar(A_K + 4 * (4 * kt + p), 4), vr(qreg(qt, p), 4),
                   "0" if p == 0 else None) for kt in range(4) for p in range(4) for qt in qts]


def sum_mfmas(par, u, qts):
    return [mfma16(vr(V_LM + 4 * qt, 4), vr(V_ONE, 4), vr(sreg(par, u, qt), 4)) for qt in qts]


def pv_mfmas(par, qts, msum=False):
    out = []
    for u in range(2):
        for dt in range(8):
            out += [mfma16(ar(oreg(qt, dt), 4), ar(A_V + 4 * (8 * u + dt), 4), vr(sreg(par, u, qt), 4)) for qt in qts]
            if msum and dt == 3:
                out += sum_mfmas(par, u, qts)
    return out


def exp_stream(par, pairs, adds=True):
    return [x for x in _exp_stream(par, pairs) if adds or not x.startswith("v_add")]


def _exp_stream(par, pairs):
    out = []
    prev = None

    def fin(p):
        u, qt, e = p
        b = sreg(par, u, qt)
        r = b + 2 * e
        return [f"v_add_f32 v{V_LS+qt}, v{V_LS+qt}, v{r}", f"v_cvt_pk_bf16_f32 v{b + e}, v{r}, v{r+1}",
                f"v_add_f32 v{V_LS+qt}, v{V_LS+qt}, v{r+1}"]
    for p in pairs:
        u, qt, e = p
        r = sreg(par, u, qt) + 2 * e
        f = fin(prev) if prev else []
        out.append(f"v_exp_f32 v{r}, v{r}")
        out += [f[0], f[2]] if f else []
        out.append(f"v_exp_f32 v{r+1}, v{r+1}")
        out += f[1:2]
        prev = p
    if prev:
        f = fin(prev)
        out += [f[0], f[2], f[1]]
    return out


def all_pairs(qts):
    return [(u, qt, e) for u in range(2) for qt in qts for e in range(4)]


NA = {4: int(os.environ.get("NA2", "16")), 2: int(os.environ.get("NA1", "8")), 3: 12, 1: 4}


assert NA[4] <= 16 and NA[2] <= 8


def mask_items(par, qts, u, off):
    out = []
    for j, (e, qt) in enumerate((e, qt) for e in range(2) for qt in qts):
        T = V_T + 6 + (j & 1)
        c = -16 * (2 * u + e)
        if isinstance(off, int):
            out.append(f"v_add_u32 v{T}, {c + off}, v{V_Q4[qt & 1]}")
        else:
            out += [f"v_add_u32 v{T}, {off}, v{V_Q4[qt & 1]}", f"v_add_u32 v{T}, {c}, v{T}"]
        m = S_MSK + 8 * (j & 1)
        out += [f"v_cmp_gt_i32_e64 {sr(m + 2*r, 2)}, {r}, v{T}" for r in range(4)]
        for r in range(4):
            x = sreg(par, u, qt) + 4 * e + r
            out.append(f"v_cndmask_b32_e64 v{x}, v{x}, v{V_NINF}, {sr(m + 2*r, 2)}")
    return out


def group_reduce(op, r, T):
    return [f"v_mov_b32 v{T}, v{r}", f"v_permlane32_swap_b32 v{r}, v{T}", f"{op} v{r}, v{r}, v{T}",
            f"v_mov_b32 v{T}, v{r}", f"v_permlane16_swap_b32 v{r}, v{T}", f"{op} v{r}, v{r}, v{T}"]


def sum_check(qts, first, msum):
    T = V_T
    out = [x for p in zip(*[group_reduce("v_add_f32", V_LS + qt, T + k) for k, qt in enumerate(qts)]) for x in p]
    for qt in qts:
        if msum:
            out.append(f"v_add_f32 v{V_LS+qt}, v{V_LS+qt}, v{V_LM+4*qt}")
        out += [f"v_cmp_nle_f32 vcc, 0x30800000, v{V_LS+qt}", "s_nop 0",
                f"s_mov_b64 {sr(S_BAD,2)}, vcc" if first else f"s_or_b64 {sr(S_BAD,2)}, {sr(S_BAD,2)}, vcc",
                f"v_cmp_nge_f32 vcc, 0x4e800000, v{V_LS+qt}", "s_nop 0", f"s_or_b64 {sr(S_BAD,2)}, {sr(S_BAD,2)}, vcc"]
        first = False
    return out


class Body:
    def __init__(self, par, qk, pv, mask=None, tail=(), xdma=(), xfill=(), end=0, st=None):
        a, b = par, par ^ 1
        valu1 = exp_stream(a, all_pairs(pv)[NA[len(pv)]:], len(pv) > 2 or not MSUM)
        vrd = [rd_v(f, 16384 if par == 0 else 0) for f in range(16)]
        head = ["s_waitcnt lgkmcnt(0)"] + ([f"v_xor_b32 v{V_VA}, 0x8000, v{V_VA}"] if par == 1 else [])
        S = Seg()
        self.segs = [S]
        if not qk:
            T = V_T
            S.add(head + vrd + valu1 + (sum_mfmas(a, 0, pv) + sum_mfmas(a, 1, pv) if MSUM else []))
            if EARLY_L0:
                S.add(sum_check([0], False, MSUM))
                epilogue(S, [0], S_CL, tag="#ctx0")
                S.add(sum_check([1], False, MSUM))
            else:
                S.add(sum_check(TL, False, MSUM))
            S(f"s_cmp_lg_u64 {sr(S_BAD,2)}, 0\ns_cselect_b32 s{S_TMP}, 1, 0\nv_mov_b32 v{T}, s{S_TMP}")
            S(f"s_lshl_b32 s{S_TMP}, s{S_W}, 2\ns_add_u32 s{S_TMP}, s{S_TMP}, {VOTE_LDS}\nv_mov_b32 v{T+1}, s{S_TMP}")
            S(f"ds_write_b32 v{T+1}, v{T}\nv_mov_b32 v{T+1}, {VOTE_LDS}")
            if st:
                st(S)
            S("@vmwait ur lgkm")
            if st:
                st(S)
            S(f"s_barrier\nds_read_b128 {vr(T+4,4)}, v{T+1}")
            S.add(list(xdma))
            mf = pv_mfmas(a, pv)
            S.add(mf[:6])
            S(f"v_or3_b32 v{T}, v{T+4}, v{T+5}, v{T+6}\nv_or_b32 v{T}, v{T}, v{T+7}")
            S.add(mf[6:7])
            S(f"v_cmp_ne_u32 vcc, 0, v{T}")
            S.add(mf[7:9])
            S("s_cbranch_vccnz L_fallback")
            S2 = Seg()
            sc = Sched(mf[9:], CAP)
            sc.stream(list(xfill), 0, len(mf) - 10)
            S2.add(sc.build())
            self.segs.append(S2)
            return
        mf = qk_mfmas(b, qk)
        n1 = len(mf)
        sc = Sched(mf, CAP)
        sc.pack, sc.late = True, LATE
        sc.stream(vrd, 0, (n1 * RSP) // 16, prio=2)
        dv = [f"buffer_load_dwordx4 v{V_DO}, {sr(SRD_V,4)}, s{S_KVO} offen offset:{1024*i} {COH} lds" for i in range(4)]
        dv += [f"s_add_u32 s{S_KVO}, s{S_KVO}, 16384"] + ([f"s_xor_b32 s{S_MV}, s{S_MV}, 0x8000"] if par == 1 else [])
        if not end:
            sc.pin(0, [f"s_add_u32 m0, s{S_MV}, {0 if par == 0 else 16384}"])
            sc.stream(dv, 1, n1, prio=1)
        sc.stream(valu1, 0, n1)
        if mask:
            sc.stream(mask_items(b, mask[:1], 0, -64 * mask[1]), min(n1 - 1, n1 // 2 + 6), n1)
        S.add(sc.build(head))
        mf = pv_mfmas(a, pv, MSUM and len(pv) <= 2)
        n2 = len(mf)
        sc = Sched(mf, CAP)
        sc.pack, sc.late = True, LATE
        sc.pin(0, ["s_barrier"] + ([f"v_xor_b32 v{V_KA}, 0x8000, v{V_KA}"] if par == 1 else []))
        if not end:
            sc.pin(1, [f"s_add_u32 m0, s{S_MK}, {0 if par == 0 else 16384}"])
        if end < 2:
            sc.stream([rd_k(f, 16384 if par == 0 else 0) for f in range(16)], 1, (n2 * RSP) // 16, prio=2)
        dk = [f"buffer_load_dwordx4 v{V_DO}, {sr(SRD_K,4)}, s{S_KVO} offen offset:{1024*i} {COH} lds" for i in range(4)]
        dk += [f"s_xor_b32 s{S_MK}, s{S_MK}, 0x8000"] if par == 1 else []
        sc.stream((dk if not end else []) + list(xdma) + list(tail[:-1]), 2, n2, prio=1)
        sc.stream(exp_stream(b, all_pairs(qk)[:NA[len(qk)]], len(qk) > 2 or not MSUM), 1, n2)
        if mask:
            sc.stream(mask_items(b, mask[:1], 1, -64 * mask[1]), 6, n2)
        sc.stream(list(xfill), 2, n2)
        S.add(sc.build([f"s_waitcnt vmcnt({(16, 12, 4)[end]}) lgkmcnt(0)"]))
        S.add(list(tail[-1:]))


def epilogue(S, qts, so, ob=None, tag=""):
    T = V_T
    for qt in qts:
        S(f"v_rcp_f32 v{V_LS+qt}, v{V_LS+qt}")
    S(f"s_add_u32 s{S_TMP}, s{so}, s{S_C7}\ns_nop 4")
    k = 0
    for qt in qts:
        qh = qt & 1
        for p in range(4):
            D = T + 8 + 4 * (k & 1)
            k += 1
            for j in range(8):
                S(f"v_accvgpr_read_b32 v{T+j}, a{oreg(qt, 2*p) + j}")
            for j in range(8):
                S(f"v_mul_f32 v{T+j}, v{T+j}, v{V_LS+qt}")
            for u in range(4):
                S(f"v_cvt_pk_bf16_f32 v{D+u}, v{T+2*u}, v{T+2*u+1}")
            S(f"buffer_store_dwordx4 {vr(D,4)}, v{V_CST}, {sr(SRD_CTX,4)}, s{S_TMP if qh else so} offen offset:{p*1024} sc1 {tag}")


def p3_prologue(nm, extra):
    A = Seg()
    A("s_waitcnt lgkmcnt(0)\ns_barrier")
    A.add(kv_dma("K", 0, 1) + kv_dma("K", 1, 2))
    q = [f"s_mov_b32 s{S_TMP+2}, {SCALE_K:#x}", f"s_mov_b32 s{S_TMP+3}, {SCALE_K:#x}"]
    for p in range(4):
        for r in range(acc2(2 * p, 0), acc2(2 * p, 0) + 32, 2):
            q.append(f"v_pk_mul_f32 {vr(r,2)}, {vr(r,2)}, {sr(S_TMP+2,2)}")
        for qt in range(4):
            for u in range(4):
                a = acc2(2 * p + (u >> 1), qt) + 2 * (u & 1)
                q.append(f"v_cvt_pk_bf16_f32 v{qreg(qt, p) + u}, v{a}, v{a+1}")
    q += [f"v_mov_b32 v{V_LS+qt}, 0" for qt in range(4)]
    q.append(f"v_xor_b32 v{V_T+4}, 0x8000, v{V_KA}")
    d = kv_dma("V", 0, 1) + kv_dma("K", 2, 3) + kv_dma("V", 1, 2)
    for k, x in enumerate(d):
        A.add(q[k * len(q) // len(d):(k + 1) * len(q) // len(d)] + [x])
    A("@vmwait K0\ns_barrier")
    for f in range(16):
        A(f"ds_read_b128 {ar(A_K + 4*f, 4)}, v{V_T+4} offset:{16384 + 1024*f}")
    sc = Sched(qk_mfmas(0, TLS), CAP)
    sc.pin(24, ["@vmwait K1 V0 lgkm", "s_barrier"])
    sc.stream([rd_k(f, 0) for f in range(16)], at=[max(25 + f, 4 * f + 3) for f in range(16)], prio=2)
    sc.stream(kv_dma("K", 3, 0) + kv_dma("V", 2, 3), 0, 22, prio=1)
    sc.stream(kv_dma("K", 4, 1) + [f"s_mov_b32 s{S_KVO}, {4*16384}"] + list(extra), 25, 63, prio=1)
    A.add(sc.build())
    A(f"s_cmp_eq_u32 s{S_I}, 0\ns_cbranch_scc1 L_{nm}_pmask")
    M = Seg()
    M(f"L_{nm}_pmask:\ns_nop 7")
    M.add(mask_items(0, [2], 0, 0) + mask_items(0, [2], 1, 0))
    M(f"s_branch L_{nm}_pmask_ret")
    B = Seg()
    B(f"L_{nm}_pmask_ret:")
    B.add(exp_stream(0, all_pairs(TLS)[:NA[4]]))
    return A, B, M


def fallback(prep, reload, back):
    F = Seg()
    T, M, FA = V_T, 96, 98
    n, so, off, ctx, ps = S_CNT, S_KVO, S_MK, S_MV, S_TMP + 1
    F(f"L_fallback:\ns_mov_b32 s{ps}, 0\ns_mov_b32 s{n}, s{S_NT}\ns_mov_b32 s{ctx}, s{S_CL}")
    F(f"s_sub_u32 s{off}, 15, s{S_I}\nv_mov_b32 v{V_KA}, v{V_CST}\nv_add_u32 v{V_VA}, 16384, v{V_CST}\ns_nop 15")
    F(f"L_fb_set:\ns_lshl_b32 s{off}, s{off}, 7\ns_mov_b32 s{so}, 0")
    for r in range(64):
        F(f"v_accvgpr_write_b32 a{A_O+r}, 0")
    for qt in TL:
        F(f"v_mov_b32 v{V_LS+qt}, 0\nv_mov_b32 v{M+qt}, v{V_NINF}")
    F(f"L_fb_tile:\ns_waitcnt vmcnt(0) lgkmcnt(0)\ns_barrier\ns_mov_b32 m0, s{S_MWQ}\ns_add_u32 s{S_TMP}, s{so}, 16384")
    for i in range(4):
        F(f"buffer_load_dwordx4 v{V_DO}, {sr(SRD_K,4)}, s{so} offen offset:{1024*i} {COH} lds")
    F(f"s_add_u32 m0, s{S_MWQ}, 16384\ns_nop 0")
    for i in range(4):
        F(f"buffer_load_dwordx4 v{V_DO}, {sr(SRD_V,4)}, s{S_TMP} offen offset:{1024*i} {COH} lds")
    F("s_waitcnt vmcnt(0)\ns_barrier")
    F.add([rd_k(f, 0) for f in range(16)] + ["s_waitcnt lgkmcnt(0)"] + [rd_v(f, 0) for f in range(16)])
    F.add(qk_mfmas(0, TL) + mask_items(0, TL, 0, f"s{off}") + mask_items(0, TL, 1, f"s{off}"))
    for qt in TL:
        regs = [sreg(0, u, qt) + r for u in range(2) for r in range(8)]
        F(f"v_mov_b32 v{T+2}, v{M+qt}")
        for k in range(0, 16, 2):
            F(f"v_max3_f32 v{T+2}, v{T+2}, v{regs[k]}, v{regs[k+1]}")
        F.add(group_reduce("v_max_f32", T + 2, T + 3))
        F(f"v_sub_f32 v{FA+qt}, v{M+qt}, v{T+2}\nv_exp_f32 v{FA+qt}, v{FA+qt}\nv_mov_b32 v{M+qt}, v{T+2}")
        for r in regs:
            F(f"v_sub_f32 v{r}, v{r}, v{T+2}")
        F(f"v_mul_f32 v{V_LS+qt}, v{V_LS+qt}, v{FA+qt}")
        for r in range(32):
            F(f"v_accvgpr_read_b32 v{T+3}, a{oreg(qt, 0) + r}\nv_mul_f32 v{T+3}, v{T+3}, v{FA+qt}")
            F(f"v_accvgpr_write_b32 a{oreg(qt, 0) + r}, v{T+3}")
    F.add(exp_stream(0, all_pairs(TL)) + pv_mfmas(0, TL))
    F(f"s_add_u32 s{so}, s{so}, 16384\ns_sub_u32 s{off}, s{off}, 64\ns_sub_u32 s{n}, s{n}, 1")
    F(f"s_nop 15\ns_cmp_lg_u32 s{n}, 0\ns_cbranch_scc1 L_fb_tile")
    for qt in TL:
        F.add(group_reduce("v_add_f32", V_LS + qt, T))
    epilogue(F, TL, ctx)
    F(f"s_cmp_lg_u32 s{ps}, 0\ns_cbranch_scc1 L_fb_done")
    F(f"s_mov_b32 s{ps}, 1\ns_sub_u32 s{n}, 34, s{S_NT}\ns_mov_b32 s{ctx}, s{S_CS}\ns_mov_b32 s{off}, s{S_I}")
    for r in range(32):
        F(f"v_mov_b32 v{V_Q+r}, v{V_Q+32+r}")
    F("s_branch L_fb_set\nL_fb_done:\ns_waitcnt vmcnt(0) lgkmcnt(0)\ns_barrier")
    F.add(list(reload) + flat(prep) + ["s_waitcnt lgkmcnt(0)"])
    F(f"s_branch {back}")
    return F


def p3(nm, st, pro_extra, after_s, late_dma, before_last, sig_pack, mx_fill, la_fill):
    PA, PB, PM = p3_prologue(nm, pro_extra)
    st(PB)
    PB(f"s_sub_u32 s{S_CNT}, s{S_I}, 1\ns_cbranch_scc1 L_{nm}_d0m_top")
    dec = f"s_sub_u32 s{S_CNT}, s{S_CNT}, 1"
    D0 = Body(0, TLS, TLS, tail=[dec, f"s_cbranch_scc1 L_{nm}_d1m_top"])
    D1 = Body(1, TLS, TLS, tail=[f"s_branch L_{nm}_d0_top"])
    D1m = Body(1, TLS, TLS, mask=(2, 0))
    D0m = Body(0, [0, 1, 3], TLS, mask=(3, 1), tail=[f"s_cmp_eq_u32 s{S_I}, 7", f"s_cbranch_scc1 L_{nm}_mxm_top"])
    MX = Body(1, TL, [0, 1, 3], xfill=mx_fill)
    MXm = Body(1, TL, [0, 1, 3], mask=(0, 0), tail=[f"s_branch L_{nm}_eps"], xfill=mx_fill)
    S0 = Body(0, TL, TL, tail=[dec, f"s_cbranch_scc1 L_{nm}_s1m_top"])
    S1 = Body(1, TL, TL, tail=[f"s_branch L_{nm}_s0_top"], xdma=sig_pack[0] + sig_pack[1])
    S1m = Body(1, TL, TL, mask=(0, 0), end=1)
    S0m = Body(0, [1], TL, mask=(1, 1), xdma=late_dma, end=2)
    LA = Body(1, [], [1], xdma=sig_pack[0], xfill=la_fill, st=st if os.environ.get('DIAG') == '4' else None)
    lab = lambda x, al=False: Seg()((".p2align 5\n" if al else "") + f"L_{nm}_{x}_top:")
    EP_S = Seg()
    EP_S(f"L_{nm}_eps:")
    st(EP_S)
    EP_S.add(sum_check(TS, True, False))
    epilogue(EP_S, TS, S_CS, tag="#ctx1")
    if MSUM:
        EP_S.add([f"v_mov_b32 v{V_ONE+k}, 0x3f803f80" for k in range(4)] + [f"v_mov_b32 v{V_LM+k}, 0" for k in range(8)])
    EP_S.add(after_s)
    st(EP_S)
    EP_S(f"s_lshl_b32 s{S_CNT}, s{S_I}, 1\ns_sub_u32 s{S_CNT}, 13, s{S_CNT}\ns_cbranch_scc1 L_{nm}_s0m_top")
    hL = Seg()
    if os.environ.get('DIAG') == '4':
        st(hL)
    hL.add(before_last)
    EP_L = Seg()
    st(EP_L)
    epilogue(EP_L, [1] if EARLY_L0 else TL, S_CL, tag="#ctx0")
    st(EP_L)
    END = Seg()
    END(f"L_{nm}_done:")
    FB = fallback(la_fill, before_last, f"L_{nm}_done")
    lin = [PA, PB, lab("d0", True)] + D0.segs + D1.segs + [lab("d1m")] + D1m.segs + [lab("d0m")] + D0m.segs + \
        MX.segs + [EP_S, lab("s0", True)] + S0.segs + S1.segs + [lab("s1m")] + S1m.segs + [lab("s0m")] + S0m.segs + \
        [hL] + LA.segs + [EP_L, END]
    ool = [PM, lab("mxm")] + MXm.segs + [FB]
    traces = []
    for nd_, ns_ in ((-1, 2), (0, 1), (1, 0), (2, -1)):
        t = [PA] + ([PM] if nd_ < 0 else []) + [PB]
        if nd_ >= 0:
            t += (D0.segs + D1.segs) * nd_ + D0.segs + D1m.segs
        t += D0m.segs + (MX if ns_ >= 0 else MXm).segs + [EP_S]
        if ns_ >= 0:
            t += (S0.segs + S1.segs) * ns_ + S0.segs + S1m.segs
        t += S0m.segs + [hL]
        traces.append(t + LA.segs + [EP_L])
        if nd_ == 0:
            traces.append(t + LA.segs + [EP_L] + LA.segs[:1] + [FB])
    global BODIES
    BODIES = dict(D0=D0, D1=D1, D1m=D1m, D0m=D0m, MX=MX, MXm=MXm, S0=S0, S1=S1, S1m=S1m, S0m=S0m)
    return lin, ool, traces
```

```python
from common import *

S_W = 3
V_L = 1

SRD_H, SRD_UR, SRD_YO, SRD_D = 16, 20, 24, 28
S_T4 = 36
S_DO = 42
S_UB = 43
V_AA, V_BA = 40, 5
V_HW = 10
V_YW, V_YR, V_YS = 11, 12, 13
V_T4 = 16
V_O = 24
V_DA = 44
V_H = 208
V_HO = 232
V_D = 234
V_ACC4 = 76
A_FR = 128
V_YT = 108
H_STRIDE = 4160
H_WAVE = 2 * H_STRIDE
U_LDS, U_WAVE = 132096, 4608
Y_LDS = 49152
WO_LDS = 66560


def p4_ptr_loads():
    return [f"s_load_dwordx4 s[32:35], s[0:1], {KA_SSMK}"]


def p4_srds():
    S = Seg()
    t = S_T4
    S(f"s_lshl_b32 s{t}, s2, 2")
    S(f"s_add_u32 s{t}, s{t}, s{S_W}")
    S(f"s_lshl_b32 s{S_DO}, s{t}, 1")
    S(f"s_lshl_b32 s{t+1}, s{t}, 12")
    srd(S, SRD_H, 32, 4096, off=f"s{t+1}")
    S(f"s_add_u32 s{t+1}, s{t+1}, {WS_UR}")
    srd(S, SRD_UR, 40, 4096, off=f"s{t+1}")
    S(f"s_lshl_b32 s{t+1}, s2, 14")
    S(f"s_add_u32 s{t+1}, s{t+1}, {WS_Y4}")
    srd(S, SRD_YO, 40, 16384, off=f"s{t+1}")
    srd(S, SRD_D, 34, 2048)
    S(f"s_mul_i32 s{S_UB}, s{S_W}, {U_WAVE}")
    S(f"s_add_u32 s{S_UB}, s{S_UB}, {U_LDS}")
    return groupify([i.text for i in S])


def p4_ur_dma(tmp):
    out = [f"v_lshlrev_b32 v{tmp}, 4, v{V_L}", f"s_mov_b32 m0, s{S_UB}", "s_nop 0"]
    for i in range(4):
        out.append(f"buffer_load_dwordx4 v{tmp}, {sr(SRD_UR,4)}, 0 offen offset:{1024*i} sc1 lds #ur")
    return out


def p4_h_loads():
    out = [f"v_lshlrev_b32 v{V_HO}, 4, v{V_L}", f"v_add_u32 v{V_HO+1}, -4, v{V_HO}", f"v_mov_b32 v{V_D+1}, 0",
           f"buffer_load_ushort v{V_D}, v{V_D+1}, {sr(SRD_D,4)}, s{S_DO} offen"]
    for i in range(4):
        if i == 0:
            out.append(f"buffer_load_dword v{V_H+1}, v{V_HO+1}, {sr(SRD_H,4)}, 0 offen{NT_K}")
        else:
            out.append(f"buffer_load_dword v{V_H+6*i+1}, v{V_HO}, {sr(SRD_H,4)}, 0 offen offset:{1024*i - 4}{NT_K}")
        out.append(f"buffer_load_dwordx4 {vr(V_H+6*i+2,4)}, v{V_HO}, {sr(SRD_H,4)}, 0 offen offset:{1024*i}{NT_K}")
    return out


def p4_setup(S):
    T, t, l = V_T4, S_T4, V_L
    S(f"s_mul_i32 s{t}, s{S_W}, {H_WAVE}")
    S(f"v_and_b32 v{T}, 15, v{l}")
    S(f"v_lshrrev_b32 v{T+1}, 4, v{l}")
    S(f"v_add_u32 v{T+2}, 1, v{T}")
    S(f"v_and_b32 v{T+3}, 1, v{T+2}")
    S(f"v_mul_u32_u24 v{T+3}, {H_STRIDE}, v{T+3}")
    S(f"v_add_u32 v{T+2}, 2, v{T}")
    S(f"v_lshrrev_b32 v{T+2}, 1, v{T+2}")
    S(f"v_lshl_add_u32 v{T+3}, v{T+2}, 2, v{T+3}")
    S(f"v_lshl_add_u32 v{T+3}, v{T+1}, 4, v{T+3}")
    S(f"v_add_u32 v{V_AA}, s{t}, v{T+3}")
    for k in range(1, 4):
        S(f"v_add_u32 v{V_AA+k}, {1024*k}, v{V_AA}")
    S(f"v_add_u32 v{V_HW}, s{t}, v{V_HO}")
    S(f"v_lshlrev_b32 v{T+2}, 5, v{T}")
    S(f"v_lshlrev_b32 v{T+3}, 4, v{T+1}")
    S(f"v_sub_u32 v{T+3}, v{T+3}, v{T+2}")
    S(f"s_add_u32 s{t+1}, s{S_UB}, 480")
    S(f"v_add_u32 v{V_BA}, s{t+1}, v{T+3}")


def p4_prep(S):
    T, l = V_T4, V_L
    Z = T + 4
    for k in range(4):
        S(f"v_mov_b32 v{Z+k}, 0")
    S(f"v_and_b32 v{T}, 1, v{l}")
    S(f"v_mul_u32_u24 v{T}, {H_STRIDE}, v{T}")
    S(f"v_and_b32 v{T+1}, 2, v{l}")
    S(f"v_lshl_add_u32 v{T}, v{T+1}, 3, v{T}")
    S(f"v_add_u32 v{T}, s{S_T4}, v{T}")
    S(f"ds_write_b128 v{T}, {vr(Z,4)}")
    S(f"v_and_b32 v{T+1}, 31, v{l}")
    S(f"v_lshlrev_b32 v{T+1}, 4, v{T+1}")
    S(f"v_add_u32 v{T+1}, s{S_UB}, v{T+1}")
    S(f"ds_write_b128 v{T+1}, {vr(Z,4)} offset:4096")
    for i in range(4):
        D = V_H + 6 * i + 2
        O = V_O + 4 * (i & 1)
        S(f"ds_write_b128 v{V_HW}, {vr(D,4)} offset:{32 + 1024*i}")
        for k in range(4):
            S(f"v_alignbit_b32 v{O+k}, v{D+k}, v{D+k-1}, 16")
        S(f"ds_write_b128 v{V_HW}, {vr(O,4)} offset:{32 + 1024*i + H_STRIDE}")


def p4_late_setup():
    T, t, l = V_T4, S_T4, V_L
    out = [f"v_and_b32 v{T}, 15, v{l}", f"v_lshrrev_b32 v{T+1}, 4, v{l}", f"v_lshl_add_u32 v{T+2}, v{T+1}, 3, v{T}",
           f"v_sub_u32 v{V_D+1}, 15, v{T+2}", f"v_lshlrev_b32 v{T+2}, 16, v{V_D}"]
    for i in range(4):
        out += [[f"v_cmp_eq_u32 vcc, {2*i}, v{V_D+1}", f"v_cmp_eq_u32_e64 s[38:39], {2*i+1}, v{V_D+1}"],
                ["s_nop 0", f"v_cndmask_b32 v{V_DA+i}, 0, v{V_D}, vcc"],
                f"v_cndmask_b32_e64 v{V_DA+i}, v{V_DA+i}, v{T+2}, s[38:39]"]
    S = Seg()
    S(f"v_mul_u32_u24 v{T+2}, 136, v{T}")
    S(f"v_lshl_add_u32 v{T+2}, v{T+1}, 5, v{T+2}")
    S(f"s_lshl_b32 s{t+1}, s{S_W}, 1")
    S(f"s_add_u32 s{t+1}, s{t+1}, {Y_LDS}")
    S(f"v_add_u32 v{V_YW}, s{t+1}, v{T+2}")
    S(f"v_lshrrev_b32 v{T+2}, 3, v{l}")
    S(f"v_mul_u32_u24 v{T+2}, 136, v{T+2}")
    S(f"v_and_b32 v{T+3}, 7, v{l}")
    S(f"v_lshl_add_u32 v{T+2}, v{T+3}, 4, v{T+2}")
    S(f"s_mul_i32 s{t+1}, s{S_W}, {4*1088}")
    S(f"s_add_u32 s{t+1}, s{t+1}, {Y_LDS}")
    S(f"v_add_u32 v{V_YR}, s{t+1}, v{T+2}")
    S(f"s_lshl_b32 s{t+1}, s{S_W}, 12")
    S(f"v_add_u32 v{V_YS}, s{t+1}, v{V_HO}")
    return out, [i.text for i in S]


def p4_prep_items():
    S = Seg()
    p4_setup(S)
    p4_prep(S)
    out = []
    for x in [i.text for i in S]:
        if x.startswith("v_cndmask") and out[-1].startswith("v_cmp"):
            out[-1] = [out[-1], "s_nop 1", x]
        else:
            out.append(x)
    return out


def afr(rho, q):
    return A_FR + (rho & 1) * 64 + q * 4


def bfr(rho, p):
    return A_FR + (rho & 1) * 64 + 32 + p * 4


def p4_reads(rho):
    out = []
    for k in range(8):
        out.append(f"ds_read_b128 {ar(bfr(rho, k),4)}, v{V_BA} offset:{512*(7-k) + 64*rho}")
        for a in range(2):
            o = 128 * (k & 1) + 16 * rho + 2 * a
            out.append(f"ds_read2_b32 {ar(afr(rho, k) + 2*a, 2)}, v{V_AA + (k >> 1)} offset0:{o} offset1:{o+1}")
    return out


def p4_mfmas(rho):
    mf = []
    for q in range(8):
        for p in range(8 - q):
            d = vr(V_ACC4 + 4 * (p + q), 4)
            mf.append(mfma16(d, ar(afr(rho, q), 4), ar(bfr(rho, p), 4), "0" if (rho == 0 and q == 0) else None))
        if rho == 0 and q == 7:
            for p in range(8):
                mf.append(mfma16(vr(V_ACC4 + 4 * p, 4), vr(V_DA, 4), ar(bfr(0, p), 4)))
    return mf


def p4_rho(rho, head=(), vm=(), fill=(), first=()):
    mf = p4_mfmas(rho)
    sc = Sched(mf, 2)
    if rho < 7:
        sc.stream(p4_reads(rho + 1), 0, 30, prio=2)
    sc.stream(list(vm), 0, len(mf) - 1, prio=1)
    sc.stream(list(first), 0, 24, prio=3)
    sc.stream(list(fill), 0, len(mf) - 1)
    return sc.build(head)


def p4_y_write():
    out = []
    T = V_T4
    for tt in range(8):
        a = V_ACC4 + 4 * tt
        r = T + 2 * (tt & 1)
        out += [f"v_cvt_pk_bf16_f32 v{r}, v{a}, v{a+1}", f"v_cvt_pk_bf16_f32 v{r+1}, v{a+2}, v{a+3}"]
        for k in range(2):
            out += [f"ds_write_b16 v{V_YW}, v{r+k} offset:{2176*tt + 16*k}",
                    f"ds_write_b16_d16_hi v{V_YW}, v{r+k} offset:{2176*tt + 16*k + 8}"]
    return out


def p4_y_read():
    return [f"ds_read_b64 {vr(V_YT + 4*i + 2*a, 2)}, v{V_YR} offset:{1088*i + 8*a}" for i in range(4) for a in range(2)]


def p4_y_store(flavor="sc1"):
    return [f"buffer_store_dwordx4 {vr(V_YT + 4*i, 4)}, v{V_YS}, {sr(SRD_YO,4)}, 0 offen offset:{1024*i} {flavor} #yst"
            for i in range(4)]


SRD_CX, SRD_WO, SRD_XB, SRD_Y, SRD_OUT = 44, 48, 52, 56, 60
S_CO = 68
S_WO = 69
S_MW = 70
S_CNT = 71
S_T = 72
S_XO, S_YO, S_KH, S_RB, S_CB = 78, 79, 80, 81, 82
P_X, P_WO, P_OUT = 84, 86, 88

V_CD = 236
V_WD = 238
V_WA = 242
V_XV, V_YV, V_GV = 250, 251, 252
V_PL = 253
V_ACC = 124
A_WF = 64
V_RX = 76
V_X = 192
V_Y = 208
V_G = 6
V_A = 36
V_T = 48
V_TE = 228
A_C = 0
RING = 4

NS = 32


def acc5(ct, rt):
    return V_ACC + (ct * 2 + rt) * 4


def p5_ptr_loads():
    return [f"s_load_dwordx2 {sr(P_OUT,2)}, s[0:1], {KA_OUT}"]


def rb_cb(S, rb, cb, t):
    S(f"s_and_b32 s{rb}, s2, 3")
    S(f"s_lshl_b32 s{rb}, s{rb}, 1")
    S(f"s_sub_u32 s{t}, 14, s{rb}")
    S(f"s_bitcmp1_b32 s2, 4")
    S(f"s_cselect_b32 s{rb}, s{t}, s{rb}")
    S(f"s_bfe_u32 s{t}, s2, 0x10003")
    S(f"s_add_u32 s{rb}, s{rb}, s{t}")
    S(f"s_bfe_u32 s{cb}, s2, 0x10002")
    S(f"s_lshr_b32 s{t}, s2, 5")
    S(f"s_lshl_b32 s{t}, s{t}, 1")
    S(f"s_add_u32 s{cb}, s{cb}, s{t}")


def p5_setup():
    S = Seg()
    T, t, l = V_T, S_T, V_L
    rb_cb(S, S_RB, S_CB, t + 2)
    S(f"s_mov_b32 s{t}, s{S_RB}\ns_mov_b32 s{t+1}, s{S_CB}")
    S(f"s_lshl_b32 s{t+2}, s{t}, 2")
    S(f"s_add_u32 s{t+2}, s{t+2}, s{S_W}")
    S(f"s_lshl_b32 s{S_CO}, s{t+2}, 18")
    S(f"s_and_b32 s{S_KH}, s{t+1}, 1")
    S(f"s_lshl_b32 s{t+3}, s{S_KH}, 16")
    S(f"s_add_u32 s{S_CO}, s{S_CO}, s{t+3}")
    S(f"s_lshl_b32 s{S_WO}, s{t+1}, 19")
    S(f"s_lshl_b32 s{t+3}, s{t+1}, 7")
    S(f"s_lshl_b32 s{S_MW}, s{S_W}, 12")
    S(f"s_lshl_b32 s{S_XO}, s{t+2}, 16")
    S(f"s_add_u32 s{S_XO}, s{S_XO}, s{t+3}")
    S(f"s_lshl_b32 s{S_YO}, s{t+1}, 18")
    S(f"s_lshl_b32 s{t+3}, s{t+2}, 8")
    S(f"s_add_u32 s{S_YO}, s{S_YO}, s{t+3}")
    S(f"v_lshlrev_b32 v{V_CD}, 4, v{l}")
    S(f"v_add_u32 v{V_CD+1}, 0x20000, v{V_CD}")
    S(f"v_add_u32 v{V_WD}, s{S_MW}, v{V_CD}")
    S(f"s_lshl_b32 s{t+3}, s{S_KH}, 12")
    S(f"v_add_u32 v{V_WA+2}, s{t+3}, v{V_CD}")
    S(f"v_xor_b32 v{V_WA+3}, 0x1000, v{V_WA+2}")
    S(f"v_add_u32 v{V_WA}, {WO_LDS}, v{V_WA+2}")
    S(f"v_add_u32 v{V_WA+1}, {WO_LDS}, v{V_WA+3}")
    S(f"v_bfe_u32 v{T+2}, v{l}, 4, 1")
    S(f"v_lshrrev_b32 v{T+4}, 5, v{l}")
    S(f"v_and_b32 v{T}, 15, v{l}")
    S(f"v_lshlrev_b32 v{T+5}, 5, v{T+2}")
    S(f"v_lshl_add_u32 v{T+5}, v{T+4}, 4, v{T+5}")
    S(f"v_lshl_add_u32 v{V_XV}, v{T}, 11, v{T+5}")
    S(f"v_lshlrev_b32 v{T+5}, 11, v{T+5}")
    S(f"v_lshl_add_u32 v{V_YV}, v{T}, 3, v{T+5}")
    srd(S, SRD_CX, 40, 16 * MB, off=WS_CTX)
    srd(S, SRD_WO, 40, 8 * MB, off=WS_WP)
    srd(S, SRD_XB, 40, 4 * MB, off=WS_XB)
    srd(S, SRD_Y, 40, 4 * MB, off=WS_Y4)
    srd(S, SRD_OUT, P_OUT, 2048 * 1024 * 2)
    return groupify([i.text for i in S])


def ld_ctx(n, kq, rt):
    return f"buffer_load_dwordx4 {ar(A_C + (n % RING)*16 + (kq*2 + rt)*4, 4)}, v{V_CD+rt}, {sr(SRD_CX,4)}, s{S_CO} offen offset:{1024*kq} sc1"


ADV_C = f"s_add_u32 s{S_CO}, s{S_CO}, 2048"
ADV_W = f"s_add_u32 s{S_WO}, s{S_WO}, 16384"


def wo_slot(n):
    k = n % RING
    return (WO_LDS + k * 16384, 0, k * 16384) if k < 4 else ((k - 4) * 16384, 2, (k - 4) * 16384)


def wo_stage(n):
    return [f"s_add_u32 m0, s{S_MW}, {wo_slot(n)[0]}"] + \
        [f"buffer_load_dwordx4 v{V_WD}, {sr(SRD_WO,4)}, s{S_WO} offen offset:{1024*i} sc1 lds #o{n}" for i in range(4)] + [ADV_W]


def ctx_stage(n):
    return [ld_ctx(n, kq, rt) for kq in range(2) for rt in range(2)] + [ADV_C]


def rd_wo(n, kq, ct):
    _, reg, off = wo_slot(n)
    return f"ds_read_b128 {ar(A_WF + kq*32 + ct*4, 4)}, v{V_WA + reg + (ct >> 2)} offset:{off + kq*8192 + (ct & 3)*1024}"


PK_LDS = 131072


def pack_srd():
    return ["s_lshr_b32 s36, s2, 3", "s_lshl_b32 s36, s36, 18", "s_and_b32 s37, s2, 7", "s_lshl_b32 s37, s37, 8",
            "s_add_u32 s36, s36, s37", f"s_lshl_b32 s37, s{S_W}, 16", "s_add_u32 s36, s36, s37",
            ["s_add_u32 s32, s32, s36", "s_addc_u32 s33, s33, 0"], "s_mov_b32 s34, 65536", "s_mov_b32 s35, 0x20000"]


def pack_dma(T):
    out = [f"v_lshrrev_b32 v{T}, 4, v{V_L}", f"v_and_b32 v{T+1}, 15, v{V_L}", f"v_lshlrev_b32 v{T+2}, 1, v{T}",
           f"v_xor_b32 v{T+1}, v{T+1}, v{T+2}", f"v_lshlrev_b32 v{T}, 11, v{T}",
           f"v_lshl_add_u32 v{T}, v{T+1}, 4, v{T}", f"v_xor_b32 v{T+1}, 128, v{T}",
           f"s_lshl_b32 s36, s{S_W}, 13"]
    for i in range(8):
        if i % 4 == 0:
            out.append(f"s_add_u32 m0, s36, {PK_LDS + (i >> 2)*4096}")
        out += [f"s_mov_b32 s37, {8192*i - 1024*(i & 3)}",
                f"buffer_load_dwordx4 v{T + (i & 1)}, s[32:35], s37 offen offset:{1024*(i & 3)}{NT_O} lds #pack"]
    return out


def pack_store(T, regs, vdo):
    l = V_L
    out = [f"v_lshrrev_b32 v{T+1}, 2, v{l}", f"v_and_b32 v{T}, 7, v{T+1}", f"v_lshlrev_b32 v{T+1}, 8, v{T+1}",
           f"v_and_b32 v{T+2}, 3, v{l}", f"v_lshl_add_u32 v{T+1}, v{T+2}, 3, v{T+1}",
           f"s_lshl_b32 s36, s{S_W}, 13", f"s_add_u32 s36, s36, {PK_LDS}", f"v_add_u32 v{T+1}, s36, v{T+1}",
           "@vmwait pack"]
    for j in range(8):
        out += [f"v_xor_b32 v{T+2}, {j}, v{T}", f"v_lshl_add_u32 v{T+2}, v{T+2}, 5, v{T+1}"]
        out += [f"ds_read_b64_tr_b16 {vr(regs[j] + 2*a, 2)}, v{T+2} offset:{4096*a}" for a in range(2)]
    S = Seg()
    srd(S, 32, 40, 8 * MB, off=WS_WP)
    out += [i.text for i in S]
    out += ["s_and_b32 s36, s2, 7", "s_lshl_b32 s36, s36, 20", "s_lshr_b32 s37, s2, 3", "s_lshl_b32 s37, s37, 15",
            "s_add_u32 s36, s36, s37", f"s_lshl_b32 s37, s{S_W}, 12", "s_add_u32 s36, s36, s37", "s_add_u32 s37, s36, 4096"]
    for j in range(8):
        out.append(f"buffer_store_dwordx4 {vr(regs[j],4)}, v{vdo}, s[32:35], s{36 + (j >> 2)} offen offset:{1024*(j & 3)} sc1")
    return out


def y_loads():
    out = []
    for rt in range(2):
        for pr in range(2):
            for e in range(2):
                out.append([f"s_add_u32 s{S_T}, s{S_YO}, {(8*pr + e)*16384}",
                            f"buffer_load_dwordx2 {vr(V_Y + ((rt*2 + pr)*2 + e)*2, 2)}, v{V_YV}, {sr(SRD_Y,4)}, s{S_T} offen offset:{128*rt} sc1"])
    return out


def early_x_loads(srd_x, T):
    S = Seg()
    l = V_L
    rb_cb(S, 36, 37, 32)
    S(f"s_lshl_b32 s36, s36, 2\ns_add_u32 s36, s36, s{S_W}")
    S(f"s_lshl_b32 s37, s37, 7\ns_lshl_b32 s32, s36, 16\ns_add_u32 s37, s37, s32\ns_lshl_b32 s36, s36, 7")
    S(f"v_and_b32 v{T}, 15, v{l}\nv_bfe_u32 v{T+1}, v{l}, 4, 1\nv_lshlrev_b32 v{T+1}, 5, v{T+1}")
    S(f"v_lshrrev_b32 v{T+2}, 5, v{l}\nv_lshl_add_u32 v{T+1}, v{T+2}, 4, v{T+1}")
    S(f"v_lshl_add_u32 v{T+1}, v{T}, 11, v{T+1}\nv_lshlrev_b32 v{T}, 2, v{T}")
    srd(S, 32, 40, 8192, off=WS_G)
    for rt in range(2):
        for pr in range(2):
            S(f"buffer_load_dwordx4 {vr(V_X + (rt*2 + pr)*4, 4)}, v{T+1}, {sr(srd_x,4)}, s37 offen offset:{64*pr}")
        S(f"buffer_load_dword v{V_G+rt}, v{T}, s[32:35], s36 offen offset:{64*rt} sc1")
        if rt == 0:
            S("s_add_u32 s37, s37, 32768")
    return [i.text for i in S]


def ep_pre():
    out = []
    T = V_TE
    for rt in range(2):
        out.append(f"v_sub_f32 v{V_G+2+rt}, 1.0, v{V_G+rt}")
        for pr in range(2):
            for u in range(4):
                x = V_X + (rt * 2 + pr) * 4 + u
                y = V_Y + (rt * 2 + pr) * 4 + u
                a = V_A + (rt * 2 + pr) * 8 + 2 * u
                out += [f"v_lshlrev_b32 v{a}, 16, v{x}", f"v_lshlrev_b32 v{T}, 16, v{y}",
                        f"v_and_b32 v{a+1}, 0xffff0000, v{x}", f"v_and_b32 v{T+1}, 0xffff0000, v{y}",
                        f"v_mul_f32 v{a}, v{a}, v{T}", f"v_mul_f32 v{a+1}, v{a+1}, v{T+1}",
                        f"v_mul_f32 v{a}, v{a}, v{V_G+rt}", f"v_mul_f32 v{a+1}, v{a+1}, v{V_G+rt}"]
    return out


def stage(u, fill=None, bar_tags=(), after_bar=(), head0=(), conv=None):
    S = Seg()
    for kq in range(2):
        cts = list(range(8))
        mf = [mfma16(vr(acc5(ct, rt), 4), ar(A_WF + kq * 32 + ct * 4, 4),
                     ar(A_C + (u % RING) * 16 + (kq * 2 + rt) * 4, 4), "0" if (u == 0 and kq == 0) else None)
              for ct in cts for rt in range(2)]
        cm, cr = conv[kq] if conv else ([], [])
        own, mf, pos = mf, [], []
        for k, m in enumerate(own):
            mf += cm[k * len(cm) // 16:(k + 1) * len(cm) // 16] + [m]
            pos.append(len(mf) - 1)
        sc = Sched(mf, 2)
        sc.stream(cr, 0, len(mf) - 4, prio=2)
        head = []
        rd = []
        if kq == 0:
            rd = [rd_wo(u, 1, ct) for ct in range(8)]
        else:
            rd = [rd_wo(u + 1, 0, ct) for ct in (range(8) if u + 1 < 32 - NTAIL else range(4, 8))]
            head = [f"@vmwait o{u + 1} " + " ".join(bar_tags) + " lgkm", "s_barrier"] + list(after_bar)
        sc.stream(rd, 0, pos[12], prio=3)
        w = wo_stage(u + RING - 1) if u + RING - 1 < 32 else []
        w = w[:3] if kq == 0 else w[3:]
        c = [ld_ctx(u, kq, 0), ld_ctx(u, kq, 1)] + ([ADV_C] if kq == 1 else []) if u + RING < 32 else []
        if head0 and kq == 0:
            x = list(head0) + w
            sc.stream(x + c, at=[(k * pos[14]) // len(x) for k in range(len(x))] + pos[14:], prio=4)
        else:
            sc.stream(w, 1, pos[14], prio=1)
            sc.stream(c, at=[pos[14], pos[15], pos[15]], prio=4)
        if fill and fill[kq]:
            sc.stream(fill[kq], 0, len(mf))
        S.add(sc.build(head if kq else ["s_waitcnt lgkmcnt(0)"]))
    return S


NTAIL = int(os.environ.get("NTAIL", "3"))


def tail():
    steps = [(h, u, kq) for h in (1, 0) for u in range(32 - NTAIL, 32) for kq in range(2)]
    mf, rd, at = [], [], []
    for i, (h, u, kq) in enumerate(steps):
        mf += [mfma16(vr(acc5(ct, rt), 4), ar(A_WF + kq * 32 + ct * 4, 4), ar(A_C + (u % RING) * 16 + (kq * 2 + rt) * 4, 4))
               for ct in range(4 * h, 4 * h + 4) for rt in range(2)]
        if i + 1 < len(steps):
            h2, u2, kq2 = steps[i + 1]
            rd += [rd_wo(u2, kq2, ct) for ct in range(4 * h2, 4 * h2 + 4)]
            at += [8 * i + k for k in range(4)]
    sc = Sched(mf, 2)
    sc.stream(rd, at=at, prio=3)
    for j in range(1, NTAIL):
        sc.pin(8 * (2 * j - 1) - 1, [f"@vmwait o{32 - NTAIL + j}", "s_barrier"])
    xs = xb_send()
    sc.stream(xs, at=[0, 0] + [16 * NTAIL + 2] * (len(xs) - 2), prio=2)
    return sc.build(["s_waitcnt lgkmcnt(0)"])


def xb_prefill(T, vdo):
    S = Seg()
    srd(S, 32, 40, 4 * MB, off=WS_XB)
    S("s_lshl_b32 s36, s2, 14")
    for k in range(4):
        S(f"v_mov_b32 v{T+k}, -1")
    for k in range(4):
        S(f"buffer_store_dwordx4 {vr(T,4)}, v{vdo}, s[32:35], s36 offen offset:{1024*k} sc1")
    return groupify([i.text for i in S])


def swaps(h):
    return [f"v_permlane16_swap_b32 v{acc5(4*h + 2*pr, rt) + r}, v{acc5(4*h + 2*pr + 1, rt) + r}"
            for rt in range(2) for pr in range(2) for r in range(4)]


def xb_send():
    out = [f"s_xor_b32 s{S_T}, s2, 4", f"s_lshl_b32 s{S_T}, s{S_T}, 14"]
    sw = swaps(1)
    for k in range(4):
        a, b = acc5(4 + 2 * (k & 1), k >> 1), acc5(5 + 2 * (k & 1), k >> 1)
        out += sw[4 * k:4 * k + 4]
        out += [f"v_cvt_pk_bf16_f32 v{a}, v{a}, v{a+1}", f"v_cvt_pk_bf16_f32 v{a+1}, v{a+2}, v{a+3}",
                f"v_cvt_pk_bf16_f32 v{a+2}, v{b}, v{b+1}", f"v_cvt_pk_bf16_f32 v{a+3}, v{b+2}, v{b+3}",
                f"buffer_store_dwordx4 {vr(a,4)}, v{V_WD}, {sr(SRD_XB,4)}, s{S_T} offen offset:{1024*k} sc1"]
    return out


def ep_own():
    out = swaps(0)
    for rt in range(2):
        for pr in range(2):
            a = V_A + (rt * 2 + pr) * 8
            out += [f"v_fma_f32 v{a+j}, v{acc5(2*pr + (j >> 2), rt) + (j & 3)}, v{V_G+2+rt}, v{a+j}" for j in range(8)]
    return out


def xb_recv(spin):
    out = [f"s_lshl_b32 s{S_T}, s2, 14", f"s_mov_b32 s{S_T+1}, {spin}", "L_xb:"]
    out += [f"buffer_load_dwordx4 {vr(V_RX + 4*k,4)}, v{V_WD}, {sr(SRD_XB,4)}, s{S_T} offen offset:{1024*k} sc1" for k in range(4)]
    T = V_TE
    out += [f"s_sub_u32 s{S_T+1}, s{S_T+1}, 1", "s_cbranch_scc1 L_xb_done", "s_waitcnt vmcnt(3)",
            f"v_max3_u32 v{T}, v{V_RX}, v{V_RX+1}, v{V_RX+2}"]
    for k in range(3, 15, 2):
        out.append(f"v_max3_u32 v{T}, v{T}, v{V_RX+k}, v{V_RX+k+1}")
    out += [f"v_max_u32 v{T}, v{T}, v{V_RX+15}", f"v_cmp_eq_u32 vcc, -1, v{T}", "s_nop 4", "s_cbranch_vccnz L_xb", "L_xb_done:",
            "s_waitcnt vmcnt(0)"]
    return out


def p5_epilogue(S):
    T = V_RX + 16
    for rt in range(2):
        S(f"s_add_u32 s{S_T}, s{S_XO}, {rt*32768}")
        for pr in range(2):
            k = rt * 2 + pr
            a = V_A + 8 * k
            for u in range(4):
                r = V_RX + 4 * k + u
                S(f"v_lshlrev_b32 v{T}, 16, v{r}\nv_and_b32 v{T+1}, 0xffff0000, v{r}")
                S(f"v_fmac_f32 v{a+2*u}, v{T}, v{V_G+2+rt}\nv_fmac_f32 v{a+2*u+1}, v{T+1}, v{V_G+2+rt}")
                S(f"v_cvt_pk_bf16_f32 v{V_X+4*k+u}, v{a+2*u}, v{a+2*u+1}")
            S(f"buffer_store_dwordx4 {vr(V_X+4*k,4)}, v{V_XV}, {sr(SRD_OUT,4)}, s{S_T} offen offset:{64*pr} sc1")
```

```python
import sys
from common import *
import f1, f2, f3

NAME = "gated_mix__ssm_conv_h3__compressed_kv_cla__prompt_kernel"
SRD_F, SRD_DBG = 8, 12
S_W, V_L = 3, 1
V_PF = 79
SPIN = 400000
ool = []


def sig_off(v, t):
    return [f"v_lshlrev_b32 v{v}, 20, v{V_L}", f"s_lshl_b32 s{t}, s{S_W}, 26", f"v_add_u32 v{v}, s{t}, v{v}"]


def signal(F, voff, vone, t, val=1):
    return [f"v_mov_b32 v{vone}, {val}", f"s_lshl_b32 s{t}, s2, 2",
            f"buffer_store_dword v{vone}, v{voff}, {sr(SRD_F,4)}, s{t} offen offset:{F} sc1"]


def poll(tag, load, vp, t, val=1):
    S = Seg()
    S(f"L_spin_{tag}:\ns_mov_b32 s{t}, {SPIN}\nL_spin_{tag}_l:\ns_sleep 1")
    S(load)
    S(f"s_waitcnt vmcnt(0)\nv_cmp_gt_u32 vcc, {val}, v{vp}\ns_nop 4\ns_cbranch_vccz L_spin_{tag}_ret")
    S(f"s_sub_u32 s{t}, s{t}, 1\ns_cmp_lg_u32 s{t}, 0\ns_cbranch_scc1 L_spin_{tag}_l\ns_branch L_spin_{tag}_ret")
    ool.append(S)
    return [f"v_cmp_gt_u32 vcc, {val}, v{vp}", "s_nop 4", f"s_cbranch_vccnz L_spin_{tag}", f"L_spin_{tag}_ret:"]


def touch_wq_setup():
    return [["s_mov_b32 s4, s34", "s_mov_b32 s5, s35"], [f"s_mov_b32 s6, {8*MB}", "s_mov_b32 s7, 0x20000"],
            "s_lshr_b32 s43, s2, 3", "s_lshl_b32 s43, s43, 2", f"s_add_u32 s43, s43, s{S_W}", "s_lshl_b32 s43, s43, 16",
            "s_and_b32 s37, s2, 7", "s_lshl_b32 s37, s37, 10", "s_add_u32 s43, s43, s37",
            f"v_lshrrev_b32 v78, 3, v{V_L}", f"v_and_b32 v79, 7, v{V_L}", "v_lshlrev_b32 v79, %d, v79" % (27 if "tlbtouch" in EXP else 7),
            "v_lshl_add_u32 v78, v78, 13, v79", "v_add_u32 v78, s43, v78"]


def touch_wq(k, n):
    if n == 1:
        return [f"buffer_load_dword v{V_PF}, v78, s[4:7], 0 offen{NT_Q}"]
    return [f"s_and_b32 s37, s{S_W}, {n-1}", [f"s_cmp_eq_u32 s37, {k}", "s_cselect_b32 s37, 0, 0x40000000"],
            "v_add_u32 v77, s37, v78", f"buffer_load_dword v{V_PF}, v77, s[4:7], 0 offen{NT_Q}"]


def code_touch(tag, lo, hi, va, t, junk):
    su = [[f"s_getpc_b64 s[{t}:{t+1}]", f"L_ct_{tag}:"],
          [f"s_add_u32 s{t}, s{t}, {lo} - L_ct_{tag}", f"s_addc_u32 s{t+1}, s{t+1}, 0"],
          f"v_mov_b32 v{va+1}, s{t+1}", f"v_mov_b32 v{va}, s{t}",
          f"s_lshr_b32 s{t}, s2, 3", f"s_lshl_b32 s{t}, s{t}, 2", f"s_add_u32 s{t}, s{t}, s{S_W}", f"s_lshl_b32 s{t}, s{t}, 7",
          f"v_and_b32 v{junk}, 3, v{V_L}", f"v_lshlrev_b32 v{junk}, 14, v{junk}", f"v_add_u32 v{junk}, s{t}, v{junk}",
          f"v_min_u32 v{junk}, {hi} - {lo} - 4, v{junk}",
          [f"v_add_co_u32 v{va}, vcc, v{va}, v{junk}", "s_nop 1", f"v_addc_co_u32 v{va+1}, vcc, 0, v{va+1}, vcc"]]
    return su, [f"global_load_dword v{junk}, v[{va}:{va+1}], off"]


CT = os.environ.get("CT", "abc")


def touches(typ):
    H = Seg()
    H(f"v_lshlrev_b32 v74, 7, v{V_L}")
    H(f"s_getpc_b64 s[4:5]\nL_pc{typ}:\ns_lshr_b32 s98, s2, 3\ns_lshl_b32 s98, s98, 2\ns_add_u32 s98, s98, s{S_W}\ns_lshl_b32 s98, s98, 10")
    H(f"v_and_b32 v75, 0x380, v74\nv_add_u32 v75, s98, v75\nv_min_u32 v75, L_code_end - L_pc{typ} - 4, v75")
    H("v_mov_b32 v77, s5\nv_add_co_u32 v76, vcc, s4, v75\nv_addc_co_u32 v77, vcc, 0, v77, vcc")
    H(f"global_load_dword v{V_PF}, v[76:77], off")
    out, items = [], groupify([i.text for i in H])
    for x in items:
        if isinstance(x, str) and (x.endswith(":") or x.startswith("v_addc_co")):
            out[-1] = flat([out[-1]]) + (["s_nop 1"] if x.startswith("v_addc") else []) + [x]
        else:
            out.append(x)
    return out


def start(st):
    H = Seg()
    H(kernel_header(NAME))
    if DIAG:
        H("s_memtime s[98:99]\ns_memrealtime s[100:101]")
    H(f"s_cmp_ge_u32 s2, 256\ns_cbranch_scc1 L_end")
    H(f"s_load_dwordx2 {sr(f1.P_C,2)}, s[0:1], {KA_C}")
    H(f"s_load_dwordx4 {sr(f1.P_WU,4)}, s[0:1], {KA_WUK}")
    H(f"s_load_dwordx2 {sr(f1.S_WS,2)}, s[0:1], {KA_WS}")
    H(f"s_load_dwordx2 {sr(f1.P_DBG,2)}, s[0:1], {KA_DBG}")
    H.add(f2.ptr_loads()[:2])
    H(f"v_lshrrev_b32 v2, 6, v0\nv_and_b32 v{V_L}, 63, v0\nv_lshlrev_b32 v3, 4, v0")
    H(f"v_readfirstlane_b32 s{S_W}, v2")
    f1.setup(H)
    if DIAG:
        H("v_writelane_b32 v0, s98, 60\nv_writelane_b32 v0, s100, 61")
    st(H)
    srd(H, 4, f1.S_WS, 8192, off=WS_FLAG)
    H("s_lshl_b32 s43, s2, 20\nv_add_u32 v3, s43, v3")
    H("v_mov_b32 v4, 0\nv_mov_b32 v5, 0\nv_mov_b32 v6, 0\nv_mov_b32 v7, 0")
    H("s_movk_i32 s43, 4096\nbuffer_store_dwordx4 v[4:7], v3, s[4:7], 0 offen sc1")
    H("buffer_store_dwordx4 v[4:7], v3, s[4:7], s43 offen sc1\nv_lshlrev_b32 v79, 16, v3")
    H.add(f1.dma_w(0) + f1.dma_c(0))
    f1.setup2(H)
    H(f"s_mov_b32 s{f1.P_DBG+2}, 256\ns_mov_b32 s{f1.P_DBG+3}, 0x20000")
    H(f"v_mov_b32 v78, 1")
    H(f"s_cmp_lg_u32 s2, 0\ns_cselect_b32 s43, 0x10000000, 0\nv_or_b32 v79, s43, v79")
    H("@vmwait c0 w0\ns_barrier")
    if os.environ.get("DIAG") == "2":
        st(H)
    H(f"buffer_store_dword v78, v79, {sr(f1.P_DBG,4)}, 0 offen sc1")
    for rt in range(8):
        H(f1.rd_c(0, 0, rt))
    for ct in range(8):
        H.add(f1.rd_w(0, 0, ct))
    H(f"s_cmp_eq_u32 s{f1.S_TYPE}, 0\ns_cbranch_scc0 L_p1_V")
    return H


FINE = os.environ.get('DIAG') == '2'


def p1(typ, st):
    B = Seg()
    n0 = st.n
    if typ == "V":
        B("L_p1_V:")
    p0 = f1.P0()
    NL = int(os.environ.get("NL", "3"))
    ld = chunks(p0.loads(), NL)
    cp = chunks(groupify(p0.compute()), 4)
    if "nop0" in EXP:
        ld, cp = [[]] * NL, [[]] * 4
    su = chunks(groupify(f2.setup()), 2)
    vm = {(0, 0): f1.dma_w(1) + f1.dma_c(1), (6, 0): f2.dma_x(0), (6, 1): f2.dma_q(0) + f2.dma_q(1), (7, 0): f2.dma_x(1)}
    for n in range(6):
        vm[(n, 1)] = f1.dma_w(n + 2)
    for n in range(1, 6):
        vm[(n, 0)] = f1.dma_c(n + 2)
    fill = {(0, 0): touches(typ), (0, 1): p0.ptr_loads(), (1, 0): touch_wq_setup(),
            (1, 1): p0.setup(), (2, 0): [], (2, 1): su[0], (3, 0): [], (3, 1): su[1] + f2.ptr_loads()[2:], (4, 0): [],
            (5, 0): [], (7, 0): cp[3] + [f"v_lshlrev_b32 v{f1.V_ST}, 4, v{V_L}"]}
    for k in range(NL):
        fill[(5 - NL + k, 0)] += ld[k]
    NT_ = int(os.environ.get("NTW", "1"))
    T0 = int(os.environ.get("TW0", "5"))
    TWK = int(os.environ.get("TWK", "1"))
    fill[(5, 1)], fill[(6, 0)], fill[(6, 1)] = cp[:3]
    fill[(T0, TWK)] = touch_wq(0, 1) + fill.get((T0, TWK), [])
    for n in range(8):
        for kk in range(2):
            B.add(f1.kstep(typ, n, kk, vm.get((n, kk)), fill.get((n, kk)),
                           f2.p1_last_hook if (n, kk) == (7, 1) else None,
                           **(dict(bar=int(os.environ.get('BAR0', '44')), vm_pre=f1.dma_c(2)) if (n, kk) == (0, 1) else {})))
            if FINE and kk == 1 and n < 7:
                st(B)
    if typ == "K":
        st.n = n0
    if typ == "K":
        B("s_branch L_p2")
    return B


PACK_EARLY = os.environ.get('PACKE', '0') == '1'


def p2(st):
    B = Seg()
    B("L_p2:")
    NE = 20
    ep = chunks(f1.epilogue_items(), NE)
    fill = {k: list(ep[k]) for k in range(NE)}
    S = Seg()
    srd(S, SRD_F, 40, 8192, off=WS_FLAG)
    srd(S, SRD_DBG, 38, 256)
    fill[0] = groupify([i.text for i in S]) + fill[0]
    go_ld = f"buffer_load_dword v254, off, {sr(SRD_DBG,4)}, 0 sc1"
    fill[14] = fill[14] + [go_ld]
    for k in range(NE, 32):
        fill[k] = []
    zero = [f"buffer_load_dwordx4 {ar(f2.A_O + 4*i, 4)}, v229, {sr(SRD_F,4)}, 0 offen" for i in range(32)]
    fill[27], fill[28], fill[29] = chunks(["v_mov_b32 v229, 0x40000000"] + zero, 3)
    T, t = 230, 36
    fill[20] = sig_off(255, t)
    fill[21] = f2.setup3(T)
    after = {11: poll("go", go_ld, 254, t) + signal(f1.F_1, 255, 254, t) + f3.p4_ptr_loads(),
             13: [f"s_load_dwordx2 s[32:33], s[0:1], {KA_WO}"]}
    S = Seg()
    f3.rb_cb(S, t, t + 1, 43)
    S(f"v_and_b32 v{T}, 15, v{V_L}")
    S(f"s_lshl_b32 s{t}, s{t}, 4\nv_add_u32 v{T+1}, s{t}, v{T}")
    S(f"s_lshr_b32 s{t}, s2, 4\nv_lshl_add_u32 v{T+2}, v{T}, 4, s{t}")
    S(f"v_and_b32 v{T+3}, 7, v{V_L}\nv_bfe_u32 v{T+4}, v{V_L}, 3, 1\nv_lshlrev_b32 v{T+3}, 3, v{T+3}")
    S(f"v_lshl_add_u32 v{T+3}, v{T+4}, 7, v{T+3}")
    S(f"s_bfe_u32 s{t}, s{f2.S_HEAD}, 0x10001\ns_lshl_b32 s{t}, s{t}, 6\ns_lshr_b32 s{t+1}, s{f2.S_HEAD}, 2\ns_add_u32 s{t}, s{t}, s{t+1}")
    S(f"v_add_u32 v{T+3}, s{t}, v{T+3}")
    S(f"v_lshrrev_b32 v{T+4}, 4, v{V_L}")
    items = groupify([i.text for i in S])
    items.append([f"v_cmp_eq_u32 vcc, 1, v{T+4}", "s_nop 1", f"v_cndmask_b32 v{T+3}, v{T+3}, v{T+2}, vcc"])
    items.append([f"v_cmp_eq_u32 vcc, 2, v{T+4}", "s_nop 1", f"v_cndmask_b32 v{T+3}, v{T+3}, v{T+1}, vcc"])
    items.append(f"v_lshlrev_b32 v{T+3}, 2, v{T+3}")
    fill[24] = fill[24] + items
    fill[26] = fill[26] + f3.p4_srds()
    if "a" in CT:
        su, ld = code_touch("a", "L_p3_begin", "L_p3_s1m_top", T + 12, 38, T + 14)
        fill[22] = su + ld
    f1_ld = f"buffer_load_dword v{T+7}, v{T+3}, {sr(SRD_F,4)}, 0 offen offset:{f1.F_1} sc1"
    pk = f3.pack_dma(T + 8) if PACK_EARLY else []
    fill[30] = [f1_ld] + f3.pack_srd() + pk[:14]
    fill[31] = pk[14:]
    for n in range(16):
        for kk in range(2):
            ab = after.get(n) if kk == 1 else None
            seg = f2.kstep2(n, kk, fill.get(2 * n + kk), ab)
            if n == 11 and kk == 1:
                for i in seg:
                    if i.kind == "gwait":
                        i.groups.append("kvst")
            B.add(seg)
            if FINE and kk == 1 and n in (1, 3, 5, 7, 9, 10, 14):
                st(B)
    if FINE:
        st(B)
    B.add(poll("f1", f1_ld, T + 7, t))
    B("L_p3_begin:")
    return B


NPRE = int(os.environ.get('NPRE', '6'))


def p45(st):
    B = Seg()
    t, VP, VO, VS = 36, f3.V_PL, 254, 255
    S = Seg()
    VO2 = f3.V_GV
    S(f"s_lshr_b32 s{t}, s{f3.S_CB}, 1\ns_lshl_b32 s{t+1}, s{f3.S_KH}, 7\ns_add_u32 s{t}, s{t}, s{t+1}")
    S(f"v_lshl_add_u32 v{VO}, v{V_L}, 3, s{t}\ns_xor_b32 s{t}, s2, 4\nv_mov_b32 v{VP}, s{t}")
    w_off = [i.text for i in S] + [[f"v_cmp_lt_u32 vcc, 15, v{V_L}", "s_nop 1", f"v_cndmask_b32 v{VO}, v{VO}, v{VP}, vcc"],
                                   f"v_lshlrev_b32 v{VO}, 2, v{VO}"]
    w_ld = f"buffer_load_dword v{VP}, v{VO}, {sr(SRD_F,4)}, 0 offen offset:{f1.F_2S} sc1"
    S = Seg()
    S(f"s_sub_u32 s{t}, 15, s{f3.S_RB}\ns_min_u32 s{t}, s{t}, s{f3.S_RB}")
    if f2.M84:
        S(f"s_lshr_b32 s{t+1}, s{t}, 1\ns_xor_b32 s{t}, s{t}, s{t+1}\ns_and_b32 s{t}, s{t}, 1\ns_lshl_b32 s{t+1}, s{t+1}, 6")
        S(f"s_add_u32 s{t}, s{t}, s{t+1}")
    else:
        S(f"s_lshl_b32 s{t}, s{t}, 5")
    S(f"s_lshl_b32 s{t+1}, s{f3.S_KH}, 2\ns_add_u32 s{t}, s{t}, s{t+1}\ns_add_u32 s{t}, s{t}, {f1.F_2L // 4}")
    TE = f3.V_TE
    S(f"v_bfe_u32 v{TE}, v{V_L}, 4, 1\nv_lshl_add_u32 v{TE}, s{S_W}, 1, v{TE}\nv_sub_u32 v{TE+1}, 7, v{TE}")
    S(f"v_min_u32 v{TE}, v{TE}, v{TE+1}\nv_lshl_add_u32 v{TE+1}, v{TE}, 8, s{t}")
    if f2.M84:
        S(f"v_and_b32 v{VO2}, 7, v{V_L}\nv_lshlrev_b32 v{VO2}, 3, v{VO2}\nv_bfe_u32 v{TE}, v{V_L}, 3, 1\nv_lshlrev_b32 v{TE}, 1, v{TE}")
    else:
        S(f"v_and_b32 v{VO2}, 3, v{V_L}\nv_lshlrev_b32 v{VO2}, 3, v{VO2}\nv_bfe_u32 v{TE}, v{V_L}, 2, 2")
    S(f"v_add3_u32 v{VO2}, v{VO2}, v{TE}, v{TE+1}\nv_lshlrev_b32 v{VO2}, 2, v{VO2}")
    c_off = [i.text for i in S]
    c_ld = f"buffer_load_dword v{VP}, v{VO2}, {sr(SRD_F,4)}, 0 offen sc1"
    su = f3.p5_setup()
    B("s_waitcnt lgkmcnt(0)")
    B.add(f3.p4_reads(0))
    B(f"v_lshlrev_b32 v{VS}, 20, v{V_L}\nv_mov_b32 v{VP}, 1\ns_lshl_b32 s83, s{S_W}, 8\ns_add_u32 s83, s83, s2")
    B(f"s_lshl_b32 s83, s83, 2\ns_add_u32 s83, s83, {f1.F_2L}")
    SIG = int(os.environ.get("SIGAT", "1"))
    sig = ["@vmwait ctx0", f"buffer_store_dword v{VP}, v{VS}, {sr(SRD_F,4)}, s83 offen sc1"]
    da, ya = f3.p4_late_setup()
    fl = {0: su[:len(su) // 3], 1: su[len(su) // 3:] + w_off + [w_ld], 2: c_off, 3: sig_off(VS, t), 4: ya}
    WPRE = 3
    vm = {3: f3.wo_stage(0) + f3.wo_stage(1), 4: f3.wo_stage(2)}
    EP = os.environ.get("EPOLL", "1") == "1"
    for rho in range(NPRE):
        head = sig if rho == SIG else poll("w", w_ld, VP, t) if rho == 3 else []
        if EP and rho == NPRE - 1:
            head = head + [c_ld]
        B.add(f3.p4_rho(rho, head=head, fill=fl.get(rho, []), vm=vm.get(rho, []), first=da if rho == 0 else ()))
    if not EP:
        B(c_ld)
    st(B)
    B.add(poll("f2", c_ld, VP, t))
    st(B)
    R, PRE = f3.RING, int(os.environ.get("PRE", "4"))
    ramp = []
    for n in range(R):
        if WPRE <= n < R - 1:
            ramp.append(("w", n, f3.wo_stage(n)))
        ramp.append(("c", n, f3.ctx_stage(n)))
    early = [x for x in ramp if x[1] < PRE and not (x[0] == "w" and x[1] >= 4)]
    late = [x for x in ramp if x not in early]
    NMRG = int(os.environ.get("NMRG", "1"))
    ev = chunks(flat([x[2] for x in early[1:]]), 8 - NMRG - NPRE)
    conv = []
    for rho in range(8 - NMRG, 8):
        conv += list(zip(chunks(f3.p4_mfmas(rho), 3), chunks(f3.p4_reads(rho + 1) if rho < 7 else [], 2) + [[]]))
    Y0 = (len(conv) + 1) // 2
    conv += [([], [])] * 2
    for rho in range(NPRE, 8 - NMRG):
        B.add(f3.p4_rho(rho, head=early[0][2] if rho == NPRE else [], vm=ev[rho - NPRE]))
    B("@vmwait o0 lgkm\ns_barrier")
    for ct in range(8):
        B(f3.rd_wo(0, 0, ct))
    st(B)
    f3_ld = f"buffer_load_dword v{VP}, v{VO}, {sr(SRD_F,4)}, 0 offen offset:{f1.F_3} sc1"
    f3_off = [f"v_and_b32 v{VO}, 15, v{V_L}", f"s_lshl_b32 s{t}, s{f3.S_CB}, 4", f"v_add_u32 v{VO}, s{t}, v{VO}",
              f"v_lshlrev_b32 v{VO}, 2, v{VO}"]
    yw = chunks(f3.p4_y_write(), 5) + [f3.p4_y_read()]
    yl = f3.y_loads()
    pre = chunks(f3.ep_pre(), 8)
    for u in range(32 - f3.NTAIL):
        fl, tags, ab = [None] * 2, (), ()
        if Y0 <= u < Y0 + 3:
            fl = yw[2 * (u - Y0):2 * (u - Y0) + 2]
        if u == Y0 + 3:
            fl = chunks(f3.p4_y_store(), 2)
        if u == 10:
            tags, ab = ("yst",), signal(f1.F_3, VS, VP, t)
        if u == 15:
            fl = [f3_off, [f3_ld]]
        if 25 <= u < 29:
            fl = pre[2 * (u - 25):2 * (u - 24)]
        if 19 <= u < 23:
            fl = [flat([x]) for x in yl[2 * (u - 19):2 * (u - 18)]]
            if u == 19:
                fl[0] = [poll("f3", f3_ld, VP, t)] + fl[0]
        B.add(f3.stage(u, fill=fl, bar_tags=tags, after_bar=ab,
                       head0=flat([x[2] for x in late]) if u == 0 else (),
                       conv=conv[2 * u:2 * u + 2] if u < Y0 else None))
        if os.environ.get("DIAG") == "3" and u % 3 == 2:
            st(B)
    B.add(f3.tail())
    st(B)
    B.add(f3.ep_own())
    B.add(f3.xb_recv(SPIN))
    st(B)
    f3.p5_epilogue(B)
    return B


def build(out):
    st = VStamps()
    H = start(st)
    K, V = p1("K", st), p1("V", st)
    J = Seg()
    P2 = p2(st)
    st(P2)
    ctb = code_touch("b", "L_p3_s1m_top", "L_end", 172, 38, 174) if "b" in CT else ([], [])
    lin, o3, traces = f2.p3(
        "p3", st, [] if PACK_EARLY else f3.pack_dma(f2.V_T + 5),
        f3.early_x_loads(f2.SRD_X, f2.V_T) + sig_off(236, 36) + signal(f1.F_2S, 236, 237, 37)[:2] + flat(ctb[0]) + ctb[1],
        f3.p4_ur_dma(f2.V_T + 5), f3.p5_ptr_loads(), (signal(f1.F_2S, 236, 237, 37)[2:], ctb[1] if 'c' in CT else []),
        groupify(f3.pack_store(f2.V_T + 8, [96, 100, 104, 108, 128, 132, 136, 140], f2.V_DO)) +
        f3.xb_prefill(f2.V_T + 12, f2.V_DO) + f3.p4_h_loads(),
        f3.p4_prep_items())
    P45 = p45(st)
    E = Seg()
    st.dump(E)
    E("L_end:\ns_endpgm")
    Z = Seg()
    Z("L_code_end:\ns_endpgm")
    if DIAG:
        X = Seg()
        st(X)
        P2[1:1] = list(X)
    allseg = [H, K, V, P2] + lin + [P45, E] + o3 + ool + [Z]
    exp_filter([K, V, P2] + lin + o3 + [P45])
    resolve([[H, B, P2] + t + [P45, E] for B in (K, V) for t in traces], verbose="-v" in sys.argv)
    resolve([[s] for s in ool], verbose=False)
    if "-v" in sys.argv:
        for nm_, sg in (("p1K", [K]), ("p1V", [V]), ("p2", [P2]), ("p45", [P45])):
            overflow_report(nm_, sg)
        for k_, b_ in f2.BODIES.items():
            overflow_report(k_, b_.segs + [[I(mfma16('a[0:3]', 'v[0:3]', 'v[0:3]'))]])
    hdr = "; @launch grid=(256,1,1) block=(256,1,1) lds=163840\n" + '.amdgcn_target "amdgcn-amd-amdhsa--gfx950"\n.text\n' + MACROS
    open(out, "w").write(hdr + text_of(allseg) + kernel_desc(NAME))


if __name__ == "__main__":
    build(sys.argv[1])
```

```python
from common import *

S_W = 3
V_L = 1

SRD_C, SRD_W, SRD_O = 8, 12, 16
S_COFF, S_WOFF, S_MC, S_MW = 20, 21, 22, 23
S_D = 24
S_T = 36
S_WS = 40
S_TYPE = 42
P_C, P_WU, P_DBG = 44, 48, 52
V_CF, V_WF = 80, 144
V_CD, V_WD, V_CA, V_WA = 176, 184, 192, 196
V_T = 204
V_ST = 228
V_EP = 230
LDS_W = 98304

ROT = 0 if 'norot' in EXP else 7
F_1, F_2S, F_3, F_2L = 0, 1024, 2048, 4096


def acc(typ, ct, rt):
    if typ == "K":
        return ((rt * 4 + (ct >> 1)) * 2 + (ct & 1)) * 4
    return (((rt >> 1) * 8 + ct) * 2 + (rt & 1)) * 4


def setup(S):
    t, T, l = S_T, V_T, V_L
    S(f"s_and_b32 s{t}, s2, 7")
    S(f"s_lshr_b32 s{t+1}, s2, 3")
    S(f"s_and_b32 s{t+2}, s{t+1}, 7")
    S(f"s_lshr_b32 s{t+1}, s{t+1}, 3")
    S(f"s_lshr_b32 s{S_TYPE}, s{t+1}, 1")
    S(f"s_and_b32 s{t+1}, s{t+1}, 1")
    S(f"s_lshl_b32 s{t}, s{t}, 1")
    S(f"s_add_u32 s{t}, s{t}, s{t+1}")
    S(f"s_lshl_b32 s{S_D}, s{t+2}, 18")
    S(f"s_lshl_b32 s{t+3}, s{S_W}, 16")
    S(f"s_add_u32 s{S_D}, s{S_D}, s{t+3}")
    S(f"s_lshl_b32 s{S_D+1}, s{S_W}, 17")
    S(f"s_lshl_b32 s{t+3}, s{t}, 9")
    S(f"s_add_u32 s{S_D+1}, s{S_D+1}, s{t+3}")
    S(f"s_and_b32 s{S_COFF}, s2, {ROT}")
    S(f"s_lshl_b32 s{S_WOFF}, s{S_COFF}, 19")
    S(f"s_lshl_b32 s{S_COFF}, s{S_COFF}, 7")
    S(f"s_lshl_b32 s{S_MC}, s{S_W}, 13")
    S(f"s_add_u32 s{S_MW}, s{S_MC}, {LDS_W}")
    S(f"v_lshrrev_b32 v{T}, 3, v{l}")
    S(f"v_lshlrev_b32 v{T}, 10, v{T}")
    S(f"v_lshrrev_b32 v{T+1}, 4, v{l}")
    S(f"v_and_b32 v{T+2}, 7, v{l}")
    S(f"v_xor_b32 v{T+2}, v{T+2}, v{T+1}")
    S(f"v_lshl_add_u32 v{T}, v{T+2}, 4, v{T}")
    S(f"v_xor_b32 v{T+3}, 64, v{T}")
    for i in range(8):
        S(f"v_add_u32 v{V_CD+i}, {8192*i - 1024*(i&3)}, v{T + (3 if i & 1 else 0)}")
    S(f"v_lshrrev_b32 v{T}, 5, v{l}")
    S(f"v_and_b32 v{T+2}, 31, v{l}")
    S(f"v_lshlrev_b32 v{T+3}, 1, v{T}")
    S(f"v_xor_b32 v{T+2}, v{T+2}, v{T+3}")
    S(f"v_lshlrev_b32 v{T}, 13, v{T}")
    for i in range(8):
        x = (2 * (i & 1) + 4 * ((i >> 2) & 1)) << 1
        S(f"v_xor_b32 v{T+3}, {x}, v{T+2}")
        S(f"v_lshl_add_u32 v{T+3}, v{T+3}, 4, v{T}")
        S(f"v_add_u32 v{V_WD+i}, {16384*i - 1024*(i&3)}, v{T+3}")
    S("s_waitcnt lgkmcnt(0)")
    srd(S, SRD_C, P_C, 64 * 1024, off=f"s{S_D}")
    S(f"s_cmp_eq_u32 s{S_TYPE}, 0")
    S(f"s_cselect_b32 s{SRD_W}, s{P_WU}, s{P_WU+2}")
    S(f"s_cselect_b32 s{SRD_W+1}, s{P_WU+1}, s{P_WU+3}")
    S(f"s_add_u32 s{SRD_W}, s{SRD_W}, s{S_D+1}\ns_addc_u32 s{SRD_W+1}, s{SRD_W+1}, 0")
    S(f"s_sub_u32 s{SRD_W+2}, {512*4096*2}, s{S_D+1}\ns_mov_b32 s{SRD_W+3}, 0x20000")


def setup2(S):
    t, T, l = S_T, V_T, V_L
    S(f"v_and_b32 v{T}, 15, v{l}")
    S(f"v_lshrrev_b32 v{T+2}, 1, v{T}")
    S(f"v_xor_b32 v{T+2}, v{T+2}, v{T+1}")
    S(f"v_lshlrev_b32 v{T+2}, 4, v{T+2}")
    S(f"v_lshl_add_u32 v{T+2}, v{T}, 7, v{T+2}")
    S(f"s_and_b32 s{t+3}, s{S_W}, 1")
    S(f"s_lshl_b32 s{t+3}, s{t+3}, 14")
    S(f"v_add_u32 v{V_CA}, s{t+3}, v{T+2}")
    S(f"v_xor_b32 v{V_CA+1}, 64, v{V_CA}")
    S(f"v_add_u32 v{V_CA+2}, 0x10000, v{V_CA}")
    S(f"v_add_u32 v{V_CA+3}, 0x10000, v{V_CA+1}")
    S(f"v_bfe_u32 v{T}, v{l}, 2, 2")
    S(f"v_and_b32 v{T+2}, 1, v{T+1}")
    S(f"v_lshl_or_b32 v{T+2}, v{T+2}, 2, v{T}")
    S(f"v_lshl_add_u32 v{T}, v{T+1}, 3, v{T}")
    S(f"v_lshlrev_b32 v{T}, 9, v{T}")
    S(f"v_and_b32 v{T+3}, 3, v{l}")
    S(f"v_lshl_add_u32 v{T}, v{T+3}, 3, v{T}")
    S(f"s_lshr_b32 s{t+3}, s{S_W}, 1")
    S(f"s_lshl_b32 s{t+3}, s{t+3}, 8")
    S(f"s_add_u32 s{t+3}, s{t+3}, {LDS_W}")
    S(f"v_add_u32 v{T}, s{t+3}, v{T}")
    for ct in range(8):
        S(f"v_xor_b32 v{T+3}, {ct}, v{T+2}")
        S(f"v_lshl_add_u32 v{V_WA+ct}, v{T+3}, 5, v{T}")
    S(f"s_lshl_b32 s{t}, s{t}, 1")
    S(f"s_lshr_b32 s{t+3}, s{S_W}, 1")
    S(f"s_add_u32 s{t}, s{t}, s{t+3}")
    S(f"s_lshl_b32 s{S_D}, s{t}, 19")
    S(f"s_lshl_b32 s{t+2}, s{t+2}, 16")
    S(f"s_add_u32 s{S_D}, s{S_D}, s{t+2}")
    S(f"s_and_b32 s{t+3}, s{S_W}, 1")
    S(f"s_lshl_b32 s{t+3}, s{t+3}, 15")
    S(f"s_add_u32 s{S_D}, s{S_D}, s{t+3}")
    S(f"s_lshl_b32 s{t}, s{S_TYPE}, 24")
    srd(S, SRD_O, S_WS, 16 * MB, off=f"s{t}")


def dma_c(n):
    out = []
    for i in range(8):
        if i % 4 == 0:
            out.append(f"s_add_u32 m0, s{S_MC}, {(n % 3)*32768 + (i >> 2)*4096}")
        out.append(f"buffer_load_dwordx4 v{V_CD+i}, {sr(SRD_C,4)}, s{S_COFF} offen offset:{1024*(i&3)} lds #c{n}")
    out += [f"s_add_u32 s{S_COFF}, s{S_COFF}, 128", f"s_and_b32 s{S_COFF}, s{S_COFF}, 1023"]
    return out


def dma_w(n):
    out = []
    for i in range(8):
        if i % 4 == 0:
            out.append(f"s_add_u32 m0, s{S_MW}, {(n & 1)*32768 + (i >> 2)*4096}")
        out.append(f"buffer_load_dwordx4 v{V_WD+i}, {sr(SRD_W,4)}, s{S_WOFF} offen offset:{1024*(i&3)}{NT_W} lds #w{n}")
    out += [f"s_add_u32 s{S_WOFF}, s{S_WOFF}, {64*8192}", f"s_and_b32 s{S_WOFF}, s{S_WOFF}, {4*MB - 1}"]
    return out


def rd_c(n, kk, rt):
    slot = n % 3
    va = V_CA + kk + (2 if slot == 2 else 0)
    return f"ds_read_b128 {vr(V_CF + kk*32 + rt*4, 4)}, v{va} offset:{(slot & 1)*32768 + rt*2048}"


def rd_w(n, kk, ct):
    return [f"ds_read_b64_tr_b16 {vr(V_WF + ct*4 + 2*a, 2)}, v{V_WA+ct} offset:{(n & 1)*32768 + (32*kk + 4*a)*512}"
            for a in range(2)]


def kstep(typ, n, kk, vm=None, fill=None, last=None, bar=9, vm_pre=None, block=()):
    mf = []
    order = [(ct, rt) for ct in range(8) for rt in range(8)]
    if "1" in ORD:
        order = [(2 * p + e, rt if p % 2 == 0 else 7 - rt) for p in range(4) for rt in range(8) for e in range(2)]
    for ct, rt in order:
        if True:
            w, c, d = vr(V_WF + ct * 4, 4), vr(V_CF + kk * 32 + rt * 4, 4), ar(acc(typ, ct, rt), 4)
            cin = "0" if (n == 0 and kk == 0) else None
            mf.append(mfma16(d, w, c, cin) if typ == "K" else mfma16(d, c, w, cin))
    sc = Sched(mf, 2)
    fg = 0
    sc.pin(0, [] if (n == 0 and kk == 0) else [])
    if last:
        last(sc)
    else:
        nn, nkk = (n, 1) if kk == 0 else (n + 1, 0)
        if kk == 1:
            sc.pin(bar, list(block) + [f"@vmwait c{n+1} w{n+1} lgkm", "s_barrier"])
            fg = bar + 1
            if vm_pre:
                sc.stream(vm_pre, 0, bar - 1, prio=1)
        rw, at = [], []
        for ct in range(8):
            rw += rd_w(nn, nkk, ct)
            at += [min(63, max(16 * (ct >> 1) + 14 + (ct & 1) if '1' in ORD else 8 * ct + 7, fg + 2 * ct))] * 2
        sc.stream(rw, at=at, prio=3)
        sc.stream([rd_c(nn, nkk, rt) for rt in range(8)], fg + 1, max(52, fg + 10), prio=2)
    if vm:
        sc.stream(vm, fg, 62, prio=1)
    if fill:
        sc.stream(fill, fg if kk == 1 else 0, 62)
    head = [] if (n == 0 and kk == 0) else ["s_waitcnt lgkmcnt(4)" if "1" in ORD else "s_waitcnt lgkmcnt(2)"]
    return sc.build(head)


def epilogue_items(flavor="sc1"):
    items = []
    for k in range(32):
        T = V_EP + (k & 1) * 12
        for j in range(8):
            items.append(f"v_accvgpr_read_b32 v{T+4+j}, a{8*k+j}")
        for u in range(4):
            items.append(f"v_cvt_pk_bf16_f32 v{T+u}, v{T+4+2*u}, v{T+5+2*u}")
        if k % 4 == 0 and k:
            items.append(f"s_add_u32 s{S_D}, s{S_D}, 4096")
        items.append(f"buffer_store_dwordx4 {vr(T,4)}, v{V_ST}, {sr(SRD_O,4)}, s{S_D} offen offset:{1024*(k & 3)} {flavor} #kvst")
    return items


class P0:
    V_K, V_V, V_SH, V_A = 16, 38, 54, 62
    V_GX, V_GW = 230, 2
    V_KF, V_WF = 230, 2
    V_T = 252
    V_KO, V_UO, V_GO = 229, 10, 11
    V_SO, V_XO, V_GWO = 62, 63, 64
    SRD_K, SRD_V, SRD_X, SRD_SH, SRD_GW = 84, 88, 92, 96, 76
    SRD_U, SRD_G = 84, 88
    S_T = 36

    def ptr_loads(self):
        return [f"s_load_dwordx2 {sr(d,2)}, s[0:1], {ka}" for d, ka in
                ((self.SRD_K, KA_K), (self.SRD_V, KA_V), (self.SRD_X, KA_Q), (self.SRD_SH, KA_SHIFT), (self.SRD_GW, KA_GW))]

    def setup(self):
        S = Seg()
        t, T, l = self.S_T, self.V_T, V_L
        for d, n in ((self.SRD_K, 4 * MB), (self.SRD_V, 4 * MB), (self.SRD_X, 4 * MB), (self.SRD_SH, 8192), (self.SRD_GW, 2048)):
            S(f"s_mov_b32 s{d+2}, {n}\ns_mov_b32 s{d+3}, 0x20000")
        S(f"s_and_b32 s{t}, s2, 15")
        S(f"s_lshl_b32 s{t}, s{t}, 1")
        S(f"s_lshr_b32 s{t+1}, s{S_W}, 1")
        S(f"s_add_u32 s{t}, s{t}, s{t+1}")
        S(f"s_lshl_b32 s{t}, s{t}, 3")
        S(f"v_and_b32 v{T}, 7, v{l}")
        S(f"v_add_u32 v{T}, s{t}, v{T}")
        S(f"s_lshr_b32 s{t}, s2, 4")
        S(f"s_lshl_b32 s{t}, s{t}, 1")
        S(f"s_and_b32 s{t+1}, s{S_W}, 1")
        S(f"s_add_u32 s{t}, s{t}, s{t+1}")
        S(f"s_lshl_b32 s{t}, s{t}, 3")
        S(f"v_lshrrev_b32 v{T+1}, 3, v{l}")
        S(f"v_add_u32 v{T+1}, s{t}, v{T+1}")
        S(f"v_lshlrev_b32 v{T+2}, 14, v{T+1}")
        S(f"v_lshl_add_u32 v{T+2}, v{T}, 3, v{T+2}")
        S(f"v_add_u32 v{self.V_KO}, {-3*2048}, v{T+2}")
        S(f"v_lshlrev_b32 v{self.V_SO}, 5, v{T}")
        S(f"v_lshlrev_b32 v{T+2}, 4, v{T+1}")
        S(f"v_sub_u32 v{T+2}, 4080, v{T+2}")
        S(f"v_lshl_add_u32 v{self.V_UO}, v{T}, 14, v{T+2}")
        S(f"v_and_b32 v{T}, 31, v{l}")
        S(f"v_lshlrev_b32 v{self.V_GWO}, 4, v{T}")
        S(f"s_lshl_b32 s{t}, s2, 2")
        S(f"s_add_u32 s{t}, s{t}, s{S_W}")
        S(f"s_lshl_b32 s{t}, s{t}, 1")
        S(f"v_lshrrev_b32 v{T+1}, 5, v{l}")
        S(f"v_add_u32 v{T+1}, s{t}, v{T+1}")
        S(f"v_lshl_add_u32 v{self.V_XO}, v{T+1}, 11, v{self.V_GWO}")
        S(f"v_lshlrev_b32 v{T+1}, 2, v{T+1}")
        S(f"v_lshl_add_u32 v{self.V_GO}, v{T}, 20, v{T+1}")
        return [i.text for i in S]

    def gw(self, i):
        return (2, 6, 12, 246)[i]

    def loads(self):
        out = []
        T = self.V_T
        for i in range(4):
            out.append(f"buffer_load_dwordx4 {vr(self.V_GX+4*i,4)}, v{self.V_XO}, {sr(self.SRD_X,4)}, 0 offen offset:{512*i}")
            out.append(f"buffer_load_dwordx4 {vr(self.gw(i),4)}, v{self.V_GWO}, {sr(self.SRD_GW,4)}, 0 offen offset:{512*i}")
        for i in range(2):
            out.append(f"buffer_load_dwordx4 {vr(self.V_SH+4*i,4)}, v{self.V_SO}, {sr(self.SRD_SH,4)}, 0 offen offset:{16*i}")
        for i in range(11):
            tmp = T + (i & 3)
            out += [f"v_add_u32 v{tmp}, {2048*i}, v{self.V_KO}",
                    f"buffer_load_dwordx2 {vr(self.V_K+2*i,2)}, v{tmp}, {sr(self.SRD_K,4)}, 0 offen{NT_K}"]
            if i >= 3:
                out.append(f"buffer_load_dwordx2 {vr(self.V_V+2*(i-3),2)}, v{tmp}, {sr(self.SRD_V,4)}, 0 offen{NT_K}")
        return out

    def compute(self, flavor="sc1"):
        S = Seg()
        srd(S, self.SRD_U, S_WS, 4 * MB, off=WS_UR)
        srd(S, self.SRD_G, S_WS, 8192, off=WS_G)
        out = [i.text for i in S]
        T = self.V_T
        a = T
        out.append(f"v_mov_b32 v{a}, 0")
        out.append(f"v_mov_b32 v{a+1}, 0")
        out.append([f"v_dot2_f32_bf16 v{a + (i & 1)}, v{self.V_GX+i}, v{self.gw(i >> 2) + (i & 3)}, v{a + (i & 1)}"
                    for i in range(16)])
        out.append(["s_nop 2", f"v_add_f32 v{a}, v{a}, v{a+1}"])
        for r in (8, 4, 2, 1):
            out.append(f"v_add_f32_dpp v{a}, v{a}, v{a} row_ror:{r} row_mask:0xf bank_mask:0xf")
        out.append(f"v_mov_b32 v{a+1}, v{a}")
        out.append(f"v_permlane16_swap_b32 v{a}, v{a+1}")
        out.append(f"v_add_f32 v{a}, v{a}, v{a+1}")
        out.append(f"v_mul_f32 v{a}, 0xbfb8aa3b, v{a}")
        out.append(f"v_exp_f32 v{a}, v{a}")
        out.append(f"v_add_f32 v{a}, 1.0, v{a}")
        out.append(f"v_rcp_f32 v{a}, v{a}")
        out.append(["s_nop 0", f"buffer_store_dword v{a}, v{self.V_GO}, {sr(self.SRD_G,4)}, 0 offen {flavor}"])
        for cp in range(2):
            for c in range(2):
                sh = self.V_SH + 4 * cp + 2 * c
                w = self.V_WF + 4 * c
                out += [f"v_lshlrev_b32 v{w}, 16, v{sh}", f"v_and_b32 v{w+1}, 0xffff0000, v{sh}",
                        f"v_lshlrev_b32 v{w+2}, 16, v{sh+1}", f"v_and_b32 v{w+3}, 0xffff0000, v{sh+1}"]
            for i in range(11):
                k = self.V_K + 2 * i + cp
                out += [f"v_lshlrev_b32 v{self.V_KF+2*i}, 16, v{k}", f"v_and_b32 v{self.V_KF+2*i+1}, 0xffff0000, v{k}"]
            for rho in range(8):
                v = self.V_V + 2 * rho + cp
                out += [f"v_lshlrev_b32 v{T+2}, 16, v{v}", f"v_and_b32 v{T+3}, 0xffff0000, v{v}"]
                for j in range(4):
                    for c in range(2):
                        A = self.V_A + 8 * c + rho
                        kf = self.V_KF + 2 * (rho + 3 - j) + c
                        w = self.V_WF + 4 * c + j
                        out.append(f"v_mul_f32 v{A}, v{kf}, v{w}" if j == 0 else f"v_fmac_f32 v{A}, v{kf}, v{w}")
                for c in range(2):
                    A = self.V_A + 8 * c + rho
                    out.append(f"v_mul_f32 v{A}, v{A}, v{T+2+c}")
            for c in range(2):
                P = (12, self.V_SH)[c] if cp == 0 else (self.V_KF, self.V_KF + 4)[c]
                A = self.V_A + 8 * c
                for e in range(4):
                    out.append(f"v_cvt_pk_bf16_f32 v{P+e}, v{A+7-2*e}, v{A+6-2*e}")
                out += [f"s_mov_b32 s{self.S_T}, {4096*(2*cp + c)}",
                        f"buffer_store_dwordx4 {vr(P,4)}, v{self.V_UO}, {sr(self.SRD_U,4)}, s{self.S_T} offen {flavor}"]
        return out
```

```python
from common import *
import f1

S_W = 3
SRD_X = 44
SRD_WQ = 48
SRD_K = 52
SRD_V = 56
SRD_CTX = 60
S_XL, S_XS, S_WQO = 64, 65, 66
S_MX, S_MWQ = 67, 68
S_HEAD, S_I = 69, 70
S_KX, S_XO = 74, 75
S_KVO = 71
S_MK, S_MV = 72, 73
S_CNT = 74
S_NT = 77
S_BAD = 78
S_TMP = 80
S_MSK = 84
S_CL, S_CS = 100, 101
S_C7 = 76

V_L = 1
V_LS = 2
V_KA, V_VA, V_DO = 10, 11, 12
V_Q4, V_NINF, V_CST = (13, 239), 14, 15
V_Q = 16
V_S = 80
V_T = 240
V_ONE, V_LM = 160, 164
V_WF = 16
V_XF = 48
V_XD, V_WD, V_WA, V_XA = 208, 212, 216, 224
A_O = 0
A_K = 128
A_V = 192

X_SLOT = (65536, 0, 32768)
LDS_WQ = 98304
COH = 'sc1'
VOTE_LDS = 163824
M84 = os.environ.get('M84', '1') == '1'


def qreg(qt, p):
    return V_Q + 16 * qt + 4 * p


def sreg(par, u, qt):
    return V_S + 64 * par + 32 * u + 8 * qt


def oreg(qt, dt):
    return A_O + 32 * qt + 4 * dt


def acc2(ct, rt):
    return V_S + (ct * 4 + rt) * 4


def ptr_loads():
    return [f"s_load_dwordx2 s[32:33], s[0:1], {KA_Q}", f"s_load_dwordx2 s[34:35], s[0:1], {KA_WQ}",
            f"s_load_dwordx2 s[38:39], s[0:1], {KA_DBG}"]


def setup():
    S = Seg()
    T = 66
    t = S_TMP
    if M84:
        S(f"s_bfe_u32 s{t}, s2, 0x20001")
        S(f"s_bfe_u32 s{S_HEAD}, s2, 0x30003")
        S(f"s_lshl_b32 s{t}, s{t}, 3")
        S(f"s_add_u32 s{S_HEAD}, s{S_HEAD}, s{t}")
        S(f"s_lshr_b32 s{t}, s2, 6")
        S(f"s_xor_b32 s{t+1}, s{t}, s2")
        S(f"s_and_b32 s{t+1}, s{t+1}, 1")
        S(f"s_lshl_b32 s{S_I}, s{t}, 1")
        S(f"s_add_u32 s{S_I}, s{S_I}, s{t+1}")
    else:
        S(f"s_and_b32 s{t}, s2, 7")
        S(f"s_lshr_b32 s{t+1}, s2, 3")
        S(f"s_and_b32 s{S_HEAD}, s{t+1}, 3")
        S(f"s_lshl_b32 s{t}, s{t}, 2")
        S(f"s_add_u32 s{S_HEAD}, s{S_HEAD}, s{t}")
        S(f"s_lshr_b32 s{S_I}, s{t+1}, 2")
    S(f"s_lshl_b32 s{t}, s{S_W}, 1")
    S(f"s_sub_u32 s{t}, 7, s{t}")
    S(f"s_lshl_b32 s{S_C7}, s{t}, 17")
    S(f"s_lshl_b32 s{t}, s{S_W}, 15")
    S(f"s_lshl_b32 s{S_XS}, s{S_I}, 18")
    S(f"s_sub_u32 s{S_XL}, {15 << 18}, s{S_XS}")
    S(f"s_add_u32 s{S_XS}, s{S_XS}, s{t}")
    S(f"s_add_u32 s{S_XL}, s{S_XL}, s{t}")
    S(f"s_lshl_b32 s{t+1}, s{S_HEAD}, 12")
    S(f"s_lshl_b32 s{S_CL}, s{S_XL}, 2")
    S(f"s_add_u32 s{S_CL}, s{S_CL}, s{t+1}")
    S(f"s_lshl_b32 s{S_CS}, s{S_XS}, 2")
    S(f"s_add_u32 s{S_CS}, s{S_CS}, s{t+1}")
    S(f"s_lshl_b32 s{S_WQO}, s{S_W}, 17")
    S(f"s_lshl_b32 s{t+1}, s{S_HEAD}, 8")
    S(f"s_add_u32 s{S_WQO}, s{S_WQO}, s{t+1}")
    S(f"s_and_b32 s{S_KX}, s2, {f1.ROT}")
    S(f"s_lshl_b32 s{S_KX}, s{S_KX}, 8")
    S(f"s_mov_b32 s{t+2}, s{S_WQO}")
    S(f"s_lshl_b32 s{S_WQO}, s{S_KX}, 12")
    S(f"s_lshl_b32 s{S_MX}, s{S_W}, 13")
    S(f"s_lshl_b32 s{S_MWQ}, s{S_W}, 12")
    S(f"s_lshl_b32 s{S_NT}, s{S_I}, 1")
    S(f"s_sub_u32 s{S_NT}, 32, s{S_NT}")
    l = V_L
    S(f"v_lshrrev_b32 v{T}, 3, v{l}")
    S(f"v_lshlrev_b32 v{T}, 11, v{T}")
    S(f"v_lshrrev_b32 v{T+1}, 4, v{l}")
    S(f"v_and_b32 v{T+2}, 7, v{l}")
    S(f"v_xor_b32 v{T+2}, v{T+2}, v{T+1}")
    S(f"v_lshl_add_u32 v{T}, v{T+2}, 4, v{T}")
    S(f"v_xor_b32 v{T+3}, 64, v{T}")
    S(f"s_lshr_b32 s{t+3}, s{S_C7}, 2")
    for i in range(4):
        S(f"v_add_u32 v{V_XD+i}, {16384*(i & 1) - 1024*i}, v{T + (3 if i & 1 else 0)}")
        if i >= 2:
            S(f"v_add_u32 v{V_XD+i}, s{t+3}, v{V_XD+i}")
    S(f"v_and_b32 v{T+2}, 15, v{l}")
    S(f"v_lshlrev_b32 v{T+3}, 1, v{T+1}")
    S(f"v_xor_b32 v{T+2}, v{T+2}, v{T+3}")
    S(f"v_lshlrev_b32 v{T}, 13, v{T+1}")
    for i in range(4):
        S(f"v_xor_b32 v{T+3}, {(i >> 1) << 3}, v{T+2}")
        S(f"v_lshl_add_u32 v{T+3}, v{T+3}, 4, v{T}")
        S(f"v_add_u32 v{V_WD+i}, {32768*i - 1024*i}, v{T+3}")
    S(f"v_and_b32 v{T}, 15, v{l}")
    S(f"v_lshrrev_b32 v{T+2}, 1, v{T}")
    S(f"v_xor_b32 v{T+2}, v{T+2}, v{T+1}")
    S(f"v_lshlrev_b32 v{T+2}, 4, v{T+2}")
    S(f"v_lshl_add_u32 v{T+2}, v{T}, 7, v{T+2}")
    S(f"v_add_u32 v{V_XA}, s{S_MX}, v{T+2}")
    S(f"v_xor_b32 v{V_XA+1}, 64, v{V_XA}")
    S(f"v_add_u32 v{V_XA+2}, 0x10000, v{V_XA}")
    S(f"v_add_u32 v{V_XA+3}, 0x10000, v{V_XA+1}")
    S(f"v_bfe_u32 v{T}, v{l}, 2, 2")
    S(f"v_and_b32 v{T+2}, 1, v{T+1}")
    S(f"v_lshl_or_b32 v{T+2}, v{T+2}, 2, v{T}")
    S(f"v_lshl_add_u32 v{T}, v{T+1}, 3, v{T}")
    S(f"v_lshlrev_b32 v{T}, 8, v{T}")
    S(f"v_and_b32 v{T+3}, 3, v{l}")
    S(f"v_lshl_add_u32 v{T}, v{T+3}, 3, v{T}")
    S(f"v_add_u32 v{T}, {LDS_WQ}, v{T}")
    for ct in range(8):
        S(f"v_xor_b32 v{T+3}, {ct}, v{T+2}")
        S(f"v_lshl_add_u32 v{V_WA+ct}, v{T+3}, 5, v{T}")
    srd(S, SRD_X, 32, 2048 * 1024 * 2)
    S(f"s_add_u32 s{SRD_WQ}, s34, s{t+2}\ns_addc_u32 s{SRD_WQ+1}, s35, 0")
    S(f"s_sub_u32 s{SRD_WQ+2}, {8*MB}, s{t+2}\ns_mov_b32 s{SRD_WQ+3}, 0x20000")
    srd(S, SRD_CTX, 40, 16 * MB, off=WS_CTX)
    S(f"s_lshl_b32 s{t}, s{S_HEAD}, 19")
    S(f"s_add_u32 s{SRD_K}, s40, s{t}\ns_addc_u32 s{SRD_K+1}, s41, 0")
    S(f"s_lshl_b32 s{SRD_K+2}, s{S_NT}, 14\ns_mov_b32 s{SRD_K+3}, 0x20000")
    S(f"s_add_u32 s{t}, s{t}, {WS_VF - 16384}")
    S(f"s_add_u32 s{SRD_V}, s40, s{t}\ns_addc_u32 s{SRD_V+1}, s41, 0")
    S(f"s_add_u32 s{SRD_V+2}, s{SRD_K+2}, 16384\ns_mov_b32 s{SRD_V+3}, 0x20000")
    return [i.text for i in S]


def setup3(T):
    S = Seg()
    t, l = S_TMP, V_L
    S(f"v_lshlrev_b32 v{T}, 4, v{l}")
    S(f"s_lshl_b32 s{t}, s{S_W}, 12")
    S(f"v_add_u32 v{V_DO}, s{t}, v{T}")
    S(f"v_add_u32 v{V_KA}, 0x8000, v{T}")
    S(f"v_add_u32 v{V_VA}, 0x18000, v{T}")
    S(f"s_add_u32 s{S_MK}, s{t}, 0x8000")
    S(f"s_add_u32 s{S_MV}, s{t}, 0x18000")
    S(f"v_mov_b32 v{V_CST}, v{T}")
    S(f"v_and_b32 v{T}, 15, v{l}")
    S(f"v_lshrrev_b32 v{T+2}, 4, v{l}")
    S(f"v_lshlrev_b32 v{T+2}, 2, v{T+2}")
    S(f"v_sub_u32 v{T}, v{T}, v{T+2}")
    S(f"s_lshl_b32 s{t+1}, s{S_W}, 4")
    S(f"v_add_u32 v{V_Q4[0]}, s{t+1}, v{T}")
    S(f"s_sub_u32 s{t+1}, 112, s{t+1}")
    S(f"v_add_u32 v{V_Q4[1]}, s{t+1}, v{T}")
    S(f"v_mov_b32 v{V_NINF}, 0xff800000")
    return [i.text for i in S]


def dma_x(n):
    out = []
    for half, so in ((0, S_XL), (1, S_XS)):
        for i in range(4):
            if i == 0:
                out.append(f"s_add_u32 s{S_XO}, s{so}, s{S_KX}")
                out.append(f"s_add_u32 m0, s{S_MX}, {X_SLOT[n % 3] + half*4096}")
            out.append(f"buffer_load_dwordx4 v{V_XD+i}, {sr(SRD_X,4)}, s{S_XO} offen offset:{1024*i} lds #x{n}")
    out += [f"s_add_u32 s{S_KX}, s{S_KX}, 128", f"s_and_b32 s{S_KX}, s{S_KX}, 2047"]
    return out


def dma_q(n):
    out = []
    for i in range(4):
        if i == 0:
            out.append(f"s_add_u32 m0, s{S_MWQ}, {LDS_WQ + (n % 3)*16384}")
        out.append(f"buffer_load_dwordx4 v{V_WD+i}, {sr(SRD_WQ,4)}, s{S_WQO} offen offset:{1024*i}{NT_Q} lds #q{n}")
    out += [f"s_add_u32 s{S_WQO}, s{S_WQO}, {64*8192}", f"s_and_b32 s{S_WQO}, s{S_WQO}, {8*MB - 1}"]
    return out


def kv_dma(which, tile, slot):
    base = slot * 16384 + (0x10000 if which == "V" else 0)
    so = (tile + (1 if which == "V" else 0)) * 16384
    srd_ = SRD_K if which == "K" else SRD_V
    out = [f"s_add_u32 m0, s{S_MWQ}, {base}", f"s_mov_b32 s{S_TMP}, {so}"]
    for i in range(4):
        out.append(f"buffer_load_dwordx4 v{V_DO}, {sr(srd_,4)}, s{S_TMP} offen offset:{1024*i} {COH} lds #{which}{tile}")
    return out


def rd_x(n, kk, rt):
    base = X_SLOT[n % 3]
    return f"ds_read_b128 {vr(V_XF + kk*16 + rt*4, 4)}, v{V_XA + kk + (2 if base == 65536 else 0)} offset:{base % 65536 + rt*2048}"


def rd_wq(n, kk, ct):
    return [f"ds_read_b64_tr_b16 {vr(V_WF + ct*4 + 2*a, 2)}, v{V_WA+ct} offset:{(n % 3)*16384 + (32*kk + 4*a)*256}"
            for a in range(2)]


def kstep2(n, kk, fill=None, after_bar=None, head=()):
    mf = []
    order = [(ct, rt) for ct in range(8) for rt in range(4)]
    if "2" in ORD:
        order = [(2 * p + e, rt if p % 2 == 0 else 3 - rt) for p in range(4) for rt in range(4) for e in range(2)]
    for ct, rt in order:
        if True:
            d = vr(acc2(ct, rt), 4)
            mf.append(mfma16(d, vr(V_WF + ct * 4, 4), vr(V_XF + kk * 16 + rt * 4, 4),
                             "0" if (n == 0 and kk == 0) else None))
    sc = Sched(mf, 2)
    last = (n == 15 and kk == 1)
    fg = 0
    if not last:
        nn, nkk = (n, 1) if kk == 0 else (n + 1, 0)
        if kk == 1:
            sc.pin(7, [f"@vmwait x{n+1} q{n+1} lgkm", "s_barrier"])
            if after_bar:
                sc.pin(8, after_bar)
            fg = 8
        m = n + 3 if kk == 1 else n + 2
        if m <= 15 and not (n == 0 and kk == 0):
            d = dma_q(m) + dma_x(m)
            if kk == 1:
                sc.stream(d[:10], 8, 31, prio=1)
            else:
                sc.stream(d[10:], 0, 31, prio=1)
        rw, at = [], []
        for ct in range(8):
            rw += rd_wq(nn, nkk, ct)
            at += [min(31, max(8 * (ct >> 1) + 6 + (ct & 1) if '2' in ORD else 4 * ct + 3, fg + 2 * ct))] * 2
        sc.stream(rw, at=at, prio=3)
        sc.stream([rd_x(nn, nkk, rt) for rt in range(4)], fg + 1, 24, prio=2)
    if fill:
        sc.stream(fill, 0, 30)
    return sc.build(list(head) + ["s_waitcnt lgkmcnt(4)"])


def p1_last_hook(sc):
    sc.pin(9, ["@vmwait x0 q0 lgkm", "s_barrier"])
    sc.stream([rd_x(0, 0, rt) for rt in range(4)] + [x for ct in range(8) for x in rd_wq(0, 0, ct)], 10, 50, prio=2)
    sc.stream(dma_q(2) + dma_x(2), 10, 62, prio=1)


TL, TS, TLS = [0, 1], [2, 3], [0, 1, 2, 3]
CAP = 2
EARLY_L0 = os.environ.get('EL0', '0') == '1'
LATE, RSP = int(os.environ.get('LATE', '1')), int(os.environ.get('RSP', '12'))
MSUM = os.environ.get('MSUM', '1') == '1'


def rd_k(f, imm):
    return f"ds_read_b128 {ar(A_K + 4*f, 4)}, v{V_KA} offset:{imm + 1024*f}"


def rd_v(f, imm):
    return f"ds_read_b128 {ar(A_V + 4*f, 4)}, v{V_VA} offset:{imm + 1024*f}"


def qk_mfmas(par, qts, pmajor=False):
    order = [(kt, p, qt) for kt in range(4) for p in range(4) for qt in qts]
    if pmajor:
        order = [(kt if (p + k // 2) % 2 == 0 else 3 - kt, p, qt)
                 for p in range(4) for k in range(0, len(qts), 2) for kt in range(4) for qt in qts[k:k + 2]]
    return [mfma16(vr(sreg(par, kt >> 1, qt) + 4 * (kt & 1), 4), ar(A_K + 4 * (4 * kt + p), 4), vr(qreg(qt, p), 4),
                   "0" if p == 0 else None) for kt, p, qt in order]


def sum_mfmas(par, u, qts):
    return [mfma16(vr(V_LM + 4 * qt, 4), vr(V_ONE, 4), vr(sreg(par, u, qt), 4)) for qt in qts]


def pv_mfmas(par, qts, msum=False):
    out = []
    for u in range(2):
        for k, grp in enumerate([qts[:2], qts[2:]] if "3" in ORD else [qts]):
            for dt in (range(8) if k == 0 else range(7, -1, -1)):
                out += [mfma16(ar(oreg(qt, dt), 4), ar(A_V + 4 * (8 * u + dt), 4), vr(sreg(par, u, qt), 4)) for qt in grp]
                if msum and dt == 3 and k == 0:
                    out += sum_mfmas(par, u, qts)
    return out


def exp_stream(par, pairs, adds=True):
    return [x for x in _exp_stream(par, pairs) if adds or not x.startswith("v_add")]


def _exp_stream(par, pairs):
    out = []
    prev = None

    def fin(p):
        u, qt, e = p
        b = sreg(par, u, qt)
        r = b + 2 * e
        return [f"v_add_f32 v{V_LS+qt}, v{V_LS+qt}, v{r}", f"v_cvt_pk_bf16_f32 v{b + e}, v{r}, v{r+1}",
                f"v_add_f32 v{V_LS+qt}, v{V_LS+qt}, v{r+1}"]
    for p in pairs:
        u, qt, e = p
        r = sreg(par, u, qt) + 2 * e
        f = fin(prev) if prev else []
        out.append(f"v_exp_f32 v{r}, v{r}")
        out += [f[0], f[2]] if f else []
        out.append(f"v_exp_f32 v{r+1}, v{r+1}")
        out += f[1:2]
        prev = p
    if prev:
        f = fin(prev)
        out += [f[0], f[2], f[1]]
    return out


def all_pairs(qts):
    return [(u, qt, e) for u in range(2) for qt in qts for e in range(4)]


NA = {4: int(os.environ.get("NA2", "16")), 2: int(os.environ.get("NA1", "8")), 3: 12, 1: 4}


assert NA[4] <= 16 and NA[2] <= 8


def mask_items(par, qts, u, off):
    out = []
    for j, (e, qt) in enumerate((e, qt) for e in range(2) for qt in qts):
        T = V_T + 6 + (j & 1)
        c = -16 * (2 * u + e)
        if isinstance(off, int):
            out.append(f"v_add_u32 v{T}, {c + off}, v{V_Q4[qt & 1]}")
        else:
            out += [f"v_add_u32 v{T}, {off}, v{V_Q4[qt & 1]}", f"v_add_u32 v{T}, {c}, v{T}"]
        m = S_MSK + 8 * (j & 1)
        out += [f"v_cmp_gt_i32_e64 {sr(m + 2*r, 2)}, {r}, v{T}" for r in range(4)]
        for r in range(4):
            x = sreg(par, u, qt) + 4 * e + r
            out.append(f"v_cndmask_b32_e64 v{x}, v{x}, v{V_NINF}, {sr(m + 2*r, 2)}")
    return out


def group_reduce(op, r, T):
    return [f"v_mov_b32 v{T}, v{r}", f"v_permlane32_swap_b32 v{r}, v{T}", f"{op} v{r}, v{r}, v{T}",
            f"v_mov_b32 v{T}, v{r}", f"v_permlane16_swap_b32 v{r}, v{T}", f"{op} v{r}, v{r}, v{T}"]


def sum_check(qts, first, msum):
    T = V_T
    out = [x for p in zip(*[group_reduce("v_add_f32", V_LS + qt, T + k) for k, qt in enumerate(qts)]) for x in p]
    for qt in qts:
        if msum:
            out.append(f"v_add_f32 v{V_LS+qt}, v{V_LS+qt}, v{V_LM+4*qt}")
        out += [f"v_cmp_nle_f32 vcc, 0x30800000, v{V_LS+qt}", "s_nop 0",
                f"s_mov_b64 {sr(S_BAD,2)}, vcc" if first else f"s_or_b64 {sr(S_BAD,2)}, {sr(S_BAD,2)}, vcc",
                f"v_cmp_nge_f32 vcc, 0x4e800000, v{V_LS+qt}", "s_nop 0", f"s_or_b64 {sr(S_BAD,2)}, {sr(S_BAD,2)}, vcc"]
        first = False
    return out


class Body:
    def __init__(self, par, qk, pv, mask=None, tail=(), xdma=(), xfill=(), end=0, st=None):
        a, b = par, par ^ 1
        valu1 = exp_stream(a, all_pairs(pv)[NA[len(pv)]:], len(pv) > 2 or not MSUM)
        vrd = [rd_v(f, 16384 if par == 0 else 0) for f in range(16)]
        head = ["s_waitcnt lgkmcnt(0)"] + ([f"v_xor_b32 v{V_VA}, 0x8000, v{V_VA}"] if par == 1 else [])
        S = Seg()
        self.segs = [S]
        if not qk:
            T = V_T
            S.add(head + vrd + valu1 + (sum_mfmas(a, 0, pv) + sum_mfmas(a, 1, pv) if MSUM else []))
            if EARLY_L0:
                S.add(sum_check([0], False, MSUM))
                epilogue(S, [0], S_CL, tag="#ctx0")
                S.add(sum_check([1], False, MSUM))
            else:
                S.add(sum_check(TL, False, MSUM))
            S(f"s_cmp_lg_u64 {sr(S_BAD,2)}, 0\ns_cselect_b32 s{S_TMP}, 1, 0\nv_mov_b32 v{T}, s{S_TMP}")
            S(f"s_lshl_b32 s{S_TMP}, s{S_W}, 2\ns_add_u32 s{S_TMP}, s{S_TMP}, {VOTE_LDS}\nv_mov_b32 v{T+1}, s{S_TMP}")
            S(f"ds_write_b32 v{T+1}, v{T}\nv_mov_b32 v{T+1}, {VOTE_LDS}")
            if st:
                st(S)
            S("@vmwait ur lgkm")
            if st:
                st(S)
            S(f"s_barrier\nds_read_b128 {vr(T+4,4)}, v{T+1}")
            S.add(list(xdma))
            mf = pv_mfmas(a, pv)
            S.add(mf[:6])
            S(f"v_or3_b32 v{T}, v{T+4}, v{T+5}, v{T+6}\nv_or_b32 v{T}, v{T}, v{T+7}")
            S.add(mf[6:7])
            S(f"v_cmp_ne_u32 vcc, 0, v{T}")
            S.add(mf[7:9])
            S("s_cbranch_vccnz L_fallback")
            S2 = Seg()
            sc = Sched(mf[9:], CAP)
            sc.stream(list(xfill), 0, len(mf) - 10)
            S2.add(sc.build())
            self.segs.append(S2)
            return
        mf = qk_mfmas(b, qk, '3' in ORD and not mask)
        n1 = len(mf)
        sc = Sched(mf, CAP)
        sc.pack, sc.late = True, LATE
        sc.stream(vrd, 0, (n1 * RSP) // 16, prio=2)
        dv = [f"buffer_load_dwordx4 v{V_DO}, {sr(SRD_V,4)}, s{S_KVO} offen offset:{1024*i} {COH} lds" for i in range(4)]
        dv += [f"s_add_u32 s{S_KVO}, s{S_KVO}, 16384"] + ([f"s_xor_b32 s{S_MV}, s{S_MV}, 0x8000"] if par == 1 else [])
        if not end:
            sc.pin(0, [f"s_add_u32 m0, s{S_MV}, {0 if par == 0 else 16384}"])
            sc.stream(dv, 1, n1, prio=1)
        sc.stream(valu1, 0, n1)
        if mask:
            sc.stream(mask_items(b, mask[:1], 0, -64 * mask[1]), min(n1 - 1, n1 // 2 + 6), n1)
        S.add(sc.build(head))
        mf = pv_mfmas(a, pv, MSUM and len(pv) <= 2)
        n2 = len(mf)
        sc = Sched(mf, CAP)
        sc.pack, sc.late = True, LATE
        sc.pin(0, ["s_barrier"] + ([f"v_xor_b32 v{V_KA}, 0x8000, v{V_KA}"] if par == 1 else []))
        if not end:
            sc.pin(1, [f"s_add_u32 m0, s{S_MK}, {0 if par == 0 else 16384}"])
        if end < 2:
            sc.stream([rd_k(f, 16384 if par == 0 else 0) for f in range(16)], 1, (n2 * RSP) // 16, prio=2)
        dk = [f"buffer_load_dwordx4 v{V_DO}, {sr(SRD_K,4)}, s{S_KVO} offen offset:{1024*i} {COH} lds" for i in range(4)]
        dk += [f"s_xor_b32 s{S_MK}, s{S_MK}, 0x8000"] if par == 1 else []
        sc.stream((dk if not end else []) + list(xdma) + list(tail[:-1]), 2, n2, prio=1)
        sc.stream(exp_stream(b, all_pairs(qk)[:NA[len(qk)]], len(qk) > 2 or not MSUM), 2, n2)
        if mask:
            sc.stream(mask_items(b, mask[:1], 1, -64 * mask[1]), 6, n2)
        sc.stream(list(xfill), 2, n2)
        S.add(sc.build([f"s_waitcnt vmcnt({(16, 12, 4)[end]}) lgkmcnt(0)"]))
        S.add(list(tail[-1:]))


def epilogue(S, qts, so, ob=None, tag=""):
    T = V_T
    for qt in qts:
        S(f"v_rcp_f32 v{V_LS+qt}, v{V_LS+qt}")
    S(f"s_add_u32 s{S_TMP}, s{so}, s{S_C7}\ns_nop 4")
    k = 0
    for qt in qts:
        qh = qt & 1
        for p in range(4):
            D = T + 8 + 4 * (k & 1)
            k += 1
            for j in range(8):
                S(f"v_accvgpr_read_b32 v{T+j}, a{oreg(qt, 2*p) + j}")
            for j in range(0, 8, 2):
                S(f"v_pk_mul_f32 {vr(T+j,2)}, {vr(T+j,2)}, {vr(V_LS + (qt & 2), 2)} op_sel:[0,{qt & 1}] op_sel_hi:[1,{qt & 1}]")
            for u in range(4):
                S(f"v_cvt_pk_bf16_f32 v{D+u}, v{T+2*u}, v{T+2*u+1}")
            S(f"buffer_store_dwordx4 {vr(D,4)}, v{V_CST}, {sr(SRD_CTX,4)}, s{S_TMP if qh else so} offen offset:{p*1024} sc1 {tag}")


def p3_prologue(nm, extra):
    A = Seg()
    A("s_waitcnt lgkmcnt(0)\ns_barrier")
    q = [f"s_mov_b32 s{S_TMP+2}, {SCALE_K:#x}", f"s_mov_b32 s{S_TMP+3}, {SCALE_K:#x}"]
    for p in range(4):
        for r in range(acc2(2 * p, 0), acc2(2 * p, 0) + 32, 2):
            q.append(f"v_pk_mul_f32 {vr(r,2)}, {vr(r,2)}, {sr(S_TMP+2,2)}")
        for qt in range(4):
            for u in range(4):
                a = acc2(2 * p + (u >> 1), qt) + 2 * (u & 1)
                q.append(f"v_cvt_pk_bf16_f32 v{qreg(qt, p) + u}, v{a}, v{a+1}")
    q += [f"v_mov_b32 v{V_LS+qt}, 0" for qt in range(4)] + [f"v_accvgpr_write_b32 a{A_O+r}, 0" for r in range(128)]
    q.append(f"v_xor_b32 v{V_T+4}, 0x8000, v{V_KA}")
    d = kv_dma("V", 0, 3) + kv_dma("K", 2, 3) + kv_dma("V", 1, 0)
    for k, x in enumerate(d):
        A.add(q[k * len(q) // len(d):(k + 1) * len(q) // len(d)] + [x])
    A("@vmwait K0\ns_barrier")
    for f in range(16):
        A(f"ds_read_b128 {ar(A_K + 4*f, 4)}, v{V_T+4} offset:{16384 + 1024*f}")
    sc = Sched(qk_mfmas(0, TLS), CAP)
    sc.pin(24, ["@vmwait K1 V0 lgkm", "s_barrier"])
    sc.stream([rd_k(f, 0) for f in range(16)], at=[max(25 + f, 4 * f + 3) for f in range(16)], prio=2)
    sc.stream(kv_dma("K", 3, 0) + kv_dma("V", 2, 1), 0, 22, prio=1)
    sc.stream(kv_dma("K", 4, 1) + [f"s_mov_b32 s{S_KVO}, {4*16384}"] + list(extra), 25, 63, prio=1)
    A.add(sc.build())
    A(f"s_cmp_eq_u32 s{S_I}, 0\ns_cbranch_scc1 L_{nm}_pmask")
    M = Seg()
    M(f"L_{nm}_pmask:\ns_nop 7")
    M.add(mask_items(0, [2], 0, 0) + mask_items(0, [2], 1, 0))
    M(f"s_branch L_{nm}_pmask_ret")
    B = Seg()
    B(f"L_{nm}_pmask_ret:")
    B.add(exp_stream(0, all_pairs(TLS)[:NA[4]]))
    return A, B, M


def fallback(prep, reload, back):
    F = Seg()
    T, M, FA = V_T, 96, 98
    n, so, off, ctx, ps = S_CNT, S_KVO, S_MK, S_MV, S_TMP + 1
    F(f"L_fallback:\ns_mov_b32 s{ps}, 0\ns_mov_b32 s{n}, s{S_NT}\ns_mov_b32 s{ctx}, s{S_CL}")
    F(f"s_sub_u32 s{off}, 15, s{S_I}\nv_mov_b32 v{V_KA}, v{V_CST}\nv_add_u32 v{V_VA}, 16384, v{V_CST}\ns_nop 15")
    F(f"L_fb_set:\ns_lshl_b32 s{off}, s{off}, 7\ns_mov_b32 s{so}, 0")
    for r in range(64):
        F(f"v_accvgpr_write_b32 a{A_O+r}, 0")
    for qt in TL:
        F(f"v_mov_b32 v{V_LS+qt}, 0\nv_mov_b32 v{M+qt}, v{V_NINF}")
    F(f"L_fb_tile:\ns_waitcnt vmcnt(0) lgkmcnt(0)\ns_barrier\ns_mov_b32 m0, s{S_MWQ}\ns_add_u32 s{S_TMP}, s{so}, 16384")
    for i in range(4):
        F(f"buffer_load_dwordx4 v{V_DO}, {sr(SRD_K,4)}, s{so} offen offset:{1024*i} {COH} lds")
    F(f"s_add_u32 m0, s{S_MWQ}, 16384\ns_nop 0")
    for i in range(4):
        F(f"buffer_load_dwordx4 v{V_DO}, {sr(SRD_V,4)}, s{S_TMP} offen offset:{1024*i} {COH} lds")
    F("s_waitcnt vmcnt(0)\ns_barrier")
    F.add([rd_k(f, 0) for f in range(16)] + ["s_waitcnt lgkmcnt(0)"] + [rd_v(f, 0) for f in range(16)])
    F.add(qk_mfmas(0, TL) + mask_items(0, TL, 0, f"s{off}") + mask_items(0, TL, 1, f"s{off}"))
    for qt in TL:
        regs = [sreg(0, u, qt) + r for u in range(2) for r in range(8)]
        F(f"v_mov_b32 v{T+2}, v{M+qt}")
        for k in range(0, 16, 2):
            F(f"v_max3_f32 v{T+2}, v{T+2}, v{regs[k]}, v{regs[k+1]}")
        F.add(group_reduce("v_max_f32", T + 2, T + 3))
        F(f"v_sub_f32 v{FA+qt}, v{M+qt}, v{T+2}\nv_exp_f32 v{FA+qt}, v{FA+qt}\nv_mov_b32 v{M+qt}, v{T+2}")
        for r in regs:
            F(f"v_sub_f32 v{r}, v{r}, v{T+2}")
        F(f"v_mul_f32 v{V_LS+qt}, v{V_LS+qt}, v{FA+qt}")
        for r in range(32):
            F(f"v_accvgpr_read_b32 v{T+3}, a{oreg(qt, 0) + r}\nv_mul_f32 v{T+3}, v{T+3}, v{FA+qt}")
            F(f"v_accvgpr_write_b32 a{oreg(qt, 0) + r}, v{T+3}")
    F.add(exp_stream(0, all_pairs(TL)) + pv_mfmas(0, TL))
    F(f"s_add_u32 s{so}, s{so}, 16384\ns_sub_u32 s{off}, s{off}, 64\ns_sub_u32 s{n}, s{n}, 1")
    F(f"s_nop 15\ns_cmp_lg_u32 s{n}, 0\ns_cbranch_scc1 L_fb_tile")
    for qt in TL:
        F.add(group_reduce("v_add_f32", V_LS + qt, T))
    epilogue(F, TL, ctx)
    F(f"s_cmp_lg_u32 s{ps}, 0\ns_cbranch_scc1 L_fb_done")
    F(f"s_mov_b32 s{ps}, 1\ns_sub_u32 s{n}, 34, s{S_NT}\ns_mov_b32 s{ctx}, s{S_CS}\ns_mov_b32 s{off}, s{S_I}")
    for r in range(32):
        F(f"v_mov_b32 v{V_Q+r}, v{V_Q+32+r}")
    F("s_branch L_fb_set\nL_fb_done:\ns_waitcnt vmcnt(0) lgkmcnt(0)\ns_barrier")
    F.add(list(reload) + flat(prep) + ["s_waitcnt lgkmcnt(0)"])
    F(f"s_branch {back}")
    return F


def p3(nm, st, pro_extra, after_s, late_dma, before_last, sig_pack, mx_fill, la_fill, d1_dma, before_epl):
    PA, PB, PM = p3_prologue(nm, pro_extra)
    st(PB)
    PB(f"s_sub_u32 s{S_CNT}, s{S_I}, 1\ns_cbranch_scc1 L_{nm}_d0m_top")
    dec = f"s_sub_u32 s{S_CNT}, s{S_CNT}, 1"
    D0 = Body(0, TLS, TLS, tail=[dec, f"s_cbranch_scc1 L_{nm}_d1m_top"])
    D1 = Body(1, TLS, TLS, tail=[f"s_branch L_{nm}_d0_top"], xdma=d1_dma)
    D1m = Body(1, TLS, TLS, mask=(2, 0))
    D0m = Body(0, [0, 1, 3], TLS, mask=(3, 1), tail=[f"s_cmp_eq_u32 s{S_I}, 7", f"s_cbranch_scc1 L_{nm}_mxm_top"])
    MX = Body(1, TL, [0, 1, 3], xfill=mx_fill)
    MXm = Body(1, TL, [0, 1, 3], mask=(0, 0), tail=[f"s_branch L_{nm}_eps"], xfill=mx_fill)
    S0 = Body(0, TL, TL, tail=[dec, f"s_cbranch_scc1 L_{nm}_s1m_top"])
    S1 = Body(1, TL, TL, tail=[f"s_branch L_{nm}_s0_top"], xdma=sig_pack[0] + sig_pack[1])
    S1m = Body(1, TL, TL, mask=(0, 0), end=1)
    S0m = Body(0, [1], TL, mask=(1, 1), xdma=late_dma, end=2)
    LA = Body(1, [], [1], xdma=sig_pack[0], xfill=la_fill, st=st if os.environ.get('DIAG') == '4' else None)
    lab = lambda x, al=False: Seg()((".p2align 5\n" if al else "") + f"L_{nm}_{x}_top:")
    EP_S = Seg()
    EP_S(f"L_{nm}_eps:")
    st(EP_S)
    EP_S.add(sum_check(TS, True, False))
    epilogue(EP_S, TS, S_CS, tag="#ctx1")
    if MSUM:
        EP_S.add([f"v_mov_b32 v{V_ONE+k}, 0x3f803f80" for k in range(4)] + [f"v_mov_b32 v{V_LM+k}, 0" for k in range(8)])
    EP_S.add(after_s)
    st(EP_S)
    EP_S(f"s_lshl_b32 s{S_CNT}, s{S_I}, 1\ns_sub_u32 s{S_CNT}, 13, s{S_CNT}\ns_cbranch_scc1 L_{nm}_s0m_top")
    hL = Seg()
    if os.environ.get('DIAG') == '4':
        st(hL)
    hL.add(before_last)
    EP_L = Seg()
    st(EP_L)
    EP_L.add(before_epl)
    epilogue(EP_L, [1] if EARLY_L0 else TL, S_CL, tag="#ctx0")
    st(EP_L)
    END = Seg()
    END(f"L_{nm}_done:")
    FB = fallback(list(la_fill) + list(before_epl), before_last, f"L_{nm}_done")
    lin = [PA, PB, lab("d0", True)] + D0.segs + D1.segs + [lab("d1m")] + D1m.segs + [lab("d0m")] + D0m.segs + \
        MX.segs + [EP_S, lab("s0", True)] + S0.segs + S1.segs + [lab("s1m")] + S1m.segs + [lab("s0m")] + S0m.segs + \
        [hL] + LA.segs + [EP_L, END]
    ool = [PM, lab("mxm")] + MXm.segs + [FB]
    traces = []
    for nd_, ns_ in ((-1, 2), (0, 1), (1, 0), (2, -1)):
        t = [PA] + ([PM] if nd_ < 0 else []) + [PB]
        if nd_ >= 0:
            t += (D0.segs + D1.segs) * nd_ + D0.segs + D1m.segs
        t += D0m.segs + (MX if ns_ >= 0 else MXm).segs + [EP_S]
        if ns_ >= 0:
            t += (S0.segs + S1.segs) * ns_ + S0.segs + S1m.segs
        t += S0m.segs + [hL]
        traces.append(t + LA.segs + [EP_L])
        if nd_ == 0:
            traces.append(t + LA.segs + [EP_L] + LA.segs[:1] + [FB])
    global BODIES
    BODIES = dict(D0=D0, D1=D1, D1m=D1m, D0m=D0m, MX=MX, MXm=MXm, S0=S0, S1=S1, S1m=S1m, S0m=S0m)
    return lin, ool, traces
```

```python
from common import *

S_W = 3
V_L = 1

SRD_H, SRD_UR, SRD_YO, SRD_D = 16, 20, 24, 28
S_T4 = 36
S_DO = 42
S_UB = 43
V_AA, V_BA = 40, 5
V_HW = 10
V_YW, V_YR, V_YS = 11, 12, 13
V_T4 = 16
V_O = 24
V_DA = 44
V_H = 208
V_HO = 232
V_D = 234
V_ACC4 = 76
A_FR = 128
V_YT = 108
H_STRIDE = 4160
H_WAVE = 2 * H_STRIDE
U_LDS, U_WAVE = 132096, 4608
Y_LDS = 49152
WO_LDS = 66560


def p4_ptr_loads():
    return [f"s_load_dwordx4 s[32:35], s[0:1], {KA_SSMK}"]


def p4_srds():
    S = Seg()
    t = S_T4
    S(f"s_lshl_b32 s{t}, s2, 2")
    S(f"s_add_u32 s{t}, s{t}, s{S_W}")
    S(f"s_lshl_b32 s{S_DO}, s{t}, 1")
    S(f"s_lshl_b32 s{t+1}, s{t}, 12")
    srd(S, SRD_H, 32, 4096, off=f"s{t+1}")
    S(f"s_add_u32 s{t+1}, s{t+1}, {WS_UR}")
    srd(S, SRD_UR, 40, 4096, off=f"s{t+1}")
    S(f"s_lshl_b32 s{t+1}, s2, 14")
    S(f"s_add_u32 s{t+1}, s{t+1}, {WS_Y4}")
    srd(S, SRD_YO, 40, 16384, off=f"s{t+1}")
    srd(S, SRD_D, 34, 2048)
    S(f"s_mul_i32 s{S_UB}, s{S_W}, {U_WAVE}")
    S(f"s_add_u32 s{S_UB}, s{S_UB}, {U_LDS}")
    return groupify([i.text for i in S])


def p4_ur_dma(tmp):
    out = [f"v_lshlrev_b32 v{tmp}, 4, v{V_L}", f"s_mov_b32 m0, s{S_UB}", "s_nop 0"]
    for i in range(4):
        out.append(f"buffer_load_dwordx4 v{tmp}, {sr(SRD_UR,4)}, 0 offen offset:{1024*i} sc1 lds #ur")
    return out


def p4_h_loads():
    out = [f"v_lshlrev_b32 v{V_HO}, 4, v{V_L}", f"v_mov_b32 v{V_D+1}, 0",
           f"buffer_load_ushort v{V_D}, v{V_D+1}, {sr(SRD_D,4)}, s{S_DO} offen"]
    for i in range(4):
        out.append(f"buffer_load_dwordx4 {vr(V_H+6*i+2,4)}, v{V_HO}, {sr(SRD_H,4)}, 0 offen offset:{1024*i}{NT_K}")
    return out


def p4_setup(S):
    T, t, l = V_T4, S_T4, V_L
    S(f"s_mul_i32 s{t}, s{S_W}, {H_WAVE}")
    S(f"v_and_b32 v{T}, 15, v{l}")
    S(f"v_lshrrev_b32 v{T+1}, 4, v{l}")
    S(f"v_add_u32 v{T+2}, 1, v{T}")
    S(f"v_and_b32 v{T+3}, 1, v{T+2}")
    S(f"v_mul_u32_u24 v{T+3}, {H_STRIDE}, v{T+3}")
    S(f"v_add_u32 v{T+2}, 2, v{T}")
    S(f"v_lshrrev_b32 v{T+2}, 1, v{T+2}")
    S(f"v_lshl_add_u32 v{T+3}, v{T+2}, 2, v{T+3}")
    S(f"v_lshl_add_u32 v{T+3}, v{T+1}, 4, v{T+3}")
    S(f"v_add_u32 v{V_AA}, s{t}, v{T+3}")
    for k in range(1, 4):
        S(f"v_add_u32 v{V_AA+k}, {1024*k}, v{V_AA}")
    S(f"v_add_u32 v{V_HW}, s{t}, v{V_HO}")
    S(f"v_lshlrev_b32 v{T+2}, 5, v{T}")
    S(f"v_lshlrev_b32 v{T+3}, 4, v{T+1}")
    S(f"v_sub_u32 v{T+3}, v{T+3}, v{T+2}")
    S(f"s_add_u32 s{t+1}, s{S_UB}, 480")
    S(f"v_add_u32 v{V_BA}, s{t+1}, v{T+3}")


def p4_prep(S):
    T, l = V_T4, V_L
    Z = T + 4
    for k in range(4):
        S(f"v_mov_b32 v{Z+k}, 0")
    S(f"v_and_b32 v{T}, 1, v{l}")
    S(f"v_mul_u32_u24 v{T}, {H_STRIDE}, v{T}")
    S(f"v_and_b32 v{T+1}, 2, v{l}")
    S(f"v_lshl_add_u32 v{T}, v{T+1}, 3, v{T}")
    S(f"v_add_u32 v{T}, s{S_T4}, v{T}")
    S(f"ds_write_b128 v{T}, {vr(Z,4)}")
    S(f"v_and_b32 v{T+1}, 31, v{l}")
    S(f"v_lshlrev_b32 v{T+1}, 4, v{T+1}")
    S(f"v_add_u32 v{T+1}, s{S_UB}, v{T+1}")
    S(f"ds_write_b128 v{T+1}, {vr(Z,4)} offset:4096")
    for i in range(4):
        D = V_H + 6 * i + 2
        O = V_O + 4 * (i & 1)
        S(f"v_mov_b32 v{D-1}, 0" if i == 0 else f"v_mov_b32_dpp v{D-1}, v{D-3} wave_ror:1 row_mask:0xf bank_mask:0xf")
        S(f"ds_write_b128 v{V_HW}, {vr(D,4)} offset:{32 + 1024*i}")
        S(f"v_mov_b32_dpp v{D-1}, v{D+3} wave_shr:1 row_mask:0xf bank_mask:0xf")
        for k in range(4):
            S(f"v_alignbit_b32 v{O+k}, v{D+k}, v{D+k-1}, 16")
        S(f"ds_write_b128 v{V_HW}, {vr(O,4)} offset:{32 + 1024*i + H_STRIDE}")


def p4_late_setup():
    T, t, l = V_T4, S_T4, V_L
    out = [f"v_and_b32 v{T}, 15, v{l}", f"v_lshrrev_b32 v{T+1}, 4, v{l}", f"v_lshl_add_u32 v{T+2}, v{T+1}, 3, v{T}",
           f"v_sub_u32 v{V_D+1}, 15, v{T+2}", f"v_lshlrev_b32 v{T+2}, 16, v{V_D}"]
    for i in range(4):
        out += [[f"v_cmp_eq_u32 vcc, {2*i}, v{V_D+1}", f"v_cmp_eq_u32_e64 s[38:39], {2*i+1}, v{V_D+1}"],
                ["s_nop 0", f"v_cndmask_b32 v{V_DA+i}, 0, v{V_D}, vcc"],
                f"v_cndmask_b32_e64 v{V_DA+i}, v{V_DA+i}, v{T+2}, s[38:39]"]
    S = Seg()
    S(f"v_mul_u32_u24 v{T+2}, 136, v{T}")
    S(f"v_lshl_add_u32 v{T+2}, v{T+1}, 5, v{T+2}")
    S(f"s_lshl_b32 s{t+1}, s{S_W}, 1")
    S(f"s_add_u32 s{t+1}, s{t+1}, {Y_LDS}")
    S(f"v_add_u32 v{V_YW}, s{t+1}, v{T+2}")
    S(f"v_lshrrev_b32 v{T+2}, 3, v{l}")
    S(f"v_mul_u32_u24 v{T+2}, 136, v{T+2}")
    S(f"v_and_b32 v{T+3}, 7, v{l}")
    S(f"v_lshl_add_u32 v{T+2}, v{T+3}, 4, v{T+2}")
    S(f"s_mul_i32 s{t+1}, s{S_W}, {4*1088}")
    S(f"s_add_u32 s{t+1}, s{t+1}, {Y_LDS}")
    S(f"v_add_u32 v{V_YR}, s{t+1}, v{T+2}")
    S(f"s_lshl_b32 s{t+1}, s{S_W}, 12")
    S(f"v_add_u32 v{V_YS}, s{t+1}, v{V_HO}")
    return out, [i.text for i in S]


def p4_prep_items():
    S = Seg()
    p4_setup(S)
    p4_prep(S)
    out = []
    for x in [i.text for i in S]:
        if x.startswith("v_cndmask") and out[-1].startswith("v_cmp"):
            out[-1] = [out[-1], "s_nop 1", x]
        else:
            out.append(x)
    return out


def afr(rho, q):
    return A_FR + (rho & 1) * 64 + q * 4


def bfr(rho, p):
    return A_FR + (rho & 1) * 64 + 32 + p * 4


def p4_reads(rho):
    out = []
    for k in range(8):
        out.append(f"ds_read_b128 {ar(bfr(rho, k),4)}, v{V_BA} offset:{512*(7-k) + 64*rho}")
        for a in range(2):
            o = 128 * (k & 1) + 16 * rho + 2 * a
            out.append(f"ds_read2_b32 {ar(afr(rho, k) + 2*a, 2)}, v{V_AA + (k >> 1)} offset0:{o} offset1:{o+1}")
    return out


def p4_mfmas(rho):
    mf = []
    if "4" in ORD and rho > 0:
        order = [(q + e, p) for q in range(0, 8, 2) for p in range(8 - q) for e in range(2) if p + q + e < 8]
        return [mfma16(vr(V_ACC4 + 4 * (p + q), 4), ar(afr(rho, q), 4), ar(bfr(rho, p), 4)) for q, p in order]
    for q in range(8):
        for p in range(8 - q):
            d = vr(V_ACC4 + 4 * (p + q), 4)
            mf.append(mfma16(d, ar(afr(rho, q), 4), ar(bfr(rho, p), 4), "0" if (rho == 0 and q == 0) else None))
        if rho == 0 and q == 7:
            for p in range(8):
                mf.append(mfma16(vr(V_ACC4 + 4 * p, 4), vr(V_DA, 4), ar(bfr(0, p), 4)))
    return mf


def p4_rho(rho, head=(), vm=(), fill=(), first=()):
    mf = p4_mfmas(rho)
    sc = Sched(mf, 2)
    if rho < 7:
        sc.stream(p4_reads(rho + 1), 0, 30, prio=2)
    sc.stream(list(vm), 0, len(mf) - 1, prio=1)
    sc.stream(list(first), 0, 24, prio=3)
    sc.stream(list(fill), 0, len(mf) - 1)
    return sc.build(head)


def p4_y_write():
    out = []
    T = V_T4
    for tt in range(8):
        a = V_ACC4 + 4 * tt
        r = T + 2 * (tt & 1)
        out += [f"v_cvt_pk_bf16_f32 v{r}, v{a}, v{a+1}", f"v_cvt_pk_bf16_f32 v{r+1}, v{a+2}, v{a+3}"]
        for k in range(2):
            out += [f"ds_write_b16 v{V_YW}, v{r+k} offset:{2176*tt + 16*k}",
                    f"ds_write_b16_d16_hi v{V_YW}, v{r+k} offset:{2176*tt + 16*k + 8}"]
    return out


def p4_y_read():
    return [f"ds_read_b64 {vr(V_YT + 4*i + 2*a, 2)}, v{V_YR} offset:{1088*i + 8*a}" for i in range(4) for a in range(2)]


def p4_y_store(flavor="sc1"):
    return [f"buffer_store_dwordx4 {vr(V_YT + 4*i, 4)}, v{V_YS}, {sr(SRD_YO,4)}, 0 offen offset:{1024*i} {flavor} #yst"
            for i in range(4)]


SRD_CX, SRD_WO, SRD_XB, SRD_Y, SRD_OUT = 44, 48, 52, 56, 60
S_CO = 68
S_WO = 69
S_MW = 70
S_CNT = 71
S_T = 72
S_XO, S_YO, S_KH, S_RB, S_CB = 78, 79, 80, 81, 82
P_X, P_WO, P_OUT = 84, 86, 88

V_CD = 236
V_WD = 238
V_WA = 242
V_XV, V_YV, V_GV = 250, 251, 252
V_PL = 253
V_ACC = 124
A_WF = 64
V_RX = 76
V_X = 192
V_Y = 208
V_G = 6
V_A = 36
V_T = 48
V_TE = 228
A_C = 0
RING = 4

NS = 32


def acc5(ct, rt):
    return V_ACC + (ct * 2 + rt) * 4


def p5_ptr_loads():
    return [f"s_load_dwordx2 {sr(P_OUT,2)}, s[0:1], {KA_OUT}"]


def rb_cb(S, rb, cb, t):
    S(f"s_and_b32 s{rb}, s2, 3")
    S(f"s_lshl_b32 s{rb}, s{rb}, 1")
    S(f"s_sub_u32 s{t}, 14, s{rb}")
    S(f"s_bitcmp1_b32 s2, 4")
    S(f"s_cselect_b32 s{rb}, s{t}, s{rb}")
    S(f"s_bfe_u32 s{t}, s2, 0x10003")
    S(f"s_add_u32 s{rb}, s{rb}, s{t}")
    S(f"s_bfe_u32 s{cb}, s2, 0x10002")
    S(f"s_lshr_b32 s{t}, s2, 5")
    S(f"s_lshl_b32 s{t}, s{t}, 1")
    S(f"s_add_u32 s{cb}, s{cb}, s{t}")


def p5_setup():
    S = Seg()
    T, t, l = V_T, S_T, V_L
    rb_cb(S, S_RB, S_CB, t + 2)
    S(f"s_mov_b32 s{t}, s{S_RB}\ns_mov_b32 s{t+1}, s{S_CB}")
    S(f"s_lshl_b32 s{t+2}, s{t}, 2")
    S(f"s_add_u32 s{t+2}, s{t+2}, s{S_W}")
    S(f"s_lshl_b32 s{S_CO}, s{t+2}, 18")
    S(f"s_and_b32 s{S_KH}, s{t+1}, 1")
    S(f"s_lshl_b32 s{t+3}, s{S_KH}, 16")
    S(f"s_add_u32 s{S_CO}, s{S_CO}, s{t+3}")
    S(f"s_lshl_b32 s{S_WO}, s{t+1}, 19")
    S(f"s_lshl_b32 s{t+3}, s{t+1}, 7")
    S(f"s_lshl_b32 s{S_MW}, s{S_W}, 12")
    S(f"s_lshl_b32 s{S_XO}, s{t+2}, 16")
    S(f"s_add_u32 s{S_XO}, s{S_XO}, s{t+3}")
    S(f"s_lshl_b32 s{S_YO}, s{t+1}, 18")
    S(f"s_lshl_b32 s{t+3}, s{t+2}, 8")
    S(f"s_add_u32 s{S_YO}, s{S_YO}, s{t+3}")
    S(f"v_lshlrev_b32 v{V_CD}, 4, v{l}")
    S(f"v_add_u32 v{V_CD+1}, 0x20000, v{V_CD}")
    S(f"v_add_u32 v{V_WD}, s{S_MW}, v{V_CD}")
    S(f"s_lshl_b32 s{t+3}, s{S_KH}, 12")
    S(f"v_add_u32 v{V_WA+2}, s{t+3}, v{V_CD}")
    S(f"v_xor_b32 v{V_WA+3}, 0x1000, v{V_WA+2}")
    S(f"v_add_u32 v{V_WA}, {WO_LDS}, v{V_WA+2}")
    S(f"v_add_u32 v{V_WA+1}, {WO_LDS}, v{V_WA+3}")
    S(f"v_bfe_u32 v{T+2}, v{l}, 4, 1")
    S(f"v_lshrrev_b32 v{T+4}, 5, v{l}")
    S(f"v_and_b32 v{T}, 15, v{l}")
    S(f"v_lshlrev_b32 v{T+5}, 5, v{T+2}")
    S(f"v_lshl_add_u32 v{T+5}, v{T+4}, 4, v{T+5}")
    S(f"v_lshl_add_u32 v{V_XV}, v{T}, 11, v{T+5}")
    S(f"v_lshlrev_b32 v{T+5}, 11, v{T+5}")
    S(f"v_lshl_add_u32 v{V_YV}, v{T}, 3, v{T+5}")
    srd(S, SRD_CX, 40, 16 * MB, off=WS_CTX)
    srd(S, SRD_WO, 40, 8 * MB, off=WS_WP)
    srd(S, SRD_XB, 40, 4 * MB, off=WS_XB)
    srd(S, SRD_Y, 40, 4 * MB, off=WS_Y4)
    srd(S, SRD_OUT, P_OUT, 2048 * 1024 * 2)
    return groupify([i.text for i in S])


def ld_ctx(n, kq, rt):
    return f"buffer_load_dwordx4 {ar(A_C + (n % RING)*16 + (kq*2 + rt)*4, 4)}, v{V_CD+rt}, {sr(SRD_CX,4)}, s{S_CO} offen offset:{1024*kq} sc1"


ADV_C = f"s_add_u32 s{S_CO}, s{S_CO}, 2048"
ADV_W = f"s_add_u32 s{S_WO}, s{S_WO}, 16384"


def wo_slot(n):
    k = n % RING
    return (WO_LDS + k * 16384, 0, k * 16384) if k < 4 else ((k - 4) * 16384, 2, (k - 4) * 16384)


def wo_stage(n):
    return [f"s_add_u32 m0, s{S_MW}, {wo_slot(n)[0]}"] + \
        [f"buffer_load_dwordx4 v{V_WD}, {sr(SRD_WO,4)}, s{S_WO} offen offset:{1024*i} sc1 lds #o{n & 3}" for i in range(4)] + [ADV_W]


def ctx_stage(n):
    return [ld_ctx(n, kq, rt) for kq in range(2) for rt in range(2)] + [ADV_C]


def rd_wo(n, kq, ct):
    _, reg, off = wo_slot(n)
    return f"ds_read_b128 {ar(A_WF + kq*32 + ct*4, 4)}, v{V_WA + reg + (ct >> 2)} offset:{off + kq*8192 + (ct & 3)*1024}"


PK_LDS = 131072


def pack_srd():
    return ["s_lshr_b32 s36, s2, 3", "s_lshl_b32 s36, s36, 18", "s_and_b32 s37, s2, 7", "s_lshl_b32 s37, s37, 8",
            "s_add_u32 s36, s36, s37", f"s_lshl_b32 s37, s{S_W}, 16", "s_add_u32 s36, s36, s37",
            ["s_add_u32 s32, s32, s36", "s_addc_u32 s33, s33, 0"], "s_mov_b32 s34, 65536", "s_mov_b32 s35, 0x20000"]


def pack_dma(T):
    out = [f"v_lshrrev_b32 v{T}, 4, v{V_L}", f"v_and_b32 v{T+1}, 15, v{V_L}", f"v_lshlrev_b32 v{T+2}, 1, v{T}",
           f"v_xor_b32 v{T+1}, v{T+1}, v{T+2}", f"v_lshlrev_b32 v{T}, 11, v{T}",
           f"v_lshl_add_u32 v{T}, v{T+1}, 4, v{T}", f"v_xor_b32 v{T+1}, 128, v{T}",
           f"s_lshl_b32 s36, s{S_W}, 13"]
    for i in range(8):
        if i % 4 == 0:
            out.append(f"s_add_u32 m0, s36, {PK_LDS + (i >> 2)*4096}")
        out += [f"s_mov_b32 s37, {8192*i - 1024*(i & 3)}",
                f"buffer_load_dwordx4 v{T + (i & 1)}, s[32:35], s37 offen offset:{1024*(i & 3)}{NT_O} lds #pack"]
    return out


def pack_store(T, regs, vdo):
    l = V_L
    out = [f"v_lshrrev_b32 v{T+1}, 2, v{l}", f"v_and_b32 v{T}, 7, v{T+1}", f"v_lshlrev_b32 v{T+1}, 8, v{T+1}",
           f"v_and_b32 v{T+2}, 3, v{l}", f"v_lshl_add_u32 v{T+1}, v{T+2}, 3, v{T+1}",
           f"s_lshl_b32 s36, s{S_W}, 13", f"s_add_u32 s36, s36, {PK_LDS}", f"v_add_u32 v{T+1}, s36, v{T+1}",
           "@vmwait pack"]
    for j in range(8):
        out += [f"v_xor_b32 v{T+2}, {j}, v{T}", f"v_lshl_add_u32 v{T+2}, v{T+2}, 5, v{T+1}"]
        out += [f"ds_read_b64_tr_b16 {vr(regs[j] + 2*a, 2)}, v{T+2} offset:{4096*a}" for a in range(2)]
    S = Seg()
    srd(S, 32, 40, 8 * MB, off=WS_WP)
    out += [i.text for i in S]
    out += ["s_and_b32 s36, s2, 7", "s_lshl_b32 s36, s36, 20", "s_lshr_b32 s37, s2, 3", "s_lshl_b32 s37, s37, 15",
            "s_add_u32 s36, s36, s37", f"s_lshl_b32 s37, s{S_W}, 12", "s_add_u32 s36, s36, s37", "s_add_u32 s37, s36, 4096"]
    for j in range(8):
        out.append(f"buffer_store_dwordx4 {vr(regs[j],4)}, v{vdo}, s[32:35], s{36 + (j >> 2)} offen offset:{1024*(j & 3)} sc1")
    return out


def y_loads():
    out = []
    for rt in range(2):
        for pr in range(2):
            for e in range(2):
                out.append([f"s_add_u32 s{S_T}, s{S_YO}, {(8*pr + e)*16384}",
                            f"buffer_load_dwordx2 {vr(V_Y + ((rt*2 + pr)*2 + e)*2, 2)}, v{V_YV}, {sr(SRD_Y,4)}, s{S_T} offen offset:{128*rt} sc1"])
    return out


def early_x_loads(srd_x, T):
    S = Seg()
    l = V_L
    rb_cb(S, 36, 37, 32)
    S(f"s_lshl_b32 s36, s36, 2\ns_add_u32 s36, s36, s{S_W}")
    S(f"s_lshl_b32 s37, s37, 7\ns_lshl_b32 s32, s36, 16\ns_add_u32 s37, s37, s32\ns_lshl_b32 s36, s36, 7")
    S(f"v_and_b32 v{T}, 15, v{l}\nv_bfe_u32 v{T+1}, v{l}, 4, 1\nv_lshlrev_b32 v{T+1}, 5, v{T+1}")
    S(f"v_lshrrev_b32 v{T+2}, 5, v{l}\nv_lshl_add_u32 v{T+1}, v{T+2}, 4, v{T+1}")
    S(f"v_lshl_add_u32 v{T+1}, v{T}, 11, v{T+1}\nv_lshlrev_b32 v{T}, 2, v{T}")
    srd(S, 32, 40, 8192, off=WS_G)
    for rt in range(2):
        for pr in range(2):
            S(f"buffer_load_dwordx4 {vr(V_X + (rt*2 + pr)*4, 4)}, v{T+1}, {sr(srd_x,4)}, s37 offen offset:{64*pr}")
        S(f"buffer_load_dword v{V_G+rt}, v{T}, s[32:35], s36 offen offset:{64*rt} sc1")
        if rt == 0:
            S("s_add_u32 s37, s37, 32768")
    return [i.text for i in S]


def ep_pre():
    out = []
    T = V_TE
    for rt in range(2):
        out.append(f"v_sub_f32 v{V_G+2+rt}, 1.0, v{V_G+rt}")
        for pr in range(2):
            for u in range(4):
                x = V_X + (rt * 2 + pr) * 4 + u
                y = V_Y + (rt * 2 + pr) * 4 + u
                a = V_A + (rt * 2 + pr) * 8 + 2 * u
                out += [f"v_lshlrev_b32 v{a}, 16, v{x}", f"v_lshlrev_b32 v{T}, 16, v{y}",
                        f"v_and_b32 v{a+1}, 0xffff0000, v{x}", f"v_and_b32 v{T+1}, 0xffff0000, v{y}",
                        f"v_mul_f32 v{a}, v{a}, v{T}", f"v_mul_f32 v{a+1}, v{a+1}, v{T+1}",
                        f"v_mul_f32 v{a}, v{a}, v{V_G+rt}", f"v_mul_f32 v{a+1}, v{a+1}, v{V_G+rt}"]
    return out


def stage(u, fill=None, bar_tags=(), after_bar=(), head0=(), conv=None):
    S = Seg()
    for kq in range(2):
        cts = list(range(8))
        mf = [mfma16(vr(acc5(ct, rt), 4), ar(A_WF + kq * 32 + ct * 4, 4),
                     ar(A_C + (u % RING) * 16 + (kq * 2 + rt) * 4, 4), "0" if (u == 0 and kq == 0) else None)
              for ct in cts for rt in range(2)]
        cm, cr = conv[kq] if conv else ([], [])
        own, mf, pos = mf, [], []
        for k, m in enumerate(own):
            mf += cm[k * len(cm) // 16:(k + 1) * len(cm) // 16] + [m]
            pos.append(len(mf) - 1)
        sc = Sched(mf, 2)
        sc.stream(cr, 0, len(mf) - 4, prio=2)
        head = []
        rd = []
        if kq == 0:
            rd = [rd_wo(u, 1, ct) for ct in range(8)]
        else:
            rd = [rd_wo(u + 1, 0, ct) for ct in (range(8) if u + 1 < 32 - NTAIL else range(4, 8))]
            head = [f"@vmwait o{(u + 1) & 3} " + " ".join(bar_tags) + " lgkm", "s_barrier"] + list(after_bar)
        sc.stream(rd, 0, pos[12], prio=3)
        w = wo_stage(u + RING - 1) if u + RING - 1 < 32 else []
        w = w[:3] if kq == 0 else w[3:]
        c = [ld_ctx(u, kq, 0), ld_ctx(u, kq, 1)] + ([ADV_C] if kq == 1 else []) if u + RING < 32 else []
        if head0 and kq == 0:
            x = list(head0) + w
            sc.stream(x + c, at=[(k * pos[14]) // len(x) for k in range(len(x))] + pos[14:], prio=4)
        else:
            sc.stream(w, 1, pos[14], prio=1)
            sc.stream(c, at=[pos[14], pos[15], pos[15]], prio=4)
        if fill and fill[kq]:
            sc.stream(fill[kq], 0, len(mf))
        S.add(sc.build(head if kq else ["s_waitcnt lgkmcnt(0)"]))
    return S


NTAIL = int(os.environ.get("NTAIL", "3"))


def tail():
    steps = [(h, u, kq) for h in (1, 0) for u in range(32 - NTAIL, 32) for kq in range(2)]
    mf, rd, at = [], [], []
    for i, (h, u, kq) in enumerate(steps):
        mf += [mfma16(vr(acc5(ct, rt), 4), ar(A_WF + kq * 32 + ct * 4, 4), ar(A_C + (u % RING) * 16 + (kq * 2 + rt) * 4, 4))
               for ct in range(4 * h, 4 * h + 4) for rt in range(2)]
        if i + 1 < len(steps):
            h2, u2, kq2 = steps[i + 1]
            rd += [rd_wo(u2, kq2, ct) for ct in range(4 * h2, 4 * h2 + 4)]
            at += [8 * i + k for k in range(4)]
    sc = Sched(mf, 2)
    sc.stream(rd, at=at, prio=3)
    for j in range(1, NTAIL):
        sc.pin(8 * (2 * j - 1) - 1, [f"@vmwait o{(32 - NTAIL + j) & 3}", "s_barrier"])
    xs = xb_send()
    sc.stream(xs, at=[0, 0] + [16 * NTAIL + 2] * (len(xs) - 2), prio=2)
    return sc.build(["s_waitcnt lgkmcnt(0)"])


def xb_prefill(T, vdo):
    S = Seg()
    srd(S, 4, 40, 4 * MB, off=WS_XB)
    S("s_lshl_b32 s36, s2, 14")
    for k in range(4):
        S(f"v_mov_b32 v{T+k}, -1")
    for k in range(4):
        S(f"buffer_store_dwordx4 {vr(T,4)}, v{vdo}, s[4:7], s36 offen offset:{1024*k} sc1")
    return groupify([i.text for i in S])


def swaps(h):
    return [f"v_permlane16_swap_b32 v{acc5(4*h + 2*pr, rt) + r}, v{acc5(4*h + 2*pr + 1, rt) + r}"
            for rt in range(2) for pr in range(2) for r in range(4)]


def xb_send():
    out = [f"s_xor_b32 s{S_T}, s2, 4", f"s_lshl_b32 s{S_T}, s{S_T}, 14"]
    sw = swaps(1)
    for k in range(4):
        a, b = acc5(4 + 2 * (k & 1), k >> 1), acc5(5 + 2 * (k & 1), k >> 1)
        out += sw[4 * k:4 * k + 4]
        out += [f"v_cvt_pk_bf16_f32 v{a}, v{a}, v{a+1}", f"v_cvt_pk_bf16_f32 v{a+1}, v{a+2}, v{a+3}",
                f"v_cvt_pk_bf16_f32 v{a+2}, v{b}, v{b+1}", f"v_cvt_pk_bf16_f32 v{a+3}, v{b+2}, v{b+3}",
                f"buffer_store_dwordx4 {vr(a,4)}, v{V_WD}, {sr(SRD_XB,4)}, s{S_T} offen offset:{1024*k} sc1"]
    return out


def ep_own():
    out = swaps(0)
    for rt in range(2):
        for pr in range(2):
            a = V_A + (rt * 2 + pr) * 8
            out += [f"v_fma_f32 v{a+j}, v{acc5(2*pr + (j >> 2), rt) + (j & 3)}, v{V_G+2+rt}, v{a+j}" for j in range(8)]
    return out


def xb_recv(spin, meanwhile):
    ld = [f"buffer_load_dwordx4 {vr(V_RX + 4*k,4)}, v{V_WD}, {sr(SRD_XB,4)}, s{S_T} offen offset:{1024*k} sc1" for k in range(4)]
    out = [f"s_lshl_b32 s{S_T}, s2, 14", f"s_mov_b32 s{S_T+1}, {spin}"] + ld + meanwhile + ["s_branch L_xb_chk", "L_xb:"] + ld
    T = V_TE
    out += [f"s_sub_u32 s{S_T+1}, s{S_T+1}, 1", "s_cbranch_scc1 L_xb_done", "L_xb_chk:", "s_waitcnt vmcnt(3)",
            f"v_max3_u32 v{T}, v{V_RX}, v{V_RX+1}, v{V_RX+2}"]
    for k in range(3, 15, 2):
        out.append(f"v_max3_u32 v{T}, v{T}, v{V_RX+k}, v{V_RX+k+1}")
    out += [f"v_max_u32 v{T}, v{T}, v{V_RX+15}", f"v_cmp_eq_u32 vcc, -1, v{T}", "s_nop 4", "s_cbranch_vccnz L_xb", "L_xb_done:",
            "s_waitcnt vmcnt(0)"]
    return out


def p5_epilogue(S):
    T = V_RX + 16
    for rt in range(2):
        S(f"s_add_u32 s{S_T}, s{S_XO}, {rt*32768}")
        for pr in range(2):
            k = rt * 2 + pr
            a = V_A + 8 * k
            for u in range(4):
                r = V_RX + 4 * k + u
                S(f"v_lshlrev_b32 v{T}, 16, v{r}\nv_and_b32 v{T+1}, 0xffff0000, v{r}")
                S(f"v_fmac_f32 v{a+2*u}, v{T}, v{V_G+2+rt}\nv_fmac_f32 v{a+2*u+1}, v{T+1}, v{V_G+2+rt}")
                S(f"v_cvt_pk_bf16_f32 v{V_X+4*k+u}, v{a+2*u}, v{a+2*u+1}")
            S(f"buffer_store_dwordx4 {vr(V_X+4*k,4)}, v{V_XV}, {sr(SRD_OUT,4)}, s{S_T} offen offset:{64*pr} sc1")
```

```python
import sys
from common import *
import f1, f2, f3

NAME = "gated_mix__ssm_conv_h3__compressed_kv_cla__prompt_kernel"
SRD_F, SRD_DBG = 8, 12
S_W, V_L = 3, 1
V_PF = 79
SPIN = 400000
ool = []


def sig_off(v, t):
    return [f"v_lshlrev_b32 v{v}, 20, v{V_L}", f"s_lshl_b32 s{t}, s{S_W}, 26", f"v_add_u32 v{v}, s{t}, v{v}"]


def signal(F, voff, vone, t, val=1):
    return [f"v_mov_b32 v{vone}, {val}", f"s_lshl_b32 s{t}, s2, 2",
            f"buffer_store_dword v{vone}, v{voff}, {sr(SRD_F,4)}, s{t} offen offset:{F} sc1"]


def poll(tag, load, vp, t, val=1):
    S = Seg()
    S(f"L_spin_{tag}:\ns_mov_b32 s{t}, {SPIN}\nL_spin_{tag}_l:\ns_sleep 1")
    S(load)
    S(f"s_waitcnt vmcnt(0)\nv_cmp_gt_u32 vcc, {val}, v{vp}\ns_nop 4\ns_cbranch_vccz L_spin_{tag}_ret")
    S(f"s_sub_u32 s{t}, s{t}, 1\ns_cmp_lg_u32 s{t}, 0\ns_cbranch_scc1 L_spin_{tag}_l\ns_branch L_spin_{tag}_ret")
    ool.append(S)
    return [f"v_cmp_gt_u32 vcc, {val}, v{vp}", "s_nop 4", f"s_cbranch_vccnz L_spin_{tag}", f"L_spin_{tag}_ret:"]


def touch_wq_setup():
    return [["s_mov_b32 s4, s34", "s_mov_b32 s5, s35"], [f"s_mov_b32 s6, {8*MB}", "s_mov_b32 s7, 0x20000"],
            "s_lshr_b32 s43, s2, 3", "s_lshl_b32 s43, s43, 2", f"s_add_u32 s43, s43, s{S_W}", "s_lshl_b32 s43, s43, 16",
            "s_and_b32 s37, s2, 7", "s_lshl_b32 s37, s37, 10", "s_add_u32 s43, s43, s37",
            f"v_lshrrev_b32 v78, 3, v{V_L}", f"v_and_b32 v79, 7, v{V_L}", "v_lshlrev_b32 v79, %d, v79" % (27 if "tlbtouch" in EXP else 7),
            "v_lshl_add_u32 v78, v78, 13, v79", "v_add_u32 v78, s43, v78"]


def touch_wq(k, n):
    if n == 1:
        return [f"buffer_load_dword v{V_PF}, v78, s[4:7], 0 offen{NT_Q}"]
    return [f"s_and_b32 s37, s{S_W}, {n-1}", [f"s_cmp_eq_u32 s37, {k}", "s_cselect_b32 s37, 0, 0x40000000"],
            "v_add_u32 v229, s37, v78", f"buffer_load_dword v{V_PF}, v229, s[4:7], 0 offen{NT_Q}"]


def code_touch(tag, lo, hi, va, t, junk):
    su = [[f"s_getpc_b64 s[{t}:{t+1}]", f"L_ct_{tag}:"],
          [f"s_add_u32 s{t}, s{t}, {lo} - L_ct_{tag}", f"s_addc_u32 s{t+1}, s{t+1}, 0"],
          f"v_mov_b32 v{va+1}, s{t+1}", f"v_mov_b32 v{va}, s{t}",
          f"s_lshr_b32 s{t}, s2, 3", f"s_lshl_b32 s{t}, s{t}, 2", f"s_add_u32 s{t}, s{t}, s{S_W}", f"s_lshl_b32 s{t}, s{t}, 7",
          f"v_and_b32 v{junk}, 3, v{V_L}", f"v_lshlrev_b32 v{junk}, 14, v{junk}", f"v_add_u32 v{junk}, s{t}, v{junk}",
          f"v_min_u32 v{junk}, {hi} - {lo} - 4, v{junk}",
          [f"v_add_co_u32 v{va}, vcc, v{va}, v{junk}", "s_nop 1", f"v_addc_co_u32 v{va+1}, vcc, 0, v{va+1}, vcc"]]
    return su, [f"global_load_dword v{junk}, v[{va}:{va+1}], off"]


SJ = os.environ.get('SJ', 'p')
CT = os.environ.get("CT", "abcef")


def touches(typ):
    H = Seg()
    H(f"v_lshlrev_b32 v74, 7, v{V_L}")
    H(f"s_getpc_b64 s[4:5]\nL_pc{typ}:\ns_lshr_b32 s98, s2, 3\ns_lshl_b32 s98, s98, 2\ns_add_u32 s98, s98, s{S_W}\ns_lshl_b32 s98, s98, 10")
    H(f"v_and_b32 v75, 0x380, v74\nv_add_u32 v75, s98, v75\nv_min_u32 v75, L_code_end - L_pc{typ} - 4, v75")
    H("v_mov_b32 v77, s5\nv_add_co_u32 v76, vcc, s4, v75\nv_addc_co_u32 v77, vcc, 0, v77, vcc")
    H(f"global_load_dword v{V_PF}, v[76:77], off")
    out, items = [], groupify([i.text for i in H])
    for x in items:
        if isinstance(x, str) and (x.endswith(":") or x.startswith("v_addc_co")):
            out[-1] = flat([out[-1]]) + (["s_nop 1"] if x.startswith("v_addc") else []) + [x]
        else:
            out.append(x)
    return out


def start(st):
    H = Seg()
    H(kernel_header(NAME))
    if DIAG:
        H("s_memtime s[98:99]\ns_memrealtime s[100:101]")
    H(f"s_cmp_ge_u32 s2, 256\ns_cbranch_scc1 L_end")
    H(f"s_load_dwordx2 {sr(f1.P_C,2)}, s[0:1], {KA_C}")
    H(f"s_load_dwordx4 {sr(f1.P_WU,4)}, s[0:1], {KA_WUK}")
    H(f"s_load_dwordx2 {sr(f1.S_WS,2)}, s[0:1], {KA_WS}")
    H(f"s_load_dwordx2 {sr(f1.P_DBG,2)}, s[0:1], {KA_DBG}")
    H.add(f2.ptr_loads()[:2])
    H(f"v_lshrrev_b32 v2, 6, v0\nv_and_b32 v{V_L}, 63, v0\nv_lshlrev_b32 v3, 4, v0")
    H(f"v_readfirstlane_b32 s{S_W}, v2")
    if "e" in CT:
        su, ld = code_touch("e", "L_p1_K", "L_p3_begin", 76, 4, 79)
        H.add(flat(su) + ld)
    f1.setup(H)
    if DIAG:
        H("v_writelane_b32 v0, s98, 60\nv_writelane_b32 v0, s100, 61")
    st(H)
    srd(H, 4, f1.S_WS, 8192, off=WS_FLAG)
    H("s_lshl_b32 s43, s2, 20\nv_add_u32 v3, s43, v3")
    H("v_mov_b32 v4, 0\nv_mov_b32 v5, 0\nv_mov_b32 v6, 0\nv_mov_b32 v7, 0")
    H("s_movk_i32 s43, 4096\nbuffer_store_dwordx4 v[4:7], v3, s[4:7], 0 offen sc1")
    H("buffer_store_dwordx4 v[4:7], v3, s[4:7], s43 offen sc1\nv_lshlrev_b32 v79, 16, v3")
    H.add(f1.dma_w(0) + f1.dma_c(0))
    f1.setup2(H)
    H(f"s_mov_b32 s{f1.P_DBG+2}, 256\ns_mov_b32 s{f1.P_DBG+3}, 0x20000")
    H(f"v_mov_b32 v78, 1")
    H(f"s_cmp_lg_u32 s2, 0\ns_cselect_b32 s43, 0x10000000, 0\nv_or_b32 v79, s43, v79")
    H("@vmwait c0 w0\ns_barrier")
    if os.environ.get("DIAG") == "2":
        st(H)
    H(f"buffer_store_dword v78, v79, {sr(f1.P_DBG,4)}, 0 offen sc1")
    for rt in range(8):
        H(f1.rd_c(0, 0, rt))
    for ct in range(8):
        H.add(f1.rd_w(0, 0, ct))
    H(f"s_cmp_eq_u32 s{f1.S_TYPE}, 0\ns_cbranch_scc0 L_p1_V")
    return H


FINE = os.environ.get('DIAG') == '2'


def p1(typ, st):
    B = Seg()
    n0 = st.n
    B(f"L_p1_{typ}:")
    p0 = f1.P0()
    NL = int(os.environ.get("NL", "3"))
    ld = chunks(p0.loads(), NL)
    cp = chunks(groupify(p0.compute()), 4)
    if "nop0" in EXP:
        ld, cp = [[]] * NL, [[]] * 4
    su = chunks(groupify(f2.setup()), 2)
    vm = {(0, 0): f1.dma_w(1) + f1.dma_c(1), (6, 0): f2.dma_x(0), (6, 1): f2.dma_q(0) + f2.dma_q(1), (7, 0): f2.dma_x(1)}
    for n in range(6):
        vm[(n, 1)] = f1.dma_w(n + 2)
    for n in range(1, 6):
        vm[(n, 0)] = f1.dma_c(n + 2)
    fill = {(0, 0): touches(typ) if 'e' not in CT else [], (0, 1): p0.ptr_loads(), (1, 0): touch_wq_setup(),
            (1, 1): p0.setup(), (2, 0): [], (2, 1): su[0], (3, 0): [], (3, 1): su[1] + f2.ptr_loads()[2:], (4, 0): [],
            (5, 0): [], (7, 0): cp[3] + [f"v_lshlrev_b32 v{f1.V_ST}, 4, v{V_L}"]}
    for k in range(NL):
        fill[(5 - NL + k, 0)] += ld[k]
    NT_ = int(os.environ.get("NTW", "1"))
    T0 = int(os.environ.get("TW0", "5"))
    TWK = int(os.environ.get("TWK", "1"))
    fill[(5, 1)], fill[(6, 0)], fill[(6, 1)] = cp[:3]
    TS_ = os.environ.get("TWS", "41,50,51,60")
    if TS_:
        pos = [(int(x[0]), int(x[1])) for x in TS_.split(",")]
        for k, x in enumerate(pos):
            fill[x] = touch_wq(k, len(pos)) + fill.get(x, [])
    else:
        fill[(T0, TWK)] = touch_wq(0, 1) + fill.get((T0, TWK), [])
    if "f" in CT:
        su2, ld2 = code_touch("f" + typ, "L_p2", "L_p3_begin", 66, 82, 68)
        fill[(4, 1)] = fill.get((4, 1), []) + su2 + ld2
    for n in range(8):
        for kk in range(2):
            B.add(f1.kstep(typ, n, kk, vm.get((n, kk)), fill.get((n, kk)),
                           f2.p1_last_hook if (n, kk) == (7, 1) else None,
                           **(dict(bar=int(os.environ.get('BAR0', '44')), vm_pre=f1.dma_c(2)) if (n, kk) == (0, 1) else {})))
            if FINE and kk == 1 and n < 7:
                st(B)
    if typ == "K":
        st.n = n0
    if typ == "K":
        B("s_branch L_p2")
    return B


PACK_EARLY = os.environ.get('PACKE', '0') == '1'


def p2(st):
    B = Seg()
    B("L_p2:")
    NE = int(os.environ.get('NE', '20'))
    ep = chunks(f1.epilogue_items(), NE)
    fill = {k: list(ep[k]) for k in range(NE)}
    S = Seg()
    srd(S, SRD_F, 40, 8192, off=WS_FLAG)
    srd(S, SRD_DBG, 38, 256)
    fill[0] = groupify([i.text for i in S]) + fill[0]
    go_ld = f"buffer_load_dword v254, off, {sr(SRD_DBG,4)}, 0 sc1"
    fill[14] = fill[14] + [go_ld]
    for k in range(NE, 32):
        fill[k] = []
    T, t = 230, 36
    fill[20] = sig_off(255, t)
    fill[21] = f2.setup3(T)
    after = {11: poll("go", go_ld, 254, t) + signal(f1.F_1, 255, 254, t) + f3.p4_ptr_loads(),
             13: [f"s_load_dwordx2 s[32:33], s[0:1], {KA_WO}"]}
    S = Seg()
    f3.rb_cb(S, t, t + 1, 43)
    S(f"v_and_b32 v{T}, 15, v{V_L}")
    S(f"s_lshl_b32 s{t}, s{t}, 4\nv_add_u32 v{T+1}, s{t}, v{T}")
    S(f"s_lshr_b32 s{t}, s2, 4\nv_lshl_add_u32 v{T+2}, v{T}, 4, s{t}")
    S(f"v_and_b32 v{T+3}, 7, v{V_L}\nv_bfe_u32 v{T+4}, v{V_L}, 3, 1\nv_lshlrev_b32 v{T+3}, 3, v{T+3}")
    S(f"v_lshl_add_u32 v{T+3}, v{T+4}, 7, v{T+3}")
    S(f"s_bfe_u32 s{t}, s{f2.S_HEAD}, 0x10001\ns_lshl_b32 s{t}, s{t}, 6\ns_lshr_b32 s{t+1}, s{f2.S_HEAD}, 2\ns_add_u32 s{t}, s{t}, s{t+1}")
    S(f"v_add_u32 v{T+3}, s{t}, v{T+3}")
    S(f"v_lshrrev_b32 v{T+4}, 4, v{V_L}")
    items = groupify([i.text for i in S])
    items.append([f"v_cmp_eq_u32 vcc, 1, v{T+4}", "s_nop 1", f"v_cndmask_b32 v{T+3}, v{T+3}, v{T+2}, vcc"])
    items.append([f"v_cmp_eq_u32 vcc, 2, v{T+4}", "s_nop 1", f"v_cndmask_b32 v{T+3}, v{T+3}, v{T+1}, vcc"])
    items.append(f"v_lshlrev_b32 v{T+3}, 2, v{T+3}")
    fill[24] = fill[24] + items
    fill[26] = fill[26] + f3.p4_srds()
    if "a" in CT:
        su, ld = code_touch("a", "L_p3_begin", "L_p3_s1m_top", 228, 38, 238)
        fill[22] = su + ld
    f1_ld = f"buffer_load_dword v{T+7}, v{T+3}, {sr(SRD_F,4)}, 0 offen offset:{f1.F_1} sc1"
    pk = f3.pack_dma(T + 8) if PACK_EARLY else []
    if "p" in SJ:
        fill[28] = f3.xb_prefill(T + 14, f2.V_DO)
    fill[30] = [f1_ld] + f3.pack_srd() + pk[:14]
    fill[31] = f2.kv_dma("K", 0, 1) + f2.kv_dma("K", 1, 2)
    for n in range(16):
        for kk in range(2):
            ab = after.get(n) if kk == 1 else None
            seg = f2.kstep2(n, kk, fill.get(2 * n + kk), ab, poll("f1", f1_ld, T + 7, t) if (n, kk) == (15, 1) else ())
            if n == 11 and kk == 1:
                for i in seg:
                    if i.kind == "gwait":
                        i.groups.append("kvst")
            B.add(seg)
            if FINE and kk == 1 and n in (3, 7, 9, 10, 11, 12, 13, 14):
                st(B)
    if FINE:
        st(B)
    B("L_p3_begin:")
    return B


NPRE = int(os.environ.get('NPRE', '6'))


def p45(st):
    B = Seg()
    t, VP, VO, VS = 36, f3.V_PL, 254, 255
    S = Seg()
    VO2 = f3.V_GV
    S(f"s_lshr_b32 s{t}, s{f3.S_CB}, 1\ns_lshl_b32 s{t+1}, s{f3.S_KH}, 7\ns_add_u32 s{t}, s{t}, s{t+1}")
    S(f"v_lshl_add_u32 v{VO}, v{V_L}, 3, s{t}\ns_xor_b32 s{t}, s2, 4\nv_mov_b32 v{VP}, s{t}")
    w_off = [i.text for i in S] + [[f"v_cmp_lt_u32 vcc, 15, v{V_L}", "s_nop 1", f"v_cndmask_b32 v{VO}, v{VO}, v{VP}, vcc"],
                                   f"v_lshlrev_b32 v{VO}, 2, v{VO}"]
    w_ld = f"buffer_load_dword v{VP}, v{VO}, {sr(SRD_F,4)}, 0 offen offset:{f1.F_2S} sc1"
    S = Seg()
    S(f"s_sub_u32 s{t}, 15, s{f3.S_RB}\ns_min_u32 s{t}, s{t}, s{f3.S_RB}")
    if f2.M84:
        S(f"s_lshr_b32 s{t+1}, s{t}, 1\ns_xor_b32 s{t}, s{t}, s{t+1}\ns_and_b32 s{t}, s{t}, 1\ns_lshl_b32 s{t+1}, s{t+1}, 6")
        S(f"s_add_u32 s{t}, s{t}, s{t+1}")
    else:
        S(f"s_lshl_b32 s{t}, s{t}, 5")
    S(f"s_lshl_b32 s{t+1}, s{f3.S_KH}, 2\ns_add_u32 s{t}, s{t}, s{t+1}\ns_add_u32 s{t}, s{t}, {f1.F_2L // 4}")
    TE = f3.V_TE
    S(f"v_bfe_u32 v{TE}, v{V_L}, 4, 1\nv_lshl_add_u32 v{TE}, s{S_W}, 1, v{TE}\nv_sub_u32 v{TE+1}, 7, v{TE}")
    S(f"v_min_u32 v{TE}, v{TE}, v{TE+1}\nv_lshl_add_u32 v{TE+1}, v{TE}, 8, s{t}")
    if f2.M84:
        S(f"v_and_b32 v{VO2}, 7, v{V_L}\nv_lshlrev_b32 v{VO2}, 3, v{VO2}\nv_bfe_u32 v{TE}, v{V_L}, 3, 1\nv_lshlrev_b32 v{TE}, 1, v{TE}")
    else:
        S(f"v_and_b32 v{VO2}, 3, v{V_L}\nv_lshlrev_b32 v{VO2}, 3, v{VO2}\nv_bfe_u32 v{TE}, v{V_L}, 2, 2")
    S(f"v_add3_u32 v{VO2}, v{VO2}, v{TE}, v{TE+1}\nv_lshlrev_b32 v{VO2}, 2, v{VO2}")
    c_off = [i.text for i in S]
    c_ld = f"buffer_load_dword v{VP}, v{VO2}, {sr(SRD_F,4)}, 0 offen sc1"
    su = f3.p5_setup()
    B(f"v_lshlrev_b32 v{VS}, 20, v{V_L}\nv_mov_b32 v{VP}, 1\ns_lshl_b32 s83, s{S_W}, 8\ns_add_u32 s83, s83, s2")
    B(f"s_lshl_b32 s83, s83, 2\ns_add_u32 s83, s83, {f1.F_2L}")
    SIG = int(os.environ.get("SIGAT", "1"))
    sig = ["@vmwait ctx0", f"buffer_store_dword v{VP}, v{VS}, {sr(SRD_F,4)}, s83 offen sc1"]
    da, ya = f3.p4_late_setup()
    fl = {0: su[:len(su) // 3], 1: su[len(su) // 3:] + w_off + [w_ld], 2: c_off, 3: sig_off(VS, t), 4: ya}
    WPRE = 3
    vm = {3: f3.wo_stage(0) + f3.wo_stage(1), 4: f3.wo_stage(2)}
    EP = os.environ.get("EPOLL", "1") == "1"
    for rho in range(NPRE):
        head = sig if rho == SIG else poll("w", w_ld, VP, t) if rho == 3 else []
        if EP and rho == NPRE - 1:
            head = head + [c_ld]
        B.add(f3.p4_rho(rho, head=head, fill=fl.get(rho, []), vm=vm.get(rho, []), first=da if rho == 0 else ()))
    if not EP:
        B(c_ld)
    st(B)
    B.add(poll("f2", c_ld, VP, t))
    st(B)
    R, PRE = f3.RING, int(os.environ.get("PRE", "4"))
    ramp = []
    for n in range(R):
        if WPRE <= n < R - 1:
            ramp.append(("w", n, f3.wo_stage(n)))
        ramp.append(("c", n, f3.ctx_stage(n)))
    early = [x for x in ramp if x[1] < PRE and not (x[0] == "w" and x[1] >= 4)]
    late = [x for x in ramp if x not in early]
    NMRG = int(os.environ.get("NMRG", "1"))
    ev = chunks(flat([x[2] for x in early[1:]]), 8 - NMRG - NPRE)
    conv = []
    for rho in range(8 - NMRG, 8):
        conv += list(zip(chunks(f3.p4_mfmas(rho), 3), chunks(f3.p4_reads(rho + 1) if rho < 7 else [], 2) + [[]]))
    Y0 = (len(conv) + 1) // 2
    conv += [([], [])] * 2
    for rho in range(NPRE, 8 - NMRG):
        B.add(f3.p4_rho(rho, head=early[0][2] if rho == NPRE else [], vm=ev[rho - NPRE]))
    B("@vmwait o0 lgkm\ns_barrier")
    for ct in range(8):
        B(f3.rd_wo(0, 0, ct))
    st(B)
    f3_ld = f"buffer_load_dword v{VP}, v{VO}, {sr(SRD_F,4)}, 0 offen offset:{f1.F_3} sc1"
    f3_off = [f"v_and_b32 v{VO}, 15, v{V_L}", f"s_lshl_b32 s{t}, s{f3.S_CB}, 4", f"v_add_u32 v{VO}, s{t}, v{VO}",
              f"v_lshlrev_b32 v{VO}, 2, v{VO}"]
    yw = chunks(f3.p4_y_write(), 5) + [f3.p4_y_read()]
    yl = f3.y_loads()
    pre = chunks(f3.ep_pre(), 6)
    assert Y0 == 2 and f3.NTAIL == 3
    C = Seg()
    LOOP = Seg()
    x1, x2 = Seg(), Seg()
    x1("L_p5_x1:")
    x1.add(signal(f1.F_3, VS, VP, t) + f3_off)
    x1("s_branch L_p5_loop")
    x2("L_p5_x2:")
    x2(f3_ld + "\ns_branch L_p5_loop")
    ool.extend([x1, x2])
    for u in range(32 - f3.NTAIL):
        fl = [None] * 2
        if Y0 <= u < Y0 + 3:
            fl = yw[2 * (u - Y0):2 * (u - Y0) + 2]
        if u == Y0 + 3:
            fl = chunks(f3.p4_y_store(), 2)
        if 22 <= u < 25:
            y3 = chunks(yl, 6)
            fl = [flat(x) for x in y3[2 * (u - 22):2 * (u - 21)]]
            if u == 22:
                fl[0] = [poll("f3", f3_ld, VP, t)] + fl[0]
        if 26 <= u < 29:
            fl = pre[2 * (u - 26):2 * (u - 25)]
        if 10 <= u < 22:
            continue
        sg = f3.stage(u, fill=fl, head0=flat([x[2] for x in late]) if u == 0 else (),
                      conv=conv[2 * u:2 * u + 2] if u < Y0 else None)
        (B if u < 6 else LOOP if u < 10 else C).add(sg)
    B(f"s_mov_b32 s71, 3\n.p2align 5\nL_p5_loop:")
    LOOP("s_sub_u32 s71, s71, 1\ns_cbranch_scc1 L_p5_out\ns_cmp_eq_u32 s71, 2\ns_cbranch_scc1 L_p5_x1")
    LOOP("s_cmp_eq_u32 s71, 0\ns_cbranch_scc1 L_p5_x2\ns_branch L_p5_loop\nL_p5_out:")
    global P5_TRACE
    P5_TRACE = [B, LOOP, x1, LOOP, LOOP, x2, LOOP, C]
    head, B = [B, LOOP], C
    B.add(f3.tail())
    st(B)
    B.add(f3.xb_recv(SPIN, f3.ep_own()))
    st(B)
    f3.p5_epilogue(B)
    return head + [B]


def build(out):
    st = VStamps()
    H = start(st)
    K, V = p1("K", st), p1("V", st)
    J = Seg()
    P2 = p2(st)
    st(P2)
    ctb = code_touch("b", "L_p3_s1m_top", "L_end", 172, 38, 174) if "b" in CT else ([], [])
    lin, o3, traces = f2.p3(
        "p3", st, f3.pack_dma(f2.V_T + 5) + (f3.p4_h_loads() if "h" in SJ else []),
        f3.early_x_loads(f2.SRD_X, f2.V_T) + sig_off(236, 36) + signal(f1.F_2S, 236, 237, 37)[:2] + flat(ctb[0]) + ctb[1],
        f3.p4_ur_dma(f2.V_T + 5), f3.p5_ptr_loads(), (signal(f1.F_2S, 236, 237, 37)[2:], ctb[1] if 'c' in CT else []),
        groupify(f3.pack_store(f2.V_T + 8, [96, 100, 104, 108, 128, 132, 136, 140], f2.V_DO)) +
        ([] if "p" in SJ else f3.xb_prefill(f2.V_T + 12, f2.V_DO)) + ([] if "h" in SJ else f3.p4_h_loads()),
        f3.p4_prep_items(), ["global_load_dword v238, v[228:229], off"] if 'd' in CT else [],
        f3.p4_reads(0))
    P45 = p45(st)
    E = Seg()
    st.dump(E)
    E("L_end:\ns_endpgm")
    Z = Seg()
    Z("L_code_end:\ns_endpgm")
    if DIAG:
        X = Seg()
        st(X)
        P2[1:1] = list(X)
    allseg = [H, K, V, P2] + lin + P45 + [E] + o3 + ool + [Z]
    exp_filter([K, V, P2] + lin + o3 + P45)
    resolve([[H, B, P2] + t + P5_TRACE + [E] for B in (K, V) for t in traces], verbose="-v" in sys.argv)
    resolve([[s] for s in ool if s not in P5_TRACE], verbose=False)
    if "-v" in sys.argv:
        for nm_, sg in (("p1K", [K]), ("p1V", [V]), ("p2", [P2]), ("p45", P45)):
            overflow_report(nm_, sg)
        for k_, b_ in f2.BODIES.items():
            overflow_report(k_, b_.segs + [[I(mfma16('a[0:3]', 'v[0:3]', 'v[0:3]'))]])
    hdr = "; @launch grid=(256,1,1) block=(256,1,1) lds=163840\n" + '.amdgcn_target "amdgcn-amd-amdhsa--gfx950"\n.text\n' + MACROS
    open(out, "w").write(hdr + text_of(allseg) + kernel_desc(NAME))


if __name__ == "__main__":
    build(sys.argv[1])
```

```python
import sys
from common import *
import f1, f2, f3

NAME = "gated_mix__ssm_conv_h3__compressed_kv_cla__prompt_kernel"
SRD_F, SRD_DBG = 8, 12
S_W, V_L = 3, 1
V_PF = 79
SPIN = 400000
ool = []


def sig_off(v, t):
    return [f"v_lshlrev_b32 v{v}, 20, v{V_L}", f"s_lshl_b32 s{t}, s{S_W}, 26", f"v_add_u32 v{v}, s{t}, v{v}"]


def signal(F, voff, vone, t, val=1):
    return [f"v_mov_b32 v{vone}, {val}", f"s_lshl_b32 s{t}, s2, 2",
            f"buffer_store_dword v{vone}, v{voff}, {sr(SRD_F,4)}, s{t} offen offset:{F} sc1"]


def poll(tag, load, vp, t, val=1):
    S = Seg()
    S(f"L_spin_{tag}:\ns_mov_b32 s{t}, {SPIN}\nL_spin_{tag}_l:\ns_sleep 1")
    S(load)
    S(f"s_waitcnt vmcnt(0)\nv_cmp_gt_u32 vcc, {val}, v{vp}\ns_nop 4\ns_cbranch_vccz L_spin_{tag}_ret")
    S(f"s_sub_u32 s{t}, s{t}, 1\ns_cmp_lg_u32 s{t}, 0\ns_cbranch_scc1 L_spin_{tag}_l\ns_branch L_spin_{tag}_ret")
    ool.append(S)
    return [f"v_cmp_gt_u32 vcc, {val}, v{vp}", "s_nop 4", f"s_cbranch_vccnz L_spin_{tag}", f"L_spin_{tag}_ret:"]


def touch_wq_setup():
    return [["s_mov_b32 s4, s34", "s_mov_b32 s5, s35"], [f"s_mov_b32 s6, {8*MB}", "s_mov_b32 s7, 0x20000"],
            "s_lshr_b32 s43, s2, 3", "s_lshl_b32 s43, s43, 2", f"s_add_u32 s43, s43, s{S_W}", "s_lshl_b32 s43, s43, 16",
            "s_and_b32 s37, s2, 7", "s_lshl_b32 s37, s37, 10", "s_add_u32 s43, s43, s37",
            f"v_lshrrev_b32 v78, 3, v{V_L}", f"v_and_b32 v79, 7, v{V_L}", "v_lshlrev_b32 v79, %d, v79" % (27 if "tlbtouch" in EXP else 7),
            "v_lshl_add_u32 v78, v78, 13, v79", "v_add_u32 v78, s43, v78"]


def touch_wq(k, n):
    if n == 1:
        return [f"buffer_load_dword v{V_PF}, v78, s[4:7], 0 offen{NT_Q}"]
    return [f"s_and_b32 s37, s{S_W}, {n-1}", [f"s_cmp_eq_u32 s37, {k}", "s_cselect_b32 s37, 0, 0x40000000"],
            "v_add_u32 v229, s37, v78", f"buffer_load_dword v{V_PF}, v229, s[4:7], 0 offen{NT_Q}"]


def code_touch(tag, lo, hi, va, t, junk):
    su = [[f"s_getpc_b64 s[{t}:{t+1}]", f"L_ct_{tag}:"],
          [f"s_add_u32 s{t}, s{t}, {lo} - L_ct_{tag}", f"s_addc_u32 s{t+1}, s{t+1}, 0"],
          f"v_mov_b32 v{va+1}, s{t+1}", f"v_mov_b32 v{va}, s{t}",
          f"s_lshr_b32 s{t}, s2, 3", f"s_lshl_b32 s{t}, s{t}, 2", f"s_add_u32 s{t}, s{t}, s{S_W}", f"s_lshl_b32 s{t}, s{t}, 7",
          f"v_and_b32 v{junk}, 3, v{V_L}", f"v_lshlrev_b32 v{junk}, 14, v{junk}", f"v_add_u32 v{junk}, s{t}, v{junk}",
          f"v_min_u32 v{junk}, {hi} - {lo} - 4, v{junk}",
          [f"v_add_co_u32 v{va}, vcc, v{va}, v{junk}", "s_nop 1", f"v_addc_co_u32 v{va+1}, vcc, 0, v{va+1}, vcc"]]
    return su, [f"global_load_dword v{junk}, v[{va}:{va+1}], off"]


SJ = os.environ.get('SJ', 'p')
CT = os.environ.get("CT", "abcef")


def touches(typ):
    H = Seg()
    H(f"v_lshlrev_b32 v74, 7, v{V_L}")
    H(f"s_getpc_b64 s[4:5]\nL_pc{typ}:\ns_lshr_b32 s98, s2, 3\ns_lshl_b32 s98, s98, 2\ns_add_u32 s98, s98, s{S_W}\ns_lshl_b32 s98, s98, 10")
    H(f"v_and_b32 v75, 0x380, v74\nv_add_u32 v75, s98, v75\nv_min_u32 v75, L_code_end - L_pc{typ} - 4, v75")
    H("v_mov_b32 v77, s5\nv_add_co_u32 v76, vcc, s4, v75\nv_addc_co_u32 v77, vcc, 0, v77, vcc")
    H(f"global_load_dword v{V_PF}, v[76:77], off")
    out, items = [], groupify([i.text for i in H])
    for x in items:
        if isinstance(x, str) and (x.endswith(":") or x.startswith("v_addc_co")):
            out[-1] = flat([out[-1]]) + (["s_nop 1"] if x.startswith("v_addc") else []) + [x]
        else:
            out.append(x)
    return out


PRO = int(os.environ.get('PRO', '1'))


P0S = int(os.environ.get('P0S', '1'))


def start(st):
    H = Seg()
    H(kernel_header(NAME))
    if DIAG:
        H("s_memtime s[98:99]\ns_memrealtime s[100:101]")
    H(f"s_cmp_ge_u32 s2, 256\ns_cbranch_scc1 L_end")
    H(f"s_load_dwordx8 {sr(f1.P_C,8)}, s[0:1], {KA_C}")
    H(f"s_load_dwordx4 {sr(f1.P_DBG,4)}, s[0:1], {KA_DBG}")
    H(f"v_lshrrev_b32 v2, 6, v0\nv_and_b32 v{V_L}, 63, v0\nv_lshlrev_b32 v3, 4, v0")
    H(f"v_readfirstlane_b32 s{S_W}, v2")
    if "e" in CT:
        su, ld = code_touch("e", "L_p1_K", "L_p3_begin", 76, 4, 79)
        H.add(flat(su) + ld)
    f1.setup(H)
    if DIAG:
        H("v_writelane_b32 v0, s98, 60\nv_writelane_b32 v0, s100, 61")
    st(H)
    H.add(f1.dma_w(0) + f1.dma_c(0))
    H(f"s_mov_b64 {sr(f1.S_WS,2)}, {sr(f1.P_DBG+2,2)}\ns_mov_b64 s[34:35], {sr(f1.P_C+2,2)}")
    H.add(f2.ptr_loads()[:1] + f1.P0().ptr_loads())
    srd(H, 4, f1.S_WS, 8192, off=WS_FLAG)
    H("s_lshl_b32 s43, s2, 20\nv_add_u32 v3, s43, v3")
    H("v_mov_b32 v4, 0\nv_mov_b32 v5, 0\nv_mov_b32 v6, 0\nv_mov_b32 v7, 0")
    H("s_movk_i32 s43, 4096\nbuffer_store_dwordx4 v[4:7], v3, s[4:7], 0 offen sc1 #clr")
    H("buffer_store_dwordx4 v[4:7], v3, s[4:7], s43 offen sc1 #clr\nv_lshlrev_b32 v79, 16, v3")
    f1.setup2(H)
    if PRO >= 1:
        H.add(f1.dma_w(1))
    if PRO == 2:
        H.add(f1.dma_c(1))
    if PRO == 3:
        H.add(f1.dma_c(1)[:5])
    H(f"s_mov_b32 s{f1.P_DBG+2}, 256\ns_mov_b32 s{f1.P_DBG+3}, 0x20000")
    H(f"v_mov_b32 v78, 1")
    H(f"s_cmp_lg_u32 s2, 0\ns_cselect_b32 s43, 0x10000000, 0\nv_or_b32 v79, s43, v79")
    H("@vmwait c0 w0 clr\ns_barrier")
    if os.environ.get("DIAG") == "2":
        st(H)
    H(f"buffer_store_dword v78, v79, {sr(f1.P_DBG,4)}, 0 offen sc1")
    for rt in range(8):
        H(f1.rd_c(0, 0, rt))
    for ct in range(8):
        H.add(f1.rd_w(0, 0, ct))
    H(f"s_cmp_eq_u32 s{f1.S_TYPE}, 0\ns_cbranch_scc0 L_p1_V")
    return H


FINE = os.environ.get('DIAG') == '2'


def p1(typ, st):
    B = Seg()
    n0 = st.n
    B(f"L_p1_{typ}:")
    p0 = f1.P0()
    NL = int(os.environ.get("NL", "3"))
    ld = chunks(p0.loads(), NL)
    cp = chunks(groupify(p0.compute()), 4)
    if "nop0" in EXP:
        ld, cp = [[]] * NL, [[]] * 4
    su = chunks(groupify(f2.setup()), 2)
    vm = {(0, 0): (f1.dma_w(1) + f1.dma_c(1), f1.dma_c(1), f1.dma_c(2), f1.dma_c(1)[5:])[PRO], (6, 0): f2.dma_x(0), (6, 1): f2.dma_q(0) + f2.dma_q(1), (7, 0): f2.dma_x(1)}
    for n in range(6):
        vm[(n, 1)] = f1.dma_w(n + 2)
    for n in range(1, 6):
        vm[(n, 0)] = f1.dma_c(n + 2)
    fill = {(0, 0): touches(typ) if 'e' not in CT else [], (0, 1): p0.ptr_loads(), (1, 0): touch_wq_setup(),
            (1, 1): p0.setup(), (2, 0): [], (2, 1): su[0], (3, 0): [], (3, 1): su[1] + f2.ptr_loads()[2:], (4, 0): [],
            (5, 0): [], (7, 0): cp[3] + [f"v_lshlrev_b32 v{f1.V_ST}, 4, v{V_L}"]}
    if P0S:
        fill[(0, 0)], fill[(0, 1)], fill[(1, 1)] = p0.setup(), [], fill[(1, 0)]
        fill[(1, 0)] = []
    LP = os.environ.get("LP", "10,20,30,40").split(",")
    for x, c in zip(LP, chunks(flat(ld), len(LP))):
        fill[(int(x[0]), int(x[1]))] = fill.get((int(x[0]), int(x[1])), []) + c
    NT_ = int(os.environ.get("NTW", "1"))
    T0 = int(os.environ.get("TW0", "5"))
    TWK = int(os.environ.get("TWK", "1"))
    fill[(5, 1)], fill[(6, 0)], fill[(6, 1)] = cp[:3]
    CP = os.environ.get("CP", "41,51,60,61,70")
    if CP:
        allc = groupify(p0.compute())
        g = next(k for k, x in enumerate(allc) if not isinstance(x, str) and "buffer_store_dword " in x[-1]) + 1
        pos = [(int(x[0]), int(x[1])) for x in CP.split(",")]
        for x in ((5, 1), (6, 0), (6, 1)):
            fill[x] = []
        fill[(7, 0)] = fill[(7, 0)][-1:]
        fill[pos[0]] = fill.get(pos[0], []) + allc[:g]
        for x, c in zip(pos[1:], chunks(allc[g:], len(pos) - 1)):
            fill[x] = c + fill.get(x, [])
    TS_ = os.environ.get("TWS", "41,50,51,60")
    if TS_:
        pos = [(int(x[0]), int(x[1])) for x in TS_.split(",")]
        for k, x in enumerate(pos):
            fill[x] = touch_wq(k, len(pos)) + fill.get(x, [])
    else:
        fill[(T0, TWK)] = touch_wq(0, 1) + fill.get((T0, TWK), [])
    if "f" in CT:
        su2, ld2 = code_touch("f" + typ, "L_p2", "L_p3_begin", 66, 82, 68)
        fill[(4, 1)] = fill.get((4, 1), []) + su2 + ld2
    for n in range(8):
        for kk in range(2):
            B.add(f1.kstep(typ, n, kk, vm.get((n, kk)), fill.get((n, kk)),
                           f2.p1_last_hook if (n, kk) == (7, 1) else None,
                           **(dict(bar=int(os.environ.get('BAR0', '30')), vm_pre=f1.dma_c(2) if PRO != 2 else None) if (n, kk) == (0, 1) else {})))
            if FINE and kk == 1 and n < 7:
                st(B)
    if typ == "K":
        st.n = n0
    if typ == "K":
        B("s_branch L_p2")
    return B


PACK_EARLY = os.environ.get('PACKE', '0') == '1'


def p2(st):
    B = Seg()
    B("L_p2:")
    NE = int(os.environ.get('NE', '20'))
    ep = chunks(f1.epilogue_items(), NE)
    fill = {k: list(ep[k]) for k in range(NE)}
    S = Seg()
    srd(S, SRD_F, 40, 8192, off=WS_FLAG)
    srd(S, SRD_DBG, 38, 256)
    fill[0] = groupify([i.text for i in S]) + fill[0]
    go_ld = f"buffer_load_dword v254, off, {sr(SRD_DBG,4)}, 0 sc1"
    fill[14] = fill[14] + [go_ld]
    for k in range(NE, 32):
        fill[k] = []
    T, t = 230, 36
    fill[20] = sig_off(255, t)
    fill[21] = f2.setup3(T)
    after = {11: poll("go", go_ld, 254, t) + signal(f1.F_1, 255, 254, t) + f3.p4_ptr_loads(),
             13: [f"s_load_dwordx2 s[32:33], s[0:1], {KA_WO}"]}
    S = Seg()
    f3.rb_cb(S, t, t + 1, 43)
    S(f"v_and_b32 v{T}, 15, v{V_L}")
    S(f"s_lshl_b32 s{t}, s{t}, 4\nv_add_u32 v{T+1}, s{t}, v{T}")
    S(f"s_lshr_b32 s{t}, s2, 4\nv_lshl_add_u32 v{T+2}, v{T}, 4, s{t}")
    S(f"v_and_b32 v{T+3}, 7, v{V_L}\nv_bfe_u32 v{T+4}, v{V_L}, 3, 1\nv_lshlrev_b32 v{T+3}, 3, v{T+3}")
    S(f"v_lshl_add_u32 v{T+3}, v{T+4}, 7, v{T+3}")
    S(f"s_bfe_u32 s{t}, s{f2.S_HEAD}, 0x10001\ns_lshl_b32 s{t}, s{t}, 6\ns_lshr_b32 s{t+1}, s{f2.S_HEAD}, 2\ns_add_u32 s{t}, s{t}, s{t+1}")
    S(f"v_add_u32 v{T+3}, s{t}, v{T+3}")
    S(f"v_lshrrev_b32 v{T+4}, 4, v{V_L}")
    items = groupify([i.text for i in S])
    items.append([f"v_cmp_eq_u32 vcc, 1, v{T+4}", "s_nop 1", f"v_cndmask_b32 v{T+3}, v{T+3}, v{T+2}, vcc"])
    items.append([f"v_cmp_eq_u32 vcc, 2, v{T+4}", "s_nop 1", f"v_cndmask_b32 v{T+3}, v{T+3}, v{T+1}, vcc"])
    items.append(f"v_lshlrev_b32 v{T+3}, 2, v{T+3}")
    fill[24] = fill[24] + items
    fill[26] = fill[26] + f3.p4_srds()
    if "a" in CT:
        su, ld = code_touch("a", "L_p3_begin", "L_p3_s1m_top", 228, 38, 238)
        fill[22] = su + ld
    f1_ld = f"buffer_load_dword v{T+7}, v{T+3}, {sr(SRD_F,4)}, 0 offen offset:{f1.F_1} sc1"
    pk = f3.pack_dma(T + 8) if PACK_EARLY else []
    if "p" in SJ:
        fill[28] = f3.xb_prefill(T + 14, f2.V_DO)
    fill[30] = [f1_ld] + f3.pack_srd() + pk[:14]
    fill[31] = f2.kv_dma("K", 0, 1) + f2.kv_dma("K", 1, 2)
    for n in range(16):
        for kk in range(2):
            ab = after.get(n) if kk == 1 else None
            seg = f2.kstep2(n, kk, fill.get(2 * n + kk), ab, poll("f1", f1_ld, T + 7, t) if (n, kk) == (15, 1) else ())
            if n == 11 and kk == 1:
                for i in seg:
                    if i.kind == "gwait":
                        i.groups.append("kvst")
            B.add(seg)
            if FINE and kk == 1 and n in (3, 7, 9, 10, 11, 12, 13, 14):
                st(B)
    if FINE:
        st(B)
    B("L_p3_begin:")
    return B


NPRE = int(os.environ.get('NPRE', '6'))


def p45(st):
    B = Seg()
    t, VP, VO, VS = 36, f3.V_PL, 254, 255
    S = Seg()
    VO2 = f3.V_GV
    S(f"s_lshr_b32 s{t}, s{f3.S_CB}, 1\ns_lshl_b32 s{t+1}, s{f3.S_KH}, 7\ns_add_u32 s{t}, s{t}, s{t+1}")
    S(f"v_lshl_add_u32 v{VO}, v{V_L}, 3, s{t}\ns_xor_b32 s{t}, s2, 4\nv_mov_b32 v{VP}, s{t}")
    w_off = [i.text for i in S] + [[f"v_cmp_lt_u32 vcc, 15, v{V_L}", "s_nop 1", f"v_cndmask_b32 v{VO}, v{VO}, v{VP}, vcc"],
                                   f"v_lshlrev_b32 v{VO}, 2, v{VO}"]
    w_ld = f"buffer_load_dword v{VP}, v{VO}, {sr(SRD_F,4)}, 0 offen offset:{f1.F_2S} sc1"
    S = Seg()
    S(f"s_sub_u32 s{t}, 15, s{f3.S_RB}\ns_min_u32 s{t}, s{t}, s{f3.S_RB}")
    if f2.M84:
        S(f"s_lshr_b32 s{t+1}, s{t}, 1\ns_xor_b32 s{t}, s{t}, s{t+1}\ns_and_b32 s{t}, s{t}, 1\ns_lshl_b32 s{t+1}, s{t+1}, 6")
        S(f"s_add_u32 s{t}, s{t}, s{t+1}")
    else:
        S(f"s_lshl_b32 s{t}, s{t}, 5")
    S(f"s_lshl_b32 s{t+1}, s{f3.S_KH}, 2\ns_add_u32 s{t}, s{t}, s{t+1}\ns_add_u32 s{t}, s{t}, {f1.F_2L // 4}")
    TE = f3.V_TE
    S(f"v_bfe_u32 v{TE}, v{V_L}, 4, 1\nv_lshl_add_u32 v{TE}, s{S_W}, 1, v{TE}\nv_sub_u32 v{TE+1}, 7, v{TE}")
    S(f"v_min_u32 v{TE}, v{TE}, v{TE+1}\nv_lshl_add_u32 v{TE+1}, v{TE}, 8, s{t}")
    if f2.M84:
        S(f"v_and_b32 v{VO2}, 7, v{V_L}\nv_lshlrev_b32 v{VO2}, 3, v{VO2}\nv_bfe_u32 v{TE}, v{V_L}, 3, 1\nv_lshlrev_b32 v{TE}, 1, v{TE}")
    else:
        S(f"v_and_b32 v{VO2}, 3, v{V_L}\nv_lshlrev_b32 v{VO2}, 3, v{VO2}\nv_bfe_u32 v{TE}, v{V_L}, 2, 2")
    S(f"v_add3_u32 v{VO2}, v{VO2}, v{TE}, v{TE+1}\nv_lshlrev_b32 v{VO2}, 2, v{VO2}")
    c_off = [i.text for i in S]
    c_ld = f"buffer_load_dword v{VP}, v{VO2}, {sr(SRD_F,4)}, 0 offen sc1"
    su = f3.p5_setup()
    B(f"v_lshlrev_b32 v{VS}, 20, v{V_L}\nv_mov_b32 v{VP}, 1\ns_lshl_b32 s83, s{S_W}, 8\ns_add_u32 s83, s83, s2")
    B(f"s_lshl_b32 s83, s83, 2\ns_add_u32 s83, s83, {f1.F_2L}")
    SIG = int(os.environ.get("SIGAT", "1"))
    sig = ["@vmwait ctx0", f"buffer_store_dword v{VP}, v{VS}, {sr(SRD_F,4)}, s83 offen sc1"]
    da, ya = f3.p4_late_setup()
    fl = {0: su[:len(su) // 3], 1: su[len(su) // 3:] + w_off + [w_ld], 2: c_off, 3: sig_off(VS, t), 4: ya}
    WPRE = 3
    vm = {3: f3.wo_stage(0) + f3.wo_stage(1), 4: f3.wo_stage(2)}
    EP = os.environ.get("EPOLL", "1") == "1"
    for rho in range(NPRE):
        head = sig if rho == SIG else poll("w", w_ld, VP, t) if rho == 3 else []
        if EP and rho == NPRE - 1:
            head = head + [c_ld]
        B.add(f3.p4_rho(rho, head=head, fill=fl.get(rho, []), vm=vm.get(rho, []), first=da if rho == 0 else ()))
    if not EP:
        B(c_ld)
    st(B)
    B.add(poll("f2", c_ld, VP, t))
    st(B)
    R, PRE = f3.RING, int(os.environ.get("PRE", "4"))
    ramp = []
    for n in range(R):
        if WPRE <= n < R - 1:
            ramp.append(("w", n, f3.wo_stage(n)))
        ramp.append(("c", n, f3.ctx_stage(n)))
    early = [x for x in ramp if x[1] < PRE and not (x[0] == "w" and x[1] >= 4)]
    late = [x for x in ramp if x not in early]
    NMRG = int(os.environ.get("NMRG", "1"))
    ev = chunks(flat([x[2] for x in early[1:]]), 8 - NMRG - NPRE)
    conv = []
    for rho in range(8 - NMRG, 8):
        conv += list(zip(chunks(f3.p4_mfmas(rho), 3), chunks(f3.p4_reads(rho + 1) if rho < 7 else [], 2) + [[]]))
    Y0 = (len(conv) + 1) // 2
    conv += [([], [])] * 2
    for rho in range(NPRE, 8 - NMRG):
        B.add(f3.p4_rho(rho, head=early[0][2] if rho == NPRE else [], vm=ev[rho - NPRE]))
    B("@vmwait o0 lgkm\ns_barrier")
    for ct in range(8):
        B(f3.rd_wo(0, 0, ct))
    st(B)
    f3_ld = f"buffer_load_dword v{VP}, v{VO}, {sr(SRD_F,4)}, 0 offen offset:{f1.F_3} sc1"
    f3_off = [f"v_and_b32 v{VO}, 15, v{V_L}", f"s_lshl_b32 s{t}, s{f3.S_CB}, 4", f"v_add_u32 v{VO}, s{t}, v{VO}",
              f"v_lshlrev_b32 v{VO}, 2, v{VO}"]
    yw = chunks(f3.p4_y_write(), 5) + [f3.p4_y_read()]
    yl = f3.y_loads()
    pre = chunks(f3.ep_pre(), 6)
    assert Y0 == 2 and f3.NTAIL == 3
    C = Seg()
    LOOP = Seg()
    x1, x2 = Seg(), Seg()
    x1("L_p5_x1:")
    x1.add(signal(f1.F_3, VS, VP, t) + f3_off)
    x1("s_branch L_p5_loop")
    x2("L_p5_x2:")
    x2(f3_ld + "\ns_branch L_p5_loop")
    ool.extend([x1, x2])
    for u in range(32 - f3.NTAIL):
        fl = [None] * 2
        if Y0 <= u < Y0 + 3:
            fl = yw[2 * (u - Y0):2 * (u - Y0) + 2]
        if u == Y0 + 3:
            fl = chunks(f3.p4_y_store(), 2)
        if 22 <= u < 25:
            y3 = chunks(yl, 6)
            fl = [flat(x) for x in y3[2 * (u - 22):2 * (u - 21)]]
            if u == 22:
                fl[0] = [poll("f3", f3_ld, VP, t)] + fl[0]
        if 26 <= u < 29:
            fl = pre[2 * (u - 26):2 * (u - 25)]
        if 10 <= u < 22:
            continue
        sg = f3.stage(u, fill=fl, head0=flat([x[2] for x in late]) if u == 0 else (),
                      conv=conv[2 * u:2 * u + 2] if u < Y0 else None)
        (B if u < 6 else LOOP if u < 10 else C).add(sg)
    B(f"s_mov_b32 s71, 3\n.p2align 5\nL_p5_loop:")
    LOOP("s_sub_u32 s71, s71, 1\ns_cbranch_scc1 L_p5_out\ns_cmp_eq_u32 s71, 2\ns_cbranch_scc1 L_p5_x1")
    LOOP("s_cmp_eq_u32 s71, 0\ns_cbranch_scc1 L_p5_x2\ns_branch L_p5_loop\nL_p5_out:")
    global P5_TRACE
    P5_TRACE = [B, LOOP, x1, LOOP, LOOP, x2, LOOP, C]
    head, B = [B, LOOP], C
    B.add(f3.tail())
    st(B)
    B.add(f3.xb_recv(SPIN, f3.ep_own()))
    st(B)
    f3.p5_epilogue(B)
    return head + [B]


HEADER = """; Generated by gen/fused.py (hand-written generator: gen/f1.py, f2.py, f3.py, asmlib.py). One persistent launch, one
"""


def build(out):
    st = VStamps()
    H = start(st)
    K, V = p1("K", st), p1("V", st)
    J = Seg()
    P2 = p2(st)
    st(P2)
    ctb = code_touch("b", "L_p3_s1m_top", "L_end", 172, 38, 174) if "b" in CT else ([], [])
    lin, o3, traces = f2.p3(
        "p3", st, f3.pack_dma(f2.V_T + 5) + (f3.p4_h_loads() if "h" in SJ else []),
        f3.early_x_loads(f2.SRD_X, f2.V_T) + sig_off(236, 36) + signal(f1.F_2S, 236, 237, 37)[:2] + flat(ctb[0]) + ctb[1],
        f3.p4_ur_dma(f2.V_T + 5), f3.p5_ptr_loads(), (signal(f1.F_2S, 236, 237, 37)[2:], ctb[1] if 'c' in CT else []),
        groupify(f3.pack_store(f2.V_T + 8, [96, 100, 104, 108, 128, 132, 136, 140], f2.V_DO)) +
        ([] if "p" in SJ else f3.xb_prefill(f2.V_T + 12, f2.V_DO)) + ([] if "h" in SJ else f3.p4_h_loads()),
        f3.p4_prep_items(), ["global_load_dword v238, v[228:229], off"] if 'd' in CT else [],
        f3.p4_reads(0))
    P45 = p45(st)
    E = Seg()
    st.dump(E)
    E("L_end:\ns_endpgm")
    Z = Seg()
    Z("L_code_end:\ns_endpgm")
    if DIAG:
        X = Seg()
        st(X)
        P2[1:1] = list(X)
    allseg = [H, K, V, P2] + lin + P45 + [E] + o3 + ool + [Z]
    exp_filter([K, V, P2] + lin + o3 + P45)
    resolve([[H, B, P2] + t + P5_TRACE + [E] for B in (K, V) for t in traces], verbose="-v" in sys.argv)
    resolve([[s] for s in ool if s not in P5_TRACE], verbose=False)
    if "-v" in sys.argv:
        for nm_, sg in (("p1K", [K]), ("p1V", [V]), ("p2", [P2]), ("p45", P45)):
            overflow_report(nm_, sg)
        for k_, b_ in f2.BODIES.items():
            overflow_report(k_, b_.segs + [[I(mfma16('a[0:3]', 'v[0:3]', 'v[0:3]'))]])
    hdr = "; @launch grid=(256,1,1) block=(256,1,1) lds=163840\n" + HEADER + '.amdgcn_target "amdgcn-amd-amdhsa--gfx950"\n.text\n' + MACROS
    open(out, "w").write(hdr + text_of(allseg) + kernel_desc(NAME))


if __name__ == "__main__":
    build(sys.argv[1])
```

```python
from common import *

S_W = 3
V_L = 1

SRD_H, SRD_UR, SRD_YO, SRD_D = 16, 20, 24, 28
S_T4 = 36
S_DO = 42
S_UB = 43
V_AA, V_BA = 40, 5
V_HW = 10
V_YW, V_YR, V_YS = 11, 12, 13
V_T4 = 16
V_O = 24
V_DA = 44
V_H = (208, 212, 228, 234)
V_HO = 15
V_D = 232
V_ACC4 = 76
A_FR = 128
V_YT = 108
H_STRIDE = 4160
H_WAVE = 2 * H_STRIDE
U_LDS, U_WAVE = 132096, 4608
Y_LDS = 49152
WO_LDS = 66560


def p4_ptr_loads():
    return [f"s_load_dwordx4 s[32:35], s[0:1], {KA_SSMK}"]


def p4_srds():
    S = Seg()
    t = S_T4
    S(f"s_lshl_b32 s{t}, s2, 2")
    S(f"s_add_u32 s{t}, s{t}, s{S_W}")
    S(f"s_lshl_b32 s{S_DO}, s{t}, 1")
    S(f"s_lshl_b32 s{t+1}, s{t}, 12")
    srd(S, SRD_H, 32, 4096, off=f"s{t+1}")
    S(f"s_add_u32 s{t+1}, s{t+1}, {WS_UR}")
    srd(S, SRD_UR, 40, 4096, off=f"s{t+1}")
    S(f"s_lshl_b32 s{t+1}, s2, 14")
    S(f"s_add_u32 s{t+1}, s{t+1}, {WS_Y4}")
    srd(S, SRD_YO, 40, 16384, off=f"s{t+1}")
    srd(S, SRD_D, 34, 2048)
    S(f"s_mul_i32 s{S_UB}, s{S_W}, {U_WAVE}")
    S(f"s_add_u32 s{S_UB}, s{S_UB}, {U_LDS}")
    return groupify([i.text for i in S])


def p4_ur_dma(tmp):
    out = [f"v_lshlrev_b32 v{tmp}, 4, v{V_L}", f"s_mov_b32 m0, s{S_UB}", "s_nop 0"]
    for i in range(4):
        out.append(f"buffer_load_dwordx4 v{tmp}, {sr(SRD_UR,4)}, 0 offen offset:{1024*i} sc1 lds #ur")
    return out


def p4_h_loads():
    return [f"buffer_load_dwordx4 {vr(V_H[i],4)}, v{V_HO}, {sr(SRD_H,4)}, 0 offen offset:{1024*i}{NT_K}" for i in range(4)] + \
        [f"buffer_load_ushort v{V_D}, off, {sr(SRD_D,4)}, s{S_DO}"]


def p4_setup(S):
    T, t, l = V_T4, S_T4, V_L
    S(f"s_mul_i32 s{t}, s{S_W}, {H_WAVE}")
    S(f"v_and_b32 v{T}, 15, v{l}")
    S(f"v_lshrrev_b32 v{T+1}, 4, v{l}")
    S(f"v_add_u32 v{T+2}, 1, v{T}")
    S(f"v_and_b32 v{T+3}, 1, v{T+2}")
    S(f"v_mul_u32_u24 v{T+3}, {H_STRIDE}, v{T+3}")
    S(f"v_add_u32 v{T+2}, 2, v{T}")
    S(f"v_lshrrev_b32 v{T+2}, 1, v{T+2}")
    S(f"v_lshl_add_u32 v{T+3}, v{T+2}, 2, v{T+3}")
    S(f"v_lshl_add_u32 v{T+3}, v{T+1}, 4, v{T+3}")
    S(f"v_add_u32 v{V_AA}, s{t}, v{T+3}")
    for k in range(1, 4):
        S(f"v_add_u32 v{V_AA+k}, {1024*k}, v{V_AA}")
    S(f"v_add_u32 v{V_HW}, s{t}, v{V_HO}")
    S(f"v_lshlrev_b32 v{T+2}, 5, v{T}")
    S(f"v_lshlrev_b32 v{T+3}, 4, v{T+1}")
    S(f"v_sub_u32 v{T+3}, v{T+3}, v{T+2}")
    S(f"s_add_u32 s{t+1}, s{S_UB}, 480")
    S(f"v_add_u32 v{V_BA}, s{t+1}, v{T+3}")


def p4_prep(S):
    T, l = V_T4, V_L
    Z = T + 4
    for k in range(4):
        S(f"v_mov_b32 v{Z+k}, 0")
    S(f"v_and_b32 v{T}, 1, v{l}")
    S(f"v_mul_u32_u24 v{T}, {H_STRIDE}, v{T}")
    S(f"v_and_b32 v{T+1}, 2, v{l}")
    S(f"v_lshl_add_u32 v{T}, v{T+1}, 3, v{T}")
    S(f"v_add_u32 v{T}, s{S_T4}, v{T}")
    S(f"ds_write_b128 v{T}, {vr(Z,4)}")
    S(f"v_and_b32 v{T+1}, 31, v{l}")
    S(f"v_lshlrev_b32 v{T+1}, 4, v{T+1}")
    S(f"v_add_u32 v{T+1}, s{S_UB}, v{T+1}")
    S(f"ds_write_b128 v{T+1}, {vr(Z,4)} offset:4096")
    for i in range(4):
        D, M = V_H[i], T + 2
        O = V_O + 4 * (i & 1)
        S(f"v_mov_b32 v{M}, 0" if i == 0 else f"v_mov_b32_dpp v{M}, v{V_H[i-1]+3} wave_ror:1 row_mask:0xf bank_mask:0xf")
        S(f"ds_write_b128 v{V_HW}, {vr(D,4)} offset:{32 + 1024*i}")
        S(f"v_mov_b32_dpp v{M}, v{D+3} wave_shr:1 row_mask:0xf bank_mask:0xf")
        for k in range(4):
            S(f"v_alignbit_b32 v{O+k}, v{D+k}, v{D+k-1 if k else M}, 16")
        S(f"ds_write_b128 v{V_HW}, {vr(O,4)} offset:{32 + 1024*i + H_STRIDE}")


def p4_late_setup():
    T, t, l = V_T4, S_T4, V_L
    out = [f"v_and_b32 v{T}, 15, v{l}", f"v_lshrrev_b32 v{T+1}, 4, v{l}", f"v_lshl_add_u32 v{T+2}, v{T+1}, 3, v{T}",
           f"v_sub_u32 v{V_D+1}, 15, v{T+2}", f"v_lshlrev_b32 v{T+2}, 16, v{V_D}"]
    for i in range(4):
        out += [[f"v_cmp_eq_u32 vcc, {2*i}, v{V_D+1}", f"v_cmp_eq_u32_e64 s[38:39], {2*i+1}, v{V_D+1}"],
                ["s_nop 0", f"v_cndmask_b32 v{V_DA+i}, 0, v{V_D}, vcc"],
                f"v_cndmask_b32_e64 v{V_DA+i}, v{V_DA+i}, v{T+2}, s[38:39]"]
    S = Seg()
    S(f"v_mul_u32_u24 v{T+2}, 136, v{T}")
    S(f"v_lshl_add_u32 v{T+2}, v{T+1}, 5, v{T+2}")
    S(f"s_lshl_b32 s{t+1}, s{S_W}, 1")
    S(f"s_add_u32 s{t+1}, s{t+1}, {Y_LDS}")
    S(f"v_add_u32 v{V_YW}, s{t+1}, v{T+2}")
    S(f"v_lshrrev_b32 v{T+2}, 3, v{l}")
    S(f"v_mul_u32_u24 v{T+2}, 136, v{T+2}")
    S(f"v_and_b32 v{T+3}, 7, v{l}")
    S(f"v_lshl_add_u32 v{T+2}, v{T+3}, 4, v{T+2}")
    S(f"s_mul_i32 s{t+1}, s{S_W}, {4*1088}")
    S(f"s_add_u32 s{t+1}, s{t+1}, {Y_LDS}")
    S(f"v_add_u32 v{V_YR}, s{t+1}, v{T+2}")
    S(f"s_lshl_b32 s{t+1}, s{S_W}, 12")
    S(f"v_add_u32 v{V_YS}, s{t+1}, v{V_HO}")
    return out, [i.text for i in S]


def p4_prep_items():
    S = Seg()
    p4_setup(S)
    p4_prep(S)
    out = []
    for x in [i.text for i in S]:
        if x.startswith("v_cndmask") and out[-1].startswith("v_cmp"):
            out[-1] = [out[-1], "s_nop 1", x]
        else:
            out.append(x)
    return out


def afr(rho, q):
    return A_FR + (rho & 1) * 64 + q * 4


def bfr(rho, p):
    return A_FR + (rho & 1) * 64 + 32 + p * 4


def p4_reads(rho):
    out = []
    for k in range(8):
        out.append(f"ds_read_b128 {ar(bfr(rho, k),4)}, v{V_BA} offset:{512*(7-k) + 64*rho}")
        for a in range(2):
            o = 128 * (k & 1) + 16 * rho + 2 * a
            out.append(f"ds_read2_b32 {ar(afr(rho, k) + 2*a, 2)}, v{V_AA + (k >> 1)} offset0:{o} offset1:{o+1}")
    return out


def p4_mfmas(rho):
    mf = []
    if "4" in ORD and rho > 0:
        order = [(q + e, p) for q in range(0, 8, 2) for p in range(8 - q) for e in range(2) if p + q + e < 8]
        return [mfma16(vr(V_ACC4 + 4 * (p + q), 4), ar(afr(rho, q), 4), ar(bfr(rho, p), 4)) for q, p in order]
    for q in range(8):
        for p in range(8 - q):
            d = vr(V_ACC4 + 4 * (p + q), 4)
            mf.append(mfma16(d, ar(afr(rho, q), 4), ar(bfr(rho, p), 4), "0" if (rho == 0 and q == 0) else None))
        if rho == 0 and q == 7:
            for p in range(8):
                mf.append(mfma16(vr(V_ACC4 + 4 * p, 4), vr(V_DA, 4), ar(bfr(0, p), 4)))
    return mf


def p4_rho(rho, head=(), vm=(), fill=(), first=()):
    mf = p4_mfmas(rho)
    sc = Sched(mf, 2)
    if rho < 7:
        sc.stream(p4_reads(rho + 1), 0, 30, prio=2)
    sc.stream(list(vm), 0, len(mf) - 1, prio=1)
    sc.stream(list(first), 0, 24, prio=3)
    sc.stream(list(fill), 0, len(mf) - 1)
    return sc.build(head)


def p4_y_write():
    out = []
    T = V_T4
    for tt in range(8):
        a = V_ACC4 + 4 * tt
        r = T + 2 * (tt & 1)
        out += [f"v_cvt_pk_bf16_f32 v{r}, v{a}, v{a+1}", f"v_cvt_pk_bf16_f32 v{r+1}, v{a+2}, v{a+3}"]
        for k in range(2):
            out += [f"ds_write_b16 v{V_YW}, v{r+k} offset:{2176*tt + 16*k}",
                    f"ds_write_b16_d16_hi v{V_YW}, v{r+k} offset:{2176*tt + 16*k + 8}"]
    return out


def p4_y_read():
    return [f"ds_read_b64 {vr(V_YT + 4*i + 2*a, 2)}, v{V_YR} offset:{1088*i + 8*a}" for i in range(4) for a in range(2)]


def p4_y_store(flavor="sc1"):
    return [f"buffer_store_dwordx4 {vr(V_YT + 4*i, 4)}, v{V_YS}, {sr(SRD_YO,4)}, 0 offen offset:{1024*i} {flavor} #yst"
            for i in range(4)]


SRD_CX, SRD_WO, SRD_XB, SRD_Y, SRD_OUT = 44, 48, 52, 56, 60
S_CO = 68
S_WO = 69
S_MW = 70
S_CNT = 71
S_T = 72
S_XO, S_YO, S_KH, S_RB, S_CB = 78, 79, 80, 81, 82
P_X, P_WO, P_OUT = 84, 86, 88

V_CD = 236
V_WD = 238
V_WA = 242
V_XV, V_YV, V_GV = 250, 251, 252
V_PL = 253
V_ACC = 124
A_WF = 64
V_RX = 76
V_X = 192
V_Y = 208
V_G = 6
V_A = 36
V_T = 48
V_TE = 228
A_C = 0
RING = 4

NS = 32


def acc5(ct, rt):
    return V_ACC + (ct * 2 + rt) * 4


def p5_ptr_loads():
    return [f"s_load_dwordx2 {sr(P_OUT,2)}, s[0:1], {KA_OUT}"]


def rb_cb(S, rb, cb, t):
    S(f"s_and_b32 s{rb}, s2, 3")
    S(f"s_lshl_b32 s{rb}, s{rb}, 1")
    S(f"s_sub_u32 s{t}, 14, s{rb}")
    S(f"s_bitcmp1_b32 s2, 4")
    S(f"s_cselect_b32 s{rb}, s{t}, s{rb}")
    S(f"s_bfe_u32 s{t}, s2, 0x10003")
    S(f"s_add_u32 s{rb}, s{rb}, s{t}")
    S(f"s_bfe_u32 s{cb}, s2, 0x10002")
    S(f"s_lshr_b32 s{t}, s2, 5")
    S(f"s_lshl_b32 s{t}, s{t}, 1")
    S(f"s_add_u32 s{cb}, s{cb}, s{t}")


def p5_setup():
    S = Seg()
    T, t, l = V_T, S_T, V_L
    rb_cb(S, S_RB, S_CB, t + 2)
    S(f"s_mov_b32 s{t}, s{S_RB}\ns_mov_b32 s{t+1}, s{S_CB}")
    S(f"s_lshl_b32 s{t+2}, s{t}, 2")
    S(f"s_add_u32 s{t+2}, s{t+2}, s{S_W}")
    S(f"s_lshl_b32 s{S_CO}, s{t+2}, 18")
    S(f"s_and_b32 s{S_KH}, s{t+1}, 1")
    S(f"s_lshl_b32 s{t+3}, s{S_KH}, 16")
    S(f"s_add_u32 s{S_CO}, s{S_CO}, s{t+3}")
    S(f"s_lshl_b32 s{S_WO}, s{t+1}, 19")
    S(f"s_lshl_b32 s{t+3}, s{t+1}, 7")
    S(f"s_lshl_b32 s{S_MW}, s{S_W}, 12")
    S(f"s_lshl_b32 s{S_XO}, s{t+2}, 16")
    S(f"s_add_u32 s{S_XO}, s{S_XO}, s{t+3}")
    S(f"s_lshl_b32 s{S_YO}, s{t+1}, 18")
    S(f"s_lshl_b32 s{t+3}, s{t+2}, 8")
    S(f"s_add_u32 s{S_YO}, s{S_YO}, s{t+3}")
    S(f"v_lshlrev_b32 v{V_CD}, 4, v{l}")
    S(f"v_add_u32 v{V_CD+1}, 0x20000, v{V_CD}")
    S(f"v_add_u32 v{V_WD}, s{S_MW}, v{V_CD}")
    S(f"s_lshl_b32 s{t+3}, s{S_KH}, 12")
    S(f"v_add_u32 v{V_WA+2}, s{t+3}, v{V_CD}")
    S(f"v_xor_b32 v{V_WA+3}, 0x1000, v{V_WA+2}")
    S(f"v_add_u32 v{V_WA}, {WO_LDS}, v{V_WA+2}")
    S(f"v_add_u32 v{V_WA+1}, {WO_LDS}, v{V_WA+3}")
    S(f"v_bfe_u32 v{T+2}, v{l}, 4, 1")
    S(f"v_lshrrev_b32 v{T+4}, 5, v{l}")
    S(f"v_and_b32 v{T}, 15, v{l}")
    S(f"v_lshlrev_b32 v{T+5}, 5, v{T+2}")
    S(f"v_lshl_add_u32 v{T+5}, v{T+4}, 4, v{T+5}")
    S(f"v_lshl_add_u32 v{V_XV}, v{T}, 11, v{T+5}")
    S(f"v_lshlrev_b32 v{T+5}, 11, v{T+5}")
    S(f"v_lshl_add_u32 v{V_YV}, v{T}, 3, v{T+5}")
    srd(S, SRD_CX, 40, 16 * MB, off=WS_CTX)
    srd(S, SRD_WO, 40, 8 * MB, off=WS_WP)
    srd(S, SRD_XB, 40, 4 * MB, off=WS_XB)
    srd(S, SRD_Y, 40, 4 * MB, off=WS_Y4)
    srd(S, SRD_OUT, P_OUT, 2048 * 1024 * 2)
    return groupify([i.text for i in S])


def ld_ctx(n, kq, rt):
    return f"buffer_load_dwordx4 {ar(A_C + (n % RING)*16 + (kq*2 + rt)*4, 4)}, v{V_CD+rt}, {sr(SRD_CX,4)}, s{S_CO} offen offset:{1024*kq} sc1"


ADV_C = f"s_add_u32 s{S_CO}, s{S_CO}, 2048"
ADV_W = f"s_add_u32 s{S_WO}, s{S_WO}, 16384"


def wo_slot(n):
    k = n % RING
    return (WO_LDS + k * 16384, 0, k * 16384) if k < 4 else ((k - 4) * 16384, 2, (k - 4) * 16384)


def wo_stage(n):
    return [f"s_add_u32 m0, s{S_MW}, {wo_slot(n)[0]}"] + \
        [f"buffer_load_dwordx4 v{V_WD}, {sr(SRD_WO,4)}, s{S_WO} offen offset:{1024*i} sc1 lds #o{n & 3}" for i in range(4)] + [ADV_W]


def ctx_stage(n):
    return [ld_ctx(n, kq, rt) for kq in range(2) for rt in range(2)] + [ADV_C]


def rd_wo(n, kq, ct):
    _, reg, off = wo_slot(n)
    return f"ds_read_b128 {ar(A_WF + kq*32 + ct*4, 4)}, v{V_WA + reg + (ct >> 2)} offset:{off + kq*8192 + (ct & 3)*1024}"


PK_LDS = 131072


def pack_srd():
    return ["s_lshr_b32 s36, s2, 3", "s_lshl_b32 s36, s36, 18", "s_and_b32 s37, s2, 7", "s_lshl_b32 s37, s37, 8",
            "s_add_u32 s36, s36, s37", f"s_lshl_b32 s37, s{S_W}, 16", "s_add_u32 s36, s36, s37",
            ["s_add_u32 s32, s82, s36", "s_addc_u32 s33, s83, 0"], "s_mov_b32 s34, 65536", "s_mov_b32 s35, 0x20000"]


def pack_dma(T):
    out = [f"v_lshrrev_b32 v{T}, 4, v{V_L}", f"v_and_b32 v{T+1}, 15, v{V_L}", f"v_lshlrev_b32 v{T+2}, 1, v{T}",
           f"v_xor_b32 v{T+1}, v{T+1}, v{T+2}", f"v_lshlrev_b32 v{T}, 11, v{T}",
           f"v_lshl_add_u32 v{T}, v{T+1}, 4, v{T}", f"v_xor_b32 v{T+1}, 128, v{T}",
           f"s_lshl_b32 s36, s{S_W}, 13"]
    for i in range(8):
        if i % 4 == 0:
            out.append(f"s_add_u32 m0, s36, {PK_LDS + (i >> 2)*4096}")
        out += [f"s_mov_b32 s37, {8192*i - 1024*(i & 3)}",
                f"buffer_load_dwordx4 v{T + (i & 1)}, s[32:35], s37 offen offset:{1024*(i & 3)}{NT_O} lds #pack"]
    return out


def pack_store(T, regs, vdo):
    l = V_L
    out = [f"v_lshrrev_b32 v{T+1}, 2, v{l}", f"v_and_b32 v{T}, 7, v{T+1}", f"v_lshlrev_b32 v{T+1}, 8, v{T+1}",
           f"v_and_b32 v{T+2}, 3, v{l}", f"v_lshl_add_u32 v{T+1}, v{T+2}, 3, v{T+1}",
           f"s_lshl_b32 s36, s{S_W}, 13", f"s_add_u32 s36, s36, {PK_LDS}", f"v_add_u32 v{T+1}, s36, v{T+1}",
           "@vmwait pack"]
    for j in range(8):
        out += [f"v_xor_b32 v{T+2}, {j}, v{T}", f"v_lshl_add_u32 v{T+2}, v{T+2}, 5, v{T+1}"]
        out += [f"ds_read_b64_tr_b16 {vr(regs[j] + 2*a, 2)}, v{T+2} offset:{4096*a}" for a in range(2)]
    S = Seg()
    srd(S, 32, 40, 8 * MB, off=WS_WP)
    out += [i.text for i in S]
    out += ["s_and_b32 s36, s2, 7", "s_lshl_b32 s36, s36, 20", "s_lshr_b32 s37, s2, 3", "s_lshl_b32 s37, s37, 15",
            "s_add_u32 s36, s36, s37", f"s_lshl_b32 s37, s{S_W}, 12", "s_add_u32 s36, s36, s37", "s_add_u32 s37, s36, 4096"]
    for j in range(8):
        out.append(f"buffer_store_dwordx4 {vr(regs[j],4)}, v{vdo}, s[32:35], s{36 + (j >> 2)} offen offset:{1024*(j & 3)} sc1")
    return out


def y_loads():
    out = []
    for rt in range(2):
        for pr in range(2):
            for e in range(2):
                out.append([f"s_add_u32 s{S_T}, s{S_YO}, {(8*pr + e)*16384}",
                            f"buffer_load_dwordx2 {vr(V_Y + ((rt*2 + pr)*2 + e)*2, 2)}, v{V_YV}, {sr(SRD_Y,4)}, s{S_T} offen offset:{128*rt} sc1"])
    return out


def early_x_loads(srd_x, T):
    S = Seg()
    l = V_L
    rb_cb(S, 36, 37, 32)
    S(f"s_lshl_b32 s36, s36, 2\ns_add_u32 s36, s36, s{S_W}")
    S(f"s_lshl_b32 s37, s37, 7\ns_lshl_b32 s32, s36, 16\ns_add_u32 s37, s37, s32\ns_lshl_b32 s36, s36, 7")
    S(f"v_and_b32 v{T}, 15, v{l}\nv_bfe_u32 v{T+1}, v{l}, 4, 1\nv_lshlrev_b32 v{T+1}, 5, v{T+1}")
    S(f"v_lshrrev_b32 v{T+2}, 5, v{l}\nv_lshl_add_u32 v{T+1}, v{T+2}, 4, v{T+1}")
    S(f"v_lshl_add_u32 v{T+1}, v{T}, 11, v{T+1}\nv_lshlrev_b32 v{T}, 2, v{T}")
    srd(S, 32, 40, 8192, off=WS_G)
    for rt in range(2):
        for pr in range(2):
            S(f"buffer_load_dwordx4 {vr(V_X + (rt*2 + pr)*4, 4)}, v{T+1}, {sr(srd_x,4)}, s37 offen offset:{64*pr}")
        S(f"buffer_load_dword v{V_G+rt}, v{T}, s[32:35], s36 offen offset:{64*rt} sc1")
        if rt == 0:
            S("s_add_u32 s37, s37, 32768")
    return [i.text for i in S]


def ep_pre():
    out = []
    T = V_TE
    for rt in range(2):
        out.append(f"v_sub_f32 v{V_G+2+rt}, 1.0, v{V_G+rt}")
        for pr in range(2):
            for u in range(4):
                x = V_X + (rt * 2 + pr) * 4 + u
                y = V_Y + (rt * 2 + pr) * 4 + u
                a = V_A + (rt * 2 + pr) * 8 + 2 * u
                out += [f"v_lshlrev_b32 v{a}, 16, v{x}", f"v_lshlrev_b32 v{T}, 16, v{y}",
                        f"v_and_b32 v{a+1}, 0xffff0000, v{x}", f"v_and_b32 v{T+1}, 0xffff0000, v{y}",
                        f"v_mul_f32 v{a}, v{a}, v{T}", f"v_mul_f32 v{a+1}, v{a+1}, v{T+1}",
                        f"v_mul_f32 v{a}, v{a}, v{V_G+rt}", f"v_mul_f32 v{a+1}, v{a+1}, v{V_G+rt}"]
    return out


def stage(u, fill=None, bar_tags=(), after_bar=(), head0=(), conv=None):
    S = Seg()
    for kq in range(2):
        cts = list(range(8))
        mf = [mfma16(vr(acc5(ct, rt), 4), ar(A_WF + kq * 32 + ct * 4, 4),
                     ar(A_C + (u % RING) * 16 + (kq * 2 + rt) * 4, 4), "0" if (u == 0 and kq == 0) else None)
              for ct in cts for rt in range(2)]
        cm, cr = conv[kq] if conv else ([], [])
        own, mf, pos = mf, [], []
        for k, m in enumerate(own):
            mf += cm[k * len(cm) // 16:(k + 1) * len(cm) // 16] + [m]
            pos.append(len(mf) - 1)
        sc = Sched(mf, 2)
        sc.stream(cr, 0, len(mf) - 4, prio=2)
        head = []
        rd = []
        if kq == 0:
            rd = [rd_wo(u, 1, ct) for ct in range(8)]
        else:
            rd = [rd_wo(u + 1, 0, ct) for ct in (range(8) if u + 1 < 32 - NTAIL else range(4, 8))]
            head = [f"@vmwait o{(u + 1) & 3} " + " ".join(bar_tags) + " lgkm", "s_barrier"] + list(after_bar)
        sc.stream(rd, 0, pos[12], prio=3)
        w = wo_stage(u + RING - 1) if u + RING - 1 < 32 else []
        w = w[:3] if kq == 0 else w[3:]
        c = [ld_ctx(u, kq, 0), ld_ctx(u, kq, 1)] + ([ADV_C] if kq == 1 else []) if u + RING < 32 else []
        if head0 and kq == 0:
            x = list(head0) + w
            sc.stream(x + c, at=[(k * pos[14]) // len(x) for k in range(len(x))] + pos[14:], prio=4)
        else:
            sc.stream(w, 1, pos[14], prio=1)
            sc.stream(c, at=[pos[14], pos[15], pos[15]], prio=4)
        if fill and fill[kq]:
            sc.stream(fill[kq], 0, len(mf))
        S.add(sc.build(head if kq else ["s_waitcnt lgkmcnt(0)"]))
    return S


NTAIL = int(os.environ.get("NTAIL", "3"))


def tail():
    steps = [(h, u, kq) for h in (1, 0) for u in range(32 - NTAIL, 32) for kq in range(2)]
    mf, rd, at = [], [], []
    for i, (h, u, kq) in enumerate(steps):
        mf += [mfma16(vr(acc5(ct, rt), 4), ar(A_WF + kq * 32 + ct * 4, 4), ar(A_C + (u % RING) * 16 + (kq * 2 + rt) * 4, 4))
               for ct in range(4 * h, 4 * h + 4) for rt in range(2)]
        if i + 1 < len(steps):
            h2, u2, kq2 = steps[i + 1]
            rd += [rd_wo(u2, kq2, ct) for ct in range(4 * h2, 4 * h2 + 4)]
            at += [8 * i + k for k in range(4)]
    sc = Sched(mf, 2)
    sc.stream(rd, at=at, prio=3)
    for j in range(1, NTAIL):
        sc.pin(8 * (2 * j - 1) - 1, [f"@vmwait o{(32 - NTAIL + j) & 3}", "s_barrier"])
    xs = xb_send()
    sc.stream(xs, at=[0, 0] + [16 * NTAIL + 2] * (len(xs) - 2), prio=2)
    return sc.build(["s_waitcnt lgkmcnt(0)"])


def xb_prefill(T, vdo):
    S = Seg()
    srd(S, 4, 40, 4 * MB, off=WS_XB)
    S("s_lshl_b32 s36, s2, 14")
    for k in range(4):
        S(f"v_mov_b32 v{T+k}, -1")
    for k in range(4):
        S(f"buffer_store_dwordx4 {vr(T,4)}, v{vdo}, s[4:7], s36 offen offset:{1024*k} sc1")
    return groupify([i.text for i in S])


def swaps(h):
    return [f"v_permlane16_swap_b32 v{acc5(4*h + 2*pr, rt) + r}, v{acc5(4*h + 2*pr + 1, rt) + r}"
            for rt in range(2) for pr in range(2) for r in range(4)]


def xb_send():
    out = [f"s_xor_b32 s{S_T}, s2, 4", f"s_lshl_b32 s{S_T}, s{S_T}, 14"]
    sw = swaps(1)
    for k in range(4):
        a, b = acc5(4 + 2 * (k & 1), k >> 1), acc5(5 + 2 * (k & 1), k >> 1)
        out += sw[4 * k:4 * k + 4]
        out += [f"v_cvt_pk_bf16_f32 v{a}, v{a}, v{a+1}", f"v_cvt_pk_bf16_f32 v{a+1}, v{a+2}, v{a+3}",
                f"v_cvt_pk_bf16_f32 v{a+2}, v{b}, v{b+1}", f"v_cvt_pk_bf16_f32 v{a+3}, v{b+2}, v{b+3}",
                f"buffer_store_dwordx4 {vr(a,4)}, v{V_WD}, {sr(SRD_XB,4)}, s{S_T} offen offset:{1024*k} sc1"]
    return out


def ep_own():
    out = swaps(0)
    for rt in range(2):
        for pr in range(2):
            a = V_A + (rt * 2 + pr) * 8
            out += [f"v_fma_f32 v{a+j}, v{acc5(2*pr + (j >> 2), rt) + (j & 3)}, v{V_G+2+rt}, v{a+j}" for j in range(8)]
    return out


def xb_recv(spin, meanwhile):
    ld = [f"buffer_load_dwordx4 {vr(V_RX + 4*k,4)}, v{V_WD}, {sr(SRD_XB,4)}, s{S_T} offen offset:{1024*k} sc1" for k in range(4)]
    out = [f"s_lshl_b32 s{S_T}, s2, 14", f"s_mov_b32 s{S_T+1}, {spin}"] + ld + meanwhile + ["s_branch L_xb_chk", "L_xb:"] + ld
    T = V_TE
    out += [f"s_sub_u32 s{S_T+1}, s{S_T+1}, 1", "s_cbranch_scc1 L_xb_done", "L_xb_chk:", "s_waitcnt vmcnt(3)",
            f"v_max3_u32 v{T}, v{V_RX}, v{V_RX+1}, v{V_RX+2}"]
    for k in range(3, 15, 2):
        out.append(f"v_max3_u32 v{T}, v{T}, v{V_RX+k}, v{V_RX+k+1}")
    out += [f"v_max_u32 v{T}, v{T}, v{V_RX+15}", f"v_cmp_eq_u32 vcc, -1, v{T}", "s_nop 4", "s_cbranch_vccnz L_xb", "L_xb_done:",
            "s_waitcnt vmcnt(0)"]
    return out


def p5_epilogue(S):
    T = V_RX + 16
    for rt in range(2):
        S(f"s_add_u32 s{S_T}, s{S_XO}, {rt*32768}")
        for pr in range(2):
            k = rt * 2 + pr
            a = V_A + 8 * k
            for u in range(4):
                r = V_RX + 4 * k + u
                S(f"v_lshlrev_b32 v{T}, 16, v{r}\nv_and_b32 v{T+1}, 0xffff0000, v{r}")
                S(f"v_fmac_f32 v{a+2*u}, v{T}, v{V_G+2+rt}\nv_fmac_f32 v{a+2*u+1}, v{T+1}, v{V_G+2+rt}")
                S(f"v_cvt_pk_bf16_f32 v{V_X+4*k+u}, v{a+2*u}, v{a+2*u+1}")
            S(f"buffer_store_dwordx4 {vr(V_X+4*k,4)}, v{V_XV}, {sr(SRD_OUT,4)}, s{S_T} offen offset:{64*pr} sc1")
```

```python
import sys
from common import *
import f1, f2, f3

NAME = "gated_mix__ssm_conv_h3__compressed_kv_cla__prompt_kernel"
SRD_F, SRD_DBG = 8, 12
S_W, V_L = 3, 1
V_PF = 79
SPIN = 400000
ool = []


def sig_off(v, t):
    return [f"v_lshlrev_b32 v{v}, 20, v{V_L}", f"s_lshl_b32 s{t}, s{S_W}, 26", f"v_add_u32 v{v}, s{t}, v{v}"]


def signal(F, voff, vone, t, val=1):
    return [f"v_mov_b32 v{vone}, {val}", f"s_lshl_b32 s{t}, s2, 2",
            f"buffer_store_dword v{vone}, v{voff}, {sr(SRD_F,4)}, s{t} offen offset:{F} sc1"]


def poll(tag, load, vp, t, val=1):
    S = Seg()
    S(f"L_spin_{tag}:\ns_mov_b32 s{t}, {SPIN}\nL_spin_{tag}_l:\ns_sleep 1")
    S(load)
    S(f"s_waitcnt vmcnt(0)\nv_cmp_gt_u32 vcc, {val}, v{vp}\ns_nop 4\ns_cbranch_vccz L_spin_{tag}_ret")
    S(f"s_sub_u32 s{t}, s{t}, 1\ns_cmp_lg_u32 s{t}, 0\ns_cbranch_scc1 L_spin_{tag}_l\ns_branch L_spin_{tag}_ret")
    ool.append(S)
    return [f"v_cmp_gt_u32 vcc, {val}, v{vp}", "s_nop 4", f"s_cbranch_vccnz L_spin_{tag}", f"L_spin_{tag}_ret:"]


def touch_wq_setup():
    return [["s_mov_b32 s4, s34", "s_mov_b32 s5, s35"], [f"s_mov_b32 s6, {8*MB}", "s_mov_b32 s7, 0x20000"],
            "s_lshr_b32 s43, s2, 3", "s_lshl_b32 s43, s43, 2", f"s_add_u32 s43, s43, s{S_W}", "s_lshl_b32 s43, s43, 16",
            "s_and_b32 s37, s2, 7", "s_lshl_b32 s37, s37, 10", "s_add_u32 s43, s43, s37",
            f"v_lshrrev_b32 v78, 3, v{V_L}", f"v_and_b32 v79, 7, v{V_L}", "v_lshlrev_b32 v79, %d, v79" % (27 if "tlbtouch" in EXP else 7),
            "v_lshl_add_u32 v78, v78, 13, v79", "v_add_u32 v78, s43, v78"]


def touch_wq(k, n):
    if n == 1:
        return [f"buffer_load_dword v{V_PF}, v78, s[4:7], 0 offen{NT_Q}"]
    return [f"s_and_b32 s37, s{S_W}, {n-1}", [f"s_cmp_eq_u32 s37, {k}", "s_cselect_b32 s37, 0, 0x40000000"],
            "v_add_u32 v229, s37, v78", f"buffer_load_dword v{V_PF}, v229, s[4:7], 0 offen{NT_Q}"]


def code_touch(tag, lo, hi, va, t, junk):
    su = [[f"s_getpc_b64 s[{t}:{t+1}]", f"L_ct_{tag}:"],
          [f"s_add_u32 s{t}, s{t}, {lo} - L_ct_{tag}", f"s_addc_u32 s{t+1}, s{t+1}, 0"],
          f"v_mov_b32 v{va+1}, s{t+1}", f"v_mov_b32 v{va}, s{t}",
          f"s_lshr_b32 s{t}, s2, 3", f"s_lshl_b32 s{t}, s{t}, 2", f"s_add_u32 s{t}, s{t}, s{S_W}", f"s_lshl_b32 s{t}, s{t}, 7",
          f"v_and_b32 v{junk}, 3, v{V_L}", f"v_lshlrev_b32 v{junk}, 14, v{junk}", f"v_add_u32 v{junk}, s{t}, v{junk}",
          f"v_min_u32 v{junk}, {hi} - {lo} - 4, v{junk}",
          [f"v_add_co_u32 v{va}, vcc, v{va}, v{junk}", "s_nop 1", f"v_addc_co_u32 v{va+1}, vcc, 0, v{va+1}, vcc"]]
    return su, [f"global_load_dword v{junk}, v[{va}:{va+1}], off"]


SJ = os.environ.get('SJ', 'pt')
CT = os.environ.get("CT", "abcef")


def touches(typ):
    H = Seg()
    H(f"v_lshlrev_b32 v74, 7, v{V_L}")
    H(f"s_getpc_b64 s[4:5]\nL_pc{typ}:\ns_lshr_b32 s98, s2, 3\ns_lshl_b32 s98, s98, 2\ns_add_u32 s98, s98, s{S_W}\ns_lshl_b32 s98, s98, 10")
    H(f"v_and_b32 v75, 0x380, v74\nv_add_u32 v75, s98, v75\nv_min_u32 v75, L_code_end - L_pc{typ} - 4, v75")
    H("v_mov_b32 v77, s5\nv_add_co_u32 v76, vcc, s4, v75\nv_addc_co_u32 v77, vcc, 0, v77, vcc")
    H(f"global_load_dword v{V_PF}, v[76:77], off")
    out, items = [], groupify([i.text for i in H])
    for x in items:
        if isinstance(x, str) and (x.endswith(":") or x.startswith("v_addc_co")):
            out[-1] = flat([out[-1]]) + (["s_nop 1"] if x.startswith("v_addc") else []) + [x]
        else:
            out.append(x)
    return out


PRO = int(os.environ.get('PRO', '1'))


P0S = int(os.environ.get('P0S', '1'))


def start(st):
    H = Seg()
    H(kernel_header(NAME))
    if DIAG:
        H("s_memtime s[98:99]\ns_memrealtime s[100:101]")
    H(f"s_cmp_ge_u32 s2, 256\ns_cbranch_scc1 L_end")
    H(f"s_load_dwordx8 {sr(f1.P_C,8)}, s[0:1], {KA_C}")
    H(f"s_load_dwordx4 {sr(f1.P_DBG,4)}, s[0:1], {KA_DBG}")
    H(f"v_lshrrev_b32 v2, 6, v0\nv_and_b32 v{V_L}, 63, v0\nv_lshlrev_b32 v3, 4, v0")
    H(f"v_readfirstlane_b32 s{S_W}, v2")
    if "e" in CT:
        su, ld = code_touch("e", "L_p1_K", "L_p3_begin", 76, 4, 79)
        H.add(flat(su) + ld)
    f1.setup(H)
    if DIAG:
        H("v_writelane_b32 v0, s98, 60\nv_writelane_b32 v0, s100, 61")
    st(H)
    H.add(f1.dma_w(0) + f1.dma_c(0))
    H(f"s_mov_b64 {sr(f1.S_WS,2)}, {sr(f1.P_DBG+2,2)}\ns_mov_b64 s[34:35], {sr(f1.P_C+2,2)}")
    H.add(f2.ptr_loads()[:1] + f1.P0().ptr_loads())
    srd(H, 4, f1.S_WS, 8192, off=WS_FLAG)
    H("s_lshl_b32 s43, s2, 20\nv_add_u32 v3, s43, v3")
    H("v_mov_b32 v4, 0\nv_mov_b32 v5, 0\nv_mov_b32 v6, 0\nv_mov_b32 v7, 0")
    H("s_movk_i32 s43, 4096\nbuffer_store_dwordx4 v[4:7], v3, s[4:7], 0 offen sc1 #clr")
    H("buffer_store_dwordx4 v[4:7], v3, s[4:7], s43 offen sc1 #clr\nv_lshlrev_b32 v79, 16, v3")
    f1.setup2(H)
    if PRO >= 1:
        H.add(f1.dma_w(1))
    if PRO == 2:
        H.add(f1.dma_c(1))
    if PRO == 3:
        H.add(f1.dma_c(1)[:5])
    H(f"s_mov_b32 s{f1.P_DBG+2}, 256\ns_mov_b32 s{f1.P_DBG+3}, 0x20000")
    H(f"v_mov_b32 v78, 1")
    H(f"s_cmp_lg_u32 s2, 0\ns_cselect_b32 s43, 0x10000000, 0\nv_or_b32 v79, s43, v79")
    H("@vmwait c0 w0 clr\ns_barrier")
    if os.environ.get("DIAG") == "2":
        st(H)
    H(f"buffer_store_dword v78, v79, {sr(f1.P_DBG,4)}, 0 offen sc1")
    for rt in range(8):
        H(f1.rd_c(0, 0, rt))
    for ct in range(8):
        H.add(f1.rd_w(0, 0, ct))
    H(f"s_cmp_eq_u32 s{f1.S_TYPE}, 0\ns_cbranch_scc0 L_p1_V")
    return H


FINE = os.environ.get('DIAG') == '2'


def p1(typ, st):
    B = Seg()
    n0 = st.n
    B(f"L_p1_{typ}:")
    p0 = f1.P0()
    NL = int(os.environ.get("NL", "3"))
    ld = chunks(p0.loads(), NL)
    cp = chunks(groupify(p0.compute()), 4)
    if "nop0" in EXP:
        ld, cp = [[]] * NL, [[]] * 4
    su = chunks(groupify(f2.setup()), 2)
    vm = {(0, 0): (f1.dma_w(1) + f1.dma_c(1), f1.dma_c(1), f1.dma_c(2), f1.dma_c(1)[5:])[PRO], (6, 0): f2.dma_x(0), (6, 1): f2.dma_q(0) + f2.dma_q(1), (7, 0): f2.dma_x(1)}
    for n in range(6):
        vm[(n, 1)] = f1.dma_w(n + 2)
    for n in range(1, 6):
        vm[(n, 0)] = f1.dma_c(n + 2)
    fill = {(0, 0): touches(typ) if 'e' not in CT else [], (0, 1): p0.ptr_loads(), (1, 0): touch_wq_setup(),
            (1, 1): p0.setup(), (2, 0): [], (2, 1): su[0], (3, 0): [], (3, 1): su[1] + f2.ptr_loads()[2:], (4, 0): [],
            (5, 0): [], (7, 0): cp[3] + [f"v_lshlrev_b32 v{f1.V_ST}, 4, v{V_L}"]}
    if P0S:
        fill[(0, 0)], fill[(0, 1)], fill[(1, 1)] = p0.setup(), [], fill[(1, 0)]
        fill[(1, 0)] = []
    LP = os.environ.get("LP", "10,20,30,40").split(",")
    for x, c in zip(LP, chunks(flat(ld), len(LP))):
        fill[(int(x[0]), int(x[1]))] = fill.get((int(x[0]), int(x[1])), []) + c
    NT_ = int(os.environ.get("NTW", "1"))
    T0 = int(os.environ.get("TW0", "5"))
    TWK = int(os.environ.get("TWK", "1"))
    fill[(5, 1)], fill[(6, 0)], fill[(6, 1)] = cp[:3]
    CP = os.environ.get("CP", "41,51,60,61,70")
    if CP:
        allc = groupify(p0.compute())
        g = next(k for k, x in enumerate(allc) if not isinstance(x, str) and "buffer_store_dword " in x[-1]) + 1
        pos = [(int(x[0]), int(x[1])) for x in CP.split(",")]
        for x in ((5, 1), (6, 0), (6, 1)):
            fill[x] = []
        fill[(7, 0)] = fill[(7, 0)][-1:]
        fill[pos[0]] = fill.get(pos[0], []) + allc[:g]
        for x, c in zip(pos[1:], chunks(allc[g:], len(pos) - 1)):
            fill[x] = c + fill.get(x, [])
    TS_ = os.environ.get("TWS", "41,50,51,60")
    if TS_:
        pos = [(int(x[0]), int(x[1])) for x in TS_.split(",")]
        for k, x in enumerate(pos):
            fill[x] = touch_wq(k, len(pos)) + fill.get(x, [])
    else:
        fill[(T0, TWK)] = touch_wq(0, 1) + fill.get((T0, TWK), [])
    if "f" in CT:
        su2, ld2 = code_touch("f" + typ, "L_p2", "L_p3_begin", 66, 82, 68)
        fill[(4, 1)] = fill.get((4, 1), []) + su2 + ld2
    for n in range(8):
        for kk in range(2):
            B.add(f1.kstep(typ, n, kk, vm.get((n, kk)), fill.get((n, kk)),
                           f2.p1_last_hook if (n, kk) == (7, 1) else None,
                           **(dict(bar=int(os.environ.get('BAR0', '30')), vm_pre=f1.dma_c(2) if PRO != 2 else None) if (n, kk) == (0, 1) else {})))
            if FINE and kk == 1 and n < 7:
                st(B)
    if typ == "K":
        st.n = n0
    if typ == "K":
        B("s_branch L_p2")
    return B


PACK_EARLY = os.environ.get('PACKE', '0') == '1'


def p2(st):
    B = Seg()
    B("L_p2:")
    NE = int(os.environ.get('NE', '20'))
    ep = chunks(f1.epilogue_items(), NE)
    fill = {k: list(ep[k]) for k in range(NE)}
    S = Seg()
    srd(S, SRD_F, 40, 8192, off=WS_FLAG)
    srd(S, SRD_DBG, 38, 256)
    fill[0] = groupify([i.text for i in S]) + fill[0]
    go_ld = f"buffer_load_dword v254, off, {sr(SRD_DBG,4)}, 0 sc1"
    fill[14] = fill[14] + [go_ld]
    for k in range(NE, 32):
        fill[k] = []
    T, t = 230, 36
    fill[20] = sig_off(255, t)
    fill[21] = f2.setup3(T)
    after = {11: poll("go", go_ld, 254, t) + signal(f1.F_1, 255, 254, t) + f3.p4_ptr_loads() +
             [f"s_load_dwordx2 s[82:83], s[0:1], {KA_WO}"]}
    S = Seg()
    f3.rb_cb(S, t, t + 1, 43)
    S(f"v_and_b32 v{T}, 15, v{V_L}")
    S(f"s_lshl_b32 s{t}, s{t}, 4\nv_add_u32 v{T+1}, s{t}, v{T}")
    S(f"s_lshr_b32 s{t}, s2, 4\nv_lshl_add_u32 v{T+2}, v{T}, 4, s{t}")
    S(f"v_and_b32 v{T+3}, 7, v{V_L}\nv_bfe_u32 v{T+4}, v{V_L}, 3, 1\nv_lshlrev_b32 v{T+3}, 3, v{T+3}")
    S(f"v_lshl_add_u32 v{T+3}, v{T+4}, 7, v{T+3}")
    S(f"s_bfe_u32 s{t}, s{f2.S_HEAD}, 0x10001\ns_lshl_b32 s{t}, s{t}, 6\ns_lshr_b32 s{t+1}, s{f2.S_HEAD}, 2\ns_add_u32 s{t}, s{t}, s{t+1}")
    S(f"v_add_u32 v{T+3}, s{t}, v{T+3}")
    S(f"v_lshrrev_b32 v{T+4}, 4, v{V_L}")
    items = groupify([i.text for i in S])
    items.append([f"v_cmp_eq_u32 vcc, 1, v{T+4}", "s_nop 1", f"v_cndmask_b32 v{T+3}, v{T+3}, v{T+2}, vcc"])
    items.append([f"v_cmp_eq_u32 vcc, 2, v{T+4}", "s_nop 1", f"v_cndmask_b32 v{T+3}, v{T+3}, v{T+1}, vcc"])
    items.append(f"v_lshlrev_b32 v{T+3}, 2, v{T+3}")
    fill[24] = fill[24] + items
    fill[26] = fill[26] + f3.p4_srds()
    if "a" in CT:
        su, ld = code_touch("a", "L_p3_begin", "L_p3_s1m_top", 228, 38, 238)
        fill[22] = su + ld
    f1_ld = f"buffer_load_dword v238, v{T+3}, {sr(SRD_F,4)}, 0 offen offset:{f1.F_1} sc1"
    pk = f3.pack_dma(T + 10) if PACK_EARLY else []
    if "p" in SJ:
        fill[28] = f3.xb_prefill(T + 14, f2.V_DO)
    fill[30] = [f1_ld] + f3.pack_srd()
    if PACK_EARLY:
        fill[27] = f3.pack_srd()
        after[14] = [f1_ld]
        fill[29], fill[30] = [], pk
    fill[31] = f2.kv_dma("K", 0, 1) + f2.kv_dma("K", 1, 2)
    if "t" in SJ:
        h = f3.p4_h_loads()
        fill[27], fill[28] = h[:3] + fill.get(27, []), h[3:] + fill[28]
    for n in range(16):
        for kk in range(2):
            ab = after.get(n) if kk == 1 else None
            seg = f2.kstep2(n, kk, fill.get(2 * n + kk), ab, poll("f1", f1_ld, 238, t) if (n, kk) == (15, 1) else ())
            if n == 11 and kk == 1:
                for i in seg:
                    if i.kind == "gwait":
                        i.groups.append("kvst")
            B.add(seg)
            if FINE and kk == 1 and n in (3, 7, 9, 10, 11, 12, 13, 14):
                st(B)
    if FINE:
        st(B)
    B("L_p3_begin:")
    return B


NPRE = int(os.environ.get('NPRE', '6'))


def p45(st):
    B = Seg()
    t, VP, VO, VS = 36, f3.V_PL, 254, 255
    S = Seg()
    VO2 = f3.V_GV
    S(f"s_lshr_b32 s{t}, s{f3.S_CB}, 1\ns_lshl_b32 s{t+1}, s{f3.S_KH}, 7\ns_add_u32 s{t}, s{t}, s{t+1}")
    S(f"v_lshl_add_u32 v{VO}, v{V_L}, 3, s{t}\ns_xor_b32 s{t}, s2, 4\nv_mov_b32 v{VP}, s{t}")
    w_off = [i.text for i in S] + [[f"v_cmp_lt_u32 vcc, 15, v{V_L}", "s_nop 1", f"v_cndmask_b32 v{VO}, v{VO}, v{VP}, vcc"],
                                   f"v_lshlrev_b32 v{VO}, 2, v{VO}"]
    w_ld = f"buffer_load_dword v{VP}, v{VO}, {sr(SRD_F,4)}, 0 offen offset:{f1.F_2S} sc1"
    S = Seg()
    S(f"s_sub_u32 s{t}, 15, s{f3.S_RB}\ns_min_u32 s{t}, s{t}, s{f3.S_RB}")
    if f2.M84:
        S(f"s_lshr_b32 s{t+1}, s{t}, 1\ns_xor_b32 s{t}, s{t}, s{t+1}\ns_and_b32 s{t}, s{t}, 1\ns_lshl_b32 s{t+1}, s{t+1}, 6")
        S(f"s_add_u32 s{t}, s{t}, s{t+1}")
    else:
        S(f"s_lshl_b32 s{t}, s{t}, 5")
    S(f"s_lshl_b32 s{t+1}, s{f3.S_KH}, 2\ns_add_u32 s{t}, s{t}, s{t+1}\ns_add_u32 s{t}, s{t}, {f1.F_2L // 4}")
    TE = f3.V_TE
    S(f"v_bfe_u32 v{TE}, v{V_L}, 4, 1\nv_lshl_add_u32 v{TE}, s{S_W}, 1, v{TE}\nv_sub_u32 v{TE+1}, 7, v{TE}")
    S(f"v_min_u32 v{TE}, v{TE}, v{TE+1}\nv_lshl_add_u32 v{TE+1}, v{TE}, 8, s{t}")
    if f2.M84:
        S(f"v_and_b32 v{VO2}, 7, v{V_L}\nv_lshlrev_b32 v{VO2}, 3, v{VO2}\nv_bfe_u32 v{TE}, v{V_L}, 3, 1\nv_lshlrev_b32 v{TE}, 1, v{TE}")
    else:
        S(f"v_and_b32 v{VO2}, 3, v{V_L}\nv_lshlrev_b32 v{VO2}, 3, v{VO2}\nv_bfe_u32 v{TE}, v{V_L}, 2, 2")
    S(f"v_add3_u32 v{VO2}, v{VO2}, v{TE}, v{TE+1}\nv_lshlrev_b32 v{VO2}, 2, v{VO2}")
    c_off = [i.text for i in S]
    c_ld = f"buffer_load_dword v{VP}, v{VO2}, {sr(SRD_F,4)}, 0 offen sc1"
    su = f3.p5_setup()
    B(f"v_lshlrev_b32 v{VS}, 20, v{V_L}\nv_mov_b32 v{VP}, 1\ns_lshl_b32 s83, s{S_W}, 8\ns_add_u32 s83, s83, s2")
    B(f"s_lshl_b32 s83, s83, 2\ns_add_u32 s83, s83, {f1.F_2L}")
    SIG = int(os.environ.get("SIGAT", "1"))
    sig = ["@vmwait ctx0", f"buffer_store_dword v{VP}, v{VS}, {sr(SRD_F,4)}, s83 offen sc1"]
    da, ya = f3.p4_late_setup()
    fl = {0: su[:len(su) // 3], 1: su[len(su) // 3:] + w_off + [w_ld], 2: c_off, 3: sig_off(VS, t), 4: ya}
    WPRE = 3
    vm = {3: f3.wo_stage(0) + f3.wo_stage(1), 4: f3.wo_stage(2)}
    EP = os.environ.get("EPOLL", "1") == "1"
    for rho in range(NPRE):
        head = sig if rho == SIG else poll("w", w_ld, VP, t) if rho == 3 else []
        if EP and rho == NPRE - 1:
            head = head + [c_ld]
        B.add(f3.p4_rho(rho, head=head, fill=fl.get(rho, []), vm=vm.get(rho, []), first=da if rho == 0 else ()))
    if not EP:
        B(c_ld)
    st(B)
    B.add(poll("f2", c_ld, VP, t))
    st(B)
    R, PRE = f3.RING, int(os.environ.get("PRE", "4"))
    ramp = []
    for n in range(R):
        if WPRE <= n < R - 1:
            ramp.append(("w", n, f3.wo_stage(n)))
        ramp.append(("c", n, f3.ctx_stage(n)))
    early = [x for x in ramp if x[1] < PRE and not (x[0] == "w" and x[1] >= 4)]
    late = [x for x in ramp if x not in early]
    NMRG = int(os.environ.get("NMRG", "1"))
    ev = chunks(flat([x[2] for x in early[1:]]), 8 - NMRG - NPRE)
    conv = []
    for rho in range(8 - NMRG, 8):
        conv += list(zip(chunks(f3.p4_mfmas(rho), 3), chunks(f3.p4_reads(rho + 1) if rho < 7 else [], 2) + [[]]))
    Y0 = (len(conv) + 1) // 2
    conv += [([], [])] * 2
    for rho in range(NPRE, 8 - NMRG):
        B.add(f3.p4_rho(rho, head=early[0][2] if rho == NPRE else [], vm=ev[rho - NPRE]))
    B("@vmwait o0 lgkm\ns_barrier")
    for ct in range(8):
        B(f3.rd_wo(0, 0, ct))
    st(B)
    f3_ld = f"buffer_load_dword v{VP}, v{VO}, {sr(SRD_F,4)}, 0 offen offset:{f1.F_3} sc1"
    f3_off = [f"v_and_b32 v{VO}, 15, v{V_L}", f"s_lshl_b32 s{t}, s{f3.S_CB}, 4", f"v_add_u32 v{VO}, s{t}, v{VO}",
              f"v_lshlrev_b32 v{VO}, 2, v{VO}"]
    yw = chunks(f3.p4_y_write(), 5) + [f3.p4_y_read()]
    yl = f3.y_loads()
    pre = chunks(f3.ep_pre(), 6)
    assert Y0 == 2 and f3.NTAIL == 3
    C = Seg()
    LOOP = Seg()
    x1, x2 = Seg(), Seg()
    x1("L_p5_x1:")
    x1.add(signal(f1.F_3, VS, VP, t) + f3_off)
    x1("s_branch L_p5_loop")
    x2("L_p5_x2:")
    x2(f3_ld + "\ns_branch L_p5_loop")
    ool.extend([x1, x2])
    for u in range(32 - f3.NTAIL):
        fl = [None] * 2
        if Y0 <= u < Y0 + 3:
            fl = yw[2 * (u - Y0):2 * (u - Y0) + 2]
        if u == Y0 + 3:
            fl = chunks(f3.p4_y_store(), 2)
        if 22 <= u < 25:
            y3 = chunks(yl, 6)
            fl = [flat(x) for x in y3[2 * (u - 22):2 * (u - 21)]]
            if u == 22:
                fl[0] = [poll("f3", f3_ld, VP, t)] + fl[0]
        if 26 <= u < 29:
            fl = pre[2 * (u - 26):2 * (u - 25)]
        if 10 <= u < 22:
            continue
        sg = f3.stage(u, fill=fl, head0=flat([x[2] for x in late]) if u == 0 else (),
                      conv=conv[2 * u:2 * u + 2] if u < Y0 else None)
        (B if u < 6 else LOOP if u < 10 else C).add(sg)
    B(f"s_mov_b32 s71, 3\n.p2align 5\nL_p5_loop:")
    LOOP("s_sub_u32 s71, s71, 1\ns_cbranch_scc1 L_p5_out\ns_cmp_eq_u32 s71, 2\ns_cbranch_scc1 L_p5_x1")
    LOOP("s_cmp_eq_u32 s71, 0\ns_cbranch_scc1 L_p5_x2\ns_branch L_p5_loop\nL_p5_out:")
    global P5_TRACE
    P5_TRACE = [B, LOOP, x1, LOOP, LOOP, x2, LOOP, C]
    head, B = [B, LOOP], C
    B.add(f3.tail())
    st(B)
    B.add(f3.xb_recv(SPIN, f3.ep_own()))
    st(B)
    f3.p5_epilogue(B)
    return head + [B]


HEADER = """; Generated by gen/fused.py (hand-written generator: gen/f1.py, f2.py, f3.py, asmlib.py). One persistent launch, one
"""


def build(out):
    st = VStamps()
    H = start(st)
    K, V = p1("K", st), p1("V", st)
    J = Seg()
    P2 = p2(st)
    st(P2)
    ctb = code_touch("b", "L_p3_s1m_top", "L_end", 172, 38, 174) if "b" in CT else ([], [])
    lin, o3, traces = f2.p3(
        "p3", st, [] if PACK_EARLY else f3.pack_dma(f2.V_T + 5),
        f3.early_x_loads(f2.SRD_X, f2.V_T) + sig_off(216, 36) + signal(f1.F_2S, 216, 217, 37)[:2] + flat(ctb[0]) + ctb[1],
        f3.p4_ur_dma(f2.V_T + 5), f3.p5_ptr_loads(), (signal(f1.F_2S, 216, 217, 37)[2:], ctb[1] if 'c' in CT else []),
        groupify(f3.pack_store(f2.V_T + 8, [96, 100, 104, 108, 128, 132, 136, 140], f2.V_DO)) +
        ([] if "p" in SJ else f3.xb_prefill(f2.V_T + 12, f2.V_DO)) + ([] if "h" in SJ or "t" in SJ else f3.p4_h_loads()),
        f3.p4_prep_items(), ["global_load_dword v238, v[228:229], off"] if 'd' in CT else [],
        f3.p4_reads(0))
    P45 = p45(st)
    E = Seg()
    st.dump(E)
    E("L_end:\ns_endpgm")
    Z = Seg()
    Z("L_code_end:\ns_endpgm")
    if DIAG:
        X = Seg()
        st(X)
        P2[1:1] = list(X)
    allseg = [H, K, V, P2] + lin + P45 + [E] + o3 + ool + [Z]
    exp_filter([K, V, P2] + lin + o3 + P45)
    resolve([[H, B, P2] + t + P5_TRACE + [E] for B in (K, V) for t in traces], verbose="-v" in sys.argv)
    resolve([[s] for s in ool if s not in P5_TRACE], verbose=False)
    if "-v" in sys.argv:
        for nm_, sg in (("p1K", [K]), ("p1V", [V]), ("p2", [P2]), ("p45", P45)):
            overflow_report(nm_, sg)
        for k_, b_ in f2.BODIES.items():
            overflow_report(k_, b_.segs + [[I(mfma16('a[0:3]', 'v[0:3]', 'v[0:3]'))]])
    hdr = "; @launch grid=(256,1,1) block=(256,1,1) lds=163840\n" + HEADER + '.amdgcn_target "amdgcn-amd-amdhsa--gfx950"\n.text\n' + MACROS
    open(out, "w").write(hdr + text_of(allseg) + kernel_desc(NAME))


if __name__ == "__main__":
    build(sys.argv[1])
```
